```python
import torch

def _softmax(x, axis=-1):
    return torch.softmax(x, dim=axis)
def _gelu(x):
    return torch.nn.functional.gelu(x, approximate="tanh")
def _silu(x):
    return torch.nn.functional.silu(x)
def _sigmoid(x):
    return torch.sigmoid(x)
def _layernorm(x, axis=-1, eps=1e-5):
    m = x.mean(dim=axis, keepdim=True)
    v = x.var(dim=axis, keepdim=True, unbiased=False)
    return (x - m) / torch.sqrt(v + eps)
def _scatter_add(tgt, idx, src, axis=0):
    return tgt.clone().index_add_(axis, idx, src)
def _segment_sum(src, seg, n):
    out = torch.zeros((n,) + src.shape[1:], dtype=src.dtype)
    return out.index_add_(0, seg, src)
def _pad(x, pw):
    flat = tuple(v for pair in reversed(pw) for v in pair)
    return torch.nn.functional.pad(x, flat)

kernel_name = 'sequential_preLN__mha_block_cached__geglu_ffn__decode'

def setup_inputs():

    _w = (lambda a: (lambda t: t.to(torch.bfloat16) if t.is_floating_point() else t)(torch.as_tensor(a)))
    def _A_setup():
        B, Sq, D = 2, 1, 448
        H, Sk, Dh = 16, 16384, 256
        return {
            "x": _w((lambda *s: torch.randn(*s, dtype=torch.bfloat16) * 0.05)(B, Sq, D)),
            "k_cache": _w((lambda *s: torch.randn(*s, dtype=torch.bfloat16) * 3.2)(B, H, Sk, Dh)),
            "v_cache": _w((lambda *s: torch.randn(*s, dtype=torch.bfloat16) * 0.4)(B, H, Sk, Dh)),
            "wq": _w((lambda *s: torch.randn(*s, dtype=torch.bfloat16) * 3.2)(D, H * Dh) * (D ** -0.5)),
            "wo": _w((lambda *s: torch.randn(*s, dtype=torch.bfloat16) * 0.4)(H * Dh, D) * ((H * Dh) ** -0.5)),
        }
    _A_in = _A_setup()

    def _B_setup():
        B, S, D, F = 2, 1, 448, 1792
        return {
            "x": _w((lambda *s: torch.randn(*s, dtype=torch.bfloat16) * 0.05)(B, S, D)),
            "w_gate": _w((lambda *s: torch.randn(*s, dtype=torch.bfloat16) * 0.05)(D, F)),
            "w_up": _w((lambda *s: torch.randn(*s, dtype=torch.bfloat16) * 0.05)(D, F)),
            "w_down": _w((lambda *s: torch.randn(*s, dtype=torch.bfloat16) * 0.05)(F, D)),
        }
    _B_in = _B_setup()

    return {
        "A_x": _A_in["x"],
        "A_k_cache": _A_in["k_cache"],
        "A_v_cache": _A_in["v_cache"],
        "A_wq": _A_in["wq"],
        "A_wo": _A_in["wo"],
        "B_x": _B_in["x"],
        "B_w_gate": _B_in["w_gate"],
        "B_w_up": _B_in["w_up"],
        "B_w_down": _B_in["w_down"],
    }

def reference(A_x, A_k_cache, A_v_cache, A_wq, A_wo, B_x, B_w_gate, B_w_up, B_w_down):
    def _A_ref(x, k_cache, v_cache, wq, wo):
        B, Sq, D = x.shape
        H, Dh = 16, 256
        q = (lambda x, *d: x.permute(*d))((x @ wq).reshape(B, Sq, H, Dh), 0, 2, 1, 3)
        scores = torch.einsum("bhqd,bhkd->bhqk", q, k_cache) * (Dh ** -0.5)
        p = _softmax(scores, axis=-1)
        o = torch.einsum("bhqk,bhkd->bhqd", p, v_cache)
        return (lambda x, *d: x.permute(*d))(o, 0, 2, 1, 3).reshape(B, Sq, H * Dh) @ wo

    def _B_ref(x, w_gate, w_up, w_down):
        return (_gelu(x @ w_gate) * (x @ w_up)) @ w_down

    x = A_x
    h = x + _A_ref(_layernorm(x, axis=-1), A_k_cache, A_v_cache, A_wq, A_wo)
    h2 = h + _B_ref(_layernorm(h, axis=-1), B_w_gate, B_w_up, B_w_down)
    return h2
```

```python
import sys, json, struct, math

NAME = "sequential_preLN__mha_block_cached__geglu_ffn__decode_kernel"

def f2u(x):
    return struct.unpack("<I", struct.pack("<f", x))[0]

WS_EPOCH = 0x0000
WS_CNT   = 0x1000
WS_Q     = 0x4000
WS_ML    = 0xC000
WS_Y     = 0xD000
WS_ACT   = 0x14000
WS_PART  = 0x20000
WS_TS    = 0x80000
WS_SIZE  = 0x100000

L_Q    = 0
L_ML   = 512
L_XN   = 1024
L_RED  = 4096
L_R2   = 12288
L_WQ   = 16384
L_W    = 32768
L_G    = 49152
L_U    = 56320
L_D    = 32768
LDS_BYTES = 90112

class Gen:
    def __init__(self, **kw):
        self.o = dict(PD=2, static_frac=0.75, rot=262144, ts=False, wpol='', wqpol='', pace=0, nopf=False, kvpol='nt', spin=20000)
        self.o.update(kw)
        self.L = []
        self.q = []
        self.lab = 0

    def e(self, s):
        for line in s.split("\n"):
            self.L.append("    " + line.strip())

    def label(self, s):
        self.L.append(s + ":")

    def newlab(self, p):
        self.lab += 1
        return f".L{p}_{self.lab}"

    def c(self, s):
        self.L.append("    ; " + s)

    def vm(self, s, tag):
        self.e(s)
        self.q.append(tag)

    def vwait(self, tag):
        idx = max(i for i, t in enumerate(self.q) if t == tag)
        n = len(self.q) - 1 - idx
        if n > 63:
            n = 63
        self.e(f"s_waitcnt vmcnt({n})")
        self.q = self.q[len(self.q) - n:] if n > 0 else []

    def ts(self, slot):
        if self.o['ts']:
            self.e(f"s_memrealtime s[{70 + 2 * slot}:{71 + 2 * slot}]")

    def bf16r(self, dst, src):
        self.e(f"v_cvt_pk_bf16_f32 {dst}, {src}, {src}")
        self.e(f"v_and_b32 {dst}, 0xffff0000, {dst}")

    def half_reduce_add(self, v, t):
        e = self.e
        e("s_nop 1")
        e(f"v_add_f32_dpp {v}, {v}, {v} quad_perm:[1,0,3,2] row_mask:0xf bank_mask:0xf")
        e("s_nop 1")
        e(f"v_add_f32_dpp {v}, {v}, {v} quad_perm:[2,3,0,1] row_mask:0xf bank_mask:0xf")
        e("s_nop 1")
        e(f"v_add_f32_dpp {v}, {v}, {v} row_half_mirror row_mask:0xf bank_mask:0xf")
        e("s_nop 1")
        e(f"v_add_f32_dpp {v}, {v}, {v} row_mirror row_mask:0xf bank_mask:0xf")
        e("s_nop 0")
        e(f"v_mov_b32 {t}, {v}")
        e("s_nop 1")
        e(f"v_permlane16_swap_b32 {v}, {t}")
        e("s_nop 1")
        e(f"v_add_f32 {v}, {v}, {t}")

    def layernorm16(self, X, T, valid):
        e = self.e
        s, t, mb, r = f"v{T}", f"v{T+1}", f"v{T+2}", f"v{T+3}"
        e(f"v_add_f32 {s}, v{X}, v{X+1}")
        e(f"v_add_f32 {t}, v{X+2}, v{X+3}")
        for i in range(4, 16, 2):
            e(f"v_add_f32 {s}, {s}, v{X+i}")
            e(f"v_add_f32 {t}, {t}, v{X+i+1}")
        e(f"v_add_f32 {s}, {s}, {t}")
        self.half_reduce_add(s, t)
        e(f"v_mul_f32 {s}, {hex(f2u(1.0/448))}, {s}")
        self.bf16r(mb, s)
        a0, a1, d0, d1 = f"v{T+4}", f"v{T+5}", f"v{T+6}", f"v{T+7}"
        e(f"v_sub_f32 {d0}, v{X}, {s}")
        e(f"v_sub_f32 {d1}, v{X+1}, {s}")
        e(f"v_mul_f32 {a0}, {d0}, {d0}")
        e(f"v_mul_f32 {a1}, {d1}, {d1}")
        for i in range(2, 16, 2):
            e(f"v_sub_f32 {d0}, v{X+i}, {s}")
            e(f"v_sub_f32 {d1}, v{X+i+1}, {s}")
            e(f"v_fmac_f32 {a0}, {d0}, {d0}")
            e(f"v_fmac_f32 {a1}, {d1}, {d1}")
        e(f"v_add_f32 {a0}, {a0}, {a1}")
        e(f"v_cndmask_b32 {a0}, 0, {a0}, {valid}")
        self.half_reduce_add(a0, a1)
        e(f"v_mul_f32 {a0}, {hex(f2u(1.0/448))}, {a0}")
        self.bf16r(a0, a0)
        e(f"v_add_f32 {a0}, {hex(f2u(1e-5))}, {a0}")
        self.bf16r(a0, a0)
        e(f"v_sqrt_f32 {a0}, {a0}")
        e("s_nop 0")
        self.bf16r(a0, a0)
        e(f"v_rcp_f32 {r}, {a0}")
        for i in range(0, 16, 2):
            e(f"v_sub_f32 v{X+i}, v{X+i}, {mb}")
            e(f"v_sub_f32 v{X+i+1}, v{X+i+1}, {mb}")
            e(f"v_cvt_pk_bf16_f32 {d0}, v{X+i}, v{X+i+1}")
            e(f"v_lshlrev_b32 v{X+i}, 16, {d0}")
            e(f"v_and_b32 v{X+i+1}, 0xffff0000, {d0}")
            e(f"v_mul_f32 v{X+i}, v{X+i}, {r}")
            e(f"v_mul_f32 v{X+i+1}, v{X+i+1}, {r}")
            e(f"v_cvt_pk_bf16_f32 v{X+i//2}, v{X+i}, v{X+i+1}")

    def srd(self, r, base, size):
        e = self.e
        e(f"s_mov_b32 s{r}, s{base}")
        e(f"s_mov_b32 s{r+1}, s{base+1}")
        e(f"s_mov_b32 s{r+2}, {size}")
        e(f"s_mov_b32 s{r+3}, 0x20000")

    def ldK(self, kb, g, tag=None):
        for j in range(4):
            r = kb + g * 16 + j * 4
            s = f"buffer_load_dwordx4 v[{r}:{r+3}], v{2+g}, s[28:31], s57 offen offset:{j*128} {self.o['kvpol']}"
            if tag is not None: self.vm(s, tag)
            else: self.e(s)

    def ldV(self, vb, g, tag=None):
        for j in range(4):
            r = vb + g * 16 + j * 4
            s = f"buffer_load_dwordx4 a[{r}:{r+3}], v{2+g}, s[32:35], s57 offen offset:{j*128} {self.o['kvpol']}"
            if tag is not None: self.vm(s, tag)
            else: self.e(s)

    def tile_addr(self):
        self.e("s_lshl_b32 s57, s56, 13")
        self.e("s_add_u32 s57, s57, s61")
        self.e("s_and_b32 s57, s57, 0x7fffff")

    def tile(self, kb, vb, waitK, waitV, reissue, atomic=False, rtag=None):
        e = self.e
        S = [11, 12]; S2 = [13, 14]
        for g in range(2):
            e(f"v_mov_b32 v{S[g]}, 0")
            e(f"v_mov_b32 v{S2[g]}, 0")
        for g in range(2):
            waitK(g)
            for i in range(16):
                acc = S[g] if i % 2 == 0 else S2[g]
                e(f"v_dot2c_f32_bf16 v{acc}, v{kb+g*16+i}, v{32+i}")
            if reissue:
                self.ldK(kb, g, rtag and (rtag + 'K', g))
        if atomic:
            e("v_mov_b32 v24, 1")
            e("s_mov_b64 exec, 1")
            e("buffer_atomic_add v24, v25, s[36:39], 0 offen sc0 sc1")
            e("s_mov_b64 exec, -1")
        else:
            e("s_nop 2")
        e("v_add_f32 v11, v11, v13")
        e("v_add_f32 v12, v12, v14")
        e("s_nop 0")
        for st in ("quad_perm:[1,0,3,2]", "quad_perm:[2,3,0,1]", "row_half_mirror"):
            e(f"v_add_f32_dpp v11, v11, v11 {st} row_mask:0xf bank_mask:0xf")
            e(f"v_add_f32_dpp v12, v12, v12 {st} row_mask:0xf bank_mask:0xf")
            e("s_nop 0")
        e("v_cvt_pk_bf16_f32 v13, v11, v12")
        e("v_lshlrev_b32 v11, 16, v13")
        e("v_and_b32 v12, 0xffff0000, v13")
        e("v_max_f32 v13, v11, v12")
        e("v_cmp_gt_f32 vcc, v13, v8")
        skip = self.newlab("nors")
        e(f"s_cbranch_vccz {skip}")
        e("v_max_f32_dpp v13, v13, v13 row_ror:8 row_mask:0xf bank_mask:0xf")
        e("s_nop 1")
        e("v_max_f32_dpp v13, v13, v13 row_bcast:15 row_mask:0xa bank_mask:0xf")
        e("s_nop 1")
        e("v_max_f32_dpp v13, v13, v13 row_bcast:31 row_mask:0xc bank_mask:0xf")
        e("s_nop 1")
        e("v_readlane_b32 s60, v13, 63")
        e("s_nop 1")
        e("v_subrev_f32 v14, s60, v8")
        e("v_mul_f32 v14, s59, v14")
        e("v_exp_f32 v14, v14")
        e("v_mov_b32 v8, s60")
        e("v_mul_f32 v9, s59, v8")
        e("v_sub_f32 v9, 0, v9")
        e("v_mul_f32 v10, v10, v14")
        for i in range(16):
            e(f"v_mul_f32 v{48+i}, v{48+i}, v14")
        self.label(skip)
        e("v_fma_f32 v11, v11, s59, v9")
        e("v_fma_f32 v12, v12, s59, v9")
        e("v_exp_f32 v11, v11")
        e("v_exp_f32 v12, v12")
        e("s_nop 0")
        e("v_cvt_pk_bf16_f32 v26, v11, v11")
        e("v_cvt_pk_bf16_f32 v27, v12, v12")
        e("v_add_f32 v10, v10, v11")
        for r in range(4):
            e(f"v_and_b32 v{16+r}, v{4+r}, v26")
        for r in range(4):
            e(f"v_and_b32 v{20+r}, v{4+r}, v27")
        e("v_add_f32 v10, v10, v12")
        for g in range(2):
            waitV(g)
            if g == 0: e("s_nop 0")
            A = 16 + 4 * g
            for j in range(4):
                r = vb + g * 16 + j * 4
                e(f"v_mfma_f32_16x16x32_bf16 v[{48+4*j}:{51+4*j}], v[{A}:{A+3}], a[{r}:{r+3}], v[{48+4*j}:{51+4*j}]")
            if reissue:
                self.ldV(vb, g, rtag and (rtag + 'V', g))

    def poll_begin(self):
        self.e(f"s_mov_b32 s62, {self.o['spin']}")

    def build(self):
        o = self.o; e = self.e
        PD = o['PD']
        NT = 1024
        NEX = 8 * 3 * PD
        S = int((NT - NEX) * o['static_frac']) // 32
        DYN0 = NEX + 32 * S
        KA, VA = 64, 0
        self.L.append(f"; @launch grid=(256,1,1) block=(256,1,1) lds={LDS_BYTES}")
        self.L.append('.amdgcn_target "amdgcn-amd-amdhsa--gfx950"')
        self.L.append(".text")
        self.L.append(f".globl {NAME}")
        self.L.append(".p2align 8")
        self.L.append(f".type {NAME},@function")
        self.label(NAME)
        e("s_cmp_ge_u32 s2, 256")
        e("s_cbranch_scc1 .Lend")
        self.ts(0)
        e("s_load_dwordx16 s[4:19], s[0:1], 0")
        e("s_load_dwordx8 s[20:27], s[0:1], 64")
        e("v_and_b32 v1, 63, v0")
        e("v_lshrrev_b32 v2, 6, v0")
        e("s_and_b32 s53, s2, 7")
        e("v_readfirstlane_b32 s52, v2")
        e("s_lshr_b32 s54, s2, 3")
        e(f"s_mov_b32 s59, {hex(f2u(math.log2(math.e) / 16.0))}")
        e(f"s_mul_i32 s61, s54, {o['rot']}")
        e("v_lshrrev_b32 v2, 3, v1")
        e("v_lshlrev_b32 v2, 9, v2")
        e("v_and_b32 v3, 7, v1")
        e("v_lshl_or_b32 v2, v3, 4, v2")
        e("v_add_u32 v3, 4096, v2")
        e("v_and_b32 v13, 1, v1")
        e("v_mov_b32 v14, 0xffff")
        e("v_lshlrev_b32 v13, 4, v13")
        e("v_lshlrev_b32 v14, v13, v14")
        e("v_bfe_u32 v13, v1, 1, 2")
        for r in range(4):
            e(f"v_cmp_eq_u32 vcc, {r}, v13")
            e("s_nop 1")
            e(f"v_cndmask_b32 v{4+r}, 0, v14, vcc")
        e("v_mov_b32 v8, 0xff800000")
        e("v_mov_b32 v9, 0")
        e("v_mov_b32 v10, 0")
        for i in range(16):
            e(f"v_mov_b32 v{48+i}, 0")
        e("s_lshl_b32 s60, s54, 8")
        e(f"s_add_u32 s60, s60, {WS_CNT}")
        e("v_mov_b32 v25, s60")
        e("s_waitcnt lgkmcnt(0)")
        self.ts(9)
        e("s_lshl_b32 s60, s54, 23")
        e("s_add_u32 s28, s6, s60")
        e("s_addc_u32 s29, s7, 0")
        e("s_mov_b32 s30, 0x800000")
        e("s_mov_b32 s31, 0x20000")
        e("s_add_u32 s32, s8, s60")
        e("s_addc_u32 s33, s9, 0")
        e("s_mov_b32 s34, 0x800000")
        e("s_mov_b32 s35, 0x20000")
        self.srd(36, 26, WS_SIZE)
        self.srd(48, 24, 256)
        e("v_and_b32 v13, 31, v1")
        e("v_cmp_gt_u32 s[64:65], 28, v13")
        e("v_lshrrev_b32 v14, 5, v1")
        e("v_mul_u32_u24 v14, 896, v14")
        e("v_lshl_add_u32 v28, v13, 5, v14")
        e("v_lshrrev_b32 v13, 4, v1")
        e("v_lshlrev_b32 v29, 8, v13")
        e("v_bfe_u32 v13, v1, 2, 2")
        e("v_lshl_add_u32 v29, v13, 5, v29")
        e("v_and_b32 v13, 3, v1")
        e("v_lshl_add_u32 v29, v13, 3, v29")
        e("v_and_b32 v13, 1, v1")
        e("v_mul_u32_u24 v30, 896, v13")
        e("v_lshrrev_b32 v13, 4, v1")
        e("v_lshl_add_u32 v30, v13, 4, v30")
        e("s_cmp_lg_u32 s52, 0")
        e("s_cbranch_scc1 .Lw123")

        self.c("wave 0: q slice")
        e("s_setprio 3")
        self.q = []
        self.srd(40, 4, 1792)
        self.srd(44, 10, 3670016)
        e("v_mov_b32 v13, 0x10000")
        e("v_cndmask_b32 v31, v13, v28, s[64:65]")
        e("v_mov_b32 v15, 0")
        self.vm(f"buffer_load_dword v24, v15, s[36:39], 0 offen offset:{WS_EPOCH} sc1", 'E')
        self.vm("buffer_load_dwordx4 v[64:67], v31, s[40:43], 0 offen", 'x')
        self.vm("buffer_load_dwordx4 v[68:71], v31, s[40:43], 0 offen offset:16", 'x')
        e("s_lshl_b32 s60, s53, 5")
        e("s_add_u32 s63, s60, s54")
        e("s_lshl_b32 s60, s63, 5")
        e("v_lshrrev_b32 v13, 1, v1")
        e("v_lshlrev_b32 v13, 13, v13")
        e("v_and_b32 v14, 1, v1")
        e("v_lshl_add_u32 v13, v14, 4, v13")
        e("v_add_u32 v13, s60, v13")
        for ks in range(14):
            e(f"s_mov_b32 m0, {L_WQ + ks * 1024}")
            e(f"s_mov_b32 s60, {ks * 262144}")
            self.vm(f"buffer_load_dwordx4 v13, s[44:47], s60 offen {o['wqpol']} lds", 'wq')
        e("s_and_b32 s60, s63, 15")
        e("s_cmp_lg_u32 s60, 0")
        e("s_cbranch_scc1 .Lnocinit")
        e("s_lshr_b32 s60, s63, 4")
        e("s_lshl_b32 s60, s60, 8")
        e("v_lshlrev_b32 v14, 12, v1")
        e("v_add_u32 v14, s60, v14")
        e("s_mov_b64 exec, 3")
        e(f"v_add_u32 v14, {WS_CNT}, v14")
        e("buffer_store_dword v15, v14, s[36:39], 0 offen sc1")
        e("s_mov_b64 exec, -1")
        self.label(".Lnocinit")
        self.vwait('x')
        self.ts(10)
        e("v_readfirstlane_b32 s55, v24")
        e("s_mul_i32 s55, s55, 0x9e3779b1")
        e("s_add_u32 s55, s55, 0x7f4a7c15")
        for i in range(7, -1, -1):
            e(f"v_and_b32 v{80+2*i+1}, 0xffff0000, v{64+i}")
            e(f"v_lshlrev_b32 v{80+2*i}, 16, v{64+i}")
        self.layernorm16(80, 96, "s[64:65]")
        e("s_mov_b64 exec, s[64:65]")
        e(f"ds_write_b128 v28, v[80:83] offset:{L_XN}")
        e(f"ds_write_b128 v28, v[84:87] offset:{L_XN+16}")
        e("s_mov_b64 exec, -1")
        e("s_waitcnt lgkmcnt(0)")
        for ks in range(14):
            e(f"ds_read_b128 v[{104+4*ks}:{107+4*ks}], v30 offset:{L_XN + ks*64}")
        self.ts(11)
        e("s_waitcnt vmcnt(0)")
        self.ts(12)
        self.q = []
        for ks in range(14):
            e(f"ds_read_b64_tr_b16 v[{160+4*ks}:{161+4*ks}], v29 offset:{L_WQ + ks*1024}")
            e(f"ds_read_b64_tr_b16 v[{162+4*ks}:{163+4*ks}], v29 offset:{L_WQ + ks*1024 + 128}")
            if ks == 6:
                e("s_waitcnt lgkmcnt(6)")
        e("s_waitcnt lgkmcnt(0)")
        for ks in range(14):
            cin = "0" if ks == 0 else "v[64:67]"
            e(f"v_mfma_f32_16x16x32_bf16 v[64:67], v[{104+4*ks}:{107+4*ks}], v[{160+4*ks}:{163+4*ks}], {cin}")
        e("v_and_b32 v13, 1, v1")
        e("v_lshlrev_b32 v14, 14, v13")
        e("v_cmp_eq_u32 vcc, 1, v13")
        e("v_lshrrev_b32 v13, 1, v1")
        e("v_lshl_add_u32 v14, v13, 3, v14")
        e("s_lshl_b32 s60, s63, 6")
        e(f"s_add_u32 s60, s60, {WS_Q}")
        e("v_add_u32 v14, s60, v14")
        e("s_nop 3")
        e("v_mov_b32_dpp v68, v64 quad_perm:[1,0,3,2] row_mask:0xf bank_mask:0xf")
        e("v_mov_b32_dpp v69, v65 quad_perm:[1,0,3,2] row_mask:0xf bank_mask:0xf")
        e("v_cndmask_b32 v70, v64, v69, vcc")
        e("v_cndmask_b32 v71, v68, v65, vcc")
        e("v_cvt_pk_bf16_f32 v72, v70, v71")
        e("v_mov_b32 v73, s55")
        e("s_mov_b64 exec, 0xffff")
        e("buffer_store_dwordx2 v[72:73], v14, s[36:39], 0 offen sc1")
        e("s_mov_b64 exec, -1")
        self.ts(1)
        e("s_lshl_b32 s60, s54, 10")
        e(f"s_add_u32 s60, s60, {WS_Q}")
        e("v_lshlrev_b32 v13, 4, v1")
        self.poll_begin()
        self.label(".Lqpoll")
        e("buffer_load_dwordx4 v[64:67], v13, s[36:39], s60 offen sc1")
        e("s_waitcnt vmcnt(0)")
        e("v_cmp_ne_u32 vcc, s55, v65")
        e("v_cmp_ne_u32 s[66:67], s55, v67")
        e("s_or_b64 vcc, vcc, s[66:67]")
        e("s_cbranch_vccz .Lqok")
        e("s_sleep 2")
        e("s_sub_u32 s62, s62, 1")
        e("s_cmp_lg_u32 s62, 0")
        e("s_cbranch_scc1 .Lqpoll")
        self.label(".Lqok")
        e("v_lshlrev_b32 v13, 3, v1")
        e(f"ds_write2_b32 v13, v64, v66 offset0:{L_Q//4} offset1:{L_Q//4+1}")
        e("s_lshl_b32 s56, s53, 2")
        e(f"s_add_u32 s56, s56, {NEX}")
        self.tile_addr()
        for g in range(2): self.ldK(KA, g)
        for g in range(2): self.ldV(VA, g)
        e("s_waitcnt lgkmcnt(0)")
        e("s_setprio 0")
        self.ts(2)
        e("s_barrier")
        e("v_and_b32 v13, 7, v1")
        e("v_lshlrev_b32 v13, 4, v13")
        for j in range(4):
            e(f"ds_read_b128 v[{32+4*j}:{35+4*j}], v13 offset:{L_Q + j*128}")
        e("s_waitcnt lgkmcnt(0)")
        e(f"s_mov_b32 s58, {S-2}")
        e("s_branch .Lsloop")

        self.label(".Lw123")
        self.q = []
        e("v_mov_b32 v64, -1")
        e("v_mov_b32 v65, -1")
        e("v_mov_b32 v66, -1")
        e("v_mov_b32 v67, -1")
        e("s_cmp_lg_u32 s52, 1")
        e("s_cbranch_scc1 .Lnoreset")
        e("s_lshl_b32 s60, s2, 10")
        e(f"s_add_u32 s60, s60, {WS_PART}")
        e("v_lshlrev_b32 v13, 4, v1")
        e("buffer_store_dwordx4 v[64:67], v13, s[36:39], s60 offen sc1")
        e("s_lshl_b32 s60, s2, 3")
        e(f"s_add_u32 s60, s60, {WS_ML}")
        e("s_mov_b64 exec, 1")
        e("buffer_store_dwordx2 v[64:65], v13, s[36:39], s60 offen sc1")
        e("s_mov_b64 exec, -1")
        e("s_cmp_ge_u32 s54, 28")
        e("s_cbranch_scc1 .Lreset_done")
        e("s_mul_i32 s60, s53, 3584")
        e("s_lshl_b32 s63, s54, 6")
        e("s_add_u32 s60, s60, s63")
        e(f"s_add_u32 s60, s60, {WS_Y}")
        e("v_lshrrev_b32 v13, 2, v1")
        e("v_mul_u32_u24 v13, 1792, v13")
        e("v_and_b32 v14, 3, v1")
        e("v_lshl_add_u32 v13, v14, 4, v13")
        e("s_mov_b64 exec, 0xff")
        e("buffer_store_dwordx4 v[64:67], v13, s[36:39], s60 offen sc1")
        e("s_mul_i32 s60, s53, 28")
        e("s_add_u32 s60, s60, s54")
        e("s_lshl_b32 s60, s60, 4")
        e(f"s_add_u32 s60, s60, {WS_ACT}")
        e("v_mul_u32_u24 v13, 3584, v1")
        e("s_mov_b64 exec, 3")
        e("buffer_store_dwordx4 v[64:67], v13, s[36:39], s60 offen sc1")
        e("s_mov_b64 exec, -1")
        self.label(".Lreset_done")
        self.label(".Lnoreset")
        e("s_lshl_b32 s56, s53, 2")
        e("s_add_u32 s56, s56, s52")
        e(f"s_add_u32 s56, s56, {NEX}")
        self.tile_addr()
        def pace():
            if o['pace']: e(f"s_waitcnt vmcnt({o['pace']})")
        for g in range(2): pace(); self.ldK(KA, g, ('AK', g))
        for g in range(2): pace(); self.ldV(VA, g, ('AV', g))
        if o['nopf']: e("s_branch .Lpf_done")
        e("v_lshrrev_b32 v13, 1, v1")
        e("v_mul_u32_u24 v13, 896, v13")
        e("v_and_b32 v14, 1, v1")
        e("v_lshl_add_u32 v13, v14, 4, v13")
        e("s_cmp_ge_u32 s54, 28")
        e("s_cbranch_scc1 .Lpf_d")
        e("s_cmp_lg_u32 s52, 1")
        e("s_cbranch_scc1 .Lpf_w")
        self.srd(40, 16, 1605632)
        self.srd(44, 18, 1605632)
        e("s_mul_i32 s60, s53, 28")
        e("s_add_u32 s60, s60, s54")
        e("s_lshl_b32 s60, s60, 4")
        e("v_mul_u32_u24 v13, 3584, v1")
        e("v_add_u32 v13, s60, v13")
        for n in range(7):
            e(f"s_mov_b32 s60, {n * 64 * 3584}")
            if n % 2 == 0: pace()
            e(f"s_mov_b32 m0, {L_G + n * 1024}")
            e("s_nop 0")
            e(f"buffer_load_dwordx4 v13, s[40:43], s60 offen {o['wpol']} lds")
            e(f"s_mov_b32 m0, {L_U + n * 1024}")
            e("s_nop 0")
            e(f"buffer_load_dwordx4 v13, s[44:47], s60 offen {o['wpol']} lds")
        e("s_branch .Lpf_done")
        self.label(".Lpf_w")
        self.srd(40, 12, 3670016)
        e("s_lshl_b32 s60, s54, 5")
        e("v_add_u32 v13, s60, v13")
        e("s_sub_u32 s63, s52, 2")
        e("s_lshl_b32 s60, s53, 1")
        e("s_add_u32 s60, s60, s63")
        e(f"s_mul_i32 s60, s60, {256 * 896}")
        e("s_lshl_b32 s63, s63, 13")
        e(f"s_add_u32 s63, s63, {L_W}")
        for n in range(8):
            if n % 4 == 0: pace()
            e("s_mov_b32 m0, s63")
            e("s_add_u32 s63, s63, 1024")
            e(f"buffer_load_dwordx4 v13, s[40:43], s60 offen {o['wpol']} lds")
            e(f"s_add_u32 s60, s60, {32 * 896}")
        e("s_branch .Lpf_done")
        self.label(".Lpf_d")
        e("s_cmp_ge_u32 s53, 7")
        e("s_cbranch_scc1 .Lpf_done")
        self.srd(40, 20, 1605632)
        e("s_lshl_b32 s60, s53, 2")
        e("s_add_u32 s60, s60, s54")
        e("s_sub_u32 s60, s60, 28")
        e("s_lshl_b32 s60, s60, 5")
        e("v_add_u32 v13, s60, v13")
        e("s_sub_u32 s58, s52, 1")
        self.label(".Lpf_dl")
        if o['pace']: e(f"s_waitcnt vmcnt({o['pace']+3})")
        e(f"s_mul_i32 s60, s58, {32 * 896}")
        e("s_lshl_b32 s63, s58, 10")
        e(f"s_add_u32 s63, s63, {L_D}")
        e("s_mov_b32 m0, s63")
        e("s_add_u32 s58, s58, 3")
        e(f"buffer_load_dwordx4 v13, s[40:43], s60 offen {o['wpol']} lds")
        e("s_cmp_lt_u32 s58, 56")
        e("s_cbranch_scc1 .Lpf_dl")
        self.label(".Lpf_done")
        e("s_mov_b32 s63, s56")
        for p in range(PD):
            e("s_mul_i32 s56, s53, 3")
            e("s_add_u32 s56, s56, s52")
            e(f"s_add_u32 s56, s56, {24 * p - 1}")
            self.tile_addr()
            for g in range(2): pace(); self.ldK(96 + 32 * p, g, (f'E{p}K', g))
            for g in range(2): pace(); self.ldV(32 + 32 * p, g, (f'E{p}V', g))
        e("s_mov_b32 s56, s63")
        self.ts(1)
        e("s_barrier")
        self.ts(2)
        e("v_and_b32 v13, 7, v1")
        e("v_lshlrev_b32 v13, 4, v13")
        for j in range(4):
            e(f"ds_read_b128 v[{32+4*j}:{35+4*j}], v13 offset:{L_Q + j*128}")
        e("s_add_u32 s56, s56, 32")
        self.tile_addr()
        e("s_waitcnt lgkmcnt(0)")
        self.tile(KA, VA, lambda g: self.vwait(('AK', g)), lambda g: self.vwait(('AV', g)), True, rtag='A2')
        e("s_cmp_lg_u32 s52, 1")
        e("s_cbranch_scc1 .Lnosig")
        e("v_mov_b32 v24, 1")
        e("v_mov_b32 v13, 0")
        e("s_mov_b64 exec, 1")
        e("buffer_atomic_add v24, v13, s[48:51], 0 offen sc1")
        e("s_mov_b64 exec, -1")
        self.label(".Lnosig")
        for p in range(PD):
            self.tile(96 + 32 * p, 32 + 32 * p, lambda g: self.vwait((f'E{p}K', g)), lambda g: self.vwait((f'E{p}V', g)), False)
        e(f"s_mov_b32 s58, {S-3}")

        self.label(".Lsloop")
        e("s_add_u32 s56, s56, 32")
        self.tile_addr()
        w12 = lambda g: e("s_waitcnt vmcnt(12)")
        w13 = lambda g: e("s_waitcnt vmcnt(13)")
        self.tile(KA, VA, w12, w12, True)
        e("s_sub_u32 s58, s58, 1")
        e("s_cmp_lg_u32 s58, 0")
        e("s_cbranch_scc1 .Lsloop")
        e("s_add_u32 s56, s56, 32")
        self.tile_addr()
        self.tile(KA, VA, w12, w13, True, atomic=True)
        self.label(".Ldloop")
        e("s_waitcnt vmcnt(8)")
        e("v_readfirstlane_b32 s56, v24")
        e(f"s_add_u32 s56, s56, {DYN0}")
        e(f"s_cmp_ge_u32 s56, {NT}")
        e("s_cbranch_scc1 .Llast")
        self.tile_addr()
        self.tile(KA, VA, lambda g: None, w13, True, atomic=True)
        e("s_branch .Ldloop")
        self.label(".Llast")
        e("v_mov_b32 v13, 0")
        e("buffer_load_dword v31, v13, s[48:51], 0 offen sc1")
        self.tile(KA, VA, lambda g: None, lambda g: e(f"s_waitcnt vmcnt({5 - 4 * g})"), False)
        self.ts(3)

        e("v_add_f32_dpp v10, v10, v10 row_ror:8 row_mask:0xf bank_mask:0xf")
        e("s_nop 1")
        e("v_add_f32_dpp v10, v10, v10 row_bcast:15 row_mask:0xa bank_mask:0xf")
        e("s_nop 1")
        e("v_add_f32_dpp v10, v10, v10 row_bcast:31 row_mask:0xc bank_mask:0xf")
        e("v_lshrrev_b32 v13, 5, v1")
        e("v_lshlrev_b32 v13, 10, v13")
        e("v_and_b32 v14, 7, v1")
        e("v_lshl_add_u32 v13, v14, 5, v13")
        e("v_bfe_u32 v14, v1, 4, 1")
        e("v_lshl_add_u32 v13, v14, 4, v13")
        e("s_lshl_b32 s60, s52, 11")
        e("v_add_u32 v13, s60, v13")
        e("s_lshl_b32 s60, s52, 3")
        e("v_mov_b32 v14, s60")
        e("v_mov_b32 v9, v10")
        e("s_mov_b32 exec_lo, 0x00ff00ff")
        e("s_mov_b32 exec_hi, 0xff00ff00")
        for j in range(4):
            e(f"ds_write_b128 v13, v[{48+4*j}:{51+4*j}] offset:{L_RED + j*256}")
        e("s_mov_b32 exec_lo, 0")
        e("s_mov_b32 exec_hi, 0x80000000")
        e(f"ds_write_b64 v14, v[8:9] offset:{L_ML}")
        e("s_mov_b64 exec, -1")
        e("s_waitcnt lgkmcnt(0)")
        e("s_barrier")
        e("v_mov_b32 v14, 0")
        e(f"ds_read_b128 v[64:67], v14 offset:{L_ML}")
        e(f"ds_read_b128 v[68:71], v14 offset:{L_ML+16}")
        e("v_lshlrev_b32 v13, 2, v0")
        for i in range(8):
            e(f"ds_read_b32 v{72+i}, v13 offset:{L_RED + i*1024}")
        e("s_waitcnt lgkmcnt(8)")
        e("v_max3_f32 v80, v64, v66, v68")
        e("v_max_f32 v80, v80, v70")
        for w in range(4):
            e(f"v_sub_f32 v{84+w}, v{64+2*w}, v80")
        for w in range(4):
            e(f"v_mul_f32 v{84+w}, s59, v{84+w}")
        for w in range(4):
            e(f"v_exp_f32 v{84+w}, v{84+w}")
        e("s_nop 0")
        e("v_mul_f32 v81, v65, v84")
        for w in range(1, 4):
            e(f"v_fmac_f32 v81, v{65+2*w}, v{84+w}")
        e("s_waitcnt lgkmcnt(0)")
        for w in range(4):
            e(f"v_add_f32 v{72+2*w}, v{72+2*w}, v{73+2*w}")
        e("v_mul_f32 v82, v72, v84")
        for w in range(1, 4):
            e(f"v_fmac_f32 v82, v{72+2*w}, v{84+w}")
        e("v_min_u32 v82, -2, v82")
        e("v_min_u32 v80, -2, v80")
        e("v_min_u32 v81, -2, v81")
        e("s_lshl_b32 s60, s2, 10")
        e(f"s_add_u32 s60, s60, {WS_PART}")
        e("buffer_store_dword v82, v13, s[36:39], s60 offen sc1")
        e("s_lshl_b32 s60, s2, 3")
        e(f"s_add_u32 s60, s60, {WS_ML}")
        e("v_cmp_eq_u32 vcc, 0, v0")
        e("s_and_b64 exec, exec, vcc")
        e("s_cbranch_execz .Lnoml")
        e("buffer_store_dwordx2 v[80:81], v14, s[36:39], s60 offen sc1")
        self.label(".Lnoml")
        e("s_mov_b64 exec, -1")
        self.ts(4)
        self.poll_begin()
        e("s_waitcnt vmcnt(1)")
        self.label(".Lrd")
        e("v_readfirstlane_b32 s60, v31")
        e("s_cmp_ge_u32 s60, 256")
        e("s_cbranch_scc1 .Lrdok")
        e("s_sleep 4")
        e("buffer_load_dword v31, v14, s[48:51], 0 offen sc1")
        e("s_waitcnt vmcnt(0)")
        e("s_sub_u32 s62, s62, 1")
        e("s_cmp_lg_u32 s62, 0")
        e("s_cbranch_scc1 .Lrd")
        self.label(".Lrdok")
        e("s_cmp_ge_u32 s54, 28")
        e("s_cbranch_scc1 .LstageD")

        self.c("stage W")
        e("s_or_b32 s60, s2, s52")
        e("s_cmp_lg_u32 s60, 0")
        e("s_cbranch_scc1 .Lnoep")
        e("v_mov_b32 v15, s55")
        e("s_mov_b64 exec, 1")
        e(f"buffer_store_dword v15, v14, s[36:39], 0 offen offset:{WS_EPOCH} sc1")
        e("s_mov_b64 exec, -1")
        self.label(".Lnoep")
        e("s_lshl_b32 s60, s52, 12")
        e("v_add_u32 v13, s60, v29")
        for t in range(4):
            e(f"ds_read_b64_tr_b16 v[{128+4*t}:{129+4*t}], v13 offset:{L_W + t*1024}")
            e(f"ds_read_b64_tr_b16 v[{130+4*t}:{131+4*t}], v13 offset:{L_W + t*1024 + 128}")
        e("v_and_b32 v13, 1, v1")
        e("v_lshlrev_b32 v13, 7, v13")
        e("v_bfe_u32 v14, v1, 1, 3")
        e("v_add_u32 v13, v13, v14")
        e("s_lshr_b32 s60, s52, 1")
        e("s_lshl_b32 s63, s53, 1")
        e("s_add_u32 s60, s60, s63")
        e("s_lshl_b32 s60, s60, 3")
        e("v_add_u32 v13, s60, v13")
        e("v_lshlrev_b32 v14, 3, v13")
        e("v_lshlrev_b32 v13, 10, v13")
        e("v_lshrrev_b32 v15, 4, v1")
        e("v_lshl_add_u32 v13, v15, 5, v13")
        e("s_and_b32 s60, s52, 1")
        e("s_lshl_b32 s60, s60, 9")
        e(f"s_add_u32 s60, s60, {WS_PART}")
        e(f"s_mov_b32 s63, {WS_ML}")
        self.poll_begin()
        self.label(".Lwpoll")
        e("buffer_load_dwordx2 v[96:97], v14, s[36:39], s63 offen sc1")
        for t in range(4):
            e(f"buffer_load_dwordx4 v[{64+8*t}:{67+8*t}], v13, s[36:39], s60 offen offset:{t*128} sc1")
            e(f"buffer_load_dwordx4 v[{68+8*t}:{71+8*t}], v13, s[36:39], s60 offen offset:{t*128+16} sc1")
        e("s_waitcnt vmcnt(0)")
        e("v_max_u32 v98, v96, v97")
        e("v_max3_u32 v99, v64, v65, v66")
        for i in range(67, 95, 4):
            e(f"v_max3_u32 v98, v98, v{i}, v{i+1}")
            e(f"v_max3_u32 v99, v99, v{i+2}, v{i+3}")
        e("v_max3_u32 v98, v98, v95, v99")
        e("v_cmp_eq_u32 vcc, -1, v98")
        e("s_and_b64 exec, exec, vcc")
        e("s_cbranch_execz .Lwok")
        e("s_sleep 1")
        e("s_sub_u32 s62, s62, 1")
        e("s_cmp_lg_u32 s62, 0")
        e("s_cbranch_scc1 .Lwpoll")
        self.label(".Lwok")
        e("s_mov_b64 exec, -1")
        self.ts(5)
        e("v_max_f32_dpp v98, v96, v96 row_ror:2 row_mask:0xf bank_mask:0xf")
        e("s_nop 1")
        e("v_max_f32_dpp v98, v98, v98 row_ror:4 row_mask:0xf bank_mask:0xf")
        e("s_nop 1")
        e("v_max_f32_dpp v98, v98, v98 row_ror:8 row_mask:0xf bank_mask:0xf")
        e("v_sub_f32 v98, v96, v98")
        e("v_mul_f32 v98, s59, v98")
        e("v_exp_f32 v98, v98")
        e("s_nop 0")
        e("v_mul_f32 v99, v97, v98")
        e("s_nop 1")
        e("v_add_f32_dpp v99, v99, v99 row_ror:2 row_mask:0xf bank_mask:0xf")
        e("s_nop 1")
        e("v_add_f32_dpp v99, v99, v99 row_ror:4 row_mask:0xf bank_mask:0xf")
        e("s_nop 1")
        e("v_add_f32_dpp v99, v99, v99 row_ror:8 row_mask:0xf bank_mask:0xf")
        e("v_rcp_f32 v99, v99")
        e("s_nop 0")
        e("v_mul_f32 v98, v98, v99")
        for i in range(32):
            e(f"v_mul_f32 v{64+i}, v{64+i}, v98")
        for i in range(16):
            e(f"v_cvt_pk_bf16_f32 v{100+i}, v{64+2*i}, v{65+2*i}")
        e("s_waitcnt lgkmcnt(0)")
        e("s_nop 0")
        for t in range(4):
            cin = "0" if t == 0 else "v[120:123]"
            e(f"v_mfma_f32_16x16x32_bf16 v[120:123], v[{100+4*t}:{103+4*t}], v[{128+4*t}:{131+4*t}], {cin}")
        e("v_and_b32 v13, 15, v1")
        e("v_mul_u32_u24 v13, 80, v13")
        e("v_lshrrev_b32 v14, 4, v1")
        e("v_lshl_add_u32 v13, v14, 2, v13")
        e("s_lshl_b32 s60, s52, 4")
        e("v_add_u32 v13, s60, v13")
        e("s_nop 3")
        e("v_add_f32 v120, v120, v122")
        e("v_add_f32 v121, v121, v123")
        e(f"ds_write_b32 v13, v120 offset:{L_R2}")
        e(f"ds_write_b32 v13, v121 offset:{L_R2 + 16*80}")
        e("s_waitcnt lgkmcnt(0)")
        e("s_barrier")
        e("s_cmp_lg_u32 s52, 3")
        e("s_cbranch_scc1 .LstageG")
        e("v_and_b32 v14, 31, v1")
        e("v_mul_u32_u24 v13, 80, v14")
        for i in range(4):
            e(f"ds_read_b128 v[{64+4*i}:{67+4*i}], v13 offset:{L_R2 + 16*i}")
        e("v_lshrrev_b32 v13, 4, v14")
        e("v_mul_u32_u24 v13, 1792, v13")
        e("v_and_b32 v14, 15, v1")
        e("v_lshl_add_u32 v13, v14, 2, v13")
        e("s_mul_i32 s60, s53, 3584")
        e("s_lshl_b32 s63, s54, 6")
        e("s_add_u32 s60, s60, s63")
        e(f"s_add_u32 s60, s60, {WS_Y}")
        e("s_waitcnt lgkmcnt(0)")
        for i in range(8):
            e(f"v_add_f32 v{64+i}, v{64+i}, v{72+i}")
        for i in range(4):
            e(f"v_add_f32 v{64+i}, v{64+i}, v{68+i}")
        e("v_add_f32 v64, v64, v65")
        e("v_add_f32 v66, v66, v67")
        e("v_add_f32 v64, v64, v66")
        e("v_min_u32 v64, -2, v64")
        e("s_mov_b32 exec_lo, -1\ns_mov_b32 exec_hi, 0")
        e("buffer_store_dword v64, v13, s[36:39], s60 offen sc1")
        e("s_mov_b64 exec, -1")

        self.label(".LstageG")
        self.ts(6)
        e("v_lshlrev_b32 v13, 1, v28")
        e("s_mul_i32 s60, s52, 7168")
        e(f"s_add_u32 s60, s60, {WS_Y}")
        e("s_add_u32 s63, s60, 3584")
        e("s_cmp_lg_u32 s52, 0")
        e("s_cbranch_scc1 .Lg_nopre")
        self.srd(40, 4, 1792)
        e("s_mov_b64 exec, s[64:65]")
        e("buffer_load_dwordx4 v[104:107], v28, s[40:43], 0 offen")
        e("buffer_load_dwordx4 v[108:111], v28, s[40:43], 0 offen offset:16")
        e("s_mov_b64 exec, -1")
        e("v_lshrrev_b32 v14, 4, v1")
        e("v_lshlrev_b32 v14, 7, v14")
        e("v_bfe_u32 v15, v1, 2, 2")
        e("v_lshl_add_u32 v14, v15, 4, v14")
        e("v_and_b32 v15, 1, v1")
        e("v_lshl_add_u32 v14, v15, 3, v14")
        e("v_bfe_u32 v15, v1, 1, 1")
        e(f"v_mul_u32_u24 v15, {L_U - L_G}, v15")
        e("v_add_u32 v14, v14, v15")
        for ks in range(14):
            e(f"ds_read_b64_tr_b16 v[{160+4*ks}:{161+4*ks}], v14 offset:{L_G + ks*512}")
            e(f"ds_read_b64_tr_b16 v[{162+4*ks}:{163+4*ks}], v14 offset:{L_G + ks*512 + 64}")
            if ks == 6:
                e("s_waitcnt lgkmcnt(6)")
        self.label(".Lg_nopre")
        for i in range(32):
            e(f"v_mov_b32 v{64+i}, 0")
        e("s_mov_b64 exec, s[64:65]")
        self.poll_begin()
        self.label(".Lgpoll")
        for i in range(4):
            e(f"buffer_load_dwordx4 v[{64+4*i}:{67+4*i}], v13, s[36:39], s60 offen offset:{16*i} sc1")
        for i in range(4):
            e(f"buffer_load_dwordx4 v[{80+4*i}:{83+4*i}], v13, s[36:39], s63 offen offset:{16*i} sc1")
        e("s_waitcnt vmcnt(0)")
        e("v_max_u32 v98, v64, v65")
        e("v_max_u32 v99, v66, v67")
        for i in range(68, 96, 4):
            e(f"v_max3_u32 v98, v98, v{i}, v{i+1}")
            e(f"v_max3_u32 v99, v99, v{i+2}, v{i+3}")
        e("v_max_u32 v98, v98, v99")
        e("v_cmp_eq_u32 vcc, -1, v98")
        e("s_and_b64 exec, exec, vcc")
        e("s_cbranch_execz .Lgok")
        e("s_sleep 1")
        e("s_sub_u32 s62, s62, 1")
        e("s_cmp_lg_u32 s62, 0")
        e("s_cbranch_scc1 .Lgpoll")
        self.label(".Lgok")
        e("s_mov_b64 exec, -1")
        self.ts(7)
        for i in range(16):
            e(f"v_add_f32 v{64+i}, v{64+i}, v{80+i}")
        e("s_cmp_eq_u32 s52, 0")
        e("s_cbranch_scc1 .Lg_w0")
        e("s_sub_u32 s60, s52, 1")
        e("s_lshl_b32 s60, s60, 12")
        e("v_lshlrev_b32 v13, 4, v1")
        e("v_add_u32 v13, s60, v13")
        for i in range(4):
            e(f"ds_write_b128 v13, v[{64+4*i}:{67+4*i}] offset:{L_WQ + i*1024}")
        e("s_waitcnt lgkmcnt(0)")
        e("s_barrier")
        e("s_branch .Lfin")
        self.label(".Lg_w0")
        e("s_barrier")
        e("v_lshlrev_b32 v13, 4, v1")
        for w in range(3):
            for i in range(4):
                e(f"ds_read_b128 v[{112+16*w+4*i}:{115+16*w+4*i}], v13 offset:{L_WQ + w*4096 + i*1024}")
        for i in range(7, -1, -1):
            e(f"v_and_b32 v{80+2*i+1}, 0xffff0000, v{104+i}")
            e(f"v_lshlrev_b32 v{80+2*i}, 16, v{104+i}")
        for w in range(3):
            e(f"s_waitcnt lgkmcnt({8 - 4*w})")
            for i in range(16):
                e(f"v_add_f32 v{64+i}, v{64+i}, v{112+16*w+i}")
        for i in range(0, 16, 2):
            e(f"v_cvt_pk_bf16_f32 v96, v{64+i}, v{65+i}")
            e(f"v_lshlrev_b32 v{64+i}, 16, v96")
            e(f"v_and_b32 v{65+i}, 0xffff0000, v96")
            e(f"v_add_f32 v{64+i}, v{64+i}, v{80+i}")
            e(f"v_add_f32 v{65+i}, v{65+i}, v{81+i}")
            e(f"v_cvt_pk_bf16_f32 v96, v{64+i}, v{65+i}")
            e(f"v_lshlrev_b32 v{80+i}, 16, v96")
            e(f"v_and_b32 v{81+i}, 0xffff0000, v96")
        for i in range(16):
            e(f"v_cndmask_b32 v{80+i}, 0, v{80+i}, s[64:65]")
        self.layernorm16(80, 96, "s[64:65]")
        e("s_mov_b64 exec, s[64:65]")
        e(f"ds_write_b128 v28, v[80:83] offset:{L_XN}")
        e(f"ds_write_b128 v28, v[84:87] offset:{L_XN+16}")
        e("s_mov_b64 exec, -1")
        e("s_waitcnt lgkmcnt(0)")
        for ks in range(14):
            e(f"ds_read_b128 v[{104+4*ks}:{107+4*ks}], v30 offset:{L_XN + ks*64}")
        for ks in range(14):
            e(f"s_waitcnt lgkmcnt({13-ks})")
            cin = "0" if ks == 0 else "v[64:67]"
            e(f"v_mfma_f32_16x16x32_bf16 v[64:67], v[{104+4*ks}:{107+4*ks}], v[{160+4*ks}:{163+4*ks}], {cin}")
        e("v_and_b32 v13, 8, v1")
        e("v_cmp_ne_u32 vcc, 0, v13")
        e("s_nop 5")
        e("v_mov_b32_dpp v68, v64 row_ror:8 row_mask:0xf bank_mask:0xf")
        e("v_mov_b32_dpp v69, v65 row_ror:8 row_mask:0xf bank_mask:0xf")
        e("v_cndmask_b32 v70, v64, v69, vcc")
        e("v_cndmask_b32 v71, v68, v65, vcc")
        e("v_cvt_pk_bf16_f32 v72, v70, v71")
        e("v_lshlrev_b32 v70, 16, v72")
        e("v_and_b32 v71, 0xffff0000, v72")
        k1 = -2.0 * math.sqrt(2.0 / math.pi) * math.log2(math.e)
        e("v_mul_f32 v73, v70, v70")
        e(f"v_mov_b32 v74, {hex(f2u(k1))}")
        e(f"v_fmamk_f32 v73, v73, {hex(f2u(k1 * 0.044715))}, v74")
        e("v_mul_f32 v73, v73, v70")
        e("v_exp_f32 v73, v73")
        e("s_nop 0")
        e("v_add_f32 v73, 1.0, v73")
        e("v_rcp_f32 v73, v73")
        e("s_nop 0")
        e("v_mul_f32 v73, v73, v70")
        self.bf16r("v73", "v73")
        e("v_mul_f32 v73, v73, v71")
        e("s_nop 1")
        e("v_mov_b32_dpp v74, v73 quad_perm:[1,0,3,2] row_mask:0xf bank_mask:0xf")
        e("v_cvt_pk_bf16_f32 v75, v73, v74")
        e("v_min_u32 v75, -2, v75")
        e("v_bfe_u32 v13, v1, 3, 1")
        e("v_mul_u32_u24 v13, 3584, v13")
        e("v_and_b32 v14, 7, v1")
        e("v_lshl_add_u32 v13, v14, 1, v13")
        e("s_mul_i32 s60, s53, 28")
        e("s_add_u32 s60, s60, s54")
        e("s_lshl_b32 s60, s60, 4")
        e(f"s_add_u32 s60, s60, {WS_ACT}")
        e("s_mov_b64 exec, 0x5555")
        e("buffer_store_dword v75, v13, s[36:39], s60 offen sc1")
        e("s_mov_b64 exec, -1")
        e("s_branch .Lfin")

        self.label(".LstageD")
        e("s_cmp_ge_u32 s53, 7")
        e("s_cbranch_scc1 .Lfin")
        e("s_mul_i32 s60, s52, 14336")
        e("v_add_u32 v13, s60, v29")
        for t in range(14):
            e(f"ds_read_b64_tr_b16 v[{160+4*t}:{161+4*t}], v13 offset:{L_D + t*1024}")
            e(f"ds_read_b64_tr_b16 v[{162+4*t}:{163+4*t}], v13 offset:{L_D + t*1024 + 128}")
            if t == 6:
                e("s_waitcnt lgkmcnt(6)")
        e("s_lshl_b32 s58, s53, 2")
        e("s_add_u32 s58, s58, s54")
        e("s_sub_u32 s58, s58, 28")
        e("s_cmp_lg_u32 s52, 0")
        e("s_cbranch_scc1 .Ld_noh")
        self.srd(40, 4, 1792)
        e("v_bfe_u32 v13, v1, 4, 1")
        e("v_mul_u32_u24 v13, 896, v13")
        e("v_and_b32 v14, 15, v1")
        e("v_lshl_add_u32 v13, v14, 1, v13")
        e("s_lshl_b32 s60, s58, 5")
        e("v_add_u32 v26, s60, v13")
        e("buffer_load_ushort v27, v26, s[40:43], 0 offen")
        e("v_lshlrev_b32 v13, 1, v26")
        e(f"v_add_u32 v13, {WS_Y}, v13")
        e("s_mov_b32 exec_lo, -1\ns_mov_b32 exec_hi, 0")
        self.poll_begin()
        self.label(".Lhpoll")
        for p in range(8):
            e(f"s_mov_b32 s60, {p*3584}")
            e(f"buffer_load_dword v{64+p}, v13, s[36:39], s60 offen sc1")
        e("s_waitcnt vmcnt(0)")
        e("v_max3_u32 v72, v64, v65, v66")
        e("v_max3_u32 v72, v72, v67, v68")
        e("v_max3_u32 v72, v72, v69, v70")
        e("v_max_u32 v72, v72, v71")
        e("v_cmp_eq_u32 vcc, -1, v72")
        e("s_and_b64 exec, exec, vcc")
        e("s_cbranch_execz .Lhok")
        e("s_sleep 4")
        e("s_sub_u32 s62, s62, 1")
        e("s_cmp_lg_u32 s62, 0")
        e("s_cbranch_scc1 .Lhpoll")
        self.label(".Lhok")
        e("s_mov_b64 exec, -1")
        for p in range(4):
            e(f"v_add_f32 v{64+2*p}, v{64+2*p}, v{65+2*p}")
        e("v_add_f32 v64, v64, v66")
        e("v_add_f32 v64, v64, v68")
        e("v_add_f32 v64, v64, v70")
        self.bf16r("v64", "v64")
        e("v_lshlrev_b32 v27, 16, v27")
        e("v_add_f32 v27, v27, v64")
        self.bf16r("v27", "v27")
        self.label(".Ld_noh")
        e("v_and_b32 v13, 1, v1")
        e("v_mul_u32_u24 v13, 3584, v13")
        e("v_lshrrev_b32 v14, 4, v1")
        e("v_lshl_add_u32 v13, v14, 4, v13")
        e("s_mul_i32 s60, s52, 896")
        e(f"s_add_u32 s60, s60, {WS_ACT}")
        for i in range(56):
            e(f"v_mov_b32 v{104+i}, 0")
        e("s_mov_b32 exec_lo, 0x00030003")
        e("s_mov_b32 exec_hi, 0x00030003")
        self.poll_begin()
        self.label(".Ldpoll")
        for t in range(14):
            e(f"buffer_load_dwordx4 v[{104+4*t}:{107+4*t}], v13, s[36:39], s60 offen offset:{t*64} sc1")
        e("s_waitcnt vmcnt(0)")
        e("v_max_u32 v98, v104, v105")
        e("v_max_u32 v99, v106, v107")
        for i in range(108, 160, 4):
            e(f"v_max3_u32 v98, v98, v{i}, v{i+1}")
            e(f"v_max3_u32 v99, v99, v{i+2}, v{i+3}")
        e("v_max_u32 v98, v98, v99")
        e("v_cmp_eq_u32 vcc, -1, v98")
        e("s_and_b64 exec, exec, vcc")
        e("s_cbranch_execz .Ldok")
        e("s_sleep 1")
        e("s_sub_u32 s62, s62, 1")
        e("s_cmp_lg_u32 s62, 0")
        e("s_cbranch_scc1 .Ldpoll")
        self.label(".Ldok")
        e("s_mov_b64 exec, -1")
        self.ts(7)
        e("s_waitcnt lgkmcnt(0)")
        e("s_nop 3")
        for t in range(14):
            cin = "0" if t == 0 else "v[64:67]"
            e(f"v_mfma_f32_16x16x32_bf16 v[64:67], v[{104+4*t}:{107+4*t}], v[{160+4*t}:{163+4*t}], {cin}")
        e("v_lshlrev_b32 v13, 4, v1")
        e("s_lshl_b32 s60, s52, 2")
        e("v_add_u32 v13, s60, v13")
        e("s_nop 6")
        e("s_mov_b64 exec, 0xffff")
        e(f"ds_write_b32 v13, v64 offset:{L_R2}")
        e(f"ds_write_b32 v13, v65 offset:{L_R2 + 256}")
        e("s_mov_b64 exec, -1")
        e("s_waitcnt lgkmcnt(0)")
        e("s_barrier")
        e("s_cmp_lg_u32 s52, 0")
        e("s_cbranch_scc1 .Lfin")
        e("v_and_b32 v13, 31, v1")
        e("v_lshlrev_b32 v13, 4, v13")
        e(f"ds_read_b128 v[64:67], v13 offset:{L_R2}")
        self.srd(44, 22, 1792)
        e("s_waitcnt lgkmcnt(0)")
        e("v_add_f32 v64, v64, v65")
        e("v_add_f32 v66, v66, v67")
        e("v_add_f32 v64, v64, v66")
        self.bf16r("v64", "v64")
        e("v_add_f32 v64, v64, v27")
        e("v_cvt_pk_bf16_f32 v64, v64, v64")
        e("s_mov_b32 exec_lo, -1\ns_mov_b32 exec_hi, 0")
        e("buffer_store_short v64, v26, s[44:47], 0 offen")
        e("s_mov_b64 exec, -1")

        self.label(".Lfin")
        if o['ts']:
            self.ts(8)
            e("s_waitcnt lgkmcnt(0)")
            e("s_lshl_b32 s60, s2, 2")
            e("s_add_u32 s60, s60, s52")
            e("s_lshl_b32 s60, s60, 6")
            e(f"s_add_u32 s60, s60, {WS_TS}")
            e("v_mov_b32 v13, 0")
            e("s_getreg_b32 s63, hwreg(HW_REG_XCC_ID)")
            for i in range(13):
                e(f"v_mov_b32 v{64+i}, s{70+2*i}")
            e("v_mov_b32 v77, s63")
            e("v_mov_b32 v78, s62")
            e("v_mov_b32 v79, s56")
            e("s_mov_b64 exec, 1")
            for i in range(4):
                e(f"buffer_store_dwordx4 v[{64+4*i}:{67+4*i}], v13, s[36:39], s60 offen offset:{16*i}")
        self.label(".Lend")
        e("s_endpgm")
        arch = max(96 + 32 * PD, 216)
        arch = (arch + 3) // 4 * 4
        nacc = 32 + 32 * PD
        self.L.append('.section .rodata,"a"')
        self.L.append(".p2align 6")
        self.L.append(f".amdhsa_kernel {NAME}")
        self.L.append(f"  .amdhsa_next_free_vgpr {arch + nacc}")
        self.L.append("  .amdhsa_next_free_sgpr 100")
        self.L.append(f"  .amdhsa_accum_offset {arch}")
        self.L.append("  .amdhsa_group_segment_fixed_size 0")
        self.L.append("  .amdhsa_kernarg_size 96")
        self.L.append("  .amdhsa_user_sgpr_count 2")
        self.L.append("  .amdhsa_user_sgpr_kernarg_segment_ptr 1")
        self.L.append("  .amdhsa_system_sgpr_workgroup_id_x 1")
        self.L.append("  .amdhsa_float_denorm_mode_32 3")
        self.L.append(".end_amdhsa_kernel")
        return "\n".join(self.L) + "\n"

if __name__ == "__main__":
    out = sys.argv[1]
    kw = json.loads(sys.argv[2]) if len(sys.argv) > 2 else {}
    open(out, "w").write(Gen(**kw).build())
```

```python
import sys, json
sys.path.insert(0,'dev')
from util import *
import gen
a=sys.argv[1:]
for n,j in zip(a[::2],a[1::2]):
    open('dev/'+n,'w').write(gen.Gen(**json.loads(j)).build())
    co,l=build('dev/'+n)
    p=cl.address_register_problem(co, l[0].kernel)
    print(n, "OK" if p is None else p)
```

```python
import sys, json, struct, math

NAME = "sequential_preLN__mha_block_cached__geglu_ffn__decode_kernel"

def f2u(x):
    return struct.unpack("<I", struct.pack("<f", x))[0]

WS_EPOCH = 0x0000
WS_CNT   = 0x1000
WS_Q     = 0x4000
WS_ML    = 0xC000
WS_Y     = 0xD000
WS_ACT   = 0x14000
WS_PART  = 0x20000
WS_TS    = 0x80000
WS_SIZE  = 0x100000

L_Q    = 0
L_ML   = 512
L_XN   = 1024
L_RED  = 4096
L_R2   = 12288
L_WQ   = 16384
L_W    = 32768
L_G    = 49152
L_U    = 56320
L_D    = 32768
LDS_BYTES = 90112

class Gen:
    def __init__(self, **kw):
        self.o = dict(PD=2, static_frac=0.75, rot=262144, ts=False, wpol='', wqpol='', pace=0, nopf=False, kvpol='nt', kpol=None, vpol=None, spin=20000, dbgts=False)
        self.o.update(kw)
        self.L = []
        self.q = []
        self.lab = 0

    def e(self, s):
        for line in s.split("\n"):
            self.L.append("    " + line.strip())

    def label(self, s):
        self.L.append(s + ":")

    def newlab(self, p):
        self.lab += 1
        return f".L{p}_{self.lab}"

    def c(self, s):
        self.L.append("    ; " + s)

    def vm(self, s, tag):
        self.e(s)
        self.q.append(tag)

    def vwait(self, tag):
        idx = max(i for i, t in enumerate(self.q) if t == tag)
        n = len(self.q) - 1 - idx
        if n > 63:
            n = 63
        self.e(f"s_waitcnt vmcnt({n})")
        self.q = self.q[len(self.q) - n:] if n > 0 else []

    def ts(self, slot):
        if self.o['ts']:
            self.e(f"s_memrealtime s[{70 + 2 * slot}:{71 + 2 * slot}]")

    def bf16r(self, dst, src):
        self.e(f"v_cvt_pk_bf16_f32 {dst}, {src}, {src}")
        self.e(f"v_and_b32 {dst}, 0xffff0000, {dst}")

    def half_reduce_add(self, v, t):
        e = self.e
        e("s_nop 1")
        e(f"v_add_f32_dpp {v}, {v}, {v} quad_perm:[1,0,3,2] row_mask:0xf bank_mask:0xf")
        e("s_nop 1")
        e(f"v_add_f32_dpp {v}, {v}, {v} quad_perm:[2,3,0,1] row_mask:0xf bank_mask:0xf")
        e("s_nop 1")
        e(f"v_add_f32_dpp {v}, {v}, {v} row_half_mirror row_mask:0xf bank_mask:0xf")
        e("s_nop 1")
        e(f"v_add_f32_dpp {v}, {v}, {v} row_mirror row_mask:0xf bank_mask:0xf")
        e("s_nop 0")
        e(f"v_mov_b32 {t}, {v}")
        e("s_nop 1")
        e(f"v_permlane16_swap_b32 {v}, {t}")
        e("s_nop 1")
        e(f"v_add_f32 {v}, {v}, {t}")

    def layernorm16(self, X, T, valid):
        e = self.e
        s, t, mb, r = f"v{T}", f"v{T+1}", f"v{T+2}", f"v{T+3}"
        e(f"v_add_f32 {s}, v{X}, v{X+1}")
        e(f"v_add_f32 {t}, v{X+2}, v{X+3}")
        for i in range(4, 16, 2):
            e(f"v_add_f32 {s}, {s}, v{X+i}")
            e(f"v_add_f32 {t}, {t}, v{X+i+1}")
        e(f"v_add_f32 {s}, {s}, {t}")
        self.half_reduce_add(s, t)
        e(f"v_mul_f32 {s}, {hex(f2u(1.0/448))}, {s}")
        self.bf16r(mb, s)
        a0, a1, d0, d1 = f"v{T+4}", f"v{T+5}", f"v{T+6}", f"v{T+7}"
        e(f"v_sub_f32 {d0}, v{X}, {s}")
        e(f"v_sub_f32 {d1}, v{X+1}, {s}")
        e(f"v_mul_f32 {a0}, {d0}, {d0}")
        e(f"v_mul_f32 {a1}, {d1}, {d1}")
        for i in range(2, 16, 2):
            e(f"v_sub_f32 {d0}, v{X+i}, {s}")
            e(f"v_sub_f32 {d1}, v{X+i+1}, {s}")
            e(f"v_fmac_f32 {a0}, {d0}, {d0}")
            e(f"v_fmac_f32 {a1}, {d1}, {d1}")
        e(f"v_add_f32 {a0}, {a0}, {a1}")
        e(f"v_cndmask_b32 {a0}, 0, {a0}, {valid}")
        self.half_reduce_add(a0, a1)
        e(f"v_mul_f32 {a0}, {hex(f2u(1.0/448))}, {a0}")
        self.bf16r(a0, a0)
        e(f"v_add_f32 {a0}, {hex(f2u(1e-5))}, {a0}")
        self.bf16r(a0, a0)
        e(f"v_sqrt_f32 {a0}, {a0}")
        e("s_nop 0")
        self.bf16r(a0, a0)
        e(f"v_rcp_f32 {r}, {a0}")
        for i in range(0, 16, 2):
            e(f"v_sub_f32 v{X+i}, v{X+i}, {mb}")
            e(f"v_sub_f32 v{X+i+1}, v{X+i+1}, {mb}")
            e(f"v_cvt_pk_bf16_f32 {d0}, v{X+i}, v{X+i+1}")
            e(f"v_lshlrev_b32 v{X+i}, 16, {d0}")
            e(f"v_and_b32 v{X+i+1}, 0xffff0000, {d0}")
            e(f"v_mul_f32 v{X+i}, v{X+i}, {r}")
            e(f"v_mul_f32 v{X+i+1}, v{X+i+1}, {r}")
            e(f"v_cvt_pk_bf16_f32 v{X+i//2}, v{X+i}, v{X+i+1}")

    def srd(self, r, base, size):
        e = self.e
        e(f"s_mov_b32 s{r}, s{base}")
        e(f"s_mov_b32 s{r+1}, s{base+1}")
        e(f"s_mov_b32 s{r+2}, {size}")
        e(f"s_mov_b32 s{r+3}, 0x20000")

    def ldK(self, kb, g, tag=None):
        for j in range(4):
            r = kb + g * 16 + j * 4
            s = f"buffer_load_dwordx4 v[{r}:{r+3}], v{2+g}, s[28:31], s57 offen offset:{j*128} {self.o['kvpol'] if self.o['kpol'] is None else self.o['kpol']}"
            if tag is not None: self.vm(s, tag)
            else: self.e(s)

    def ldV(self, vb, g, tag=None):
        for j in range(4):
            r = vb + g * 16 + j * 4
            s = f"buffer_load_dwordx4 a[{r}:{r+3}], v{2+g}, s[32:35], s57 offen offset:{j*128} {self.o['kvpol'] if self.o['vpol'] is None else self.o['vpol']}"
            if tag is not None: self.vm(s, tag)
            else: self.e(s)

    def tile_addr(self):
        self.e("s_lshl_b32 s57, s56, 13")
        self.e("s_add_u32 s57, s57, s61")
        self.e("s_and_b32 s57, s57, 0x7fffff")

    def tile(self, kb, vb, waitK, waitV, reissue, atomic=False, rtag=None):
        e = self.e
        S = [11, 12]; S2 = [13, 14]
        for g in range(2):
            e(f"v_mov_b32 v{S[g]}, 0")
            e(f"v_mov_b32 v{S2[g]}, 0")
        for g in range(2):
            waitK(g)
            for i in range(16):
                acc = S[g] if i % 2 == 0 else S2[g]
                e(f"v_dot2c_f32_bf16 v{acc}, v{kb+g*16+i}, v{32+i}")
            if reissue:
                self.ldK(kb, g, rtag and (rtag + 'K', g))
        if atomic:
            e("v_mov_b32 v24, 1")
            e("s_mov_b64 exec, 1")
            e("buffer_atomic_add v24, v25, s[36:39], 0 offen sc0 sc1")
            e("s_mov_b64 exec, -1")
        else:
            e("s_nop 2")
        e("v_add_f32 v11, v11, v13")
        e("v_add_f32 v12, v12, v14")
        e("s_nop 0")
        for st in ("quad_perm:[1,0,3,2]", "quad_perm:[2,3,0,1]", "row_half_mirror"):
            e(f"v_add_f32_dpp v11, v11, v11 {st} row_mask:0xf bank_mask:0xf")
            e(f"v_add_f32_dpp v12, v12, v12 {st} row_mask:0xf bank_mask:0xf")
            e("s_nop 0")
        e("v_cvt_pk_bf16_f32 v13, v11, v12")
        e("v_lshlrev_b32 v11, 16, v13")
        e("v_and_b32 v12, 0xffff0000, v13")
        e("v_max_f32 v13, v11, v12")
        e("v_cmp_gt_f32 vcc, v13, v8")
        skip = self.newlab("nors")
        e(f"s_cbranch_vccz {skip}")
        e("v_max_f32_dpp v13, v13, v13 row_ror:8 row_mask:0xf bank_mask:0xf")
        e("s_nop 1")
        e("v_max_f32_dpp v13, v13, v13 row_bcast:15 row_mask:0xa bank_mask:0xf")
        e("s_nop 1")
        e("v_max_f32_dpp v13, v13, v13 row_bcast:31 row_mask:0xc bank_mask:0xf")
        e("s_nop 1")
        e("v_readlane_b32 s60, v13, 63")
        e("s_nop 1")
        e("v_subrev_f32 v14, s60, v8")
        e("v_mul_f32 v14, s59, v14")
        e("v_exp_f32 v14, v14")
        e("v_mov_b32 v8, s60")
        e("v_mul_f32 v9, s59, v8")
        e("v_sub_f32 v9, 0, v9")
        e("v_mul_f32 v10, v10, v14")
        for i in range(16):
            e(f"v_mul_f32 v{48+i}, v{48+i}, v14")
        self.label(skip)
        e("v_fma_f32 v11, v11, s59, v9")
        e("v_fma_f32 v12, v12, s59, v9")
        e("v_exp_f32 v11, v11")
        e("v_exp_f32 v12, v12")
        e("s_nop 0")
        e("v_cvt_pk_bf16_f32 v26, v11, v11")
        e("v_cvt_pk_bf16_f32 v27, v12, v12")
        e("v_add_f32 v10, v10, v11")
        for r in range(4):
            e(f"v_and_b32 v{16+r}, v{4+r}, v26")
        for r in range(4):
            e(f"v_and_b32 v{20+r}, v{4+r}, v27")
        e("v_add_f32 v10, v10, v12")
        for g in range(2):
            waitV(g)
            if g == 0: e("s_nop 0")
            A = 16 + 4 * g
            for j in range(4):
                r = vb + g * 16 + j * 4
                e(f"v_mfma_f32_16x16x32_bf16 v[{48+4*j}:{51+4*j}], v[{A}:{A+3}], a[{r}:{r+3}], v[{48+4*j}:{51+4*j}]")
            if reissue:
                self.ldV(vb, g, rtag and (rtag + 'V', g))

    def poll_begin(self):
        self.e(f"s_mov_b32 s62, {self.o['spin']}")

    def build(self):
        o = self.o; e = self.e
        PD = o['PD']
        NT = 1024
        NEX = 8 * 3 * PD
        S = int((NT - NEX) * o['static_frac']) // 32
        DYN0 = NEX + 32 * S
        KA, VA = 64, 0
        self.L.append(f"; @launch grid=(256,1,1) block=(256,1,1) lds={LDS_BYTES}")
        self.L.append('.amdgcn_target "amdgcn-amd-amdhsa--gfx950"')
        self.L.append(".text")
        self.L.append(f".globl {NAME}")
        self.L.append(".p2align 8")
        self.L.append(f".type {NAME},@function")
        self.label(NAME)
        e("s_cmp_ge_u32 s2, 256")
        e("s_cbranch_scc1 .Lend")
        if o['ts']:
            for i in range(72, 96): e(f"s_mov_b32 s{i}, 0")
        self.ts(0)
        e("s_load_dwordx16 s[4:19], s[0:1], 0")
        e("s_load_dwordx8 s[20:27], s[0:1], 64")
        e("v_and_b32 v1, 63, v0")
        e("v_lshrrev_b32 v2, 6, v0")
        e("s_and_b32 s53, s2, 7")
        e("v_readfirstlane_b32 s52, v2")
        e("s_lshr_b32 s54, s2, 3")
        e(f"s_mov_b32 s59, {hex(f2u(math.log2(math.e) / 16.0))}")
        e(f"s_mul_i32 s61, s54, {o['rot']}")
        e("v_lshrrev_b32 v2, 3, v1")
        e("v_lshlrev_b32 v2, 9, v2")
        e("v_and_b32 v3, 7, v1")
        e("v_lshl_or_b32 v2, v3, 4, v2")
        e("v_add_u32 v3, 4096, v2")
        e("v_and_b32 v13, 1, v1")
        e("v_mov_b32 v14, 0xffff")
        e("v_lshlrev_b32 v13, 4, v13")
        e("v_lshlrev_b32 v14, v13, v14")
        e("v_bfe_u32 v13, v1, 1, 2")
        for r in range(4):
            e(f"v_cmp_eq_u32 vcc, {r}, v13")
            e("s_nop 1")
            e(f"v_cndmask_b32 v{4+r}, 0, v14, vcc")
        e("v_mov_b32 v8, 0xff800000")
        e("v_mov_b32 v9, 0")
        e("v_mov_b32 v10, 0")
        for i in range(16):
            e(f"v_mov_b32 v{48+i}, 0")
        e("s_lshl_b32 s60, s54, 8")
        e(f"s_add_u32 s60, s60, {WS_CNT}")
        e("v_mov_b32 v25, s60")
        e("s_waitcnt lgkmcnt(0)")
        self.ts(9)
        e("s_lshl_b32 s60, s54, 23")
        e("s_add_u32 s28, s6, s60")
        e("s_addc_u32 s29, s7, 0")
        e("s_mov_b32 s30, 0x800000")
        e("s_mov_b32 s31, 0x20000")
        e("s_add_u32 s32, s8, s60")
        e("s_addc_u32 s33, s9, 0")
        e("s_mov_b32 s34, 0x800000")
        e("s_mov_b32 s35, 0x20000")
        self.srd(36, 26, WS_SIZE)
        self.srd(48, 24, 256)
        e("v_and_b32 v13, 31, v1")
        e("v_cmp_gt_u32 s[64:65], 28, v13")
        e("v_lshrrev_b32 v14, 5, v1")
        e("v_mul_u32_u24 v14, 896, v14")
        e("v_lshl_add_u32 v28, v13, 5, v14")
        e("v_lshrrev_b32 v13, 4, v1")
        e("v_lshlrev_b32 v29, 8, v13")
        e("v_bfe_u32 v13, v1, 2, 2")
        e("v_lshl_add_u32 v29, v13, 5, v29")
        e("v_and_b32 v13, 3, v1")
        e("v_lshl_add_u32 v29, v13, 3, v29")
        e("v_and_b32 v13, 1, v1")
        e("v_mul_u32_u24 v30, 896, v13")
        e("v_lshrrev_b32 v13, 4, v1")
        e("v_lshl_add_u32 v30, v13, 4, v30")
        e("s_cmp_lg_u32 s52, 0")
        e("s_cbranch_scc1 .Lw123")

        self.c("wave 0: q slice")
        e("s_setprio 3")
        self.q = []
        self.srd(40, 4, 1792)
        self.srd(44, 10, 3670016)
        e("v_mov_b32 v13, 0x10000")
        e("v_cndmask_b32 v31, v13, v28, s[64:65]")
        e("v_mov_b32 v15, 0")
        self.vm(f"buffer_load_dword v24, v15, s[36:39], 0 offen offset:{WS_EPOCH} sc1", 'E')
        self.vm("buffer_load_dwordx4 v[64:67], v31, s[40:43], 0 offen", 'x')
        self.vm("buffer_load_dwordx4 v[68:71], v31, s[40:43], 0 offen offset:16", 'x')
        e("s_lshl_b32 s60, s53, 5")
        e("s_add_u32 s63, s60, s54")
        e("s_lshl_b32 s60, s63, 5")
        e("v_lshrrev_b32 v13, 1, v1")
        e("v_lshlrev_b32 v13, 13, v13")
        e("v_and_b32 v14, 1, v1")
        e("v_lshl_add_u32 v13, v14, 4, v13")
        e("v_add_u32 v13, s60, v13")
        for ks in range(14):
            e(f"s_mov_b32 m0, {L_WQ + ks * 1024}")
            e(f"s_mov_b32 s60, {ks * 262144}")
            self.vm(f"buffer_load_dwordx4 v13, s[44:47], s60 offen {o['wqpol']} lds", 'wq')
        e("s_and_b32 s60, s63, 15")
        e("s_cmp_lg_u32 s60, 0")
        e("s_cbranch_scc1 .Lnocinit")
        e("s_lshr_b32 s60, s63, 4")
        e("s_lshl_b32 s60, s60, 8")
        e("v_lshlrev_b32 v14, 12, v1")
        e("v_add_u32 v14, s60, v14")
        e("s_mov_b64 exec, 3")
        e(f"v_add_u32 v14, {WS_CNT}, v14")
        e("buffer_store_dword v15, v14, s[36:39], 0 offen sc1")
        e("s_mov_b64 exec, -1")
        self.label(".Lnocinit")
        self.vwait('x')
        self.ts(10)
        e("v_readfirstlane_b32 s55, v24")
        e("s_mul_i32 s55, s55, 0x9e3779b1")
        e("s_add_u32 s55, s55, 0x7f4a7c15")
        for i in range(7, -1, -1):
            e(f"v_and_b32 v{80+2*i+1}, 0xffff0000, v{64+i}")
            e(f"v_lshlrev_b32 v{80+2*i}, 16, v{64+i}")
        self.layernorm16(80, 96, "s[64:65]")
        e("s_mov_b64 exec, s[64:65]")
        e(f"ds_write_b128 v28, v[80:83] offset:{L_XN}")
        e(f"ds_write_b128 v28, v[84:87] offset:{L_XN+16}")
        e("s_mov_b64 exec, -1")
        e("s_waitcnt lgkmcnt(0)")
        for ks in range(14):
            e(f"ds_read_b128 v[{104+4*ks}:{107+4*ks}], v30 offset:{L_XN + ks*64}")
        self.ts(11)
        e("s_waitcnt vmcnt(0)")
        self.ts(12)
        self.q = []
        for ks in range(14):
            e(f"ds_read_b64_tr_b16 v[{160+4*ks}:{161+4*ks}], v29 offset:{L_WQ + ks*1024}")
            e(f"ds_read_b64_tr_b16 v[{162+4*ks}:{163+4*ks}], v29 offset:{L_WQ + ks*1024 + 128}")
            if ks == 6:
                e("s_waitcnt lgkmcnt(6)")
        e("s_waitcnt lgkmcnt(0)")
        for ks in range(14):
            cin = "0" if ks == 0 else "v[64:67]"
            e(f"v_mfma_f32_16x16x32_bf16 v[64:67], v[{104+4*ks}:{107+4*ks}], v[{160+4*ks}:{163+4*ks}], {cin}")
        e("v_and_b32 v13, 1, v1")
        e("v_lshlrev_b32 v14, 14, v13")
        e("v_cmp_eq_u32 vcc, 1, v13")
        e("v_lshrrev_b32 v13, 1, v1")
        e("v_lshl_add_u32 v14, v13, 3, v14")
        e("s_lshl_b32 s60, s63, 6")
        e(f"s_add_u32 s60, s60, {WS_Q}")
        e("v_add_u32 v14, s60, v14")
        e("s_nop 3")
        e("v_mov_b32_dpp v68, v64 quad_perm:[1,0,3,2] row_mask:0xf bank_mask:0xf")
        e("v_mov_b32_dpp v69, v65 quad_perm:[1,0,3,2] row_mask:0xf bank_mask:0xf")
        e("v_cndmask_b32 v70, v64, v69, vcc")
        e("v_cndmask_b32 v71, v68, v65, vcc")
        e("v_cvt_pk_bf16_f32 v72, v70, v71")
        e("v_mov_b32 v73, s55")
        e("s_mov_b64 exec, 0xffff")
        e("buffer_store_dwordx2 v[72:73], v14, s[36:39], 0 offen sc1")
        e("s_mov_b64 exec, -1")
        self.ts(1)
        e("s_lshl_b32 s60, s54, 10")
        e(f"s_add_u32 s60, s60, {WS_Q}")
        e("v_lshlrev_b32 v13, 4, v1")
        self.poll_begin()
        self.label(".Lqpoll")
        e("buffer_load_dwordx4 v[64:67], v13, s[36:39], s60 offen sc1")
        e("s_waitcnt vmcnt(0)")
        e("v_cmp_ne_u32 vcc, s55, v65")
        e("v_cmp_ne_u32 s[66:67], s55, v67")
        e("s_or_b64 vcc, vcc, s[66:67]")
        e("s_cbranch_vccz .Lqok")
        e("s_sleep 2")
        e("s_sub_u32 s62, s62, 1")
        e("s_cmp_lg_u32 s62, 0")
        e("s_cbranch_scc1 .Lqpoll")
        self.label(".Lqok")
        e("v_lshlrev_b32 v13, 3, v1")
        e(f"ds_write2_b32 v13, v64, v66 offset0:{L_Q//4} offset1:{L_Q//4+1}")
        e("s_lshl_b32 s56, s53, 2")
        e(f"s_add_u32 s56, s56, {NEX}")
        self.tile_addr()
        for g in range(2): self.ldK(KA, g)
        for g in range(2): self.ldV(VA, g)
        e("s_waitcnt lgkmcnt(0)")
        e("s_setprio 0")
        self.ts(2)
        e("s_barrier")
        e("v_and_b32 v13, 7, v1")
        e("v_lshlrev_b32 v13, 4, v13")
        for j in range(4):
            e(f"ds_read_b128 v[{32+4*j}:{35+4*j}], v13 offset:{L_Q + j*128}")
        e("s_waitcnt lgkmcnt(0)")
        e(f"s_mov_b32 s58, {S-2}")
        e("s_branch .Lsloop")

        self.label(".Lw123")
        self.q = []
        e("v_mov_b32 v64, -1")
        e("v_mov_b32 v65, -1")
        e("v_mov_b32 v66, -1")
        e("v_mov_b32 v67, -1")
        e("s_cmp_lg_u32 s52, 1")
        e("s_cbranch_scc1 .Lnoreset")
        e("s_lshl_b32 s60, s2, 10")
        e(f"s_add_u32 s60, s60, {WS_PART}")
        e("v_lshlrev_b32 v13, 4, v1")
        e("buffer_store_dwordx4 v[64:67], v13, s[36:39], s60 offen sc1")
        e("s_lshl_b32 s60, s2, 3")
        e(f"s_add_u32 s60, s60, {WS_ML}")
        e("s_mov_b64 exec, 1")
        e("buffer_store_dwordx2 v[64:65], v13, s[36:39], s60 offen sc1")
        e("s_mov_b64 exec, -1")
        e("s_cmp_ge_u32 s54, 28")
        e("s_cbranch_scc1 .Lreset_done")
        e("s_mul_i32 s60, s53, 3584")
        e("s_lshl_b32 s63, s54, 6")
        e("s_add_u32 s60, s60, s63")
        e(f"s_add_u32 s60, s60, {WS_Y}")
        e("v_lshrrev_b32 v13, 2, v1")
        e("v_mul_u32_u24 v13, 1792, v13")
        e("v_and_b32 v14, 3, v1")
        e("v_lshl_add_u32 v13, v14, 4, v13")
        e("s_mov_b64 exec, 0xff")
        e("buffer_store_dwordx4 v[64:67], v13, s[36:39], s60 offen sc1")
        e("s_mul_i32 s60, s53, 28")
        e("s_add_u32 s60, s60, s54")
        e("s_lshl_b32 s60, s60, 4")
        e(f"s_add_u32 s60, s60, {WS_ACT}")
        e("v_mul_u32_u24 v13, 3584, v1")
        e("s_mov_b64 exec, 3")
        e("buffer_store_dwordx4 v[64:67], v13, s[36:39], s60 offen sc1")
        e("s_mov_b64 exec, -1")
        self.label(".Lreset_done")
        self.label(".Lnoreset")
        e("s_lshl_b32 s56, s53, 2")
        e("s_add_u32 s56, s56, s52")
        e(f"s_add_u32 s56, s56, {NEX}")
        self.tile_addr()
        def pace():
            if o['pace']: e(f"s_waitcnt vmcnt({o['pace']})")
        for g in range(2): pace(); self.ldK(KA, g, ('AK', g))
        for g in range(2): pace(); self.ldV(VA, g, ('AV', g))
        if o['nopf']: e("s_branch .Lpf_done")
        e("v_lshrrev_b32 v13, 1, v1")
        e("v_mul_u32_u24 v13, 896, v13")
        e("v_and_b32 v14, 1, v1")
        e("v_lshl_add_u32 v13, v14, 4, v13")
        e("s_cmp_ge_u32 s54, 28")
        e("s_cbranch_scc1 .Lpf_d")
        e("s_cmp_lg_u32 s52, 1")
        e("s_cbranch_scc1 .Lpf_w")
        self.srd(40, 16, 1605632)
        self.srd(44, 18, 1605632)
        e("s_mul_i32 s60, s53, 28")
        e("s_add_u32 s60, s60, s54")
        e("s_lshl_b32 s60, s60, 4")
        e("v_mul_u32_u24 v13, 3584, v1")
        e("v_add_u32 v13, s60, v13")
        for n in range(7):
            e(f"s_mov_b32 s60, {n * 64 * 3584}")
            if n % 2 == 0: pace()
            e(f"s_mov_b32 m0, {L_G + n * 1024}")
            e("s_nop 0")
            e(f"buffer_load_dwordx4 v13, s[40:43], s60 offen {o['wpol']} lds")
            e(f"s_mov_b32 m0, {L_U + n * 1024}")
            e("s_nop 0")
            e(f"buffer_load_dwordx4 v13, s[44:47], s60 offen {o['wpol']} lds")
        e("s_branch .Lpf_done")
        self.label(".Lpf_w")
        self.srd(40, 12, 3670016)
        e("s_lshl_b32 s60, s54, 5")
        e("v_add_u32 v13, s60, v13")
        e("s_sub_u32 s63, s52, 2")
        e("s_lshl_b32 s60, s53, 1")
        e("s_add_u32 s60, s60, s63")
        e(f"s_mul_i32 s60, s60, {256 * 896}")
        e("s_lshl_b32 s63, s63, 13")
        e(f"s_add_u32 s63, s63, {L_W}")
        for n in range(8):
            if n % 4 == 0: pace()
            e("s_mov_b32 m0, s63")
            e("s_add_u32 s63, s63, 1024")
            e(f"buffer_load_dwordx4 v13, s[40:43], s60 offen {o['wpol']} lds")
            e(f"s_add_u32 s60, s60, {32 * 896}")
        e("s_branch .Lpf_done")
        self.label(".Lpf_d")
        e("s_cmp_ge_u32 s53, 7")
        e("s_cbranch_scc1 .Lpf_done")
        self.srd(40, 20, 1605632)
        e("s_lshl_b32 s60, s53, 2")
        e("s_add_u32 s60, s60, s54")
        e("s_sub_u32 s60, s60, 28")
        e("s_lshl_b32 s60, s60, 5")
        e("v_add_u32 v13, s60, v13")
        e("s_sub_u32 s58, s52, 1")
        self.label(".Lpf_dl")
        if o['pace']: e(f"s_waitcnt vmcnt({o['pace']+3})")
        e(f"s_mul_i32 s60, s58, {32 * 896}")
        e("s_lshl_b32 s63, s58, 10")
        e(f"s_add_u32 s63, s63, {L_D}")
        e("s_mov_b32 m0, s63")
        e("s_add_u32 s58, s58, 3")
        e(f"buffer_load_dwordx4 v13, s[40:43], s60 offen {o['wpol']} lds")
        e("s_cmp_lt_u32 s58, 56")
        e("s_cbranch_scc1 .Lpf_dl")
        self.label(".Lpf_done")
        e("s_mov_b32 s63, s56")
        for p in range(PD):
            e("s_mul_i32 s56, s53, 3")
            e("s_add_u32 s56, s56, s52")
            e(f"s_add_u32 s56, s56, {24 * p - 1}")
            self.tile_addr()
            for g in range(2): pace(); self.ldK(96 + 32 * p, g, (f'E{p}K', g))
            for g in range(2): pace(); self.ldV(32 + 32 * p, g, (f'E{p}V', g))
        e("s_mov_b32 s56, s63")
        self.ts(1)
        e("s_barrier")
        self.ts(2)
        e("v_and_b32 v13, 7, v1")
        e("v_lshlrev_b32 v13, 4, v13")
        for j in range(4):
            e(f"ds_read_b128 v[{32+4*j}:{35+4*j}], v13 offset:{L_Q + j*128}")
        e("s_add_u32 s56, s56, 32")
        self.tile_addr()
        e("s_waitcnt lgkmcnt(0)")
        self.tile(KA, VA, lambda g: self.vwait(('AK', g)), lambda g: self.vwait(('AV', g)), True, rtag='A2')
        e("s_cmp_lg_u32 s52, 1")
        e("s_cbranch_scc1 .Lnosig")
        e("v_mov_b32 v24, 1")
        e("v_mov_b32 v13, 0")
        e("s_mov_b64 exec, 1")
        e("buffer_atomic_add v24, v13, s[48:51], 0 offen sc1")
        e("s_mov_b64 exec, -1")
        self.label(".Lnosig")
        for p in range(PD):
            self.tile(96 + 32 * p, 32 + 32 * p, lambda g: self.vwait((f'E{p}K', g)), lambda g: self.vwait((f'E{p}V', g)), False)
        e(f"s_mov_b32 s58, {S-3}")

        self.label(".Lsloop")
        e("s_add_u32 s56, s56, 32")
        self.tile_addr()
        w12 = lambda g: e("s_waitcnt vmcnt(12)")
        w13 = lambda g: e("s_waitcnt vmcnt(13)")
        self.tile(KA, VA, w12, w12, True)
        e("s_sub_u32 s58, s58, 1")
        e("s_cmp_lg_u32 s58, 0")
        e("s_cbranch_scc1 .Lsloop")
        e("s_add_u32 s56, s56, 32")
        self.tile_addr()
        self.tile(KA, VA, w12, w13, True, atomic=True)
        self.label(".Ldloop")
        e("s_waitcnt vmcnt(8)")
        e("v_readfirstlane_b32 s56, v24")
        e(f"s_add_u32 s56, s56, {DYN0}")
        e(f"s_cmp_ge_u32 s56, {NT}")
        e("s_cbranch_scc1 .Llast")
        self.tile_addr()
        self.tile(KA, VA, lambda g: None, w13, True, atomic=True)
        e("s_branch .Ldloop")
        self.label(".Llast")
        e("v_mov_b32 v13, 0")
        e("buffer_load_dword v31, v13, s[48:51], 0 offen sc1")
        self.tile(KA, VA, lambda g: None, lambda g: e(f"s_waitcnt vmcnt({5 - 4 * g})"), False)
        self.ts(3)

        e("v_add_f32_dpp v10, v10, v10 row_ror:8 row_mask:0xf bank_mask:0xf")
        e("s_nop 1")
        e("v_add_f32_dpp v10, v10, v10 row_bcast:15 row_mask:0xa bank_mask:0xf")
        e("s_nop 1")
        e("v_add_f32_dpp v10, v10, v10 row_bcast:31 row_mask:0xc bank_mask:0xf")
        e("v_lshrrev_b32 v13, 5, v1")
        e("v_lshlrev_b32 v13, 10, v13")
        e("v_and_b32 v14, 7, v1")
        e("v_lshl_add_u32 v13, v14, 5, v13")
        e("v_bfe_u32 v14, v1, 4, 1")
        e("v_lshl_add_u32 v13, v14, 4, v13")
        e("s_lshl_b32 s60, s52, 11")
        e("v_add_u32 v13, s60, v13")
        e("s_lshl_b32 s60, s52, 3")
        e("v_mov_b32 v14, s60")
        e("v_mov_b32 v9, v10")
        e("s_mov_b32 exec_lo, 0x00ff00ff")
        e("s_mov_b32 exec_hi, 0xff00ff00")
        for j in range(4):
            e(f"ds_write_b128 v13, v[{48+4*j}:{51+4*j}] offset:{L_RED + j*256}")
        e("s_mov_b32 exec_lo, 0")
        e("s_mov_b32 exec_hi, 0x80000000")
        e(f"ds_write_b64 v14, v[8:9] offset:{L_ML}")
        e("s_mov_b64 exec, -1")
        e("s_waitcnt lgkmcnt(0)")
        e("s_barrier")
        e("v_mov_b32 v14, 0")
        e(f"ds_read_b128 v[64:67], v14 offset:{L_ML}")
        e(f"ds_read_b128 v[68:71], v14 offset:{L_ML+16}")
        e("v_lshlrev_b32 v13, 2, v0")
        for i in range(8):
            e(f"ds_read_b32 v{72+i}, v13 offset:{L_RED + i*1024}")
        e("s_waitcnt lgkmcnt(8)")
        e("v_max3_f32 v80, v64, v66, v68")
        e("v_max_f32 v80, v80, v70")
        for w in range(4):
            e(f"v_sub_f32 v{84+w}, v{64+2*w}, v80")
        for w in range(4):
            e(f"v_mul_f32 v{84+w}, s59, v{84+w}")
        for w in range(4):
            e(f"v_exp_f32 v{84+w}, v{84+w}")
        e("s_nop 0")
        e("v_mul_f32 v81, v65, v84")
        for w in range(1, 4):
            e(f"v_fmac_f32 v81, v{65+2*w}, v{84+w}")
        e("s_waitcnt lgkmcnt(0)")
        for w in range(4):
            e(f"v_add_f32 v{72+2*w}, v{72+2*w}, v{73+2*w}")
        e("v_mul_f32 v82, v72, v84")
        for w in range(1, 4):
            e(f"v_fmac_f32 v82, v{72+2*w}, v{84+w}")
        e("v_min_u32 v82, -2, v82")
        e("v_min_u32 v80, -2, v80")
        e("v_min_u32 v81, -2, v81")
        e("s_lshl_b32 s60, s2, 10")
        e(f"s_add_u32 s60, s60, {WS_PART}")
        e("buffer_store_dword v82, v13, s[36:39], s60 offen sc1")
        e("s_lshl_b32 s60, s2, 3")
        e(f"s_add_u32 s60, s60, {WS_ML}")
        e("v_cmp_eq_u32 vcc, 0, v0")
        e("s_and_b64 exec, exec, vcc")
        e("s_cbranch_execz .Lnoml")
        e("buffer_store_dwordx2 v[80:81], v14, s[36:39], s60 offen sc1")
        self.label(".Lnoml")
        e("s_mov_b64 exec, -1")
        self.ts(4)
        self.poll_begin()
        e("s_waitcnt vmcnt(1)")
        self.label(".Lrd")
        e("v_readfirstlane_b32 s60, v31")
        e("s_cmp_ge_u32 s60, 256")
        e("s_cbranch_scc1 .Lrdok")
        e("s_sleep 4")
        e("buffer_load_dword v31, v14, s[48:51], 0 offen sc1")
        e("s_waitcnt vmcnt(0)")
        e("s_sub_u32 s62, s62, 1")
        e("s_cmp_lg_u32 s62, 0")
        e("s_cbranch_scc1 .Lrd")
        self.label(".Lrdok")
        e("s_cmp_ge_u32 s54, 28")
        e("s_cbranch_scc1 .LstageD")

        self.c("stage W")
        e("s_or_b32 s60, s2, s52")
        e("s_cmp_lg_u32 s60, 0")
        e("s_cbranch_scc1 .Lnoep")
        e("v_mov_b32 v15, s55")
        e("s_mov_b64 exec, 1")
        e(f"buffer_store_dword v15, v14, s[36:39], 0 offen offset:{WS_EPOCH} sc1")
        e("s_mov_b64 exec, -1")
        self.label(".Lnoep")
        e("s_lshl_b32 s60, s52, 12")
        e("v_add_u32 v13, s60, v29")
        for t in range(4):
            e(f"ds_read_b64_tr_b16 v[{128+4*t}:{129+4*t}], v13 offset:{L_W + t*1024}")
            e(f"ds_read_b64_tr_b16 v[{130+4*t}:{131+4*t}], v13 offset:{L_W + t*1024 + 128}")
        e("v_and_b32 v13, 1, v1")
        e("v_lshlrev_b32 v13, 7, v13")
        e("v_bfe_u32 v14, v1, 1, 3")
        e("v_add_u32 v13, v13, v14")
        e("s_lshr_b32 s60, s52, 1")
        e("s_lshl_b32 s63, s53, 1")
        e("s_add_u32 s60, s60, s63")
        e("s_lshl_b32 s60, s60, 3")
        e("v_add_u32 v13, s60, v13")
        e("v_lshlrev_b32 v14, 3, v13")
        e("v_lshlrev_b32 v13, 10, v13")
        e("v_lshrrev_b32 v15, 4, v1")
        e("v_lshl_add_u32 v13, v15, 5, v13")
        e("s_and_b32 s60, s52, 1")
        e("s_lshl_b32 s60, s60, 9")
        e(f"s_add_u32 s60, s60, {WS_PART}")
        e(f"s_mov_b32 s63, {WS_ML}")
        self.poll_begin()
        self.label(".Lwpoll")
        e("buffer_load_dwordx2 v[96:97], v14, s[36:39], s63 offen sc1")
        for t in range(4):
            e(f"buffer_load_dwordx4 v[{64+8*t}:{67+8*t}], v13, s[36:39], s60 offen offset:{t*128} sc1")
            e(f"buffer_load_dwordx4 v[{68+8*t}:{71+8*t}], v13, s[36:39], s60 offen offset:{t*128+16} sc1")
        e("s_waitcnt vmcnt(0)")
        e("v_max_u32 v98, v96, v97")
        e("v_max3_u32 v99, v64, v65, v66")
        for i in range(67, 95, 4):
            e(f"v_max3_u32 v98, v98, v{i}, v{i+1}")
            e(f"v_max3_u32 v99, v99, v{i+2}, v{i+3}")
        e("v_max3_u32 v98, v98, v95, v99")
        e("v_cmp_eq_u32 vcc, -1, v98")
        e("s_and_b64 exec, exec, vcc")
        e("s_cbranch_execz .Lwok")
        e("s_sleep 1")
        e("s_sub_u32 s62, s62, 1")
        e("s_cmp_lg_u32 s62, 0")
        e("s_cbranch_scc1 .Lwpoll")
        self.label(".Lwok")
        e("s_mov_b64 exec, -1")
        self.ts(5)
        e("v_max_f32_dpp v98, v96, v96 row_ror:2 row_mask:0xf bank_mask:0xf")
        e("s_nop 1")
        e("v_max_f32_dpp v98, v98, v98 row_ror:4 row_mask:0xf bank_mask:0xf")
        e("s_nop 1")
        e("v_max_f32_dpp v98, v98, v98 row_ror:8 row_mask:0xf bank_mask:0xf")
        e("v_sub_f32 v98, v96, v98")
        e("v_mul_f32 v98, s59, v98")
        e("v_exp_f32 v98, v98")
        e("s_nop 0")
        e("v_mul_f32 v99, v97, v98")
        e("s_nop 1")
        e("v_add_f32_dpp v99, v99, v99 row_ror:2 row_mask:0xf bank_mask:0xf")
        e("s_nop 1")
        e("v_add_f32_dpp v99, v99, v99 row_ror:4 row_mask:0xf bank_mask:0xf")
        e("s_nop 1")
        e("v_add_f32_dpp v99, v99, v99 row_ror:8 row_mask:0xf bank_mask:0xf")
        e("v_rcp_f32 v99, v99")
        e("s_nop 0")
        e("v_mul_f32 v98, v98, v99")
        for i in range(32):
            e(f"v_mul_f32 v{64+i}, v{64+i}, v98")
        for i in range(16):
            e(f"v_cvt_pk_bf16_f32 v{100+i}, v{64+2*i}, v{65+2*i}")
        e("s_waitcnt lgkmcnt(0)")
        e("s_nop 0")
        for t in range(4):
            cin = "0" if t == 0 else "v[120:123]"
            e(f"v_mfma_f32_16x16x32_bf16 v[120:123], v[{100+4*t}:{103+4*t}], v[{128+4*t}:{131+4*t}], {cin}")
        e("v_and_b32 v13, 15, v1")
        e("v_mul_u32_u24 v13, 80, v13")
        e("v_lshrrev_b32 v14, 4, v1")
        e("v_lshl_add_u32 v13, v14, 2, v13")
        e("s_lshl_b32 s60, s52, 4")
        e("v_add_u32 v13, s60, v13")
        e("s_nop 3")
        e("v_add_f32 v120, v120, v122")
        e("v_add_f32 v121, v121, v123")
        e(f"ds_write_b32 v13, v120 offset:{L_R2}")
        e(f"ds_write_b32 v13, v121 offset:{L_R2 + 16*80}")
        e("s_waitcnt lgkmcnt(0)")
        e("s_barrier")
        e("s_cmp_lg_u32 s52, 3")
        e("s_cbranch_scc1 .LstageG")
        e("v_and_b32 v14, 31, v1")
        e("v_mul_u32_u24 v13, 80, v14")
        for i in range(4):
            e(f"ds_read_b128 v[{64+4*i}:{67+4*i}], v13 offset:{L_R2 + 16*i}")
        e("v_lshrrev_b32 v13, 4, v14")
        e("v_mul_u32_u24 v13, 1792, v13")
        e("v_and_b32 v14, 15, v1")
        e("v_lshl_add_u32 v13, v14, 2, v13")
        e("s_mul_i32 s60, s53, 3584")
        e("s_lshl_b32 s63, s54, 6")
        e("s_add_u32 s60, s60, s63")
        e(f"s_add_u32 s60, s60, {WS_Y}")
        e("s_waitcnt lgkmcnt(0)")
        for i in range(8):
            e(f"v_add_f32 v{64+i}, v{64+i}, v{72+i}")
        for i in range(4):
            e(f"v_add_f32 v{64+i}, v{64+i}, v{68+i}")
        e("v_add_f32 v64, v64, v65")
        e("v_add_f32 v66, v66, v67")
        e("v_add_f32 v64, v64, v66")
        e("v_min_u32 v64, -2, v64")
        e("s_mov_b32 exec_lo, -1\ns_mov_b32 exec_hi, 0")
        e("buffer_store_dword v64, v13, s[36:39], s60 offen sc1")
        e("s_mov_b64 exec, -1")

        self.label(".LstageG")
        self.ts(6)
        e("v_lshlrev_b32 v13, 1, v28")
        e("s_mul_i32 s60, s52, 7168")
        e(f"s_add_u32 s60, s60, {WS_Y}")
        e("s_add_u32 s63, s60, 3584")
        e("s_cmp_lg_u32 s52, 0")
        e("s_cbranch_scc1 .Lg_nopre")
        self.srd(40, 4, 1792)
        e("s_mov_b64 exec, s[64:65]")
        e("buffer_load_dwordx4 v[104:107], v28, s[40:43], 0 offen")
        e("buffer_load_dwordx4 v[108:111], v28, s[40:43], 0 offen offset:16")
        e("s_mov_b64 exec, -1")
        e("v_lshrrev_b32 v14, 4, v1")
        e("v_lshlrev_b32 v14, 7, v14")
        e("v_bfe_u32 v15, v1, 2, 2")
        e("v_lshl_add_u32 v14, v15, 4, v14")
        e("v_and_b32 v15, 1, v1")
        e("v_lshl_add_u32 v14, v15, 3, v14")
        e("v_bfe_u32 v15, v1, 1, 1")
        e(f"v_mul_u32_u24 v15, {L_U - L_G}, v15")
        e("v_add_u32 v14, v14, v15")
        for ks in range(14):
            e(f"ds_read_b64_tr_b16 v[{160+4*ks}:{161+4*ks}], v14 offset:{L_G + ks*512}")
            e(f"ds_read_b64_tr_b16 v[{162+4*ks}:{163+4*ks}], v14 offset:{L_G + ks*512 + 64}")
            if ks == 6:
                e("s_waitcnt lgkmcnt(6)")
        self.label(".Lg_nopre")
        for i in range(32):
            e(f"v_mov_b32 v{64+i}, 0")
        e("s_mov_b64 exec, s[64:65]")
        self.poll_begin()
        self.label(".Lgpoll")
        for i in range(4):
            e(f"buffer_load_dwordx4 v[{64+4*i}:{67+4*i}], v13, s[36:39], s60 offen offset:{16*i} sc1")
        for i in range(4):
            e(f"buffer_load_dwordx4 v[{80+4*i}:{83+4*i}], v13, s[36:39], s63 offen offset:{16*i} sc1")
        e("s_waitcnt vmcnt(0)")
        e("v_max_u32 v98, v64, v65")
        e("v_max_u32 v99, v66, v67")
        for i in range(68, 96, 4):
            e(f"v_max3_u32 v98, v98, v{i}, v{i+1}")
            e(f"v_max3_u32 v99, v99, v{i+2}, v{i+3}")
        e("v_max_u32 v98, v98, v99")
        e("v_cmp_eq_u32 vcc, -1, v98")
        e("s_and_b64 exec, exec, vcc")
        e("s_cbranch_execz .Lgok")
        e("s_sleep 1")
        e("s_sub_u32 s62, s62, 1")
        e("s_cmp_lg_u32 s62, 0")
        e("s_cbranch_scc1 .Lgpoll")
        self.label(".Lgok")
        e("s_mov_b64 exec, -1")
        self.ts(7)
        for i in range(16):
            e(f"v_add_f32 v{64+i}, v{64+i}, v{80+i}")
        e("s_cmp_eq_u32 s52, 0")
        e("s_cbranch_scc1 .Lg_w0")
        e("s_sub_u32 s60, s52, 1")
        e("s_lshl_b32 s60, s60, 12")
        e("v_lshlrev_b32 v13, 4, v1")
        e("v_add_u32 v13, s60, v13")
        for i in range(4):
            e(f"ds_write_b128 v13, v[{64+4*i}:{67+4*i}] offset:{L_WQ + i*1024}")
        e("s_waitcnt lgkmcnt(0)")
        e("s_barrier")
        e("s_branch .Lfin")
        self.label(".Lg_w0")
        e("s_barrier")
        e("v_lshlrev_b32 v13, 4, v1")
        for w in range(3):
            for i in range(4):
                e(f"ds_read_b128 v[{112+16*w+4*i}:{115+16*w+4*i}], v13 offset:{L_WQ + w*4096 + i*1024}")
        for i in range(7, -1, -1):
            e(f"v_and_b32 v{80+2*i+1}, 0xffff0000, v{104+i}")
            e(f"v_lshlrev_b32 v{80+2*i}, 16, v{104+i}")
        for w in range(3):
            e(f"s_waitcnt lgkmcnt({8 - 4*w})")
            for i in range(16):
                e(f"v_add_f32 v{64+i}, v{64+i}, v{112+16*w+i}")
        for i in range(0, 16, 2):
            e(f"v_cvt_pk_bf16_f32 v96, v{64+i}, v{65+i}")
            e(f"v_lshlrev_b32 v{64+i}, 16, v96")
            e(f"v_and_b32 v{65+i}, 0xffff0000, v96")
            e(f"v_add_f32 v{64+i}, v{64+i}, v{80+i}")
            e(f"v_add_f32 v{65+i}, v{65+i}, v{81+i}")
            e(f"v_cvt_pk_bf16_f32 v96, v{64+i}, v{65+i}")
            e(f"v_lshlrev_b32 v{80+i}, 16, v96")
            e(f"v_and_b32 v{81+i}, 0xffff0000, v96")
        for i in range(16):
            e(f"v_cndmask_b32 v{80+i}, 0, v{80+i}, s[64:65]")
        self.layernorm16(80, 96, "s[64:65]")
        e("s_mov_b64 exec, s[64:65]")
        e(f"ds_write_b128 v28, v[80:83] offset:{L_XN}")
        e(f"ds_write_b128 v28, v[84:87] offset:{L_XN+16}")
        e("s_mov_b64 exec, -1")
        e("s_waitcnt lgkmcnt(0)")
        for ks in range(14):
            e(f"ds_read_b128 v[{104+4*ks}:{107+4*ks}], v30 offset:{L_XN + ks*64}")
        for ks in range(14):
            e(f"s_waitcnt lgkmcnt({13-ks})")
            cin = "0" if ks == 0 else "v[64:67]"
            e(f"v_mfma_f32_16x16x32_bf16 v[64:67], v[{104+4*ks}:{107+4*ks}], v[{160+4*ks}:{163+4*ks}], {cin}")
        e("v_and_b32 v13, 8, v1")
        e("v_cmp_ne_u32 vcc, 0, v13")
        e("s_nop 5")
        e("v_mov_b32_dpp v68, v64 row_ror:8 row_mask:0xf bank_mask:0xf")
        e("v_mov_b32_dpp v69, v65 row_ror:8 row_mask:0xf bank_mask:0xf")
        e("v_cndmask_b32 v70, v64, v69, vcc")
        e("v_cndmask_b32 v71, v68, v65, vcc")
        e("v_cvt_pk_bf16_f32 v72, v70, v71")
        e("v_lshlrev_b32 v70, 16, v72")
        e("v_and_b32 v71, 0xffff0000, v72")
        k1 = -2.0 * math.sqrt(2.0 / math.pi) * math.log2(math.e)
        e("v_mul_f32 v73, v70, v70")
        e(f"v_mov_b32 v74, {hex(f2u(k1))}")
        e(f"v_fmamk_f32 v73, v73, {hex(f2u(k1 * 0.044715))}, v74")
        e("v_mul_f32 v73, v73, v70")
        e("v_exp_f32 v73, v73")
        e("s_nop 0")
        e("v_add_f32 v73, 1.0, v73")
        e("v_rcp_f32 v73, v73")
        e("s_nop 0")
        e("v_mul_f32 v73, v73, v70")
        self.bf16r("v73", "v73")
        e("v_mul_f32 v73, v73, v71")
        e("s_nop 1")
        e("v_mov_b32_dpp v74, v73 quad_perm:[1,0,3,2] row_mask:0xf bank_mask:0xf")
        e("v_cvt_pk_bf16_f32 v75, v73, v74")
        e("v_min_u32 v75, -2, v75")
        e("v_bfe_u32 v13, v1, 3, 1")
        e("v_mul_u32_u24 v13, 3584, v13")
        e("v_and_b32 v14, 7, v1")
        e("v_lshl_add_u32 v13, v14, 1, v13")
        e("s_mul_i32 s60, s53, 28")
        e("s_add_u32 s60, s60, s54")
        e("s_lshl_b32 s60, s60, 4")
        e(f"s_add_u32 s60, s60, {WS_ACT}")
        e("s_mov_b64 exec, 0x5555")
        e("buffer_store_dword v75, v13, s[36:39], s60 offen sc1")
        e("s_mov_b64 exec, -1")
        e("s_branch .Lfin")

        self.label(".LstageD")
        e("s_cmp_ge_u32 s53, 7")
        e("s_cbranch_scc1 .Lfin")
        e("s_mul_i32 s60, s52, 14336")
        e("v_add_u32 v13, s60, v29")
        for t in range(14):
            e(f"ds_read_b64_tr_b16 v[{160+4*t}:{161+4*t}], v13 offset:{L_D + t*1024}")
            e(f"ds_read_b64_tr_b16 v[{162+4*t}:{163+4*t}], v13 offset:{L_D + t*1024 + 128}")
            if t == 6:
                e("s_waitcnt lgkmcnt(6)")
        e("s_lshl_b32 s58, s53, 2")
        e("s_add_u32 s58, s58, s54")
        e("s_sub_u32 s58, s58, 28")
        e("s_cmp_lg_u32 s52, 0")
        e("s_cbranch_scc1 .Ld_noh")
        self.srd(40, 4, 1792)
        e("v_bfe_u32 v13, v1, 4, 1")
        e("v_mul_u32_u24 v13, 896, v13")
        e("v_and_b32 v14, 15, v1")
        e("v_lshl_add_u32 v13, v14, 1, v13")
        e("s_lshl_b32 s60, s58, 5")
        e("v_add_u32 v26, s60, v13")
        e("buffer_load_ushort v27, v26, s[40:43], 0 offen")
        e("v_lshlrev_b32 v13, 1, v26")
        e(f"v_add_u32 v13, {WS_Y}, v13")
        e("s_mov_b32 exec_lo, -1\ns_mov_b32 exec_hi, 0")
        self.poll_begin()
        self.label(".Lhpoll")
        for p in range(8):
            e(f"s_mov_b32 s60, {p*3584}")
            e(f"buffer_load_dword v{64+p}, v13, s[36:39], s60 offen sc1")
        e("s_waitcnt vmcnt(0)")
        e("v_max3_u32 v72, v64, v65, v66")
        e("v_max3_u32 v72, v72, v67, v68")
        e("v_max3_u32 v72, v72, v69, v70")
        e("v_max_u32 v72, v72, v71")
        e("v_cmp_eq_u32 vcc, -1, v72")
        e("s_and_b64 exec, exec, vcc")
        e("s_cbranch_execz .Lhok")
        e("s_sleep 4")
        e("s_sub_u32 s62, s62, 1")
        e("s_cmp_lg_u32 s62, 0")
        e("s_cbranch_scc1 .Lhpoll")
        self.label(".Lhok")
        e("s_mov_b64 exec, -1")
        for p in range(4):
            e(f"v_add_f32 v{64+2*p}, v{64+2*p}, v{65+2*p}")
        e("v_add_f32 v64, v64, v66")
        e("v_add_f32 v64, v64, v68")
        e("v_add_f32 v64, v64, v70")
        self.bf16r("v64", "v64")
        e("v_lshlrev_b32 v27, 16, v27")
        e("v_add_f32 v27, v27, v64")
        self.bf16r("v27", "v27")
        self.label(".Ld_noh")
        e("v_and_b32 v13, 1, v1")
        e("v_mul_u32_u24 v13, 3584, v13")
        e("v_lshrrev_b32 v14, 4, v1")
        e("v_lshl_add_u32 v13, v14, 4, v13")
        e("s_mul_i32 s60, s52, 896")
        e(f"s_add_u32 s60, s60, {WS_ACT}")
        for i in range(56):
            e(f"v_mov_b32 v{104+i}, 0")
        e("s_mov_b32 exec_lo, 0x00030003")
        e("s_mov_b32 exec_hi, 0x00030003")
        self.poll_begin()
        self.label(".Ldpoll")
        for t in range(14):
            e(f"buffer_load_dwordx4 v[{104+4*t}:{107+4*t}], v13, s[36:39], s60 offen offset:{t*64} sc1")
        e("s_waitcnt vmcnt(0)")
        e("v_max_u32 v98, v104, v105")
        e("v_max_u32 v99, v106, v107")
        for i in range(108, 160, 4):
            e(f"v_max3_u32 v98, v98, v{i}, v{i+1}")
            e(f"v_max3_u32 v99, v99, v{i+2}, v{i+3}")
        e("v_max_u32 v98, v98, v99")
        e("v_cmp_eq_u32 vcc, -1, v98")
        e("s_and_b64 exec, exec, vcc")
        e("s_cbranch_execz .Ldok")
        e("s_sleep 1")
        e("s_sub_u32 s62, s62, 1")
        e("s_cmp_lg_u32 s62, 0")
        e("s_cbranch_scc1 .Ldpoll")
        self.label(".Ldok")
        e("s_mov_b64 exec, -1")
        self.ts(7)
        e("s_waitcnt lgkmcnt(0)")
        e("s_nop 3")
        for t in range(14):
            cin = "0" if t == 0 else "v[64:67]"
            e(f"v_mfma_f32_16x16x32_bf16 v[64:67], v[{104+4*t}:{107+4*t}], v[{160+4*t}:{163+4*t}], {cin}")
        e("v_lshlrev_b32 v13, 4, v1")
        e("s_lshl_b32 s60, s52, 2")
        e("v_add_u32 v13, s60, v13")
        e("s_nop 6")
        e("s_mov_b64 exec, 0xffff")
        e(f"ds_write_b32 v13, v64 offset:{L_R2}")
        e(f"ds_write_b32 v13, v65 offset:{L_R2 + 256}")
        e("s_mov_b64 exec, -1")
        e("s_waitcnt lgkmcnt(0)")
        e("s_barrier")
        e("s_cmp_lg_u32 s52, 0")
        e("s_cbranch_scc1 .Lfin")
        e("v_and_b32 v13, 31, v1")
        e("v_lshlrev_b32 v13, 4, v13")
        e(f"ds_read_b128 v[64:67], v13 offset:{L_R2}")
        self.srd(44, 22, 1792)
        e("s_waitcnt lgkmcnt(0)")
        e("v_add_f32 v64, v64, v65")
        e("v_add_f32 v66, v66, v67")
        e("v_add_f32 v64, v64, v66")
        self.bf16r("v64", "v64")
        e("v_add_f32 v64, v64, v27")
        e("v_cvt_pk_bf16_f32 v64, v64, v64")
        e("s_mov_b32 exec_lo, -1\ns_mov_b32 exec_hi, 0")
        e("buffer_store_short v64, v26, s[44:47], 0 offen")
        e("s_mov_b64 exec, -1")

        self.label(".Lfin")
        if o['ts']:
            self.ts(8)
            e("s_waitcnt lgkmcnt(0)")
            e("s_lshl_b32 s60, s2, 2")
            e("s_add_u32 s60, s60, s52")
            e("s_lshl_b32 s60, s60, 6")
            e(f"s_add_u32 s60, s60, {WS_TS}")
            e("v_mov_b32 v13, 0")
            e("s_getreg_b32 s63, hwreg(HW_REG_XCC_ID)")
            for i in range(13):
                e(f"v_mov_b32 v{64+i}, s{70+2*i}")
            e("v_mov_b32 v77, s63")
            e("v_mov_b32 v78, s62")
            e("v_mov_b32 v79, s56")
            e("s_mov_b64 exec, 1")
            for i in range(4):
                e(f"buffer_store_dwordx4 v[{64+4*i}:{67+4*i}], v13, s[36:39], s60 offen offset:{16*i}")
            if o['dbgts']:
                e("s_mov_b64 exec, -1")
                e("s_cmp_lg_u32 s52, 0")
                e("s_cbranch_scc1 .Lend")
                e("s_not_b32 s63, s70")
                e("v_mov_b32 v64, s63")
                for i in range(13):
                    e(f"v_writelane_b32 v64, s{70+2*i}, {i+1}")
                e("v_lshlrev_b32 v13, 2, v1")
                e("s_mov_b64 exec, 0x3fff")
                e("buffer_atomic_umax v64, v13, s[48:51], 0 offen offset:4 sc1")
        self.label(".Lend")
        e("s_endpgm")
        arch = max(96 + 32 * PD, 216)
        arch = (arch + 3) // 4 * 4
        nacc = 32 + 32 * PD
        self.L.append('.section .rodata,"a"')
        self.L.append(".p2align 6")
        self.L.append(f".amdhsa_kernel {NAME}")
        self.L.append(f"  .amdhsa_next_free_vgpr {arch + nacc}")
        self.L.append("  .amdhsa_next_free_sgpr 100")
        self.L.append(f"  .amdhsa_accum_offset {arch}")
        self.L.append("  .amdhsa_group_segment_fixed_size 0")
        self.L.append("  .amdhsa_kernarg_size 96")
        self.L.append("  .amdhsa_user_sgpr_count 2")
        self.L.append("  .amdhsa_user_sgpr_kernarg_segment_ptr 1")
        self.L.append("  .amdhsa_system_sgpr_workgroup_id_x 1")
        self.L.append("  .amdhsa_float_denorm_mode_32 3")
        self.L.append(".end_amdhsa_kernel")
        return "\n".join(self.L) + "\n"

if __name__ == "__main__":
    out = sys.argv[1]
    kw = json.loads(sys.argv[2]) if len(sys.argv) > 2 else {}
    open(out, "w").write(Gen(**kw).build())
```

```python
import sys, json, struct, math

NAME = "sequential_preLN__mha_block_cached__geglu_ffn__decode_kernel"

def f2u(x):
    return struct.unpack("<I", struct.pack("<f", x))[0]

WS_EPOCH = 0x0000
WS_CNT   = 0x1000
WS_Q     = 0x4000
WS_ML    = 0xC000
WS_Y     = 0x10000
WS_ACT   = 0x17000
WS_PART  = 0x20000
WS_TS    = 0x40000
WS_SC    = 0x80000
WS_PROF  = 0x280000
WS_SIZE  = 0x2c0000

L_Q    = 0
L_TAG  = 512
L_CNT  = 520
L_ST   = 576
L_XN   = 1024
L_SC   = 4096
L_RED  = 12288
L_R2   = 20480
L_WQ   = 16384
L_W    = 32768
L_U    = L_W + 28672
LDS_BYTES = 32768 + 65536

class Gen:
    def __init__(self, **kw):
        self.o = dict(PD=2, NSH=6, NS1=8, NH=32, rot=262144, ts=False, wpol='nt', dpol='nt', wqpol='nt', pace=8, nopf=False,
                      kvpol='nt', spin=20000, dbgts=False, prof=False, mul=1, nosc=False, nost=False, noat=False)
        self.o.update(kw)
        self.L = []
        self.q = []
        self.lab = 0

    def e(self, s):
        for line in s.split("\n"):
            self.L.append("    " + line.strip())

    def label(self, s):
        self.L.append(s + ":")

    def newlab(self, p):
        self.lab += 1
        return f".L{p}_{self.lab}"

    def c(self, s):
        self.L.append("    ; " + s)

    def vm(self, s, tag):
        self.e(s)
        self.q.append(tag)

    def vwait(self, tag):
        if tag not in self.q:
            return
        idx = max(i for i, t in enumerate(self.q) if t == tag)
        n = len(self.q) - 1 - idx
        if n > 63:
            n = 63
        self.e(f"s_waitcnt vmcnt({n})")
        self.q = self.q[len(self.q) - n:] if n > 0 else []

    def ts(self, slot):
        if self.o['ts']:
            self.e(f"s_memrealtime s[{70 + 2 * slot}:{71 + 2 * slot}]")

    def plog(self, half=False):
        if self.o['prof']:
            e = self.e
            e("s_memrealtime s[94:95]")
            e("s_waitcnt lgkmcnt(0)")
            e("s_bitset0_b32 s94, 31" if not half else "s_bitset1_b32 s94, 31")
            e("s_mov_b32 m0, s3")
            e("v_writelane_b32 v0, s94, m0")
            e("s_add_u32 s3, s3, 1")

    def bf16r(self, dst, src):
        self.e(f"v_cvt_pk_bf16_f32 {dst}, {src}, {src}")
        self.e(f"v_and_b32 {dst}, 0xffff0000, {dst}")

    def half_reduce(self, op, v, t):
        e = self.e
        for st in ("quad_perm:[1,0,3,2]", "quad_perm:[2,3,0,1]", "row_half_mirror", "row_mirror"):
            e("s_nop 1")
            e(f"{op}_dpp {v}, {v}, {v} {st} row_mask:0xf bank_mask:0xf")
        e("s_nop 0")
        e(f"v_mov_b32 {t}, {v}")
        e("s_nop 1")
        e(f"v_permlane16_swap_b32 {v}, {t}")
        e("s_nop 1")
        e(f"{op} {v}, {v}, {t}")

    def full_reduce(self, op, v, t):
        e = self.e
        self.half_reduce(op, v, t)
        e("s_nop 0")
        e(f"v_mov_b32 {t}, {v}")
        e("s_nop 1")
        e(f"v_permlane32_swap_b32 {v}, {t}")
        e("s_nop 1")
        e(f"{op} {v}, {v}, {t}")

    def layernorm16(self, X, T, valid):
        e = self.e
        s, t, mb, r = f"v{T}", f"v{T+1}", f"v{T+2}", f"v{T+3}"
        e(f"v_add_f32 {s}, v{X}, v{X+1}")
        e(f"v_add_f32 {t}, v{X+2}, v{X+3}")
        for i in range(4, 16, 2):
            e(f"v_add_f32 {s}, {s}, v{X+i}")
            e(f"v_add_f32 {t}, {t}, v{X+i+1}")
        e(f"v_add_f32 {s}, {s}, {t}")
        self.half_reduce("v_add_f32", s, t)
        e(f"v_mul_f32 {s}, {hex(f2u(1.0/448))}, {s}")
        self.bf16r(mb, s)
        a0, a1, d0, d1 = f"v{T+4}", f"v{T+5}", f"v{T+6}", f"v{T+7}"
        e(f"v_sub_f32 {d0}, v{X}, {s}")
        e(f"v_sub_f32 {d1}, v{X+1}, {s}")
        e(f"v_mul_f32 {a0}, {d0}, {d0}")
        e(f"v_mul_f32 {a1}, {d1}, {d1}")
        for i in range(2, 16, 2):
            e(f"v_sub_f32 {d0}, v{X+i}, {s}")
            e(f"v_sub_f32 {d1}, v{X+i+1}, {s}")
            e(f"v_fmac_f32 {a0}, {d0}, {d0}")
            e(f"v_fmac_f32 {a1}, {d1}, {d1}")
        e(f"v_add_f32 {a0}, {a0}, {a1}")
        e(f"v_cndmask_b32 {a0}, 0, {a0}, {valid}")
        self.half_reduce("v_add_f32", a0, a1)
        e(f"v_mul_f32 {a0}, {hex(f2u(1.0/448))}, {a0}")
        self.bf16r(a0, a0)
        e(f"v_add_f32 {a0}, {hex(f2u(1e-5))}, {a0}")
        self.bf16r(a0, a0)
        e(f"v_sqrt_f32 {a0}, {a0}")
        e("s_nop 0")
        self.bf16r(a0, a0)
        e(f"v_rcp_f32 {r}, {a0}")
        for i in range(0, 16, 2):
            e(f"v_sub_f32 v{X+i}, v{X+i}, {mb}")
            e(f"v_sub_f32 v{X+i+1}, v{X+i+1}, {mb}")
            e(f"v_cvt_pk_bf16_f32 {d0}, v{X+i}, v{X+i+1}")
            e(f"v_lshlrev_b32 v{X+i}, 16, {d0}")
            e(f"v_and_b32 v{X+i+1}, 0xffff0000, {d0}")
            e(f"v_mul_f32 v{X+i}, v{X+i}, {r}")
            e(f"v_mul_f32 v{X+i+1}, v{X+i+1}, {r}")
            e(f"v_cvt_pk_bf16_f32 v{X+i//2}, v{X+i}, v{X+i+1}")

    def srd(self, r, base, size):
        e = self.e
        e(f"s_mov_b32 s{r}, s{base}")
        e(f"s_mov_b32 s{r+1}, s{base+1}")
        e(f"s_mov_b32 s{r+2}, {size}")
        e(f"s_mov_b32 s{r+3}, 0x20000")

    def ld(self, base, g, tag=None):
        for j in range(4):
            r = base + g * 16 + j * 4
            s = f"buffer_load_dwordx4 v[{r}:{r+3}], v{2+g}, s[28:31], s57 offen offset:{j*128} {self.o['kvpol']}"
            if tag is not None: self.vm(s, tag)
            else: self.e(s)

    def tile_addr(self, src="s56"):
        self.e(f"s_mul_i32 s57, {src}, {self.o['mul'] << 14}")
        self.e("s_add_u32 s57, s57, s61")
        self.e("s_and_b32 s57, s57, 0x7fffff")

    def ktile(self, kb, wait, reissue, rtag=None, share=None):
        e = self.e
        for i in range(8):
            e(f"v_mov_b32 v{11+i}, 0")
        for g in range(4):
            wait(g)
            for i in range(16):
                e(f"v_dot2c_f32_bf16 v{11+2*g+(i&1)}, v{kb+g*16+i}, v{32+i}")
            if reissue:
                self.ld(kb, g, rtag and (rtag, g))
        self.plog()
        if not reissue: e("s_nop 2")
        for g in range(4):
            e(f"v_add_f32 v{11+2*g}, v{11+2*g}, v{12+2*g}")
        for st in ("quad_perm:[1,0,3,2]", "quad_perm:[2,3,0,1]", "row_half_mirror"):
            for g in range(4):
                e(f"v_add_f32_dpp v{11+2*g}, v{11+2*g}, v{11+2*g} {st} row_mask:0xf bank_mask:0xf")
        e("v_cvt_pk_bf16_f32 v24, v11, v13")
        e("v_cvt_pk_bf16_f32 v26, v15, v17")
        skip = self.newlab("nosh")
        if share is None:
            e(f"s_cmp_ge_u32 s58, {32*self.o['NSH']}")
        e("ds_write2_b32 v19, v24, v26 offset0:0 offset1:1")
        e("v_add_u32 v19, 64, v19")
        if share is None:
            e(f"s_cbranch_scc1 {skip}")
        if share is None or share:
            e("s_lshl_b32 s60, s58, 7")
            e("s_mov_b64 exec, s[96:97]")
            s = "buffer_store_dwordx4 v[24:27], v20, s[36:39], s60 offen sc1"
            if self.o['nost']: s = "buffer_load_dword v28, v2, s[28:31], 0 offen"
            if share: self.vm(s, 'st')
            else: e(s)
            e("s_mov_b64 exec, -1")
        self.label(skip)

    def pcalc(self, groups):
        e = self.e
        for g in groups:
            src = 24 if g < 2 else 26
            if g & 1: e(f"v_and_b32 v{11+g}, 0xffff0000, v{src}")
            else: e(f"v_lshlrev_b32 v{11+g}, 16, v{src}")
        for g in groups: e(f"v_fma_f32 v{11+g}, v{11+g}, s59, v10")
        for g in groups: e(f"v_exp_f32 v{11+g}, v{11+g}")
        if len(groups) < 2: e("s_nop 0")
        for g in groups: e(f"v_cvt_pk_bf16_f32 v{15+g}, v{11+g}, v{11+g}")
        for g in groups:
            for r in range(4):
                e(f"v_and_b32 v{32+4*g+r}, v{6+r}, v{15+g}")

    def vgrp(self, g, n, reissue):
        e = self.e
        e(f"s_waitcnt vmcnt({n})")
        for j in range(4):
            r = 64 + g * 16 + j * 4
            e(f"v_mfma_f32_16x16x32_bf16 v[{48+4*j}:{51+4*j}], v[{32+4*g}:{35+4*g}], v[{r}:{r+3}], v[{48+4*j}:{51+4*j}]")
        if reissue:
            self.ld(64, g)

    def ticket(self, off=0):
        e = self.e
        if self.o['noat']:
            r = 100 if off else 101
            e(f"v_mov_b32 v22, s{r}")
            e(f"s_add_u32 s{r}, s{r}, 32")
            e("s_mov_b64 exec, 1")
            e("buffer_load_dword v21, v2, s[28:31], 0 offen")
            e("s_mov_b64 exec, -1")
            return
        e("v_mov_b32 v22, 1")
        e("s_mov_b64 exec, 1")
        e(f"buffer_atomic_add v22, v21, s[36:39], 0 offen offset:{off} sc0 sc1")
        e("s_mov_b64 exec, -1")

    def poll_begin(self):
        self.e(f"s_mov_b32 s62, {self.o['spin']}")

    def poll_again(self, lab):
        e = self.e
        e("s_sub_u32 s62, s62, 1")
        e("s_cmp_lg_u32 s62, 0")
        e(f"s_cbranch_scc1 {lab}")

    def build(self):
        o = self.o; e = self.e
        PD = o['PD']; NSH = o['NSH']; NH = o['NH']
        ND = 32 * NSH
        NF = ND - NH
        NTK = NF + 2 * NH
        NS1 = o['NS1']
        assert PD <= 2 and PD + 1 <= NSH and NSH + 2 <= NS1 and PD + 3 <= NS1 <= 15
        def pace():
            if o['pace']: e(f"s_waitcnt vmcnt({o['pace']})")
        self.L.append(f"; @launch grid=(256,1,1) block=(256,1,1) lds={LDS_BYTES}")
        self.L.append('.amdgcn_target "amdgcn-amd-amdhsa--gfx950"')
        self.L.append(".text")
        self.L.append(f".globl {NAME}")
        self.L.append(".p2align 8")
        self.L.append(f".type {NAME},@function")
        self.label(NAME)
        e("s_cmp_ge_u32 s2, 256")
        e("s_cbranch_scc1 .Lend")
        e("s_load_dwordx16 s[4:19], s[0:1], 0")
        e("s_load_dwordx8 s[20:27], s[0:1], 64")
        if o['ts']:
            self.ts(0)
            for i in range(72, 96): e(f"s_mov_b32 s{i}, 0")
        e("v_and_b32 v1, 63, v0")
        e("v_lshrrev_b32 v2, 6, v0")
        e("s_and_b32 s53, s2, 7")
        if o['prof']:
            e("s_mov_b32 s3, 0")
            e("v_mov_b32 v0, 0")
        e("v_readfirstlane_b32 s52, v2")
        e("s_lshr_b32 s54, s2, 3")
        e(f"s_mul_i32 s61, s54, {o['rot']}")
        e("v_lshrrev_b32 v20, 3, v1")
        e("v_lshlrev_b32 v2, 9, v20")
        e("v_and_b32 v3, 7, v1")
        e("v_lshl_or_b32 v2, v3, 4, v2")
        e("v_add_u32 v3, 4096, v2")
        e("v_add_u32 v4, 8192, v2")
        e("v_add_u32 v5, 12288, v2")
        e("s_lshl_b32 s58, s53, 2")
        e("s_add_u32 s58, s58, s52")
        e("s_mov_b32 s56, s58")
        self.tile_addr()
        e("s_lshl_b32 s60, s54, 23")
        e("s_mov_b32 s30, 0x800000")
        e("s_mov_b32 s31, 0x20000")
        e("s_cmp_eq_u32 s52, 0")
        e("s_waitcnt lgkmcnt(0)")
        e("s_cbranch_scc1 .Lskip1")
        e("s_add_u32 s28, s6, s60")
        e("s_addc_u32 s29, s7, 0")
        self.q = []
        for g in range(2): self.ld(64, g, ('A', g))
        self.label(".Lskip1")
        e("s_add_u32 s28, s6, s60")
        e("s_addc_u32 s29, s7, 0")
        e("s_add_u32 s32, s8, s60")
        e("s_addc_u32 s33, s9, 0")
        self.srd(36, 26, WS_SIZE)
        self.srd(48, 24, 256)
        e(f"s_mov_b32 s59, {hex(f2u(math.log2(math.e) / 16.0))}")
        e("s_mov_b32 s96, 0x01010101")
        e("s_mov_b32 s97, 0x01010101")
        e("s_add_u32 s60, s53, s54")
        e("s_and_b32 s60, s60, 7")
        e("s_lshr_b32 s68, s60, 1")
        e("s_and_b32 s63, s60, 1")
        e("s_lshl_b32 s63, s63, 5")
        e("s_lshl_b32 s69, s68, 3")
        e("s_add_u32 s69, s69, s54")
        e("s_and_b32 s69, s69, 31")
        e("s_add_u32 s69, s69, s63")
        e("s_cmp_ge_u32 s69, 56")
        e("s_cselect_b32 s68, 3, s68")
        e("s_cmp_lt_u32 s60, 4")
        e("s_cbranch_scc1 .Lrole")
        e("s_and_b32 s69, s54, 7")
        e("s_lshl_b32 s69, s69, 2")
        e("s_lshr_b32 s63, s54, 3")
        e("s_add_u32 s69, s69, s63")
        e("s_cmp_lt_u32 s69, 28")
        e("s_cselect_b32 s68, 2, 3")
        e("s_cmp_eq_u32 s60, 4")
        e("s_cselect_b32 s68, s68, 3")
        self.label(".Lrole")
        e("v_and_b32 v13, 1, v1")
        e("v_mov_b32 v14, 0xffff")
        e("v_lshlrev_b32 v13, 4, v13")
        e("v_lshlrev_b32 v14, v13, v14")
        e("v_bfe_u32 v13, v1, 1, 2")
        for r in range(4):
            e(f"v_cmp_eq_u32 vcc, {r}, v13")
            e("s_nop 1")
            e(f"v_cndmask_b32 v{6+r}, 0, v14, vcc")
        for i in range(16):
            e(f"v_mov_b32 v{48+i}, 0")
        e("s_lshl_b32 s60, s54, 8")
        e(f"s_add_u32 s60, s60, {WS_CNT}")
        e("v_mov_b32 v21, s60")
        e("s_lshl_b32 s60, s52, 11")
        e(f"s_add_u32 s60, s60, {L_SC}")
        e("v_lshl_add_u32 v19, v20, 3, s60")
        e("v_lshl_add_u32 v18, v1, 4, s60")
        for i in range(4): e(f"v_mov_b32 v{24+i}, 0xff80ff80")
        e("ds_write_b128 v18, v[24:27]")
        e("ds_write_b128 v18, v[24:27] offset:1024")
        e("s_lshl_b32 s60, s54, 16")
        e(f"s_add_u32 s60, s60, {WS_SC}")
        e("v_lshl_add_u32 v20, v20, 4, s60")
        e("v_lshrrev_b32 v13, 4, v1")
        e("v_bfe_u32 v29, v1, 2, 2")
        e("v_lshl_add_u32 v29, v13, 3, v29")
        e("v_and_b32 v31, 3, v1")
        e("v_and_b32 v14, 1, v1")
        e("v_mul_u32_u24 v30, 896, v14")
        e("v_lshl_add_u32 v30, v13, 4, v30")
        e("s_cmp_lg_u32 s52, 0")
        e("s_cbranch_scc1 .Lw123")
        saveq = list(self.q)

        self.c("wave 0: q slice")
        e("s_setprio 3")
        self.q = []
        self.srd(40, 4, 1792)
        self.srd(44, 10, 3670016)
        e("v_and_b32 v13, 31, v1")
        e("v_cmp_gt_u32 s[64:65], 28, v13")
        e("v_lshrrev_b32 v14, 5, v1")
        e("v_mul_u32_u24 v14, 896, v14")
        e("v_lshl_add_u32 v28, v13, 5, v14")
        e("v_mov_b32 v13, 0x10000")
        e("v_cndmask_b32 v16, v13, v28, s[64:65]")
        e("v_mov_b32 v15, 0")
        self.vm(f"buffer_load_dword v24, v15, s[36:39], 0 offen offset:{WS_EPOCH} sc1", 'E')
        self.vm("buffer_load_dwordx4 v[64:67], v16, s[40:43], 0 offen", 'x')
        self.vm("buffer_load_dwordx4 v[68:71], v16, s[40:43], 0 offen offset:16", 'x')
        e("s_lshl_b32 s60, s53, 5")
        e("s_add_u32 s63, s60, s54")
        e("s_lshl_b32 s60, s63, 5")
        e("v_lshrrev_b32 v13, 1, v1")
        e("v_lshlrev_b32 v13, 13, v13")
        e("v_and_b32 v14, 1, v1")
        e("v_lshl_add_u32 v13, v14, 4, v13")
        e("v_add_u32 v13, s60, v13")
        for ks in range(14):
            e(f"s_mov_b32 m0, {L_WQ + ks * 1024}")
            e(f"s_mov_b32 s60, {ks * 262144}")
            self.vm(f"buffer_load_dwordx4 v13, s[44:47], s60 offen {o['wqpol']} lds", 'wq')
        e("s_and_b32 s60, s63, 15")
        e("s_cmp_lg_u32 s60, 0")
        e("s_cbranch_scc1 .Lnocinit")
        e("s_lshr_b32 s60, s63, 4")
        e("s_lshl_b32 s60, s60, 8")
        e("v_and_b32 v14, 1, v1")
        e("v_lshlrev_b32 v14, 12, v14")
        e("v_lshrrev_b32 v17, 1, v1")
        e("v_lshl_add_u32 v14, v17, 7, v14")
        e("v_add_u32 v14, s60, v14")
        e("s_mov_b64 exec, 15")
        e(f"v_add_u32 v14, {WS_CNT}, v14")
        e("buffer_store_dword v15, v14, s[36:39], 0 offen sc1")
        e("s_mov_b64 exec, -1")
        self.label(".Lnocinit")
        e("v_lshlrev_b32 v17, 5, v29")
        e("v_lshl_add_u32 v17, v31, 3, v17")
        self.vwait('x')
        e("v_readfirstlane_b32 s55, v24")
        e("s_mul_i32 s55, s55, 0x9e3779b1")
        e("s_add_u32 s55, s55, 0x7f4a7c15")
        for i in range(7, -1, -1):
            e(f"v_and_b32 v{80+2*i+1}, 0xffff0000, v{64+i}")
            e(f"v_lshlrev_b32 v{80+2*i}, 16, v{64+i}")
        self.layernorm16(80, 96, "s[64:65]")
        e("s_mov_b64 exec, s[64:65]")
        e(f"ds_write_b128 v28, v[80:83] offset:{L_XN}")
        e(f"ds_write_b128 v28, v[84:87] offset:{L_XN+16}")
        e("s_mov_b64 exec, -1")
        e("v_mov_b32 v25, s55")
        e("v_mov_b32 v27, s55")
        e(f"ds_write_b32 v15, v25 offset:{L_TAG}")
        e("s_waitcnt lgkmcnt(0)")
        for ks in range(14):
            e(f"ds_read_b128 v[{104+4*ks}:{107+4*ks}], v30 offset:{L_XN + ks*64}")
        e("s_waitcnt vmcnt(0)")
        self.q = []
        for ks in range(14):
            e(f"ds_read_b64_tr_b16 v[{160+4*ks}:{161+4*ks}], v17 offset:{L_WQ + ks*1024}")
            e(f"ds_read_b64_tr_b16 v[{162+4*ks}:{163+4*ks}], v17 offset:{L_WQ + ks*1024 + 128}")
            if ks == 6:
                e("s_waitcnt lgkmcnt(6)")
        e("s_waitcnt lgkmcnt(0)")
        for ks in range(14):
            cin = "0" if ks == 0 else "v[64:67]"
            e(f"v_mfma_f32_16x16x32_bf16 v[64:67], v[{104+4*ks}:{107+4*ks}], v[{160+4*ks}:{163+4*ks}], {cin}")
        e("v_and_b32 v13, 1, v1")
        e("v_lshlrev_b32 v14, 14, v13")
        e("v_cmp_eq_u32 vcc, 1, v13")
        e("v_lshrrev_b32 v13, 1, v1")
        e("v_lshl_add_u32 v14, v13, 3, v14")
        e("s_lshl_b32 s60, s63, 6")
        e(f"s_add_u32 s60, s60, {WS_Q}")
        e("v_add_u32 v14, s60, v14")
        e("s_nop 3")
        e("v_mov_b32_dpp v68, v64 quad_perm:[1,0,3,2] row_mask:0xf bank_mask:0xf")
        e("v_mov_b32_dpp v69, v65 quad_perm:[1,0,3,2] row_mask:0xf bank_mask:0xf")
        e("v_cndmask_b32 v70, v64, v69, vcc")
        e("v_cndmask_b32 v71, v68, v65, vcc")
        e("v_cvt_pk_bf16_f32 v72, v70, v71")
        e("v_mov_b32 v73, s55")
        e("s_mov_b64 exec, 0xffff")
        e("buffer_store_dwordx2 v[72:73], v14, s[36:39], 0 offen sc1")
        e("s_mov_b64 exec, -1")
        self.ts(1)
        e("s_lshl_b32 s60, s54, 10")
        e(f"s_add_u32 s60, s60, {WS_Q}")
        e("v_lshlrev_b32 v13, 4, v1")
        self.poll_begin()
        self.label(".Lqpoll")
        e("buffer_load_dwordx4 v[128:131], v13, s[36:39], s60 offen sc1")
        e("s_waitcnt vmcnt(0)")
        e("v_cmp_ne_u32 vcc, s55, v129")
        e("v_cmp_ne_u32 s[66:67], s55, v131")
        e("s_or_b64 vcc, vcc, s[66:67]")
        e("s_cbranch_vccz .Lqok")
        self.poll_again(".Lqpoll")
        self.label(".Lqok")
        e("v_lshlrev_b32 v13, 3, v1")
        e(f"ds_write2_b32 v13, v128, v130 offset0:{L_Q//4} offset1:{L_Q//4+1}")
        for g in range(4): self.ld(64, g)
        e("s_waitcnt lgkmcnt(0)")
        e("s_setprio 0")
        self.ts(2)
        e("s_barrier")
        e("v_and_b32 v13, 7, v1")
        e("v_lshlrev_b32 v13, 4, v13")
        for j in range(4):
            e(f"ds_read_b128 v[{32+4*j}:{35+4*j}], v13 offset:{L_Q + j*128}")
        e("s_waitcnt lgkmcnt(0)")
        e("s_mov_b32 s99, 0")
        e("s_branch .Lkloop")

        self.label(".Lw123")
        self.q = saveq
        for g in range(2, 4): self.ld(64, g, ('A', g))
        e("s_cmp_lg_u32 s52, 1")
        e("s_cbranch_scc1 .Lnoreset")
        for i in range(4): e(f"v_mov_b32 v{24+i}, -1")
        e("v_lshlrev_b32 v13, 4, v1")
        e("s_lshl_b32 s60, s2, 9")
        e(f"s_add_u32 s60, s60, {WS_PART}")
        e("s_mov_b32 exec_hi, 0")
        e("buffer_store_dwordx4 v[24:27], v13, s[36:39], s60 offen sc1")
        e("s_cmp_lg_u32 s68, 0")
        e("s_cbranch_scc1 .Lrs1")
        e("s_lshl_b32 s60, s69, 9")
        e(f"s_add_u32 s60, s60, {WS_Y}")
        e("buffer_store_dwordx4 v[24:27], v13, s[36:39], s60 offen sc1")
        self.label(".Lrs1")
        e("s_cmp_lg_u32 s68, 1")
        e("s_cbranch_scc1 .Lrs2")
        e("s_lshl_b32 s60, s69, 9")
        e(f"s_add_u32 s60, s60, {WS_ACT}")
        e("buffer_store_dwordx4 v[24:27], v13, s[36:39], s60 offen sc1")
        self.label(".Lrs2")
        e("s_mov_b64 exec, -1")
        self.label(".Lnoreset")
        if o['nopf']: e("s_branch .Lpf_done")
        e("s_cmp_eq_u32 s68, 3")
        e("s_cbranch_scc1 .Lpf_done")
        self.wprefetch(pace_n=o['pace'] + 3 if o['pace'] else 0)
        self.label(".Lpf_done")
        for p in range(PD):
            e("s_add_u32 s56, s56, 32")
            self.tile_addr()
            for g in range(4): pace(); self.ld(128 + 64 * p, g, (f'E{p}', g))
        self.ts(1)
        e("s_barrier")
        self.ts(2)
        e("v_and_b32 v13, 7, v1")
        e("v_lshlrev_b32 v13, 4, v13")
        e("v_mov_b32 v14, 0")
        e(f"ds_read_b32 v25, v14 offset:{L_TAG}")
        for j in range(4):
            e(f"ds_read_b128 v[{32+4*j}:{35+4*j}], v13 offset:{L_Q + j*128}")
        e("s_add_u32 s56, s56, 32")
        self.tile_addr()
        e("s_waitcnt lgkmcnt(0)")
        e("v_mov_b32 v27, v25")
        e("v_readfirstlane_b32 s55, v25")
        self.ktile(64, lambda g: self.vwait(('A', g)), True, rtag='A2', share=True)
        e("s_add_u32 s58, s58, 32")
        for p in range(PD):
            self.ktile(128 + 64 * p, lambda g: self.vwait((f'E{p}', g)), False, share=True)
            e("s_add_u32 s58, s58, 32")
        e(f"s_mov_b32 s99, {PD + 1}")
        e("s_cmp_lg_u32 s52, 1")
        e("s_cbranch_scc1 .Lkloop")
        if PD == 0: e("s_waitcnt vmcnt(17)")
        e("v_mov_b32 v22, 1")
        e("v_mov_b32 v13, 0")
        e("s_mov_b64 exec, 1")
        e("buffer_atomic_add v22, v13, s[48:51], 0 offen sc1")
        e("s_mov_b64 exec, -1")

        w12 = lambda g: e("s_waitcnt vmcnt(12)")
        self.label(".Lkloop")
        if o['noat']:
            e(f"s_cmp_ge_u32 s58, {32 * (NS1 - 2)}")
            e("s_cbranch_scc1 .Lna")
            e("s_and_b32 s100, s58, 31")
            e("s_and_b32 s101, s58, 31")
            self.label(".Lna")
        e("s_add_u32 s56, s58, 32")
        e(f"s_cmp_lt_u32 s58, {32 * (NS1 - 2)}")
        e("s_cbranch_scc1 .Lk1")
        e(f"s_cmp_lt_u32 s58, {32 * (NS1 - 1)}")
        e("s_cbranch_scc1 .Lktk")
        e("s_waitcnt vmcnt(16)")
        e("v_readfirstlane_b32 s56, v22")
        e(f"s_add_u32 s56, s56, {32 * NS1}")
        e("s_cmp_lt_u32 s56, 512")
        e("s_cbranch_scc1 .Lktk")
        e("s_mov_b64 s[28:29], s[32:33]")
        e("s_and_b32 s56, s2, 7")
        e("s_lshl_b32 s56, s56, 2")
        e("s_add_u32 s56, s56, s52")
        e(f"s_add_u32 s56, s56, {ND + 512}")
        e("s_branch .Lk1")
        self.label(".Lktk")
        e("v_mov_b32 v22, 0x10000")
        e("s_cmp_ge_u32 s99, 30")
        e("s_cbranch_scc1 .Lk1")
        self.ticket(128)
        self.label(".Lk1")
        self.tile_addr()
        e("s_mov_b32 m0, s99")
        e("v_writelane_b32 v23, s58, m0")
        e("s_add_u32 s99, s99, 1")
        self.ktile(64, w12, True)
        e("s_mov_b32 s58, s56")
        e("s_cmp_lt_u32 s56, 512")
        e("s_cbranch_scc1 .Lkloop")
        self.ts(6)
        e("s_lshl_b32 s60, s52, 11")
        e(f"s_add_u32 s60, s60, {L_SC}")
        e("v_lshl_add_u32 v13, v1, 4, s60")
        e("ds_read_b128 v[128:131], v13")
        e("ds_read_b128 v[144:147], v13 offset:1024")
        e("v_lshrrev_b32 v19, 3, v1")
        e(f"s_add_u32 s60, s60, {NSH * 64}")
        e("v_lshl_add_u32 v19, v19, 3, s60")
        e("s_waitcnt lgkmcnt(0)")
        for i in range(4):
            e(f"v_and_b32 v{149+2*i}, 0xffff0000, v{144+i}")
            e(f"v_lshlrev_b32 v{148+2*i}, 16, v{144+i}")
        for i in range(4):
            e(f"v_and_b32 v{133+2*i}, 0xffff0000, v{128+i}")
            e(f"v_lshlrev_b32 v{132+2*i}, 16, v{128+i}")
        e("v_max3_f32 v140, v132, v133, v134")
        e("v_max3_f32 v141, v135, v136, v137")
        e("v_max3_f32 v140, v140, v138, v139")
        e("v_max3_f32 v141, v141, v148, v149")
        e("v_max3_f32 v140, v140, v150, v151")
        e("v_max3_f32 v141, v141, v152, v153")
        e("v_max3_f32 v140, v140, v154, v155")
        e("v_max_f32 v140, v140, v141")
        self.full_reduce("v_max_f32", "v140", "v141")
        e("v_mul_f32 v10, s59, v140")
        e("v_sub_f32 v10, 0, v10")
        for i in range(8): e(f"v_fma_f32 v{132+i}, v{132+i}, s59, v10")
        for i in range(8): e(f"v_fma_f32 v{148+i}, v{148+i}, s59, v10")
        for i in range(8): e(f"v_exp_f32 v{132+i}, v{132+i}")
        for i in range(8): e(f"v_exp_f32 v{148+i}, v{148+i}")
        e("s_nop 0")
        for i in range(8): e(f"v_add_f32 v{132+i}, v{132+i}, v{148+i}")
        for i in range(4): e(f"v_add_f32 v{132+i}, v{132+i}, v{136+i}")
        e("v_add_f32 v132, v132, v133")
        e("v_add_f32 v134, v134, v135")
        e("v_add_f32 v142, v132, v134")
        self.full_reduce("v_add_f32", "v142", "v141")
        e("v_mov_b32 v141, s55")
        e("v_mov_b32 v143, s55")
        e("s_lshl_b32 s60, s2, 2")
        e("s_add_u32 s60, s60, s52")
        e("s_lshl_b32 s60, s60, 4")
        e(f"s_add_u32 s60, s60, {WS_ML}")
        e("v_mov_b32 v13, 0")
        e("s_mov_b64 exec, 1")
        e("buffer_store_dwordx4 v[140:143], v13, s[36:39], s60 offen sc1")
        e("s_mov_b64 exec, -1")

        e("s_lshl_b32 s98, s54, 9")
        e(f"s_add_u32 s98, s98, {WS_ML}")
        e("v_and_b32 v28, 31, v1")
        e("v_lshlrev_b32 v28, 4, v28")
        e(f"s_mov_b32 s58, {NSH + 1}")
        e("s_sub_u32 s99, s99, 1")
        self.label(".Lvloop")
        e("ds_read_b64 v[24:25], v19")
        e("v_add_u32 v19, 64, v19")
        e("v_readlane_b32 s56, v23, s58")
        e("s_cmp_lt_u32 s58, s99")
        e("s_cbranch_scc1 .Lv1")
        self.ticket()
        e("buffer_load_dwordx4 v[128:131], v28, s[36:39], s98 offen sc1")
        e("v_mov_b32 v13, 0")
        e("buffer_load_dword v23, v13, s[48:51], 0 offen sc1")
        self.label(".Lv1")
        self.tile_addr()
        e("s_add_u32 s58, s58, 1")
        e("s_waitcnt lgkmcnt(0)")
        e("v_mov_b32 v26, v25")
        self.pcalc(range(4))
        for g in range(4): self.vgrp(g, 12, True)
        self.plog()
        e("s_cmp_le_u32 s58, s99")
        e("s_cbranch_scc1 .Lvloop")
        self.ts(7)
        e("ds_read_b64 v[24:25], v19")
        e("s_waitcnt vmcnt(16)")
        self.poll_begin()
        self.label(".Lmlchk")
        e("v_cmp_ne_u32 vcc, s55, v129")
        e("v_cmp_ne_u32 s[66:67], s55, v131")
        e("s_or_b64 vcc, vcc, s[66:67]")
        e("s_cbranch_vccz .Lmlok")
        e("buffer_load_dwordx4 v[128:131], v28, s[36:39], s98 offen sc1")
        e("s_waitcnt vmcnt(0)")
        self.poll_again(".Lmlchk")
        self.label(".Lmlok")
        e("v_mov_b32 v132, v128")
        self.half_reduce("v_max_f32", "v132", "v133")
        e("v_sub_f32 v128, v128, v132")
        e("v_mul_f32 v128, s59, v128")
        e("v_exp_f32 v128, v128")
        e("s_nop 0")
        e("v_mul_f32 v130, v130, v128")
        self.half_reduce("v_add_f32", "v130", "v133")
        e("v_log_f32 v130, v130")
        e("s_nop 0")
        e("v_fma_f32 v130, v132, s59, v130")
        e("v_add_f32 v131, v10, v130")
        e("v_sub_f32 v10, 0, v130")
        e("v_exp_f32 v131, -v131")
        e("s_waitcnt lgkmcnt(0)")
        e("v_mov_b32 v26, v25")
        e("v_mov_b32 v25, s55")
        e("v_mov_b32 v27, s55")
        for i in range(16):
            e(f"v_mul_f32 v{48+i}, v{48+i}, v131")
        self.label(".Ldloop")
        e("s_waitcnt vmcnt(16)")
        self.label(".Ld0")
        e("v_readfirstlane_b32 s56, v22")
        e("v_cmp_ne_u32 vcc, s55, v25")
        e("v_cmp_ne_u32 s[66:67], s55, v27")
        e("s_or_b64 vcc, vcc, s[66:67]")
        e("s_cbranch_vccnz .Lscslow")
        self.label(".Ld1")
        self.pcalc(range(4))
        e(f"s_cmp_ge_u32 s56, {NF}")
        e("s_cbranch_scc1 .Lfx")
        self.tile_addr()
        e("s_lshl_b32 s98, s56, 7")
        e("buffer_load_dwordx4 v[24:27], v20, s[36:39], s98 offen sc1" if not o['nosc'] else "buffer_load_dword v28, v2, s[28:31], 0 offen")
        self.ticket()
        for g in range(4): self.vgrp(g, 14, True)
        self.plog()
        e("s_branch .Ldloop")
        self.label(".Lscslow")
        self.poll_begin()
        self.label(".Lscs1")
        e("buffer_load_dwordx4 v[24:27], v20, s[36:39], s98 offen sc1")
        e("s_waitcnt vmcnt(0)")
        e("v_cmp_ne_u32 vcc, s55, v25")
        e("v_cmp_ne_u32 s[66:67], s55, v27")
        e("s_or_b64 vcc, vcc, s[66:67]")
        e("s_cbranch_vccz .Ld1")
        self.poll_again(".Lscs1")
        e("s_branch .Ld1")
        self.label(".Lhslow")
        self.poll_begin()
        self.label(".Lhs1")
        e("buffer_load_dwordx2 v[26:27], v20, s[36:39], s98 offen sc1")
        e("s_waitcnt vmcnt(0)")
        e("v_cmp_ne_u32 vcc, s55, v27")
        e("s_cbranch_vccz .Lh1")
        self.poll_again(".Lhs1")
        e("s_branch .Lh1")
        self.label(".Lfx")
        self.vgrp(0, 12, False)
        self.vgrp(1, 8, False)
        self.plog(True)
        e("s_branch .Lh2")
        self.label(".Lhloop")
        e("s_waitcnt vmcnt(8)")
        e("v_readfirstlane_b32 s56, v22")
        e("v_cmp_ne_u32 vcc, s55, v27")
        e("s_cbranch_vccnz .Lhslow")
        self.label(".Lh1")
        self.pcalc([2, 3])
        self.label(".Lh2")
        e(f"s_cmp_ge_u32 s56, {NTK}")
        e("s_cbranch_scc1 .Llast")
        e(f"s_add_u32 s60, s56, {NF}")
        e("s_lshr_b32 s98, s60, 1")
        self.tile_addr("s98")
        e("s_lshl_b32 s98, s98, 7")
        e("s_and_b32 s60, s60, 1")
        e("s_lshl_b32 s63, s60, 13")
        e("s_add_u32 s57, s57, s63")
        e("s_lshl_b32 s60, s60, 3")
        e("s_add_u32 s98, s98, s60")
        e("buffer_load_dwordx2 v[26:27], v20, s[36:39], s98 offen sc1" if not o['nosc'] else "buffer_load_dword v28, v2, s[28:31], 0 offen")
        self.ticket()
        for g in (2, 3):
            e("s_waitcnt vmcnt(6)")
            for j in range(4):
                r = 64 + g * 16 + j * 4
                e(f"v_mfma_f32_16x16x32_bf16 v[{48+4*j}:{51+4*j}], v[{32+4*g}:{35+4*g}], v[{r}:{r+3}], v[{48+4*j}:{51+4*j}]")
            for j in range(4):
                r = 64 + g * 16 + j * 4
                e(f"buffer_load_dwordx4 v[{r}:{r+3}], v{g}, s[28:31], s57 offen offset:{j*128} {o['kvpol']}")
        self.plog(True)
        e("s_branch .Lhloop")
        self.label(".Llast")
        e("v_lshrrev_b32 v13, 5, v1")
        e("v_lshlrev_b32 v13, 10, v13")
        e("v_and_b32 v14, 7, v1")
        e("v_lshl_add_u32 v13, v14, 5, v13")
        e("v_bfe_u32 v14, v1, 4, 1")
        e("v_lshl_add_u32 v13, v14, 4, v13")
        e("s_lshl_b32 s60, s52, 11")
        e("v_add_u32 v13, s60, v13")
        e("v_lshrrev_b32 v14, 5, v1")
        e("v_lshlrev_b32 v14, 12, v14")
        e("v_and_b32 v15, 31, v1")
        e("v_lshl_add_u32 v14, v15, 3, v14")
        e("s_lshl_b32 s60, s52, 8")
        e("v_add_u32 v14, s60, v14")
        e("v_lshlrev_b32 v15, 2, v15")
        e("s_lshl_b32 s60, s2, 2")
        e("s_add_u32 s60, s60, s52")
        e("s_lshl_b32 s60, s60, 7")
        e(f"s_add_u32 s60, s60, {WS_PART}")
        self.vgrp(2, 4, False)
        self.vgrp(3, 0, False)
        self.plog(True)
        self.ts(3)
        e("s_mov_b32 exec_lo, 0x00ff00ff")
        e("s_mov_b32 exec_hi, 0xff00ff00")
        e("s_nop 3")
        for j in range(4):
            e(f"ds_write_b128 v13, v[{48+4*j}:{51+4*j}] offset:{L_RED + j*256}")
        e("s_mov_b64 exec, -1")
        e("s_waitcnt lgkmcnt(0)")
        e("s_barrier")
        for i in range(4):
            e(f"ds_read_b64 v[{64+2*i}:{65+2*i}], v14 offset:{L_RED + i*1024}")
        e("s_waitcnt lgkmcnt(2)")
        e("v_add_f32 v64, v64, v66")
        e("v_add_f32 v65, v65, v67")
        e("s_waitcnt lgkmcnt(0)")
        e("v_add_f32 v68, v68, v70")
        e("v_add_f32 v69, v69, v71")
        e("v_add_f32 v64, v64, v68")
        e("v_add_f32 v65, v65, v69")
        e("v_mov_b32 v66, v64")
        e("v_mov_b32 v67, v65")
        e("s_nop 0")
        e("v_permlane32_swap_b32 v64, v66")
        e("v_permlane32_swap_b32 v65, v67")
        e("s_nop 0")
        e("v_add_f32 v64, v64, v66")
        e("v_add_f32 v65, v65, v67")
        e("v_cvt_pk_bf16_f32 v64, v64, v65")
        e("v_min_u32 v64, -2, v64")
        e("s_mov_b32 exec_hi, 0")
        e("buffer_store_dword v64, v15, s[36:39], s60 offen sc1")
        e("s_mov_b64 exec, -1")
        self.ts(4)
        e("s_cmp_eq_u32 s68, 3")
        e("s_cbranch_scc1 .Lfin")
        self.poll_begin()
        e("v_mov_b32 v14, 0")
        self.label(".Lrd")
        e("v_readfirstlane_b32 s60, v23")
        e("s_cmp_ge_u32 s60, 256")
        e("s_cbranch_scc1 .Lrdok")
        e("buffer_load_dword v23, v14, s[48:51], 0 offen sc1")
        e("s_waitcnt vmcnt(0)")
        self.poll_again(".Lrd")
        self.label(".Lrdok")
        e("s_cmp_eq_u32 s68, 1")
        e("s_cbranch_scc1 .LstageG")
        e("s_cmp_eq_u32 s68, 2")
        e("s_cbranch_scc1 .LstageD")
        self.stageW()
        self.stageG()
        self.stageD()

        self.label(".Lfin")
        if o['ts']:
            self.ts(8)
            e("s_waitcnt lgkmcnt(0)")
            e("s_lshl_b32 s60, s2, 2")
            e("s_add_u32 s60, s60, s52")
            e("s_lshl_b32 s60, s60, 6")
            e(f"s_add_u32 s60, s60, {WS_TS}")
            e("v_mov_b32 v13, 0")
            e("s_getreg_b32 s63, hwreg(HW_REG_XCC_ID)")
            for i in range(13):
                e(f"v_mov_b32 v{64+i}, s{70+2*i}")
            e("v_mov_b32 v77, s63")
            e("v_mov_b32 v78, s62")
            e("v_mov_b32 v79, s68")
            e("s_mov_b64 exec, 1")
            for i in range(4):
                e(f"buffer_store_dwordx4 v[{64+4*i}:{67+4*i}], v13, s[36:39], s60 offen offset:{16*i}")
            if o['prof']:
                e("s_mov_b64 exec, -1")
                e("s_lshl_b32 s60, s2, 2")
                e("s_add_u32 s60, s60, s52")
                e("s_lshl_b32 s60, s60, 8")
                e(f"s_add_u32 s60, s60, {WS_PROF}")
                e("v_lshlrev_b32 v13, 2, v1")
                e("buffer_store_dword v0, v13, s[36:39], s60 offen")
        self.label(".Lend")
        e("s_endpgm")
        self.L.append('.section .rodata,"a"')
        self.L.append(".p2align 6")
        self.L.append(f".amdhsa_kernel {NAME}")
        self.L.append(f"  .amdhsa_next_free_vgpr 256")
        self.L.append("  .amdhsa_next_free_sgpr 102")
        self.L.append(f"  .amdhsa_accum_offset 256")
        self.L.append("  .amdhsa_group_segment_fixed_size 0")
        self.L.append("  .amdhsa_kernarg_size 96")
        self.L.append("  .amdhsa_user_sgpr_count 2")
        self.L.append("  .amdhsa_user_sgpr_kernarg_segment_ptr 1")
        self.L.append("  .amdhsa_system_sgpr_workgroup_id_x 1")
        self.L.append("  .amdhsa_float_denorm_mode_32 3")
        self.L.append(".end_amdhsa_kernel")
        return "\n".join(self.L) + "\n"

    def wprefetch(self, pace_n, sfx='', first=1, step=3):
        o = self.o
        def e(x): self.e(x.replace('.Lpf_', '.Lpf' + sfx + '_').replace('s_sub_u32 s101, s52, 1', f's_sub_u32 s101, s52, {first}').replace('s_add_u32 s101, s101, 3', f's_add_u32 s101, s101, {step}'))
        lab0 = self.label
        def label(x): lab0(x.replace('.Lpf_', '.Lpf' + sfx + '_'))
        e("s_cmp_eq_u32 s68, 1")
        e("s_cbranch_scc1 .Lpf_g")
        e("s_cmp_eq_u32 s68, 2")
        e("s_cbranch_scc1 .Lpf_d")
        self.srd(40, 12, 3670016)
        e("s_mul_i32 s60, s69, 37")
        e("s_lshr_b32 s60, s60, 8")
        e("s_mul_i32 s63, s60, 7")
        e("s_sub_u32 s63, s69, s63")
        e(f"s_mul_i32 s60, s60, {512*896}")
        e("s_lshl_b32 s63, s63, 7")
        e("s_add_u32 s60, s60, s63")
        e("v_lshrrev_b32 v13, 3, v1")
        e("v_mul_u32_u24 v13, 896, v13")
        e("v_and_b32 v14, 7, v1")
        e("v_lshl_add_u32 v13, v14, 4, v13")
        e("v_add_u32 v13, s60, v13")
        e(f"s_mov_b32 s99, {8*896}")
        e("s_mov_b32 s100, 64")
        e("s_branch .Lpf_go")
        label(".Lpf_g")
        self.srd(40, 16, 1605632)
        self.srd(44, 18, 1605632)
        e("s_lshl_b32 s60, s69, 6")
        e("v_lshrrev_b32 v13, 2, v1")
        e("v_mul_u32_u24 v13, 3584, v13")
        e("v_lshl_add_u32 v13, v31, 4, v13")
        e("v_add_u32 v13, s60, v13")
        e("s_sub_u32 s101, s52, 1")
        label(".Lpf_gl")
        if pace_n: e(f"s_waitcnt vmcnt({pace_n-1})")
        e(f"s_mul_i32 s60, s101, {16*3584}")
        e("s_lshl_b32 s63, s101, 10")
        e(f"s_add_u32 s63, s63, {L_W}")
        e("s_mov_b32 m0, s63")
        e(f"s_add_u32 s63, s63, {L_U - L_W}")
        e(f"buffer_load_dwordx4 v13, s[40:43], s60 offen {o['wpol']} lds")
        e("s_mov_b32 m0, s63")
        e("s_add_u32 s101, s101, 3")
        e(f"buffer_load_dwordx4 v13, s[44:47], s60 offen {o['wpol']} lds")
        e("s_cmp_lt_u32 s101, 28")
        e("s_cbranch_scc1 .Lpf_gl")
        e("s_branch .Lpf_done")
        label(".Lpf_d")
        self.srd(40, 20, 1605632)
        e("s_lshl_b32 s60, s69, 5")
        e("v_lshrrev_b32 v13, 1, v1")
        e("v_mul_u32_u24 v13, 896, v13")
        e("v_and_b32 v14, 1, v1")
        e("v_lshl_add_u32 v13, v14, 4, v13")
        e("v_add_u32 v13, s60, v13")
        e(f"s_mov_b32 s99, {32*896}")
        e("s_mov_b32 s100, 56")
        if o['dpol'] != o['wpol']:
            e("s_sub_u32 s101, s52, 1")
            label(".Lpf_dl")
            if pace_n: e(f"s_waitcnt vmcnt({pace_n})")
            e("s_mul_i32 s60, s101, s99")
            e("s_lshl_b32 s63, s101, 10")
            e(f"s_add_u32 s63, s63, {L_W}")
            e("s_mov_b32 m0, s63")
            e("s_add_u32 s101, s101, 3")
            e(f"buffer_load_dwordx4 v13, s[40:43], s60 offen {o['dpol']} lds")
            e("s_cmp_lt_u32 s101, s100")
            e("s_cbranch_scc1 .Lpf_dl")
            e("s_branch .Lpf_done")
        label(".Lpf_go")
        e("s_sub_u32 s101, s52, 1")
        label(".Lpf_l")
        if pace_n: e(f"s_waitcnt vmcnt({pace_n})")
        e("s_mul_i32 s60, s101, s99")
        e("s_lshl_b32 s63, s101, 10")
        e(f"s_add_u32 s63, s63, {L_W}")
        e("s_mov_b32 m0, s63")
        e("s_add_u32 s101, s101, 3")
        e(f"buffer_load_dwordx4 v13, s[40:43], s60 offen {o['wpol']} lds")
        e("s_cmp_lt_u32 s101, s100")
        e("s_cbranch_scc1 .Lpf_l")

    def epoch_bump(self):
        e = self.e
        e("s_or_b32 s60, s2, s52")
        e("s_cmp_lg_u32 s60, 0")
        e("s_cbranch_scc1 .Lnoep")
        e("v_mov_b32 v15, s55")
        e("s_mov_b64 exec, 1")
        e(f"buffer_store_dword v15, v14, s[36:39], 0 offen offset:{WS_EPOCH} sc1")
        e("s_mov_b64 exec, -1")
        self.label(".Lnoep")

    def stageW(self):
        e = self.e
        self.c("stage W")
        if not self.o.get('dyn'): self.epoch_bump()
        e("s_mul_i32 s60, s69, 37")
        e("s_lshr_b32 s60, s60, 8")
        e("s_lshl_b32 s60, s60, 1")
        e("s_lshr_b32 s63, s52, 1")
        e("s_add_u32 s60, s60, s63")
        e("s_lshl_b32 s60, s60, 12")
        e("s_and_b32 s63, s52, 1")
        e("s_lshl_b32 s63, s63, 8")
        e("s_add_u32 s60, s60, s63")
        e(f"s_add_u32 s60, s60, {WS_PART}")
        e("v_and_b32 v13, 1, v1")
        e("v_lshlrev_b32 v13, 16, v13")
        e("v_bfe_u32 v14, v1, 1, 3")
        e("v_lshl_add_u32 v13, v14, 9, v13")
        e("v_lshrrev_b32 v14, 4, v1")
        e("v_lshl_add_u32 v13, v14, 4, v13")
        for t in range(4):
            e(f"buffer_load_dwordx4 v[{64+4*t}:{67+4*t}], v13, s[36:39], s60 offen offset:{t*64} sc1")
        e("v_lshlrev_b32 v14, 7, v29")
        e("v_lshl_add_u32 v14, v31, 3, v14")
        e("s_lshl_b32 s63, s52, 14")
        e("v_add_u32 v14, s63, v14")
        for t in range(4):
            for ct in range(4):
                r = 128 + 16 * t + 4 * ct
                e(f"ds_read_b64_tr_b16 v[{r}:{r+1}], v14 offset:{L_W + t*4096 + ct*32}")
                e(f"ds_read_b64_tr_b16 v[{r+2}:{r+3}], v14 offset:{L_W + t*4096 + ct*32 + 512}")
            e("s_waitcnt lgkmcnt(4)")
        e("v_lshrrev_b32 v15, 5, v1")
        e("v_lshlrev_b32 v15, 8, v15")
        e("v_and_b32 v16, 31, v1")
        e("v_lshl_add_u32 v15, v16, 2, v15")
        e("s_lshl_b32 s63, s52, 9")
        e(f"s_add_u32 s63, s63, {L_R2}")
        e("v_add_u32 v15, s63, v15")
        e("v_lshlrev_b32 v16, 3, v1")
        e("s_lshl_b32 s63, s69, 9")
        e(f"s_add_u32 s63, s63, {WS_Y}")
        self.poll_begin()
        e("s_branch .Lwchk")
        self.label(".Lwpoll")
        for t in range(4):
            e(f"buffer_load_dwordx4 v[{64+4*t}:{67+4*t}], v13, s[36:39], s60 offen offset:{t*64} sc1")
        self.label(".Lwchk")
        e("s_waitcnt vmcnt(0)")
        e("v_max3_u32 v98, v64, v65, v66")
        e("v_max3_u32 v99, v67, v68, v69")
        e("v_max3_u32 v98, v98, v70, v71")
        e("v_max3_u32 v99, v99, v72, v73")
        e("v_max3_u32 v98, v98, v74, v75")
        e("v_max3_u32 v99, v99, v76, v77")
        e("v_max3_u32 v98, v98, v78, v79")
        e("v_max_u32 v98, v98, v99")
        e("v_cmp_eq_u32 vcc, -1, v98")
        e("s_and_b64 exec, exec, vcc")
        e("s_cbranch_execz .Lwok")
        self.poll_again(".Lwpoll")
        self.label(".Lwok")
        e("s_mov_b64 exec, -1")
        self.ts(5)
        e("s_waitcnt lgkmcnt(0)")
        for t in range(4):
            for ct in range(4):
                cin = "0" if t == 0 else f"v[{80+4*ct}:{83+4*ct}]"
                r = 128 + 16 * t + 4 * ct
                e(f"v_mfma_f32_16x16x32_bf16 v[{80+4*ct}:{83+4*ct}], v[{64+4*t}:{67+4*t}], v[{r}:{r+3}], {cin}")
        e("s_nop 4")
        for ct in range(4):
            e(f"v_add_f32 v{80+4*ct}, v{80+4*ct}, v{82+4*ct}")
            e(f"v_add_f32 v{81+4*ct}, v{81+4*ct}, v{83+4*ct}")
        e("s_nop 0")
        for ct in range(4):
            e(f"v_permlane32_swap_b32 v{80+4*ct}, v{81+4*ct}")
        for ct in range(4):
            e(f"v_add_f32 v{80+4*ct}, v{80+4*ct}, v{81+4*ct}")
        e("s_nop 0")
        e("v_permlane16_swap_b32 v80, v84")
        e("v_permlane16_swap_b32 v88, v92")
        e("s_nop 0")
        e("v_add_f32 v80, v80, v84")
        e("v_add_f32 v88, v88, v92")
        e("ds_write2_b32 v15, v80, v88 offset0:0 offset1:32")
        e("s_waitcnt lgkmcnt(0)")
        e("s_barrier")
        e("s_cmp_lg_u32 s52, 0")
        e("s_cbranch_scc1 .Lfin")
        for w in range(4):
            e(f"ds_read_b64 v[{64+2*w}:{65+2*w}], v16 offset:{L_R2 + 512*w}")
        e("s_waitcnt lgkmcnt(2)")
        e("v_add_f32 v64, v64, v66")
        e("v_add_f32 v65, v65, v67")
        e("s_waitcnt lgkmcnt(0)")
        e("v_add_f32 v68, v68, v70")
        e("v_add_f32 v69, v69, v71")
        e("v_add_f32 v64, v64, v68")
        e("v_add_f32 v65, v65, v69")
        e("v_min_u32 v64, -2, v64")
        e("v_min_u32 v65, -2, v65")
        e("buffer_store_dwordx2 v[64:65], v16, s[36:39], s63 offen sc1")
        e("s_branch .Lfin")

    def stageG(self):
        e = self.e
        self.label(".LstageG")
        e("s_and_b32 s60, s52, 1")
        e("s_mul_i32 s60, s60, 56")
        e("v_add_u32 v14, s60, v1")
        e("v_lshrrev_b32 v13, 4, v14")
        e("v_lshlrev_b32 v13, 9, v13")
        e("v_and_b32 v15, 15, v14")
        e("v_lshl_add_u32 v13, v15, 4, v13")
        e("s_lshr_b32 s63, s52, 1")
        e("s_lshl_b32 s60, s63, 8")
        e(f"s_add_u32 s60, s60, {WS_Y}")
        e("v_add_u32 v13, s60, v13")
        e("s_mul_i32 s63, s63, 896")
        e("v_lshl_add_u32 v16, v14, 3, s63")
        self.srd(40, 4, 1792)
        e("s_mov_b32 s64, -1")
        e("s_mov_b32 s65, 0x00ffffff")
        for i in range(32):
            e(f"v_mov_b32 v{64+i}, 0")
        e("v_mov_b32 v104, 0")
        e("v_mov_b32 v105, 0")
        e("s_mov_b64 exec, s[64:65]")
        e("buffer_load_dwordx2 v[104:105], v16, s[40:43], 0 offen")
        for p in range(4):
            e(f"s_mov_b32 s{44+p}, {7168*p}")
        for p in range(8):
            e(f"buffer_load_dwordx4 v[{64+4*p}:{67+4*p}], v13, s[36:39], s{44+p//2} offen offset:{3584*(p&1)} sc1")
        e("s_mov_b64 exec, -1")
        e("v_lshlrev_b32 v14, 6, v29")
        e("v_and_b32 v15, 1, v1")
        e("v_lshl_add_u32 v14, v15, 3, v14")
        e("v_bfe_u32 v15, v1, 1, 1")
        e(f"v_mul_u32_u24 v15, {L_U - L_W}, v15")
        e("v_add_u32 v14, v14, v15")
        e("s_lshl_b32 s60, s52, 4")
        e("v_add_u32 v14, s60, v14")
        for ks in range(14):
            e(f"ds_read_b64_tr_b16 v[{160+4*ks}:{161+4*ks}], v14 offset:{L_W + ks*2048}")
            e(f"ds_read_b64_tr_b16 v[{162+4*ks}:{163+4*ks}], v14 offset:{L_W + ks*2048 + 256}")
            if ks == 6:
                e("s_waitcnt lgkmcnt(6)")
        e("s_lshl_b32 s60, s52, 3")
        e("v_mov_b32 v17, s60")
        e("s_and_b32 s60, s60, 16")
        e("v_mov_b32 v18, s60")
        e("v_bfe_u32 v14, v1, 3, 1")
        e("v_lshlrev_b32 v14, 4, v14")
        e("v_and_b32 v15, 7, v1")
        e("v_lshl_add_u32 v28, v15, 1, v14")
        e("s_lshl_b32 s63, s69, 2")
        e("s_add_u32 s63, s63, s52")
        e("s_lshl_b32 s63, s63, 7")
        e(f"s_add_u32 s63, s63, {WS_ACT}")
        e("v_and_b32 v14, 8, v1")
        e("v_cmp_ne_u32 s[66:67], 0, v14")
        e("s_waitcnt vmcnt(8)")
        e("v_lshlrev_b32 v100, 16, v104")
        e("v_and_b32 v101, 0xffff0000, v104")
        e("v_lshlrev_b32 v102, 16, v105")
        e("v_and_b32 v103, 0xffff0000, v105")
        e("s_mov_b64 exec, s[64:65]")
        self.poll_begin()
        e("s_branch .Lgchk")
        self.label(".Lgpoll")
        for p in range(8):
            e(f"buffer_load_dwordx4 v[{64+4*p}:{67+4*p}], v13, s[36:39], s{44+p//2} offen offset:{3584*(p&1)} sc1")
        self.label(".Lgchk")
        for p in range(0, 8, 2):
            e(f"s_waitcnt vmcnt({6-p})")
            for i in range(4):
                e(f"v_add_f32 v{108+2*p+i}, v{64+4*p+i}, v{68+4*p+i}")
        for i in range(4):
            e(f"v_add_f32 v{108+i}, v{108+i}, v{112+i}")
            e(f"v_add_f32 v{116+i}, v{116+i}, v{120+i}")
        for i in range(4):
            e(f"v_add_f32 v{108+i}, v{108+i}, v{116+i}")
        e("v_add_f32 v112, v110, v111")
        e("v_add_f32 v113, v108, v109")
        e("v_cmp_u_f32 vcc, v112, v113")
        e("s_and_b64 exec, exec, vcc")
        e("s_cbranch_execz .Lgok")
        self.poll_again(".Lgpoll")
        self.label(".Lgok")
        e("s_mov_b64 exec, s[64:65]")
        self.ts(5)
        e("v_cvt_pk_bf16_f32 v112, v108, v109")
        e("v_cvt_pk_bf16_f32 v113, v110, v111")
        e("v_lshlrev_b32 v108, 16, v112")
        e("v_and_b32 v109, 0xffff0000, v112")
        e("v_lshlrev_b32 v110, 16, v113")
        e("v_and_b32 v111, 0xffff0000, v113")
        for i in range(4): e(f"v_add_f32 v{108+i}, v{108+i}, v{100+i}")
        e("v_cvt_pk_bf16_f32 v112, v108, v109")
        e("v_cvt_pk_bf16_f32 v113, v110, v111")
        e("v_lshlrev_b32 v108, 16, v112")
        e("v_and_b32 v109, 0xffff0000, v112")
        e("v_lshlrev_b32 v110, 16, v113")
        e("v_and_b32 v111, 0xffff0000, v113")
        e("v_add_f32 v64, v108, v109")
        e("v_mul_f32 v65, v108, v108")
        e("v_add_f32 v64, v64, v110")
        e("v_fmac_f32 v65, v109, v109")
        e("v_add_f32 v64, v64, v111")
        e("v_fmac_f32 v65, v110, v110")
        e("v_fmac_f32 v65, v111, v111")
        e("s_mov_b64 exec, -1")
        e("s_nop 0")
        for st in ("quad_perm:[1,0,3,2] row_mask:0xf bank_mask:0xf", "quad_perm:[2,3,0,1] row_mask:0xf bank_mask:0xf",
                   "row_half_mirror row_mask:0xf bank_mask:0xf", "row_mirror row_mask:0xf bank_mask:0xf",
                   "row_bcast:15 row_mask:0xa bank_mask:0xf", "row_bcast:31 row_mask:0xc bank_mask:0xf"):
            e(f"v_add_f32_dpp v64, v64, v64 {st}")
            e(f"v_add_f32_dpp v65, v65, v65 {st}")
            e("s_nop 0")
        e("s_mov_b32 exec_lo, 0")
        e("s_mov_b32 exec_hi, 0x80000000")
        e(f"ds_write_b64 v17, v[64:65] offset:{L_ST}")
        e("s_mov_b64 exec, -1")
        e("s_waitcnt lgkmcnt(0)")
        e("s_barrier")
        e(f"ds_read_b128 v[64:67], v18 offset:{L_ST}")
        e("s_waitcnt lgkmcnt(0)")
        e("v_add_f32 v64, v64, v66")
        e("v_add_f32 v65, v65, v67")
        e(f"v_mul_f32 v64, {hex(f2u(1.0/448))}, v64")
        e(f"v_mul_f32 v65, {hex(f2u(1.0/448))}, v65")
        e("v_fma_f32 v65, -v64, v64, v65")
        e("v_cvt_pk_bf16_f32 v66, v64, v65")
        e("v_and_b32 v65, 0xffff0000, v66")
        e("v_lshlrev_b32 v64, 16, v66")
        e(f"v_add_f32 v65, {hex(f2u(1e-5))}, v65")
        self.bf16r("v65", "v65")
        e("v_sqrt_f32 v65, v65")
        for i in range(4): e(f"v_sub_f32 v{108+i}, v{108+i}, v64")
        self.bf16r("v65", "v65")
        e("v_rcp_f32 v65, v65")
        e("v_cvt_pk_bf16_f32 v112, v108, v109")
        e("v_cvt_pk_bf16_f32 v113, v110, v111")
        e("v_lshlrev_b32 v108, 16, v112")
        e("v_and_b32 v109, 0xffff0000, v112")
        e("v_lshlrev_b32 v110, 16, v113")
        e("v_and_b32 v111, 0xffff0000, v113")
        for i in range(4): e(f"v_mul_f32 v{108+i}, v{108+i}, v65")
        e("v_cvt_pk_bf16_f32 v112, v108, v109")
        e("v_cvt_pk_bf16_f32 v113, v110, v111")
        e("s_mov_b64 exec, s[64:65]")
        e(f"ds_write_b64 v16, v[112:113] offset:{L_XN}")
        e("s_mov_b64 exec, -1")
        e("s_waitcnt lgkmcnt(0)")
        e("s_barrier")
        for ks in range(14):
            e(f"ds_read_b128 v[{104+4*ks}:{107+4*ks}], v30 offset:{L_XN + ks*64}")
        for ks in range(14):
            e(f"s_waitcnt lgkmcnt({13-ks})")
            cin = "0" if ks == 0 else "v[64:67]"
            e(f"v_mfma_f32_16x16x32_bf16 v[64:67], v[{104+4*ks}:{107+4*ks}], v[{160+4*ks}:{163+4*ks}], {cin}")
        k1 = -2.0 * math.sqrt(2.0 / math.pi) * math.log2(math.e)
        e(f"v_mov_b32 v74, {hex(f2u(k1))}")
        e("s_nop 6")
        e("v_mov_b32_dpp v68, v64 row_ror:8 row_mask:0xf bank_mask:0xf")
        e("v_mov_b32_dpp v69, v65 row_ror:8 row_mask:0xf bank_mask:0xf")
        e("v_cndmask_b32 v70, v64, v69, s[66:67]")
        e("v_cndmask_b32 v71, v68, v65, s[66:67]")
        e("v_cvt_pk_bf16_f32 v72, v70, v71")
        e("v_lshlrev_b32 v70, 16, v72")
        e("v_and_b32 v71, 0xffff0000, v72")
        e("v_mul_f32 v73, v70, v70")
        e(f"v_fmamk_f32 v73, v73, {hex(f2u(k1 * 0.044715))}, v74")
        e("v_mul_f32 v73, v73, v70")
        e("v_exp_f32 v73, v73")
        e("s_nop 0")
        e("v_add_f32 v73, 1.0, v73")
        e("v_rcp_f32 v73, v73")
        e("s_nop 0")
        e("v_mul_f32 v73, v73, v70")
        self.bf16r("v73", "v73")
        e("v_mul_f32 v73, v73, v71")
        e("s_nop 1")
        e("v_mov_b32_dpp v74, v73 quad_perm:[1,0,3,2] row_mask:0xf bank_mask:0xf")
        e("v_cvt_pk_bf16_f32 v75, v73, v74")
        e("v_min_u32 v75, -2, v75")
        e("s_mov_b64 exec, 0x5555")
        e("buffer_store_dword v75, v28, s[36:39], s63 offen sc1")
        e("s_mov_b64 exec, -1")
        e("s_branch .Lfin")

    def stageD(self):
        e = self.e
        self.label(".LstageD")
        e("v_lshlrev_b32 v13, 5, v29")
        e("v_lshl_add_u32 v13, v31, 3, v13")
        e("s_mul_i32 s60, s52, 14336")
        e("v_add_u32 v13, s60, v13")
        for t in range(14):
            e(f"ds_read_b64_tr_b16 v[{160+4*t}:{161+4*t}], v13 offset:{L_W + t*1024}")
            e(f"ds_read_b64_tr_b16 v[{162+4*t}:{163+4*t}], v13 offset:{L_W + t*1024 + 128}")
            if t == 6:
                e("s_waitcnt lgkmcnt(6)")
        e("s_cmp_lg_u32 s52, 0")
        e("s_cbranch_scc1 .Ld_noh")
        self.srd(40, 4, 1792)
        e("v_bfe_u32 v13, v1, 4, 1")
        e("v_mul_u32_u24 v15, 896, v13")
        e("v_and_b32 v14, 15, v1")
        e("v_lshl_add_u32 v15, v14, 1, v15")
        e("s_lshl_b32 s60, s69, 5")
        e("v_add_u32 v26, s60, v15")
        e("buffer_load_ushort v27, v26, s[40:43], 0 offen")
        e("v_lshlrev_b32 v13, 8, v13")
        e("v_lshl_add_u32 v13, v14, 2, v13")
        e("s_lshr_b32 s60, s69, 2")
        e("s_lshl_b32 s60, s60, 9")
        e("s_and_b32 s63, s69, 3")
        e("s_lshl_b32 s63, s63, 6")
        e("s_add_u32 s60, s60, s63")
        e(f"s_add_u32 s60, s60, {WS_Y}")
        e("v_add_u32 v13, s60, v13")
        for p in range(4):
            e(f"s_mov_b32 s{44+p}, {7168*p}")
        e("s_mov_b32 exec_hi, 0")
        self.poll_begin()
        self.label(".Lhpoll")
        for p in range(8):
            e(f"buffer_load_dword v{64+p}, v13, s[36:39], s{44+p//2} offen offset:{3584*(p&1)} sc1")
        e("s_waitcnt vmcnt(0)")
        for p in range(4):
            e(f"v_add_f32 v{72+p}, v{64+2*p}, v{65+2*p}")
        e("v_add_f32 v72, v72, v73")
        e("v_add_f32 v74, v74, v75")
        e("v_add_f32 v76, v72, v74")
        e("v_cmp_u_f32 vcc, v76, v76")
        e("s_and_b64 exec, exec, vcc")
        e("s_cbranch_execz .Lhok")
        self.poll_again(".Lhpoll")
        self.label(".Lhok")
        e("s_mov_b64 exec, -1")
        self.bf16r("v76", "v76")
        e("v_lshlrev_b32 v27, 16, v27")
        e("v_add_f32 v27, v27, v76")
        self.bf16r("v27", "v27")
        self.srd(44, 22, 1792)
        self.label(".Ld_noh")
        e("v_and_b32 v13, 1, v1")
        e("v_lshlrev_b32 v13, 4, v13")
        e("v_lshrrev_b32 v14, 4, v1")
        e("v_lshl_add_u32 v13, v14, 7, v13")
        e("s_mul_i32 s60, s52, 7168")
        e(f"s_add_u32 s60, s60, {WS_ACT}")
        e("s_add_u32 s63, s60, 3584")
        for i in range(56):
            e(f"v_mov_b32 v{104+i}, 0")
        e("v_lshlrev_b32 v15, 4, v1")
        e("s_lshl_b32 s58, s52, 2")
        e("v_add_u32 v15, s58, v15")
        e("v_and_b32 v16, 31, v1")
        e("v_lshlrev_b32 v16, 4, v16")
        e("s_mov_b32 exec_lo, 0x00030003")
        e("s_mov_b32 exec_hi, 0x00030003")
        self.poll_begin()
        self.label(".Ldpoll")
        for t in range(14):
            e(f"buffer_load_dwordx4 v[{104+4*t}:{107+4*t}], v13, s[36:39], {'s60' if t < 7 else 's63'} offen offset:{(t%7)*512} sc1")
        e("s_waitcnt vmcnt(7)")
        e("v_max_u32 v98, v104, v105")
        e("v_max_u32 v99, v106, v107")
        for i in range(108, 160, 4):
            if i == 132: e("s_waitcnt vmcnt(0)")
            e(f"v_max3_u32 v98, v98, v{i}, v{i+1}")
            e(f"v_max3_u32 v99, v99, v{i+2}, v{i+3}")
        e("v_max_u32 v98, v98, v99")
        e("v_cmp_eq_u32 vcc, -1, v98")
        e("s_and_b64 exec, exec, vcc")
        e("s_cbranch_execz .Ldok")
        self.poll_again(".Ldpoll")
        self.label(".Ldok")
        e("s_mov_b64 exec, -1")
        self.ts(5)
        e("s_waitcnt lgkmcnt(0)")
        for t in range(14):
            cin = "0" if t == 0 else "v[64:67]"
            e(f"v_mfma_f32_16x16x32_bf16 v[64:67], v[{104+4*t}:{107+4*t}], v[{160+4*t}:{163+4*t}], {cin}")
        e("s_mov_b64 exec, 0xffff")
        e("s_nop 6")
        e(f"ds_write_b32 v15, v64 offset:{L_R2}")
        e(f"ds_write_b32 v15, v65 offset:{L_R2 + 256}")
        e("s_mov_b64 exec, -1")
        e("s_waitcnt lgkmcnt(0)")
        e("s_barrier")
        e("s_cmp_lg_u32 s52, 0")
        e("s_cbranch_scc1 .Lfin")
        e(f"ds_read_b128 v[64:67], v16 offset:{L_R2}")
        e("s_waitcnt lgkmcnt(0)")
        e("v_add_f32 v64, v64, v65")
        e("v_add_f32 v66, v66, v67")
        e("v_add_f32 v64, v64, v66")
        self.bf16r("v64", "v64")
        e("v_add_f32 v64, v64, v27")
        e("v_cvt_pk_bf16_f32 v64, v64, v64")
        e("s_mov_b32 exec_hi, 0")
        e("buffer_store_short v64, v26, s[44:47], 0 offen")
        e("s_mov_b64 exec, -1")

if __name__ == "__main__":
    out = sys.argv[1]
    kw = json.loads(sys.argv[2]) if len(sys.argv) > 2 else {}
    open(out, "w").write(Gen(**kw).build())
```

```python
import sys, json, struct, math
from gen2 import *
import gen2

class Gen(gen2.Gen):
    def __init__(self, **kw):
        d = dict(NSH=3, PV=4, NO=2, c0=2, cmax=3, csh=6, pace=14, late='', early=False, quit=(0,0,0), dyn='', order='DGW')
        d.update(kw)
        super().__init__(**d)
        if self.o['dyn']: self.o['late'] = self.o['dyn']

    def ktile(self, kb, wait, reissue, rtag=None):
        e = self.e
        for i in range(8):
            e(f"v_mov_b32 v{11+i}, 0")
        for g in range(4):
            wait(g)
            for i in range(16):
                e(f"v_dot2c_f32_bf16 v{11+2*g+(i&1)}, v{kb+g*16+i}, v{32+i}")
            if reissue:
                self.ld(kb, g, rtag and (rtag, g))
        if reissue or self.o['prof'] != 2: self.plog()
        if not reissue: e("s_nop 2")
        for g in range(4):
            e(f"v_add_f32 v{11+2*g}, v{11+2*g}, v{12+2*g}")
        for st in ("quad_perm:[1,0,3,2]", "quad_perm:[2,3,0,1]", "row_half_mirror"):
            for g in range(4):
                e(f"v_add_f32_dpp v{11+2*g}, v{11+2*g}, v{11+2*g} {st} row_mask:0xf bank_mask:0xf")
        e("v_cvt_pk_bf16_f32 v24, v11, v13")
        e("v_cvt_pk_bf16_f32 v25, v15, v17")
        e("ds_write_b64 v19, v[24:25]")
        e("v_add_u32 v19, 64, v19")

    def pcalc(self, groups):
        e = self.e
        for g in groups:
            src = 24 if g < 2 else 25
            if g & 1: e(f"v_and_b32 v{11+g}, 0xffff0000, v{src}")
            else: e(f"v_lshlrev_b32 v{11+g}, 16, v{src}")
        for g in groups: e(f"v_fma_f32 v{11+g}, v{11+g}, s59, v10")
        for g in groups: e(f"v_exp_f32 v{11+g}, v{11+g}")
        for g in groups: e(f"v_cvt_pk_bf16_f32 v{15+g}, v{11+g}, v{11+g}")
        for g in groups:
            for r in range(4):
                e(f"v_and_b32 v{32+4*g+r}, v{6+r}, v{15+g}")

    def ticket(self, off=0, amount="1"):
        e = self.e
        e(f"v_mov_b32 v22, {amount}")
        e("s_mov_b64 exec, 1")
        e(f"buffer_atomic_add v22, v21, s[36:39], 0 offen offset:{off} sc0 sc1")
        e("s_mov_b64 exec, -1")

    def sc_addr(self, t):
        e = self.e
        e(f"s_and_b32 s98, {t}, 31")
        e("s_lshl_b32 s98, s98, 9")
        e(f"s_lshr_b32 s63, {t}, 5")
        e("s_lshl_b32 s63, s63, 6")
        e("s_add_u32 s98, s98, s63")

    def build(self):
        o = self.o; e = self.e
        PD = o['PD']; NSH = o['NSH']; NH = o['NH']; PV = o['PV']; NO = o['NO']
        ND = 32 * NSH
        NF = ND - NH
        NTK = NF + 2 * NH
        B1 = ND + 24 * PV
        B2 = B1 + 32 * NO
        assert PD <= 2 and PD + 1 <= NSH <= 8 and NO >= 2 and PV <= 4 and B2 <= 512
        def pace():
            if o['pace']: e(f"s_waitcnt vmcnt({o['pace']})")
        self.L.append(f"; @launch grid=(256,1,1) block=(256,1,1) lds={LDS_BYTES}")
        self.L.append('.amdgcn_target "amdgcn-amd-amdhsa--gfx950"')
        self.L.append(".text")
        self.L.append(f".globl {NAME}")
        self.L.append(".p2align 8")
        self.L.append(f".type {NAME},@function")
        self.label(NAME)
        e("s_cmp_ge_u32 s2, 256")
        e("s_cbranch_scc1 .Lend")
        e("s_load_dwordx16 s[4:19], s[0:1], 0")
        e("s_load_dwordx8 s[20:27], s[0:1], 64")
        if o['ts']:
            self.ts(0)
            for i in range(72, 96): e(f"s_mov_b32 s{i}, 0")
        e("v_and_b32 v1, 63, v0")
        e("v_lshrrev_b32 v2, 6, v0")
        e("s_and_b32 s53, s2, 7")
        if o['prof']:
            e("s_mov_b32 s3, 0")
            e("v_mov_b32 v0, 0")
        e("v_readfirstlane_b32 s52, v2")
        e("s_lshr_b32 s54, s2, 3")
        e(f"s_mul_i32 s61, s54, {o['rot']}")
        e("v_lshrrev_b32 v20, 3, v1")
        e("v_lshlrev_b32 v2, 9, v20")
        e("v_and_b32 v3, 7, v1")
        e("v_lshl_or_b32 v2, v3, 4, v2")
        e("v_add_u32 v3, 4096, v2")
        e("v_add_u32 v4, 8192, v2")
        e("v_add_u32 v5, 12288, v2")
        e("s_lshl_b32 s58, s53, 2")
        e("s_add_u32 s58, s58, s52")
        e("s_mov_b32 s56, s58")
        self.tile_addr()
        e("s_lshl_b32 s60, s54, 23")
        e("s_mov_b32 s30, 0x800000")
        e("s_mov_b32 s31, 0x20000")
        e("s_cmp_eq_u32 s52, 0")
        e("s_waitcnt lgkmcnt(0)")
        e("s_cbranch_scc1 .Lskip1")
        e("s_add_u32 s28, s6, s60")
        e("s_addc_u32 s29, s7, 0")
        self.q = []
        for g in range(2): self.ld(64, g, ('A', g))
        self.label(".Lskip1")
        e("s_add_u32 s28, s6, s60")
        e("s_addc_u32 s29, s7, 0")
        e("s_add_u32 s32, s8, s60")
        e("s_addc_u32 s33, s9, 0")
        e("s_mov_b32 s34, 0x800000")
        e("s_mov_b32 s35, 0x20000")
        self.srd(36, 26, WS_SIZE)
        self.srd(48, 24, 256)
        e("s_cmp_lg_u32 s52, 0")
        e("s_cbranch_scc1 .Lw123")
        saveq = list(self.q)

        self.c("wave 0: q slice")
        e("s_setprio 3")
        self.q = []
        self.srd(40, 4, 1792)
        self.srd(44, 10, 3670016)
        e("s_lshl_b32 s60, s53, 5")
        e("s_add_u32 s63, s60, s54")
        e("s_lshl_b32 s60, s63, 5")
        e("v_lshrrev_b32 v13, 1, v1")
        e("v_lshlrev_b32 v13, 13, v13")
        e("v_and_b32 v14, 1, v1")
        e("v_lshl_add_u32 v13, v14, 4, v13")
        e("v_add_u32 v13, s60, v13")
        e("v_and_b32 v16, 31, v1")
        e("v_cmp_gt_u32 s[64:65], 28, v16")
        e("v_lshrrev_b32 v14, 5, v1")
        e("v_mul_u32_u24 v14, 896, v14")
        e("v_lshl_add_u32 v28, v16, 5, v14")
        e("v_mov_b32 v16, 0x10000")
        e("v_cndmask_b32 v16, v16, v28, s[64:65]")
        e("v_mov_b32 v15, 0")
        self.vm(f"buffer_load_dword v26, v15, s[36:39], 0 offen offset:{WS_EPOCH} sc1", 'E')
        self.vm("buffer_load_dwordx4 v[64:67], v16, s[40:43], 0 offen", 'x')
        self.vm("buffer_load_dwordx4 v[68:71], v16, s[40:43], 0 offen offset:16", 'x')
        for ks in range(14):
            e(f"s_mov_b32 m0, {L_WQ + ks * 1024}")
            e(f"s_mov_b32 s60, {ks * 262144}")
            self.vm(f"buffer_load_dwordx4 v13, s[44:47], s60 offen {o['wqpol']} lds", 'wq')
        e("s_and_b32 s60, s63, 15")
        e("s_cmp_lg_u32 s60, 0")
        e("s_cbranch_scc1 .Lnocinit")
        e("s_lshr_b32 s60, s63, 4")
        e("s_lshl_b32 s60, s60, 8")
        e("v_and_b32 v14, 1, v1")
        e("v_lshlrev_b32 v14, 12, v14")
        e("v_lshrrev_b32 v17, 1, v1")
        e("v_lshl_add_u32 v14, v17, 7, v14")
        e("v_add_u32 v14, s60, v14")
        e("s_mov_b64 exec, 15")
        e(f"v_add_u32 v14, {WS_CNT}, v14")
        e("buffer_store_dword v15, v14, s[36:39], 0 offen sc1")
        e("s_mov_b64 exec, -1")
        self.label(".Lnocinit")
        e("s_mov_b32 s96, s63")
        if o['prof'] == 2: self.plog()
        self.setup(0)
        e("s_mov_b32 s63, s96")
        e("v_lshlrev_b32 v17, 5, v29")
        e("v_lshl_add_u32 v17, v31, 3, v17")
        self.vwait('x')
        e("v_readfirstlane_b32 s55, v26")
        e("s_mul_i32 s55, s55, 0x9e3779b1")
        e("s_add_u32 s55, s55, 0x7f4a7c15")
        for i in range(7, -1, -1):
            e(f"v_and_b32 v{80+2*i+1}, 0xffff0000, v{64+i}")
            e(f"v_lshlrev_b32 v{80+2*i}, 16, v{64+i}")
        self.layernorm16(80, 96, "s[64:65]")
        e("s_mov_b64 exec, s[64:65]")
        e(f"ds_write_b128 v28, v[80:83] offset:{L_XN}")
        e(f"ds_write_b128 v28, v[84:87] offset:{L_XN+16}")
        e("s_mov_b64 exec, -1")
        e("v_mov_b32 v73, s55")
        e(f"ds_write_b32 v15, v73 offset:{L_TAG}")
        e(f"ds_write_b32 v15, v15 offset:{L_CNT}")
        e("s_waitcnt lgkmcnt(0)")
        for ks in range(14):
            e(f"ds_read_b128 v[{104+4*ks}:{107+4*ks}], v30 offset:{L_XN + ks*64}")
        e("v_and_b32 v13, 1, v1")
        e("v_lshlrev_b32 v14, 14, v13")
        e("v_cmp_eq_u32 vcc, 1, v13")
        e("v_lshrrev_b32 v13, 1, v1")
        e("v_lshl_add_u32 v14, v13, 3, v14")
        e("s_lshl_b32 s60, s63, 6")
        e(f"s_add_u32 s60, s60, {WS_Q}")
        e("v_add_u32 v14, s60, v14")
        e("s_waitcnt vmcnt(0)")
        self.q = []
        for ks in range(14):
            e(f"ds_read_b64_tr_b16 v[{160+4*ks}:{161+4*ks}], v17 offset:{L_WQ + ks*1024}")
            e(f"ds_read_b64_tr_b16 v[{162+4*ks}:{163+4*ks}], v17 offset:{L_WQ + ks*1024 + 128}")
            if ks == 6:
                e("s_waitcnt lgkmcnt(6)")
        e("s_waitcnt lgkmcnt(0)")
        for ks in range(14):
            cin = "0" if ks == 0 else "v[64:67]"
            e(f"v_mfma_f32_16x16x32_bf16 v[64:67], v[{104+4*ks}:{107+4*ks}], v[{160+4*ks}:{163+4*ks}], {cin}")
        e("s_nop 7")
        e("v_mov_b32_dpp v68, v64 quad_perm:[1,0,3,2] row_mask:0xf bank_mask:0xf")
        e("v_mov_b32_dpp v69, v65 quad_perm:[1,0,3,2] row_mask:0xf bank_mask:0xf")
        e("v_cndmask_b32 v70, v64, v69, vcc")
        e("v_cndmask_b32 v71, v68, v65, vcc")
        e("v_cvt_pk_bf16_f32 v72, v70, v71")
        e("s_mov_b64 exec, 0xffff")
        e("buffer_store_dwordx2 v[72:73], v14, s[36:39], 0 offen sc1")
        e("s_mov_b64 exec, -1")
        self.ts(1)
        e("s_lshl_b32 s60, s54, 10")
        e(f"s_add_u32 s60, s60, {WS_Q}")
        e("v_lshlrev_b32 v13, 4, v1")
        self.poll_begin()
        self.label(".Lqpoll")
        e("buffer_load_dwordx4 v[128:131], v13, s[36:39], s60 offen sc1")
        e("s_waitcnt vmcnt(0)")
        e("v_cmp_ne_u32 vcc, s55, v129")
        e("v_cmp_ne_u32 s[66:67], s55, v131")
        e("s_or_b64 vcc, vcc, s[66:67]")
        e("s_cbranch_vccz .Lqok")
        self.poll_again(".Lqpoll")
        self.label(".Lqok")
        e("v_lshlrev_b32 v13, 3, v1")
        e(f"ds_write2_b32 v13, v128, v130 offset0:{L_Q//4} offset1:{L_Q//4+1}")
        for g in range(4): self.ld(64, g)
        if o['prof'] == 2: self.plog()
        e("s_waitcnt lgkmcnt(0)")
        e("s_setprio 0")
        self.ts(2)
        e("s_barrier")
        e("v_and_b32 v13, 7, v1")
        e("v_lshlrev_b32 v13, 4, v13")
        for j in range(4):
            e(f"ds_read_b128 v[{32+4*j}:{35+4*j}], v13 offset:{L_Q + j*128}")
        e("s_mov_b32 s99, 0")
        e(f"s_mov_b32 s97, {NSH}")
        e(f"s_mov_b32 s101, {NSH + NO}")
        e("s_waitcnt lgkmcnt(0)")
        e("s_branch .Lkloop")

        self.label(".Lw123")
        self.q = saveq
        for g in range(2, 4): self.ld(64, g, ('A', g))
        if o['prof'] == 2: self.plog()
        self.setup(PV)
        e("s_cmp_lg_u32 s52, 1")
        e("s_cbranch_scc1 .Lnoreset")
        for i in range(4): e(f"v_mov_b32 v{24+i}, -1")
        e("v_lshlrev_b32 v13, 4, v1")
        e("s_lshl_b32 s60, s2, 9")
        e(f"s_add_u32 s60, s60, {WS_PART}")
        e("s_mov_b32 exec_hi, 0")
        e("buffer_store_dwordx4 v[24:27], v13, s[36:39], s60 offen sc1")
        e("s_cmp_lg_u32 s68, 0")
        e("s_cbranch_scc1 .Lrs1")
        e("s_lshl_b32 s60, s69, 9")
        e(f"s_add_u32 s60, s60, {WS_Y}")
        e("buffer_store_dwordx4 v[24:27], v13, s[36:39], s60 offen sc1")
        self.label(".Lrs1")
        e("s_cmp_lg_u32 s68, 1")
        e("s_cbranch_scc1 .Lrs2")
        e("s_lshl_b32 s60, s69, 9")
        e(f"s_add_u32 s60, s60, {WS_ACT}")
        e("buffer_store_dwordx4 v[24:27], v13, s[36:39], s60 offen sc1")
        self.label(".Lrs2")
        e("s_mov_b64 exec, -1")
        self.label(".Lnoreset")
        for p in range(PD):
            e("s_add_u32 s56, s56, 32")
            self.tile_addr()
            for g in range(4): pace(); self.ld(128 + 64 * p, g, (f'E{p}', g))
            if o['prof'] == 2: self.plog()
        if o['nopf']: e("s_branch .Lpf_done")
        e("s_cmp_eq_u32 s68, 3")
        e("s_cbranch_scc1 .Lpf_done")
        for ch in o['late']:
            e(f"s_cmp_eq_u32 s68, {'WGD'.index(ch)}")
            e("s_cbranch_scc1 .Lpf_done")
        self.wprefetch(pace_n=o['pace'] + 3 if o['pace'] else 0)
        self.label(".Lpf_done")
        if o['prof'] == 2:
            e("s_cmp_eq_u32 s68, 3")
            e("s_cbranch_scc1 .Lpf_done2")
            self.plog()
            self.label(".Lpf_done2")
        for p in range(PV):
            e(f"v_readlane_b32 s56, v23, {NSH + p}")
            self.tile_addr()
            for g in range(4):
                pace()
                for j in range(4):
                    r = 64 * p + g * 16 + j * 4
                    self.vm(f"buffer_load_dwordx4 a[{r}:{r+3}], v{2+g}, s[32:35], s57 offen offset:{j*128} {o['kvpol']}", 'X')
            if o['prof'] == 2: self.plog()
        self.ts(1)
        e("s_barrier")
        self.ts(2)
        e("v_and_b32 v13, 7, v1")
        e("v_lshlrev_b32 v13, 4, v13")
        e("v_mov_b32 v14, 0")
        e(f"ds_read_b32 v26, v14 offset:{L_TAG}")
        for j in range(4):
            e(f"ds_read_b128 v[{32+4*j}:{35+4*j}], v13 offset:{L_Q + j*128}")
        e(f"v_readlane_b32 s56, v23, {PD + 1}")
        self.tile_addr()
        e("s_waitcnt lgkmcnt(0)")
        e("v_readfirstlane_b32 s55, v26")
        self.ktile(64, lambda g: self.vwait(('A', g)), True, rtag='A2')
        for p in range(PD):
            self.ktile(128 + 64 * p, lambda g: self.vwait((f'E{p}', g)), False)
        for p in range(PV if o['prof'] != 2 else 0): self.plog()
        e(f"s_mov_b32 s99, {PD + 1}")
        e(f"s_mov_b32 s97, {NSH + PV}")
        e(f"s_mov_b32 s101, {NSH + PV + NO}")
        e("s_cmp_lg_u32 s52, 1")
        e("s_cbranch_scc1 .Lkloop")
        if PD == 0: e("s_waitcnt vmcnt(16)")
        e("v_mov_b32 v22, 1")
        e("v_mov_b32 v13, 0")
        e("s_mov_b64 exec, 1")
        e("buffer_atomic_add v22, v13, s[48:51], 0 offen sc1")
        e("s_mov_b64 exec, -1")

        w12 = lambda g: e("s_waitcnt vmcnt(12)")
        self.label(".Lkloop")
        e(f"s_cmp_lg_u32 s99, {NSH}")
        e("s_cbranch_scc1 .Lk0")
        e("s_lshl_b32 s60, s52, 11")
        e(f"s_add_u32 s60, s60, {L_SC}")
        e("v_lshl_add_u32 v14, v1, 4, s60")
        e("ds_read_b128 v[24:27], v14")
        e("s_lshl_b32 s60, s2, 2")
        e("s_add_u32 s60, s60, s52")
        e("s_lshl_b32 s60, s60, 9")
        e(f"s_add_u32 s60, s60, {WS_SC}")
        e("v_lshlrev_b32 v13, 4, v1")
        e(f"s_mov_b32 exec_lo, {hex((1 << (4 * NSH)) - 1)}")
        e("s_mov_b32 exec_hi, 0")
        e("s_waitcnt lgkmcnt(0)")
        e("buffer_store_dwordx4 v[24:27], v13, s[36:39], s60 offen sc1")
        e("s_mov_b64 exec, -1")
        e(f"s_mov_b32 s100, {B2}")
        e(f"s_mov_b32 s96, {o['c0']}")
        self.label(".Lk0")
        e("s_add_u32 s99, s99, 1")
        e("s_mov_b32 s58, s99")
        e("s_cmp_lt_u32 s99, s101")
        e("s_cbranch_scc1 .Lk2")
        e("s_waitcnt vmcnt(16)")
        e("v_readfirstlane_b32 s56, v22")
        e(f"s_add_u32 s56, s56, {B2}")
        e("s_cmp_lt_u32 s56, 512")
        e("s_cbranch_scc1 .Lk1")
        e("s_mov_b64 s[28:29], s[32:33]")
        e("s_mov_b32 s58, s97")
        e("s_mov_b32 s101, 0")
        e("s_branch .Lk2")
        self.label(".Lk1")
        e("s_add_u32 s100, s56, s96")
        e("s_min_u32 s100, s100, 512")
        e("s_sub_u32 s60, s56, s99")
        e("v_add_u32 v13, s60, v1")
        e("v_cmp_le_u32 vcc, s99, v1")
        e("s_sub_u32 s101, s100, s60")
        e("s_sub_u32 s96, 512, s100")
        e("v_cndmask_b32 v23, v23, v13, vcc")
        e(f"s_lshr_b32 s96, s96, {o['csh']}")
        e("s_max_u32 s96, s96, 1")
        e(f"s_min_u32 s96, s96, {o['cmax']}")
        self.label(".Lk2")
        e("v_readlane_b32 s56, v23, s58")
        e("s_add_u32 s60, s99, 1")
        e("s_cmp_lg_u32 s60, s101")
        e("s_cbranch_scc1 .Lk3")
        e("v_mov_b32 v22, 0x10000")
        e(f"s_cmp_gt_u32 s101, {32 - o['cmax']}")
        e("s_cbranch_scc1 .Lk3")
        self.ticket(128, "s96")
        self.label(".Lk3")
        self.tile_addr()
        self.ktile(64, w12, True)
        e("s_cmp_lg_u32 s101, 0")
        e("s_cbranch_scc1 .Lkloop")
        self.ts(6)
        e("s_lshl_b32 s60, s52, 11")
        e(f"s_add_u32 s60, s60, {L_SC}")
        e("v_lshl_add_u32 v13, v1, 4, s60")
        e("ds_read_b128 v[128:131], v13")
        e("ds_read_b128 v[144:147], v13 offset:1024")
        e("v_lshrrev_b32 v19, 3, v1")
        e(f"s_add_u32 s60, s60, {NSH * 64}")
        e("v_lshl_add_u32 v19, v19, 3, s60")
        e("s_waitcnt lgkmcnt(0)")
        for i in range(4):
            e(f"v_and_b32 v{149+2*i}, 0xffff0000, v{144+i}")
            e(f"v_lshlrev_b32 v{148+2*i}, 16, v{144+i}")
        for i in range(4):
            e(f"v_and_b32 v{133+2*i}, 0xffff0000, v{128+i}")
            e(f"v_lshlrev_b32 v{132+2*i}, 16, v{128+i}")
        e("v_max3_f32 v140, v132, v133, v134")
        e("v_max3_f32 v141, v135, v136, v137")
        e("v_max3_f32 v140, v140, v138, v139")
        e("v_max3_f32 v141, v141, v148, v149")
        e("v_max3_f32 v140, v140, v150, v151")
        e("v_max3_f32 v141, v141, v152, v153")
        e("v_max3_f32 v140, v140, v154, v155")
        e("v_max_f32 v140, v140, v141")
        self.full_reduce("v_max_f32", "v140", "v141")
        e("v_mul_f32 v10, s59, v140")
        e("v_sub_f32 v10, 0, v10")
        for i in range(8): e(f"v_fma_f32 v{132+i}, v{132+i}, s59, v10")
        for i in range(8): e(f"v_fma_f32 v{148+i}, v{148+i}, s59, v10")
        for i in range(8): e(f"v_exp_f32 v{132+i}, v{132+i}")
        for i in range(8): e(f"v_exp_f32 v{148+i}, v{148+i}")
        e("s_nop 0")
        for i in range(8): e(f"v_add_f32 v{132+i}, v{132+i}, v{148+i}")
        for i in range(4): e(f"v_add_f32 v{132+i}, v{132+i}, v{136+i}")
        e("v_add_f32 v132, v132, v133")
        e("v_add_f32 v134, v134, v135")
        e("v_add_f32 v142, v132, v134")
        self.full_reduce("v_add_f32", "v142", "v141")
        e("v_mov_b32 v141, s55")
        e("v_mov_b32 v143, s55")
        e("s_lshl_b32 s60, s2, 2")
        e("s_add_u32 s60, s60, s52")
        e("s_lshl_b32 s60, s60, 4")
        e(f"s_add_u32 s60, s60, {WS_ML}")
        e("v_mov_b32 v13, 0")
        e("s_mov_b64 exec, 1")
        e("buffer_store_dwordx4 v[140:143], v13, s[36:39], s60 offen sc1")
        e("s_mov_b64 exec, -1")
        e("s_lshl_b32 s98, s54, 9")
        e(f"s_add_u32 s98, s98, {WS_ML}")
        e("v_and_b32 v28, 31, v1")
        e("v_lshlrev_b32 v28, 4, v28")
        e("s_add_u32 s58, s97, 1")
        e("s_sub_u32 s99, s99, 1")
        if PV:
            e("s_cmp_eq_u32 s52, 0")
            e("s_cbranch_scc1 .Lvloop")
            for p in range(PV):
                e("ds_read_b64 v[24:25], v19")
                e("v_add_u32 v19, 64, v19")
                e("s_waitcnt lgkmcnt(0)")
                self.pcalc(range(4))
                for g in range(4):
                    for j in range(4):
                        r = 64 * p + g * 16 + j * 4
                        e(f"v_mfma_f32_16x16x32_bf16 v[{48+4*j}:{51+4*j}], v[{32+4*g}:{35+4*g}], a[{r}:{r+3}], v[{48+4*j}:{51+4*j}]")
        self.label(".Lvloop")
        e("ds_read_b64 v[24:25], v19")
        e("v_add_u32 v19, 64, v19")
        e("v_readlane_b32 s56, v23, s58")
        e("s_cmp_lt_u32 s58, s99")
        e("s_cbranch_scc1 .Lv1")
        self.ticket()
        e("buffer_load_dwordx4 v[128:131], v28, s[36:39], s98 offen sc1")
        e("v_mov_b32 v13, 0")
        e("buffer_load_dword v23, v13, s[48:51], 0 offen sc1")
        self.label(".Lv1")
        self.tile_addr()
        e("s_add_u32 s58, s58, 1")
        e("s_waitcnt lgkmcnt(0)")
        self.pcalc(range(4))
        for g in range(4): self.vgrp(g, 12, True)
        self.plog()
        e("s_cmp_le_u32 s58, s99")
        e("s_cbranch_scc1 .Lvloop")
        self.ts(7)
        e("ds_read_b64 v[24:25], v19")
        e("s_waitcnt vmcnt(16)")
        self.poll_begin()
        self.label(".Lmlchk")
        e("v_cmp_ne_u32 vcc, s55, v129")
        e("v_cmp_ne_u32 s[66:67], s55, v131")
        e("s_or_b64 vcc, vcc, s[66:67]")
        e("s_cbranch_vccz .Lmlok")
        e("buffer_load_dwordx4 v[128:131], v28, s[36:39], s98 offen sc1")
        e("s_waitcnt vmcnt(0)")
        self.poll_again(".Lmlchk")
        self.label(".Lmlok")
        e("v_mov_b32 v132, v128")
        self.half_reduce("v_max_f32", "v132", "v133")
        e("v_sub_f32 v128, v128, v132")
        e("v_mul_f32 v128, s59, v128")
        e("v_exp_f32 v128, v128")
        e("s_nop 0")
        e("v_mul_f32 v130, v130, v128")
        self.half_reduce("v_add_f32", "v130", "v133")
        e("v_log_f32 v130, v130")
        e("s_nop 0")
        e("v_fma_f32 v130, v132, s59, v130")
        e("v_add_f32 v131, v10, v130")
        e("v_sub_f32 v10, 0, v130")
        e("v_exp_f32 v131, -v131")
        e("s_waitcnt lgkmcnt(0)")
        for i in range(16):
            e(f"v_mul_f32 v{48+i}, v{48+i}, v131")
        e("s_mov_b32 s100, 0x10000")
        for r in range(3):
            if o['quit'][r]:
                e(f"s_cmp_eq_u32 s68, {r}")
                e(f"s_cselect_b32 s100, {NTK - o['quit'][r]}, s100")
        e("s_mov_b32 s101, 0")
        def qticket():
            e("s_cmp_lt_u32 s96, s100")
            e("s_cselect_b32 s63, 1, 0")
            e("s_cselect_b32 s101, 0, 0x10000")
            self.ticket(0, "s63")
        self.label(".Ldloop")
        e("s_waitcnt vmcnt(16)")
        e("v_readfirstlane_b32 s96, v22")
        self.pcalc(range(4))
        e("s_max_u32 s56, s96, s101")
        e(f"s_cmp_ge_u32 s56, {NF}")
        e("s_cbranch_scc1 .Lfx")
        self.tile_addr()
        self.sc_addr("s56")
        e("buffer_load_dwordx2 v[24:25], v20, s[36:39], s98 offen sc1")
        qticket()
        for g in range(4): self.vgrp(g, 14, True)
        self.plog()
        e("s_branch .Ldloop")
        self.label(".Lfx")
        self.vgrp(0, 12, False)
        self.vgrp(1, 8, False)
        self.plog(True)
        e("s_branch .Lh2")
        self.label(".Lhloop")
        e("s_waitcnt vmcnt(8)")
        e("v_readfirstlane_b32 s96, v22")
        self.pcalc([2, 3])
        e("s_max_u32 s56, s96, s101")
        self.label(".Lh2")
        e(f"s_cmp_ge_u32 s56, {NTK}")
        e("s_cbranch_scc1 .Llast")
        e(f"s_add_u32 s60, s56, {NF}")
        e("s_lshr_b32 s56, s60, 1")
        self.tile_addr()
        self.sc_addr("s56")
        e("s_and_b32 s60, s60, 1")
        e("s_lshl_b32 s63, s60, 13")
        e("s_add_u32 s57, s57, s63")
        e("s_lshl_b32 s60, s60, 2")
        e("s_add_u32 s98, s98, s60")
        e("buffer_load_dword v25, v20, s[36:39], s98 offen sc1")
        qticket()
        for g in (2, 3):
            e("s_waitcnt vmcnt(6)")
            for j in range(4):
                r = 64 + g * 16 + j * 4
                e(f"v_mfma_f32_16x16x32_bf16 v[{48+4*j}:{51+4*j}], v[{32+4*g}:{35+4*g}], v[{r}:{r+3}], v[{48+4*j}:{51+4*j}]")
            for j in range(4):
                r = 64 + g * 16 + j * 4
                e(f"buffer_load_dwordx4 v[{r}:{r+3}], v{g}, s[28:31], s57 offen offset:{j*128} {o['kvpol']}")
        self.plog(True)
        e("s_branch .Lhloop")
        self.label(".Llast")
        self.tail()
        nacc = 64 * PV
        self.L.append('.section .rodata,"a"')
        self.L.append(".p2align 6")
        self.L.append(f".amdhsa_kernel {NAME}")
        self.L.append(f"  .amdhsa_next_free_vgpr {256 + nacc}")
        self.L.append("  .amdhsa_next_free_sgpr 102")
        self.L.append(f"  .amdhsa_accum_offset 256")
        self.L.append("  .amdhsa_group_segment_fixed_size 0")
        self.L.append("  .amdhsa_kernarg_size 96")
        self.L.append("  .amdhsa_user_sgpr_count 2")
        self.L.append("  .amdhsa_user_sgpr_kernarg_segment_ptr 1")
        self.L.append("  .amdhsa_system_sgpr_workgroup_id_x 1")
        self.L.append("  .amdhsa_float_denorm_mode_32 3")
        self.L.append(".end_amdhsa_kernel")
        return "\n".join(self.L) + "\n"

    def setup(self, pv):
        e = self.e; o = self.o
        NSH = o['NSH']; PV = o['PV']
        B1 = 32 * NSH + 24 * PV
        lab = self.newlab("role")
        e(f"s_mov_b32 s59, {hex(f2u(math.log2(math.e) / 16.0))}")
        e("s_add_u32 s60, s53, s54")
        e("s_and_b32 s60, s60, 7")
        e("s_lshr_b32 s68, s60, 1")
        e("s_and_b32 s63, s60, 1")
        e("s_lshl_b32 s63, s63, 5")
        e("s_lshl_b32 s69, s68, 3")
        e("s_add_u32 s69, s69, s54")
        e("s_and_b32 s69, s69, 31")
        e("s_add_u32 s69, s69, s63")
        e("s_cmp_ge_u32 s69, 56")
        e("s_cselect_b32 s68, 3, s68")
        e("s_cmp_lt_u32 s60, 4")
        e(f"s_cbranch_scc1 {lab}")
        e("s_and_b32 s69, s54, 7")
        e("s_lshl_b32 s69, s69, 2")
        e("s_lshr_b32 s63, s54, 3")
        e("s_add_u32 s69, s69, s63")
        e("s_cmp_lt_u32 s69, 28")
        e("s_cselect_b32 s68, 2, 3")
        e("s_cmp_eq_u32 s60, 4")
        e("s_cselect_b32 s68, s68, 3")
        self.label(lab)
        e("v_and_b32 v6, 1, v1")
        e("v_mov_b32 v10, 0xffff")
        e("v_lshlrev_b32 v6, 4, v6")
        e("v_lshlrev_b32 v10, v6, v10")
        e("v_bfe_u32 v11, v1, 1, 2")
        for r in range(4):
            e(f"v_cmp_eq_u32 vcc, {r}, v11")
            e("s_nop 1")
            e(f"v_cndmask_b32 v{6+r}, 0, v10, vcc")
        for i in range(16):
            e(f"v_mov_b32 v{48+i}, 0")
        e("s_lshl_b32 s60, s54, 8")
        e(f"s_add_u32 s60, s60, {WS_CNT}")
        e("v_mov_b32 v21, s60")
        e("s_lshl_b32 s60, s52, 11")
        e(f"s_add_u32 s60, s60, {L_SC}")
        e("v_lshl_add_u32 v19, v20, 3, s60")
        e("v_lshl_add_u32 v27, v1, 4, s60")
        for i in range(4): e(f"v_mov_b32 v{32+i}, 0xff80ff80")
        e("ds_write_b128 v27, v[32:35]")
        e("ds_write_b128 v27, v[32:35] offset:1024")
        e("s_lshl_b32 s60, s54, 14")
        e(f"s_add_u32 s60, s60, {WS_SC}")
        e("v_lshl_add_u32 v20, v20, 3, s60")
        e("v_lshrrev_b32 v11, 4, v1")
        e("v_bfe_u32 v29, v1, 2, 2")
        e("v_lshl_add_u32 v29, v11, 3, v29")
        e("v_and_b32 v31, 3, v1")
        e("v_and_b32 v10, 1, v1")
        e("v_mul_u32_u24 v30, 896, v10")
        e("v_lshl_add_u32 v30, v11, 4, v30")
        e("v_lshl_add_u32 v23, v1, 5, s58")
        e(f"v_add_u32 v10, {B1 - 32 * (NSH + pv)}, v23")
        e(f"v_cmp_le_u32 vcc, {NSH}, v1")
        e("s_nop 1")
        e("v_cndmask_b32 v23, v23, v10, vcc")
        if pv:
            e("s_mul_i32 s60, s53, 3")
            e("s_add_u32 s60, s60, s52")
            e(f"s_add_u32 s60, s60, {8 * NSH - 1}")
            e("v_mov_b32 v10, s60")
            e("v_mad_u32_u24 v10, v1, 24, v10")
            e(f"v_subrev_u32 v11, {NSH}, v1")
            e(f"v_cmp_gt_u32 vcc, {pv}, v11")
            e("s_nop 1")
            e("v_cndmask_b32 v23, v23, v10, vcc")

    def tail(self):
        e = self.e; o = self.o
        dyn = o['dyn']
        if dyn:
            e("v_mov_b32 v16, 0")
            e("v_mov_b32 v17, 1")
            e("s_mov_b64 exec, 1")
            e(f"ds_add_rtn_u32 v18, v16, v17 offset:{L_CNT}")
            e("s_mov_b64 exec, -1")
        e("v_lshrrev_b32 v13, 5, v1")
        e("v_lshlrev_b32 v13, 10, v13")
        e("v_and_b32 v14, 7, v1")
        e("v_lshl_add_u32 v13, v14, 5, v13")
        e("v_bfe_u32 v14, v1, 4, 1")
        e("v_lshl_add_u32 v13, v14, 4, v13")
        e("s_lshl_b32 s60, s52, 11")
        e("v_add_u32 v13, s60, v13")
        e("v_lshrrev_b32 v14, 5, v1")
        e("v_lshlrev_b32 v14, 12, v14")
        e("v_and_b32 v15, 31, v1")
        e("v_lshl_add_u32 v14, v15, 3, v14")
        e("s_lshl_b32 s60, s52, 8")
        e("v_add_u32 v14, s60, v14")
        e("v_lshlrev_b32 v15, 2, v15")
        e("s_lshl_b32 s60, s2, 2")
        e("s_add_u32 s60, s60, s52")
        e("s_lshl_b32 s60, s60, 7")
        e(f"s_add_u32 s60, s60, {WS_PART}")
        if dyn:
            e("s_waitcnt lgkmcnt(0)")
            e("v_readfirstlane_b32 s63, v18")
            if 'W' not in dyn:
                e("s_cmp_eq_u32 s68, 0")
                e("s_cselect_b32 s63, 0, s63")
            e("s_cmp_lg_u32 s63, 3")
            e("s_cbranch_scc1 .Lnort")
            e("s_mov_b64 exec, 1")
            e("buffer_atomic_add v17, v16, s[48:51], 0 offen offset:128 sc0 sc1")
            e("s_mov_b64 exec, -1")
            self.vgrp(2, 5, False)
            self.vgrp(3, 1, False)
            e("s_waitcnt vmcnt(0)")
            e("s_mov_b64 exec, 1")
            e(f"ds_write_b32 v16, v17 offset:{L_CNT + 4}")
            e("s_mov_b64 exec, -1")
            e("s_branch .Lrt")
            self.label(".Lnort")
        self.vgrp(2, 4, False)
        self.vgrp(3, 0, False)
        self.label(".Lrt")
        self.plog(True)
        self.ts(3)
        e("s_mov_b32 exec_lo, 0x00ff00ff")
        e("s_mov_b32 exec_hi, 0xff00ff00")
        e("s_nop 3")
        for j in range(4):
            e(f"ds_write_b128 v13, v[{48+4*j}:{51+4*j}] offset:{L_RED + j*256}")
        e("s_mov_b64 exec, -1")
        e("s_waitcnt lgkmcnt(0)")
        e("s_barrier")
        if dyn: e(f"ds_read_b32 v17, v16 offset:{L_CNT + 4}")
        for i in range(4):
            e(f"ds_read_b64 v[{64+2*i}:{65+2*i}], v14 offset:{L_RED + i*1024}")
        e("s_waitcnt lgkmcnt(2)")
        e("v_add_f32 v64, v64, v66")
        e("v_add_f32 v65, v65, v67")
        e("s_waitcnt lgkmcnt(0)")
        e("v_add_f32 v68, v68, v70")
        e("v_add_f32 v69, v69, v71")
        e("v_add_f32 v64, v64, v68")
        e("v_add_f32 v65, v65, v69")
        e("v_mov_b32 v66, v64")
        e("v_mov_b32 v67, v65")
        e("s_nop 0")
        e("v_permlane32_swap_b32 v64, v66")
        e("v_permlane32_swap_b32 v65, v67")
        e("s_nop 0")
        e("v_add_f32 v64, v64, v66")
        e("v_add_f32 v65, v65, v67")
        e("v_cvt_pk_bf16_f32 v64, v64, v65")
        e("v_min_u32 v64, -2, v64")
        e("s_mov_b32 exec_hi, 0")
        e("buffer_store_dword v64, v15, s[36:39], s60 offen sc1")
        e("s_mov_b64 exec, -1")
        self.ts(4)
        if dyn:
            if 'W' not in dyn:
                e("s_cmp_eq_u32 s68, 0")
                e("s_cbranch_scc1 .Lroled")
            e("v_readfirstlane_b32 s69, v17")
            e("s_mov_b32 s68, 3")
            order = [ch for ch in o['order'] if ch in dyn]
            for ch in order:
                n = 28 if ch == 'D' else 56
                e(f"s_mov_b32 s68, {'WGD'.index(ch)}")
                e(f"s_cmp_lt_u32 s69, {n}")
                e("s_cbranch_scc1 .Lroleld")
                e(f"s_sub_u32 s69, s69, {n}")
            e("s_mov_b32 s68, 3")
            e("s_branch .Lroled")
            self.label(".Lroleld")
            self.wprefetch(0, sfx='L', first=0, step=4)
            self.label(".LpfL_done")
            e("s_waitcnt vmcnt(0)")
            e("s_barrier")
            self.ts(9)
            self.label(".Lroled")
        else:
            e("s_cmp_eq_u32 s68, 3")
            e("s_cbranch_scc1 .Lfin")
            if o['late']:
                for ch in 'WGD':
                    if ch not in o['late']:
                        e(f"s_cmp_eq_u32 s68, {'WGD'.index(ch)}")
                        e("s_cbranch_scc1 .Llate_skip")
                self.wprefetch(0, sfx='L', first=0, step=4)
                self.label(".LpfL_done")
                e("s_waitcnt vmcnt(0)")
                e("s_barrier")
                self.ts(9)
                self.label(".Llate_skip")
        self.poll_begin()
        e("v_mov_b32 v14, 0")
        self.label(".Lrd")
        e("v_readfirstlane_b32 s60, v23")
        e("s_cmp_ge_u32 s60, 256")
        e("s_cbranch_scc1 .Lrdok")
        e("buffer_load_dword v23, v14, s[48:51], 0 offen sc1")
        e("s_waitcnt vmcnt(0)")
        self.poll_again(".Lrd")
        self.label(".Lrdok")
        if dyn:
            self.epoch_bump()
            e("s_cmp_eq_u32 s68, 3")
            e("s_cbranch_scc1 .Lfin")
        e("s_cmp_eq_u32 s68, 1")
        e("s_cbranch_scc1 .LstageG")
        e("s_cmp_eq_u32 s68, 2")
        e("s_cbranch_scc1 .LstageD")
        self.stageW()
        self.stageG()
        self.stageD()
        self.label(".Lfin")
        if o['ts']:
            self.ts(8)
            e("s_waitcnt lgkmcnt(0)")
            e("s_lshl_b32 s60, s2, 2")
            e("s_add_u32 s60, s60, s52")
            e("s_lshl_b32 s60, s60, 6")
            e(f"s_add_u32 s60, s60, {WS_TS}")
            e("v_mov_b32 v13, 0")
            e("s_getreg_b32 s63, hwreg(HW_REG_XCC_ID)")
            for i in range(13):
                e(f"v_mov_b32 v{64+i}, s{70+2*i}")
            e("v_mov_b32 v77, s63")
            e("v_mov_b32 v78, s62")
            e("v_mov_b32 v79, s68")
            e("s_mov_b64 exec, 1")
            for i in range(4):
                e(f"buffer_store_dwordx4 v[{64+4*i}:{67+4*i}], v13, s[36:39], s60 offen offset:{16*i}")
            if o['prof']:
                e("s_mov_b64 exec, -1")
                e("s_lshl_b32 s60, s2, 2")
                e("s_add_u32 s60, s60, s52")
                e("s_lshl_b32 s60, s60, 8")
                e(f"s_add_u32 s60, s60, {WS_PROF}")
                e("v_lshlrev_b32 v13, 2, v1")
                e("buffer_store_dword v0, v13, s[36:39], s60 offen")
        self.label(".Lend")
        e("s_endpgm")

if __name__ == "__main__":
    out = sys.argv[1]
    kw = json.loads(sys.argv[2]) if len(sys.argv) > 2 else {}
    open(out, "w").write(Gen(**kw).build())
```

```python
import sys, json
sys.path.insert(0,'dev')
from util import *
import gen3
a=sys.argv[1:]
for n,j in zip(a[::2],a[1::2]):
    open('dev/'+n,'w').write(gen3.Gen(**json.loads(j)).build())
    co,l=build('dev/'+n)
    p=cl.address_register_problem(co, l[0].kernel)
    print(n, "OK" if p is None else p)
```

```python
import sys, json, struct, math
from gen2 import *
import gen2

class Gen(gen2.Gen):
    def __init__(self, **kw):
        d = dict(NSH=3, PV=4, NO=2, c0=2, cmax=3, csh=6, pace=14, late='', early=False, quit=(0,0,0), dyn='', order='DGW', gs=0, nodot=False, NB=0, dum='', dsp=256, tpol='', remap=None, PA=0, XS=0, epol='sc1', NP=4, cpol='')
        d.update(dict(NSH=6, PV=2, dyn='WGD', order='GWD', wpol='', dpol='', tpol='nt', gs=1))
        d.update(kw)
        super().__init__(**d)
        if self.o['dyn']: self.o['late'] = self.o['dyn']

    def ktile(self, kb, wait, reissue, rtag=None):
        e = self.e
        for i in range(8):
            e(f"v_mov_b32 v{11+i}, 0")
        for g in range(4):
            wait(g)
            for i in range(16 if not self.o['nodot'] else 2):
                e(f"v_dot2c_f32_bf16 v{11+2*g+(i&1)}, v{kb+g*16+i}, v{32+i}")
            if reissue:
                self.ld(kb, g, rtag and (rtag, g))
        if reissue or self.o['prof'] != 2: self.plog()
        if not reissue: e("s_nop 2")
        for g in range(4):
            e(f"v_add_f32 v{11+2*g}, v{11+2*g}, v{12+2*g}")
        for st in ("quad_perm:[1,0,3,2]", "quad_perm:[2,3,0,1]", "row_half_mirror"):
            for g in range(4):
                e(f"v_add_f32_dpp v{11+2*g}, v{11+2*g}, v{11+2*g} {st} row_mask:0xf bank_mask:0xf")
        e("v_cvt_pk_bf16_f32 v24, v11, v13")
        e("v_cvt_pk_bf16_f32 v25, v15, v17")
        e("ds_write_b64 v19, v[24:25]")
        e("v_add_u32 v19, 64, v19")

    def pcalc(self, groups):
        e = self.e
        for g in groups:
            src = 24 if g < 2 else 25
            if g & 1: e(f"v_and_b32 v{11+g}, 0xffff0000, v{src}")
            else: e(f"v_lshlrev_b32 v{11+g}, 16, v{src}")
        for g in groups: e(f"v_fma_f32 v{11+g}, v{11+g}, s59, v10")
        for g in groups: e(f"v_exp_f32 v{11+g}, v{11+g}")
        for g in groups: e(f"v_cvt_pk_bf16_f32 v{15+g}, v{11+g}, v{11+g}")
        for g in groups:
            for r in range(4):
                e(f"v_and_b32 v{32+4*g+r}, v{6+r}, v{15+g}")

    def ticket(self, off=0, amount="1"):
        e = self.e
        e(f"v_mov_b32 v22, {amount}")
        e("s_mov_b64 exec, 1")
        e(f"buffer_atomic_add v22, v21, s[36:39], 0 offen offset:{off} sc0 sc1 {self.o['tpol']}")
        e("s_mov_b64 exec, -1")

    def tile_addr(self, src="s56"):
        k = self.o['gs']; e = self.e
        if k == 0: return super().tile_addr(src)
        e(f"s_lshr_b32 s57, {src}, {k}")
        e(f"s_lshl_b32 s57, s57, {14 + k}")
        e("s_add_u32 s57, s57, s61")
        e(f"s_and_b32 s63, {src}, {(1 << k) - 1}")
        e("s_lshl_b32 s63, s63, 12")
        e("s_add_u32 s57, s57, s63")
        e("s_and_b32 s57, s57, 0x7fffff")

    def sc_addr(self, t):
        e = self.e
        e(f"s_and_b32 s98, {t}, 31")
        e("s_lshl_b32 s98, s98, 9")
        e(f"s_lshr_b32 s63, {t}, 5")
        e("s_lshl_b32 s63, s63, 6")
        e("s_add_u32 s98, s98, s63")

    def build(self):
        o = self.o; e = self.e
        PD = o['PD']; NSH = o['NSH']; NH = o['NH']; PV = o['PV']; NO = o['NO']
        ND = 32 * NSH
        NF = ND - NH
        NTK = NF + 2 * NH
        PA = o['PA']; XS = o['XS'] + PV
        B1 = ND + 24 * XS
        B2 = B1 + 32 * NO
        E1 = PD + PA + 1
        assert 1 <= PD <= 2 and o['dyn'] == 'WGD' and PD + 1 <= NSH <= 8 and NO >= 2 and PV + PA <= 4 and B2 <= 512
        assert max(NSH, E1) + 2 <= NSH + XS + NO
        def pace():
            if o['pace']: e(f"s_waitcnt vmcnt({o['pace']})")
        self.L.append(f"; @launch grid=(256,1,1) block=(256,1,1) lds={LDS_BYTES}")
        self.L.append('.amdgcn_target "amdgcn-amd-amdhsa--gfx950"')
        self.L.append(".text")
        self.L.append(f".globl {NAME}")
        self.L.append(".p2align 8")
        self.L.append(f".type {NAME},@function")
        self.label(NAME)
        e("s_cmp_ge_u32 s2, 256")
        e("s_cbranch_scc1 .Lend")
        e("s_load_dwordx16 s[4:19], s[0:1], 0")
        e("s_load_dwordx8 s[20:27], s[0:1], 64")
        if o['ts']:
            self.ts(0)
            for i in range(72, 96): e(f"s_mov_b32 s{i}, 0")
        e("v_and_b32 v1, 63, v0")
        e("v_lshrrev_b32 v2, 6, v0")
        e("s_and_b32 s53, s2, 7")
        if o['prof']:
            e("s_mov_b32 s3, 0")
            e("v_mov_b32 v0, 0")
        e("v_readfirstlane_b32 s52, v2")
        e("s_lshr_b32 s54, s2, 3")
        e(f"s_mul_i32 s61, s54, {o['rot']}")
        e("v_lshrrev_b32 v20, 3, v1")
        e("v_lshlrev_b32 v2, 9, v20")
        e("v_and_b32 v3, 7, v1")
        e("v_lshlrev_b32 v13, 13, v20")
        e("v_lshl_or_b32 v2, v3, 4, v2")
        e("v_lshl_or_b32 v13, v3, 4, v13")
        S = 4096 << o['gs']
        e(f"v_add_u32 v3, {S}, v2")
        e(f"v_add_u32 v4, {2*S}, v2")
        e(f"v_add_u32 v5, {3*S}, v2")
        e("s_lshl_b32 s58, s53, 2")
        e("s_add_u32 s58, s58, s52")
        e("s_mov_b32 s56, s58")
        self.tile_addr()
        e("s_mov_b32 s30, 0x800000")
        e("s_mov_b32 s31, 0x20000")
        e("s_lshr_b32 s96, s53, 2")
        e("s_lshl_b32 s60, s54, 1")
        e("s_add_u32 s96, s96, s60")
        e(f"s_mul_i32 s60, s52, {112 * 8192}")
        e("s_lshl_b32 s63, s96, 7")
        e("s_add_u32 s60, s60, s63")
        e("v_add_u32 v13, s60, v13")
        e("v_and_b32 v16, 31, v1")
        e("v_cmp_gt_u32 s[64:65], 28, v16")
        e("v_lshrrev_b32 v14, 5, v1")
        e("v_mul_u32_u24 v14, 896, v14")
        e("v_lshl_add_u32 v28, v16, 5, v14")
        e("v_mov_b32 v16, 0x10000")
        e("v_cndmask_b32 v16, v16, v28, s[64:65]")
        e("v_mov_b32 v15, 0")
        e("s_mov_b32 s38, {0}".format(WS_SIZE))
        e("s_mov_b32 s39, 0x20000")
        e("s_mov_b32 s42, 1792")
        e("s_mov_b32 s43, 0x20000")
        e("s_mov_b32 s46, 3670016")
        e("s_mov_b32 s47, 0x20000")
        e(f"s_mul_i32 s97, s52, {14 * 1024}")
        e(f"s_add_u32 s97, s97, {L_W}")
        e("s_lshl_b32 s60, s54, 23")
        e("s_xor_b32 s62, s53, s54")
        e("s_and_b32 s62, s62, 3")
        e("s_waitcnt lgkmcnt(0)")
        self.ts(10)
        e("s_cbranch_scc1 .Lnoprod1")
        e("s_setprio 3")
        e("s_mov_b64 s[40:41], s[4:5]")
        e("s_mov_b64 s[44:45], s[10:11]")
        e("s_and_b32 s63, s96, 3")
        e("s_or_b32 s63, s63, s52")
        e("s_cbranch_scc1 .Lnocinit")
        e("s_mov_b64 s[36:37], s[26:27]")
        e("s_lshl_b32 s63, s96, 6")
        e("v_and_b32 v14, 1, v1")
        e("v_lshlrev_b32 v14, 12, v14")
        e("v_lshrrev_b32 v17, 1, v1")
        e("v_lshl_add_u32 v14, v17, 7, v14")
        e(f"v_add_u32 v14, {WS_CNT}, v14")
        e("s_mov_b64 exec, 15")
        e("buffer_store_dword v15, v14, s[36:39], s63 offen sc1")
        e("s_mov_b64 exec, -1")
        self.label(".Lnocinit")
        e("buffer_load_dwordx4 v[240:243], v16, s[40:43], 0 offen")
        e("buffer_load_dwordx4 v[244:247], v16, s[40:43], 0 offen offset:16")
        for ks in range(14):
            e("s_mov_b32 m0, s97")
            e(f"s_mov_b32 s63, {ks * 65536}")
            e(f"buffer_load_dwordx4 v13, s[44:47], s63 offen {o['wqpol']} lds")
            if ks < 13: e("s_add_u32 s97, s97, 1024")
        self.label(".Lnoprod1")
        e("s_add_u32 s28, s6, s60")
        e("s_addc_u32 s29, s7, 0")
        self.q = []
        for g in range(4): self.ld(64, g, ('A', g))
        e(f"s_load_dword s68, s[26:27], {WS_EPOCH}")
        def tag():
            e("s_mul_i32 s55, s68, 0x9e3779b1")
            e("s_add_u32 s55, s55, 0x7f4a7c15")
        if o['prof'] == 2: self.plog()
        e("s_add_u32 s32, s8, s60")
        e("s_addc_u32 s33, s9, 0")
        e("s_mov_b32 s34, 0x800000")
        e("s_mov_b32 s35, 0x20000")
        e("s_mov_b64 s[36:37], s[26:27]")
        self.srd(48, 24, 256)
        self.setup()
        e("s_cmp_lg_u32 s62, 0")
        e("s_cbranch_scc1 .Ljoin")
        e("v_lshlrev_b32 v17, 7, v29")
        e("v_lshl_add_u32 v17, v31, 3, v17")
        e("s_lshl_b32 s60, s52, 5")
        e(f"s_add_u32 s60, s60, {L_W}")
        e("v_add_u32 v17, s60, v17")
        e("s_waitcnt vmcnt(30)")
        self.ts(11)
        for i in range(8):
            e(f"v_and_b32 v{184+2*i+1}, 0xffff0000, v{240+i}")
            e(f"v_lshlrev_b32 v{184+2*i}, 16, v{240+i}")
        self.layernorm16(184, 200, "s[64:65]")
        e("s_mov_b64 exec, s[64:65]")
        e(f"ds_write_b128 v28, v[184:187] offset:{L_XN}")
        e(f"ds_write_b128 v28, v[188:191] offset:{L_XN+16}")
        e("s_mov_b64 exec, -1")
        e("s_waitcnt lgkmcnt(0)")
        for ks in range(14):
            e(f"ds_read_b128 v[{128+4*ks}:{131+4*ks}], v30 offset:{L_XN + ks*64}")
        tag()
        e("v_mov_b32 v249, s55")
        e("v_and_b32 v13, 1, v1")
        e("v_lshlrev_b32 v14, 14, v13")
        e("v_cmp_eq_u32 vcc, 1, v13")
        e("v_lshrrev_b32 v13, 1, v1")
        e("v_lshl_add_u32 v14, v13, 3, v14")
        e("s_lshl_b32 s60, s96, 2")
        e("s_add_u32 s60, s60, s52")
        e("s_lshl_b32 s60, s60, 6")
        e(f"s_add_u32 s60, s60, {WS_Q}")
        e("s_waitcnt vmcnt(16)")
        e("s_barrier")
        if not o['prof']: self.ts(12)
        for ks in range(14):
            e(f"ds_read_b64_tr_b16 v[{184+4*ks}:{185+4*ks}], v17 offset:{ks*4096}")
            e(f"ds_read_b64_tr_b16 v[{186+4*ks}:{187+4*ks}], v17 offset:{ks*4096 + 512}")
            if ks == 6:
                e("s_waitcnt lgkmcnt(6)")
        e("s_waitcnt lgkmcnt(0)")
        for ks in range(14):
            cin = "0" if ks == 0 else "v[240:243]"
            e(f"v_mfma_f32_16x16x32_bf16 v[240:243], v[{128+4*ks}:{131+4*ks}], v[{184+4*ks}:{187+4*ks}], {cin}")
        e("s_nop 7")
        e("v_mov_b32_dpp v244, v240 quad_perm:[1,0,3,2] row_mask:0xf bank_mask:0xf")
        e("v_mov_b32_dpp v245, v241 quad_perm:[1,0,3,2] row_mask:0xf bank_mask:0xf")
        e("v_cndmask_b32 v246, v240, v245, vcc")
        e("v_cndmask_b32 v247, v244, v241, vcc")
        e("v_cvt_pk_bf16_f32 v248, v246, v247")
        e("s_mov_b64 exec, 0xffff")
        e("buffer_store_dwordx2 v[248:249], v14, s[36:39], s60 offen sc1")
        e("s_mov_b64 exec, -1")
        e("s_setprio 0")
        self.ts(10)
        self.label(".Ljoin")
        e("s_cmp_lg_u32 s52, 1")
        e("s_cbranch_scc1 .Lnoreset")
        for i in range(4): e(f"v_mov_b32 v{24+i}, -1")
        e("v_lshlrev_b32 v13, 4, v1")
        e("s_lshl_b32 s60, s2, 9")
        e(f"s_add_u32 s60, s60, {WS_PART}")
        e("s_mov_b32 exec_hi, 0")
        e("buffer_store_dwordx4 v[24:27], v13, s[36:39], s60 offen sc1")
        e("s_cmp_ge_u32 s2, 112")
        e("s_cbranch_scc1 .Lrs2")
        e("s_lshl_b32 s60, s2, 9")
        e(f"s_add_u32 s60, s60, {WS_Y}")
        e("buffer_store_dwordx4 v[24:27], v13, s[36:39], s60 offen sc1")
        self.label(".Lrs2")
        e("s_mov_b64 exec, -1")
        self.label(".Lnoreset")
        for p in range(PD):
            e("s_add_u32 s56, s56, 32")
            self.tile_addr()
            for g in range(4):
                pace()
                self.ld(128 + 64 * p, g, (f'E{p}', g))
            if o['prof'] == 2: self.plog()
        e("s_cmp_eq_u32 s52, 0")
        e("s_cbranch_scc1 .Lw0")
        for p in range(PA):
            e(f"v_readlane_b32 s56, v23, {PD + 1 + p}")
            self.tile_addr()
            for g in range(4):
                pace()
                for j in range(4):
                    r = 64 * (PV + p) + g * 16 + j * 4
                    self.vm(f"buffer_load_dwordx4 a[{r}:{r+3}], v{2+g}, s[28:31], s57 offen offset:{j*128} {o['kvpol']}", (f'F{p}', g))
            if o['prof'] == 2: self.plog()
        for p in range(PV):
            e(f"v_readlane_b32 s56, v23, {NSH + p}")
            self.tile_addr()
            for g in range(4):
                pace()
                for j in range(4):
                    r = 64 * p + g * 16 + j * 4
                    self.vm(f"buffer_load_dwordx4 a[{r}:{r+3}], v{2+g}, s[32:35], s57 offen offset:{j*128} {o['kvpol']}", 'X')
            if o['prof'] == 2: self.plog()
        for p in range(PV if o['prof'] == 1 else 0): self.plog()
        e(f"s_mov_b32 s99, {E1}")
        e(f"s_mov_b32 s97, {NSH + PV}")
        e(f"s_mov_b32 s101, {NSH + XS + NO}")
        e(f"s_mov_b32 s62, {max(NSH, E1)}")
        e("s_branch .Lbar")
        self.label(".Lw0")
        e("s_lshl_b32 s60, s54, 10")
        e(f"s_add_u32 s60, s60, {WS_Q}")
        e("v_lshlrev_b32 v13, 4, v1")
        e("v_lshlrev_b32 v14, 3, v1")
        e(f"ds_write_b32 v15, v15 offset:{L_CNT}")
        NP = o['NP']
        def poll(k): e(f"buffer_load_dwordx4 v[{48+4*k}:{51+4*k}], v13, s[36:39], s60 offen sc1")
        for k in range(NP):
            if k: e(f"s_waitcnt vmcnt({16 - 3 * k})")
            poll(k)
        e("s_waitcnt lgkmcnt(0)")
        tag()
        self.poll_begin()
        self.label(".Lqpoll")
        for k in range(NP):
            e(f"s_waitcnt vmcnt({NP - 1})")
            e(f"v_cmp_ne_u32 vcc, s55, v{49+4*k}")
            e(f"v_cmp_ne_u32 s[66:67], s55, v{51+4*k}")
            e("s_or_b64 vcc, vcc, s[66:67]")
            e(f"s_cbranch_vccz .Lqok{k}")
            poll(k)
        self.poll_again(".Lqpoll")
        for k in range(NP):
            self.label(f".Lqok{k}")
            e(f"ds_write2_b32 v14, v{48+4*k}, v{50+4*k} offset0:{L_Q//4} offset1:{L_Q//4+1}")
            if k < NP - 1: e("s_branch .Lqok")
        self.label(".Lqok")
        e(f"s_mov_b32 s99, {PD + 1}")
        e(f"s_mov_b32 s97, {NSH}")
        e(f"s_mov_b32 s101, {NSH + NO}")
        e(f"s_mov_b32 s62, {NSH}")
        e("s_waitcnt lgkmcnt(0)")
        self.label(".Lbar")
        self.ts(1)
        e("s_barrier")
        self.ts(2)
        e("v_and_b32 v13, 7, v1")
        e("v_lshlrev_b32 v13, 4, v13")
        for j in range(4):
            e(f"ds_read_b128 v[{32+4*j}:{35+4*j}], v13 offset:{L_Q + j*128}")
        e("v_readlane_b32 s56, v23, s99")
        self.tile_addr()
        e("s_waitcnt lgkmcnt(0)")
        tag()
        self.ktile(64, lambda g: self.vwait(('A', g)), True, rtag='A2')
        for p in range(PD):
            self.ktile(128 + 64 * p, lambda g: self.vwait((f'E{p}', g)), False)
        if PA:
            e("s_cmp_eq_u32 s52, 0")
            e("s_cbranch_scc1 .Lkloop")
        for p in range(PA):
            def wa(g):
                self.vwait((f'F{p}', g))
                for i in range(16): e(f"v_accvgpr_read_b32 v{128 + 16 * g + i}, a{64 * (PV + p) + 16 * g + i}")
            self.ktile(128, wa, False)
        e("s_cmp_lg_u32 s52, 1")
        e("s_cbranch_scc1 .Lkloop")
        e("v_mov_b32 v22, 1")
        e("v_mov_b32 v13, 0")
        e("s_mov_b64 exec, 1")
        e(f"buffer_atomic_add v22, v13, s[48:51], 0 offen sc1 {o['cpol']}")
        e("s_mov_b64 exec, -1")

        w12 = lambda g: e("s_waitcnt vmcnt(12)")
        self.label(".Lkloop")
        e("s_cmp_lg_u32 s99, s62")
        e("s_cbranch_scc1 .Lk0")
        e("s_lshl_b32 s60, s52, 11")
        e(f"s_add_u32 s60, s60, {L_SC}")
        e("v_lshl_add_u32 v14, v1, 4, s60")
        e("ds_read_b128 v[24:27], v14")
        e("s_lshl_b32 s60, s2, 2")
        e("s_add_u32 s60, s60, s52")
        e("s_lshl_b32 s60, s60, 9")
        e(f"s_add_u32 s60, s60, {WS_SC}")
        e("v_lshlrev_b32 v13, 4, v1")
        e(f"s_mov_b32 exec_lo, {hex((1 << (4 * NSH)) - 1)}")
        e("s_mov_b32 exec_hi, 0")
        e("s_waitcnt lgkmcnt(0)")
        e("buffer_store_dwordx4 v[24:27], v13, s[36:39], s60 offen sc1")
        e("s_mov_b64 exec, -1")
        e(f"s_mov_b32 s100, {B2}")
        e(f"s_mov_b32 s96, {o['c0']}")
        self.label(".Lk0")
        e("s_add_u32 s99, s99, 1")
        e("s_mov_b32 s58, s99")
        e("s_cmp_lt_u32 s99, s101")
        e("s_cbranch_scc1 .Lk2")
        e("s_waitcnt vmcnt(16)")
        e("v_readfirstlane_b32 s56, v22")
        e(f"s_add_u32 s56, s56, {B2}")
        e("s_cmp_lt_u32 s56, 512")
        e("s_cbranch_scc1 .Lk1")
        e("s_mov_b64 s[28:29], s[32:33]")
        e("s_mov_b32 s58, s97")
        e("s_mov_b32 s101, 0")
        e("s_branch .Lk2")
        self.label(".Lk1")
        e("s_add_u32 s100, s56, s96")
        e("s_min_u32 s100, s100, 512")
        e("s_sub_u32 s60, s56, s99")
        e("v_add_u32 v13, s60, v1")
        e("v_cmp_le_u32 vcc, s99, v1")
        e("s_sub_u32 s101, s100, s60")
        e("s_sub_u32 s96, 512, s100")
        e("v_cndmask_b32 v23, v23, v13, vcc")
        e(f"s_lshr_b32 s96, s96, {o['csh']}")
        e("s_max_u32 s96, s96, 1")
        e(f"s_min_u32 s96, s96, {o['cmax']}")
        self.label(".Lk2")
        e("v_readlane_b32 s56, v23, s58")
        e("s_add_u32 s60, s99, 1")
        e("s_cmp_lg_u32 s60, s101")
        e("s_cbranch_scc1 .Lk3")
        e("v_mov_b32 v22, 0x10000")
        e(f"s_cmp_gt_u32 s101, {32 - o['cmax']}")
        e("s_cbranch_scc1 .Lk3")
        self.ticket(128, "s96")
        self.label(".Lk3")
        self.tile_addr()
        self.ktile(64, w12, True)
        e("s_cmp_lg_u32 s101, 0")
        e("s_cbranch_scc1 .Lkloop")
        self.ts(6)
        e("s_lshl_b32 s60, s52, 11")
        e(f"s_add_u32 s60, s60, {L_SC}")
        e("v_lshl_add_u32 v13, v1, 4, s60")
        e("ds_read_b128 v[128:131], v13")
        e("ds_read_b128 v[144:147], v13 offset:1024")
        for i in range(16): e(f"v_mov_b32 v{48+i}, 0")
        e("v_lshrrev_b32 v19, 3, v1")
        e(f"s_add_u32 s60, s60, {NSH * 64}")
        e("v_lshl_add_u32 v19, v19, 3, s60")
        e("s_waitcnt lgkmcnt(0)")
        for i in range(4):
            e(f"v_and_b32 v{149+2*i}, 0xffff0000, v{144+i}")
            e(f"v_lshlrev_b32 v{148+2*i}, 16, v{144+i}")
        for i in range(4):
            e(f"v_and_b32 v{133+2*i}, 0xffff0000, v{128+i}")
            e(f"v_lshlrev_b32 v{132+2*i}, 16, v{128+i}")
        e("v_max3_f32 v140, v132, v133, v134")
        e("v_max3_f32 v141, v135, v136, v137")
        e("v_max3_f32 v140, v140, v138, v139")
        e("v_max3_f32 v141, v141, v148, v149")
        e("v_max3_f32 v140, v140, v150, v151")
        e("v_max3_f32 v141, v141, v152, v153")
        e("v_max3_f32 v140, v140, v154, v155")
        e("v_max_f32 v140, v140, v141")
        self.full_reduce("v_max_f32", "v140", "v141")
        e("v_mul_f32 v10, s59, v140")
        e("v_sub_f32 v10, 0, v10")
        for i in range(8): e(f"v_fma_f32 v{132+i}, v{132+i}, s59, v10")
        for i in range(8): e(f"v_fma_f32 v{148+i}, v{148+i}, s59, v10")
        for i in range(8): e(f"v_exp_f32 v{132+i}, v{132+i}")
        for i in range(8): e(f"v_exp_f32 v{148+i}, v{148+i}")
        e("s_nop 0")
        for i in range(8): e(f"v_add_f32 v{132+i}, v{132+i}, v{148+i}")
        for i in range(4): e(f"v_add_f32 v{132+i}, v{132+i}, v{136+i}")
        e("v_add_f32 v132, v132, v133")
        e("v_add_f32 v134, v134, v135")
        e("v_add_f32 v142, v132, v134")
        self.full_reduce("v_add_f32", "v142", "v141")
        e("v_mov_b32 v141, s55")
        e("v_mov_b32 v143, s55")
        e("s_lshl_b32 s60, s2, 2")
        e("s_add_u32 s60, s60, s52")
        e("s_lshl_b32 s60, s60, 4")
        e(f"s_add_u32 s60, s60, {WS_ML}")
        e("v_mov_b32 v13, 0")
        e("s_mov_b64 exec, 1")
        e("buffer_store_dwordx4 v[140:143], v13, s[36:39], s60 offen sc1")
        e("s_mov_b64 exec, -1")
        e("s_lshl_b32 s98, s54, 9")
        e(f"s_add_u32 s98, s98, {WS_ML}")
        e("v_and_b32 v28, 31, v1")
        e("v_lshlrev_b32 v28, 4, v28")
        e("s_add_u32 s58, s97, 1")
        e("s_sub_u32 s99, s99, 1")
        if PV:
            e("s_cmp_eq_u32 s52, 0")
            e("s_cbranch_scc1 .Lvloop")
            for p in range(PV):
                e("ds_read_b64 v[24:25], v19")
                e("v_add_u32 v19, 64, v19")
                e("s_waitcnt lgkmcnt(0)")
                self.pcalc(range(4))
                for g in range(4):
                    for j in range(4):
                        r = 64 * p + g * 16 + j * 4
                        e(f"v_mfma_f32_16x16x32_bf16 v[{48+4*j}:{51+4*j}], v[{32+4*g}:{35+4*g}], a[{r}:{r+3}], v[{48+4*j}:{51+4*j}]")
        self.label(".Lvloop")
        e("ds_read_b64 v[24:25], v19")
        e("v_add_u32 v19, 64, v19")
        e("v_readlane_b32 s56, v23, s58")
        e("s_cmp_lt_u32 s58, s99")
        e("s_cbranch_scc1 .Lv1")
        self.ticket()
        e("buffer_load_dwordx4 v[128:131], v28, s[36:39], s98 offen sc1")
        e("v_mov_b32 v13, 0")
        e("buffer_load_dword v23, v13, s[48:51], 0 offen sc1")
        self.label(".Lv1")
        self.tile_addr()
        e("s_add_u32 s58, s58, 1")
        e("s_waitcnt lgkmcnt(0)")
        self.pcalc(range(4))
        dum = o['dum']
        if dum:
            e("s_lshl_b32 s60, s2, 2")
            e("s_add_u32 s60, s60, s52")
            e("s_lshl_b32 s60, s60, 8")
            e(f"s_mul_i32 s63, s54, {o['dsp']}")
            e(f"s_add_u32 s60, {'s60' if dum[0] == 'p' else 's63'}, 0x200000")
            e("v_mov_b32 v26, 1")
            e("v_mov_b32 v27, 0")
            e("s_mov_b64 exec, 1")
            if dum[1] in 'SWXY':
                e("s_mov_b64 exec, 0xffffffff")
                e("v_lshlrev_b32 v27, 2, v1")
            op = {'X': "buffer_atomic_swap v26, v27, s[36:39], s60 offen sc1 nt", 'Y': "buffer_atomic_swap v26, v27, s[36:39], s60 offen nt", 'z': "buffer_atomic_add v26, v27, s[36:39], s60 offen sc0 nt", 'S': "buffer_store_dword v26, v27, s[36:39], s60 offen sc1", 'w': "buffer_store_dword v26, v27, s[36:39], s60 offen",
                  'u': "buffer_store_dword v26, v27, s[36:39], s60 offen sc1 nt", 'W': "buffer_store_dword v26, v27, s[36:39], s60 offen sc0 sc1", 'a': "buffer_atomic_add v26, v27, s[36:39], s60 offen sc0 sc1", 'l': "buffer_load_dword v26, v27, s[36:39], s60 offen sc1",
                  'n': "buffer_atomic_add v26, v27, s[36:39], s60 offen sc1", 'x': "buffer_atomic_add v26, v27, s[36:39], s60 offen sc0",
                  's': "buffer_store_dword v26, v27, s[36:39], s60 offen sc1", 't': "buffer_atomic_add v26, v27, s[36:39], s60 offen sc0 sc1 nt"}[dum[1]]
            e(op)
            e("s_mov_b64 exec, -1")
        for g in range(4): self.vgrp(g, 13 if dum else 12, True)
        self.plog()
        e("s_cmp_le_u32 s58, s99")
        e("s_cbranch_scc1 .Lvloop")
        self.ts(7)
        e("ds_read_b64 v[24:25], v19")
        e("s_waitcnt vmcnt(16)")
        self.poll_begin()
        self.label(".Lmlchk")
        e("v_cmp_ne_u32 vcc, s55, v129")
        e("v_cmp_ne_u32 s[66:67], s55, v131")
        e("s_or_b64 vcc, vcc, s[66:67]")
        e("s_cbranch_vccz .Lmlok")
        e("buffer_load_dwordx4 v[128:131], v28, s[36:39], s98 offen sc1")
        e("s_waitcnt vmcnt(0)")
        self.poll_again(".Lmlchk")
        self.label(".Lmlok")
        e("v_mov_b32 v132, v128")
        self.half_reduce("v_max_f32", "v132", "v133")
        e("v_sub_f32 v128, v128, v132")
        e("v_mul_f32 v128, s59, v128")
        e("v_exp_f32 v128, v128")
        e("s_nop 0")
        e("v_mul_f32 v130, v130, v128")
        self.half_reduce("v_add_f32", "v130", "v133")
        e("v_log_f32 v130, v130")
        e("s_nop 0")
        e("v_fma_f32 v130, v132, s59, v130")
        e("v_add_f32 v131, v10, v130")
        e("v_sub_f32 v10, 0, v130")
        e("v_exp_f32 v131, -v131")
        e("s_waitcnt lgkmcnt(0)")
        for i in range(16):
            e(f"v_mul_f32 v{48+i}, v{48+i}, v131")
        e("s_mov_b32 s100, 0x10000")
        for r in range(3):
            if o['quit'][r]:
                e(f"s_cmp_eq_u32 s68, {r}")
                e(f"s_cselect_b32 s100, {NTK - o['quit'][r]}, s100")
        e("s_mov_b32 s101, 0")
        def qticket():
            e("s_cmp_lt_u32 s96, s100")
            e("s_cselect_b32 s63, 1, 0")
            e("s_cselect_b32 s101, 0, 0x10000")
            self.ticket(0, "s63")
        self.label(".Ldloop")
        e("s_waitcnt vmcnt(16)")
        e("v_readfirstlane_b32 s96, v22")
        self.pcalc(range(4))
        e("s_max_u32 s56, s96, s101")
        NB = o['NB']
        if NB:
            e(f"s_cmp_lt_u32 s56, {NB}")
            e("s_cbranch_scc1 .Ldbl")
            e(f"s_add_u32 s56, s56, {NB}")
        e(f"s_cmp_ge_u32 s56, {NF}")
        e("s_cbranch_scc1 .Lfx")
        self.label(".Ld1")
        self.tile_addr()
        self.sc_addr("s56")
        e("buffer_load_dwordx2 v[24:25], v20, s[36:39], s98 offen sc1")
        qticket()
        for g in range(4): self.vgrp(g, 14, True)
        self.plog()
        e("s_branch .Ldloop")
        if NB:
            self.label(".Ldbl")
            e("s_lshl_b32 s56, s56, 1")
            self.tile_addr()
            self.sc_addr("s56")
            e("buffer_load_dwordx2 v[24:25], v20, s[36:39], s98 offen sc1")
            for g in range(4): self.vgrp(g, 13, True)
            self.plog()
            e("s_add_u32 s56, s56, 1")
            e("s_waitcnt vmcnt(16)")
            self.pcalc(range(4))
            e("s_branch .Ld1")
        self.label(".Lfx")
        self.vgrp(0, 12, False)
        self.vgrp(1, 8, False)
        self.plog(True)
        e("s_branch .Lh2")
        self.label(".Lhloop")
        e("s_waitcnt vmcnt(8)")
        e("v_readfirstlane_b32 s96, v22")
        self.pcalc([2, 3])
        e("s_max_u32 s56, s96, s101")
        if NB: e(f"s_add_u32 s56, s56, {NB}")
        self.label(".Lh2")
        e(f"s_cmp_ge_u32 s56, {NTK}")
        e("s_cbranch_scc1 .Llast")
        e(f"s_add_u32 s60, s56, {NF}")
        e("s_lshr_b32 s56, s60, 1")
        self.tile_addr()
        self.sc_addr("s56")
        e("s_and_b32 s60, s60, 1")
        e(f"s_lshl_b32 s63, s60, {13 + o['gs']}")
        e("s_add_u32 s57, s57, s63")
        e("s_lshl_b32 s60, s60, 2")
        e("s_add_u32 s98, s98, s60")
        e("buffer_load_dword v25, v20, s[36:39], s98 offen sc1")
        qticket()
        for g in (2, 3):
            e("s_waitcnt vmcnt(6)")
            for j in range(4):
                r = 64 + g * 16 + j * 4
                e(f"v_mfma_f32_16x16x32_bf16 v[{48+4*j}:{51+4*j}], v[{32+4*g}:{35+4*g}], v[{r}:{r+3}], v[{48+4*j}:{51+4*j}]")
            for j in range(4):
                r = 64 + g * 16 + j * 4
                e(f"buffer_load_dwordx4 v[{r}:{r+3}], v{g}, s[28:31], s57 offen offset:{j*128} {o['kvpol']}")
        self.plog(True)
        e("s_branch .Lhloop")
        self.label(".Llast")
        self.tail()
        nacc = 64 * (PV + PA)
        self.L.append('.section .rodata,"a"')
        self.L.append(".p2align 6")
        self.L.append(f".amdhsa_kernel {NAME}")
        self.L.append(f"  .amdhsa_next_free_vgpr {256 + nacc}")
        self.L.append("  .amdhsa_next_free_sgpr 102")
        self.L.append(f"  .amdhsa_accum_offset 256")
        self.L.append("  .amdhsa_group_segment_fixed_size 0")
        self.L.append("  .amdhsa_kernarg_size 96")
        self.L.append("  .amdhsa_user_sgpr_count 2")
        self.L.append("  .amdhsa_user_sgpr_kernarg_segment_ptr 1")
        self.L.append("  .amdhsa_system_sgpr_workgroup_id_x 1")
        self.L.append("  .amdhsa_float_denorm_mode_32 3")
        self.L.append(".end_amdhsa_kernel")
        return "\n".join(self.L) + "\n"

    def setup(self):
        e = self.e; o = self.o
        NSH = o['NSH']; XS = o['PV'] + o['XS']
        B1 = 32 * NSH + 24 * XS
        e(f"s_mov_b32 s59, {hex(f2u(math.log2(math.e) / 16.0))}")
        e("v_and_b32 v6, 1, v1")
        e("v_mov_b32 v10, 0xffff")
        e("v_lshlrev_b32 v6, 4, v6")
        e("v_lshlrev_b32 v10, v6, v10")
        e("v_bfe_u32 v11, v1, 1, 2")
        for r in range(4):
            e(f"v_cmp_eq_u32 vcc, {r}, v11")
            e("s_nop 1")
            e(f"v_cndmask_b32 v{6+r}, 0, v10, vcc")
        e("s_lshl_b32 s60, s54, 8")
        e(f"s_add_u32 s60, s60, {WS_CNT}")
        e("v_mov_b32 v21, s60")
        e("s_lshl_b32 s60, s52, 11")
        e(f"s_add_u32 s60, s60, {L_SC}")
        e("v_lshl_add_u32 v19, v20, 3, s60")
        e("v_lshl_add_u32 v27, v1, 4, s60")
        for i in range(4): e(f"v_mov_b32 v{32+i}, 0xff80ff80")
        e("ds_write_b128 v27, v[32:35]")
        e("ds_write_b128 v27, v[32:35] offset:1024")
        e("s_lshl_b32 s60, s54, 14")
        e(f"s_add_u32 s60, s60, {WS_SC}")
        e("v_lshl_add_u32 v20, v20, 3, s60")
        e("v_lshrrev_b32 v11, 4, v1")
        e("v_bfe_u32 v29, v1, 2, 2")
        e("v_lshl_add_u32 v29, v11, 3, v29")
        e("v_and_b32 v31, 3, v1")
        e("v_and_b32 v10, 1, v1")
        e("v_mul_u32_u24 v30, 896, v10")
        e("v_lshl_add_u32 v30, v11, 4, v30")
        e("s_cmp_eq_u32 s52, 0")
        e(f"s_cselect_b32 s63, 0, {XS}")
        e("s_lshl_b32 s60, s63, 5")
        e(f"s_sub_u32 s60, {B1 - 32 * NSH}, s60")
        e("v_lshl_add_u32 v23, v1, 5, s58")
        e("v_add_u32 v10, s60, v23")
        e(f"v_cmp_le_u32 vcc, {NSH}, v1")
        e("s_nop 1")
        e("v_cndmask_b32 v23, v23, v10, vcc")
        if XS:
            e("s_mul_i32 s60, s53, 3")
            e("s_add_u32 s60, s60, s52")
            e(f"s_add_u32 s60, s60, {8 * NSH - 1}")
            e("v_mov_b32 v10, s60")
            e("v_mad_u32_u24 v10, v1, 24, v10")
            e(f"v_subrev_u32 v11, {NSH}, v1")
            e("v_cmp_gt_u32 vcc, s63, v11")
            e("s_nop 1")
            e("v_cndmask_b32 v23, v23, v10, vcc")

    def tail(self):
        e = self.e; o = self.o
        dyn = o['dyn']
        if dyn:
            e("v_mov_b32 v16, 0")
            e("v_mov_b32 v17, 1")
            e("s_mov_b64 exec, 1")
            e(f"ds_add_rtn_u32 v18, v16, v17 offset:{L_CNT}")
            e("s_mov_b64 exec, -1")
        e("v_lshrrev_b32 v13, 5, v1")
        e("v_lshlrev_b32 v13, 10, v13")
        e("v_and_b32 v14, 7, v1")
        e("v_lshl_add_u32 v13, v14, 5, v13")
        e("v_bfe_u32 v14, v1, 4, 1")
        e("v_lshl_add_u32 v13, v14, 4, v13")
        e("s_lshl_b32 s60, s52, 11")
        e("v_add_u32 v13, s60, v13")
        e("v_lshrrev_b32 v14, 5, v1")
        e("v_lshlrev_b32 v14, 12, v14")
        e("v_and_b32 v15, 31, v1")
        e("v_lshl_add_u32 v14, v15, 3, v14")
        e("s_lshl_b32 s60, s52, 8")
        e("v_add_u32 v14, s60, v14")
        e("v_lshlrev_b32 v15, 2, v15")
        e("s_lshl_b32 s60, s2, 2")
        e("s_add_u32 s60, s60, s52")
        e("s_lshl_b32 s60, s60, 7")
        e(f"s_add_u32 s60, s60, {WS_PART}")
        if dyn:
            e("s_waitcnt lgkmcnt(0)")
            e("v_readfirstlane_b32 s63, v18")
            if 'W' not in dyn:
                e("s_cmp_eq_u32 s68, 0")
                e("s_cselect_b32 s63, 0, s63")
            e("s_cmp_lg_u32 s63, 3")
            e("s_cbranch_scc1 .Lnort")
            e("s_mov_b64 exec, 1")
            e("buffer_atomic_add v17, v16, s[48:51], 0 offen offset:128 sc0 sc1")
            e("s_mov_b64 exec, -1")
            self.vgrp(2, 5, False)
            self.vgrp(3, 1, False)
            e("s_waitcnt vmcnt(0)")
            e("s_mov_b64 exec, 1")
            e(f"ds_write_b32 v16, v17 offset:{L_CNT + 4}")
            e("s_mov_b64 exec, -1")
            e("s_branch .Lrt")
            self.label(".Lnort")
        self.vgrp(2, 4, False)
        self.vgrp(3, 0, False)
        self.label(".Lrt")
        self.plog(True)
        self.ts(3)
        e("s_mov_b32 exec_lo, 0x00ff00ff")
        e("s_mov_b32 exec_hi, 0xff00ff00")
        e("s_nop 3")
        for j in range(4):
            e(f"ds_write_b128 v13, v[{48+4*j}:{51+4*j}] offset:{L_RED + j*256}")
        e("s_mov_b64 exec, -1")
        e("s_waitcnt lgkmcnt(0)")
        e("s_barrier")
        if dyn: e(f"ds_read_b32 v17, v16 offset:{L_CNT + 4}")
        for i in range(4):
            e(f"ds_read_b64 v[{64+2*i}:{65+2*i}], v14 offset:{L_RED + i*1024}")
        e("s_waitcnt lgkmcnt(2)")
        e("v_add_f32 v64, v64, v66")
        e("v_add_f32 v65, v65, v67")
        e("s_waitcnt lgkmcnt(0)")
        e("v_add_f32 v68, v68, v70")
        e("v_add_f32 v69, v69, v71")
        e("v_add_f32 v64, v64, v68")
        e("v_add_f32 v65, v65, v69")
        e("v_mov_b32 v66, v64")
        e("v_mov_b32 v67, v65")
        e("s_nop 0")
        e("v_permlane32_swap_b32 v64, v66")
        e("v_permlane32_swap_b32 v65, v67")
        e("s_nop 0")
        e("v_add_f32 v64, v64, v66")
        e("v_add_f32 v65, v65, v67")
        e("v_cvt_pk_bf16_f32 v64, v64, v65")
        e("v_min_u32 v64, -2, v64")
        e("s_mov_b32 exec_hi, 0")
        e("buffer_store_dword v64, v15, s[36:39], s60 offen sc1")
        e("s_mov_b64 exec, -1")
        self.ts(4)
        if dyn:
            if 'W' not in dyn:
                e("s_cmp_eq_u32 s68, 0")
                e("s_cbranch_scc1 .Lroled")
            e("v_readfirstlane_b32 s69, v17")
            e("s_mov_b32 s68, 3")
            order = [ch for ch in o['order'] if ch in dyn]
            for ch in order:
                n = 28 if ch == 'D' else 56
                e(f"s_mov_b32 s68, {'WGD'.index(ch)}")
                e(f"s_cmp_lt_u32 s69, {n}")
                e("s_cbranch_scc1 .Lroleld")
                e(f"s_sub_u32 s69, s69, {n}")
            e("s_mov_b32 s68, 3")
            e("s_branch .Lroled")
            self.label(".Lroleld")
            self.wprefetch(0, sfx='L', first=0, step=4)
            self.label(".LpfL_done")
            e("s_waitcnt vmcnt(0)")
            e("s_barrier")
            self.ts(9)
            self.label(".Lroled")
        else:
            e("s_cmp_eq_u32 s68, 3")
            e("s_cbranch_scc1 .Lfin")
            if o['late']:
                for ch in 'WGD':
                    if ch not in o['late']:
                        e(f"s_cmp_eq_u32 s68, {'WGD'.index(ch)}")
                        e("s_cbranch_scc1 .Llate_skip")
                self.wprefetch(0, sfx='L', first=0, step=4)
                self.label(".LpfL_done")
                e("s_waitcnt vmcnt(0)")
                e("s_barrier")
                self.ts(9)
                self.label(".Llate_skip")
        self.poll_begin()
        e("v_mov_b32 v14, 0")
        self.label(".Lrd")
        e("v_readfirstlane_b32 s60, v23")
        e("s_cmp_ge_u32 s60, 256")
        e("s_cbranch_scc1 .Lrdok")
        e("buffer_load_dword v23, v14, s[48:51], 0 offen sc1")
        e("s_waitcnt vmcnt(0)")
        self.poll_again(".Lrd")
        self.label(".Lrdok")
        if dyn:
            self.epoch_bump()
            e("s_cmp_eq_u32 s68, 3")
            e("s_cbranch_scc1 .Lfin")
        e("s_cmp_eq_u32 s68, 1")
        e("s_cbranch_scc1 .LstageG")
        e("s_cmp_eq_u32 s68, 2")
        e("s_cbranch_scc1 .LstageD")
        self.stageW()
        self.stageG()
        self.stageD()
        self.label(".Lfin")
        if o['ts']:
            self.ts(8)
            e("s_waitcnt lgkmcnt(0)")
            e("s_lshl_b32 s60, s2, 2")
            e("s_add_u32 s60, s60, s52")
            e("s_lshl_b32 s60, s60, 6")
            e(f"s_add_u32 s60, s60, {WS_TS}")
            e("v_mov_b32 v13, 0")
            e("s_getreg_b32 s63, hwreg(HW_REG_XCC_ID)")
            for i in range(13):
                e(f"v_mov_b32 v{64+i}, s{70+2*i}")
            e("v_mov_b32 v77, s63")
            e("v_mov_b32 v78, s62")
            e("v_mov_b32 v79, s68")
            e("s_mov_b64 exec, 1")
            for i in range(4):
                e(f"buffer_store_dwordx4 v[{64+4*i}:{67+4*i}], v13, s[36:39], s60 offen offset:{16*i}")
            if o['prof']:
                e("s_mov_b64 exec, -1")
                e("s_lshl_b32 s60, s2, 2")
                e("s_add_u32 s60, s60, s52")
                e("s_lshl_b32 s60, s60, 8")
                e(f"s_add_u32 s60, s60, {WS_PROF}")
                e("v_lshlrev_b32 v13, 2, v1")
                e("buffer_store_dword v0, v13, s[36:39], s60 offen")
        self.label(".Lend")
        e("s_endpgm")

if __name__ == "__main__":
    out = sys.argv[1]
    kw = json.loads(sys.argv[2]) if len(sys.argv) > 2 else {}
    open(out, "w").write(Gen(**kw).build())
```

```python
import sys, json
sys.path.insert(0,'dev')
from util import *
import gen4
a=sys.argv[1:]
for n,j in zip(a[::2],a[1::2]):
    open('dev/'+n,'w').write(gen4.Gen(**json.loads(j)).build())
    co,l=build('dev/'+n)
    p=cl.address_register_problem(co, l[0].kernel)
    print(n, "OK" if p is None else p)
```

```python
import sys, json, struct, math
from gen2 import *
import gen2

WS_PART = 0x100000
WS_Y    = 0x120000
L_D     = L_W + 57344
L_H     = 2816
L_ACT   = 640
LDS_BYTES = L_D + 28672

class Gen(gen2.Gen):
    def __init__(self, **kw):
        d = dict(NSH=3, PV=4, NO=2, c0=2, cmax=3, csh=6, pace=14, late='', early=False, quit=(0,0,0), dyn='', order='DGW', gs=0, nodot=False, NB=0, dum='', dsp=256, tpol='', remap=None, PA=0, XS=0, epol='sc1', NP=4, cpol='', NC=8, RA=0, cls=True, dry=False, rst='late', rord='GW', gts=False, opol='')
        d.update(dict(NSH=4, PV=0, NO=6, NB=48, NH=0, dyn='WGD', order='GWD', wpol='', dpol='', tpol='nt', gs=1))
        d.update(kw)
        super().__init__(**d)
        if self.o['dyn']: self.o['late'] = self.o['dyn']

    def ktile(self, kb, wait, reissue, rtag=None):
        e = self.e
        for i in range(8):
            e(f"v_mov_b32 v{11+i}, 0")
        for g in range(4):
            wait(g)
            for i in range(16 if not self.o['nodot'] else 2):
                e(f"v_dot2c_f32_bf16 v{11+2*g+(i&1)}, v{kb+g*16+i}, v{32+i}")
            if reissue:
                self.ld(kb, g, rtag and (rtag, g))
        if reissue or self.o['prof'] != 2: self.plog()
        if not reissue: e("s_nop 2")
        for g in range(4):
            e(f"v_add_f32 v{11+2*g}, v{11+2*g}, v{12+2*g}")
        for st in ("quad_perm:[1,0,3,2]", "quad_perm:[2,3,0,1]", "row_half_mirror"):
            for g in range(4):
                e(f"v_add_f32_dpp v{11+2*g}, v{11+2*g}, v{11+2*g} {st} row_mask:0xf bank_mask:0xf")
        e("v_cvt_pk_bf16_f32 v24, v11, v13")
        e("v_cvt_pk_bf16_f32 v25, v15, v17")
        e("ds_write_b64 v19, v[24:25]")
        e("v_add_u32 v19, 64, v19")

    def pcalc(self, groups):
        e = self.e
        for g in groups:
            src = 24 if g < 2 else 25
            if g & 1: e(f"v_and_b32 v{11+g}, 0xffff0000, v{src}")
            else: e(f"v_lshlrev_b32 v{11+g}, 16, v{src}")
        for g in groups: e(f"v_fma_f32 v{11+g}, v{11+g}, s59, v10")
        for g in groups: e(f"v_exp_f32 v{11+g}, v{11+g}")
        for g in groups: e(f"v_cvt_pk_bf16_f32 v{15+g}, v{11+g}, v{11+g}")
        for g in groups:
            for r in range(4):
                e(f"v_and_b32 v{32+4*g+r}, v{6+r}, v{15+g}")

    def ticket(self, off=0, amount="1"):
        e = self.e
        e(f"v_mov_b32 v22, {amount}")
        e("s_mov_b64 exec, 1")
        e(f"buffer_atomic_add v22, v21, s[36:39], 0 offen offset:{off} sc0 sc1 {self.o['tpol']}")
        e("s_mov_b64 exec, -1")

    def tile_addr(self, src="s56"):
        k = self.o['gs']; e = self.e
        if k == 0: return super().tile_addr(src)
        e(f"s_lshr_b32 s57, {src}, {k}")
        e(f"s_lshl_b32 s57, s57, {14 + k}")
        e("s_add_u32 s57, s57, s61")
        e(f"s_and_b32 s63, {src}, {(1 << k) - 1}")
        e("s_lshl_b32 s63, s63, 12")
        e("s_add_u32 s57, s57, s63")
        e("s_and_b32 s57, s57, 0x7fffff")

    def sc_addr(self, t):
        e = self.e
        e(f"s_and_b32 s98, {t}, 31")
        e("s_lshl_b32 s98, s98, 9")
        e(f"s_lshr_b32 s63, {t}, 5")
        e("s_lshl_b32 s63, s63, 6")
        e("s_add_u32 s98, s98, s63")

    def build(self):
        o = self.o; e = self.e
        PD = o['PD']; NSH = o['NSH']; NH = o['NH']; PV = o['PV']; NO = o['NO']
        ND = 32 * NSH
        NF = ND - NH
        NTK = NF + 2 * NH
        PA = o['PA']; XS = o['XS'] + PV
        B1 = ND + 24 * XS
        B2 = B1 + 32 * NO
        E1 = PD + PA + 1
        assert 1 <= PD <= 2 and o['dyn'] == 'WGD' and PD + 1 <= NSH <= 8 and NO >= 2 and PV + PA <= 4 and B2 <= 512
        assert 2 * o['NB'] <= NF
        assert max(NSH, E1) + 2 <= NSH + XS + NO
        def pace():
            if o['pace']: e(f"s_waitcnt vmcnt({o['pace']})")
        self.L.append(f"; @launch grid=(256,1,1) block=(256,1,1) lds={LDS_BYTES}")
        self.L.append('.amdgcn_target "amdgcn-amd-amdhsa--gfx950"')
        self.L.append(".text")
        self.L.append(f".globl {NAME}")
        self.L.append(".p2align 8")
        self.L.append(f".type {NAME},@function")
        self.label(NAME)
        e("s_cmp_ge_u32 s2, 256")
        e("s_cbranch_scc1 .Lend")
        e("s_load_dwordx16 s[4:19], s[0:1], 0")
        e("s_load_dwordx8 s[20:27], s[0:1], 64")
        if o['ts']:
            self.ts(0)
            for i in range(72, 96): e(f"s_mov_b32 s{i}, 0")
        e("v_and_b32 v1, 63, v0")
        e("v_lshrrev_b32 v2, 6, v0")
        e("s_and_b32 s53, s2, 7")
        if o['prof']:
            e("s_mov_b32 s3, 0")
            e("v_mov_b32 v0, 0")
        e("v_readfirstlane_b32 s52, v2")
        e("s_lshr_b32 s54, s2, 3")
        e(f"s_mul_i32 s61, s54, {o['rot']}")
        e("v_lshrrev_b32 v20, 3, v1")
        e("v_lshlrev_b32 v2, 9, v20")
        e("v_and_b32 v3, 7, v1")
        e("v_lshlrev_b32 v13, 13, v20")
        e("v_lshl_or_b32 v2, v3, 4, v2")
        e("v_lshl_or_b32 v13, v3, 4, v13")
        S = 4096 << o['gs']
        e(f"v_add_u32 v3, {S}, v2")
        e(f"v_add_u32 v4, {2*S}, v2")
        e(f"v_add_u32 v5, {3*S}, v2")
        e("s_lshl_b32 s58, s53, 2")
        e("s_add_u32 s58, s58, s52")
        e("s_mov_b32 s56, s58")
        self.tile_addr()
        e("s_mov_b32 s30, 0x800000")
        e("s_mov_b32 s31, 0x20000")
        e("s_lshr_b32 s96, s53, 2")
        e("s_lshl_b32 s60, s54, 1")
        e("s_add_u32 s96, s96, s60")
        e(f"s_mul_i32 s60, s52, {112 * 8192}")
        e("s_lshl_b32 s63, s96, 7")
        e("s_add_u32 s60, s60, s63")
        e("v_add_u32 v13, s60, v13")
        e("v_and_b32 v16, 31, v1")
        e("v_cmp_gt_u32 s[64:65], 28, v16")
        e("v_lshrrev_b32 v14, 5, v1")
        e("v_mul_u32_u24 v14, 896, v14")
        e("v_lshl_add_u32 v28, v16, 5, v14")
        e("v_mov_b32 v16, 0x10000")
        e("v_cndmask_b32 v16, v16, v28, s[64:65]")
        e("v_mov_b32 v15, 0")
        e("s_mov_b32 s38, {0}".format(WS_SIZE))
        e("s_mov_b32 s39, 0x20000")
        e("s_mov_b32 s42, 1792")
        e("s_mov_b32 s43, 0x20000")
        e("s_mov_b32 s46, 3670016")
        e("s_mov_b32 s47, 0x20000")
        e(f"s_mul_i32 s97, s52, {14 * 1024}")
        e(f"s_add_u32 s97, s97, {L_W}")
        e("s_lshl_b32 s60, s54, 23")
        e("s_xor_b32 s62, s53, s54")
        e("s_and_b32 s62, s62, 3")
        e("s_waitcnt lgkmcnt(0)")
        if o['dbgts']: e("s_mov_b64 s[84:85], s[24:25]")
        e("s_cbranch_scc1 .Lnoprod1")
        e("s_setprio 3")
        e("s_mov_b64 s[40:41], s[4:5]")
        e("s_mov_b64 s[44:45], s[10:11]")
        e("s_and_b32 s63, s96, 3")
        e("s_or_b32 s63, s63, s52")
        e("s_cbranch_scc1 .Lnocinit")
        e("s_mov_b64 s[36:37], s[26:27]")
        e("s_lshl_b32 s63, s96, 6")
        e("v_and_b32 v14, 1, v1")
        e("v_lshlrev_b32 v14, 12, v14")
        e("v_lshrrev_b32 v17, 1, v1")
        e("v_lshl_add_u32 v14, v17, 7, v14")
        e(f"v_add_u32 v14, {WS_CNT}, v14")
        e("s_mov_b64 exec, 15")
        e("buffer_store_dword v15, v14, s[36:39], s63 offen sc1")
        e("s_mov_b64 exec, -1")
        self.label(".Lnocinit")
        e("buffer_load_dwordx4 v[240:243], v16, s[40:43], 0 offen")
        e("buffer_load_dwordx4 v[244:247], v16, s[40:43], 0 offen offset:16")
        for ks in range(14):
            e("s_mov_b32 m0, s97")
            e(f"s_mov_b32 s63, {ks * 65536}")
            e(f"buffer_load_dwordx4 v13, s[44:47], s63 offen {o['wqpol']} lds")
            if ks < 13: e("s_add_u32 s97, s97, 1024")
        self.label(".Lnoprod1")
        if o['rst'] == 'first': self.resets()
        e("s_add_u32 s28, s6, s60")
        e("s_addc_u32 s29, s7, 0")
        self.q = []
        for g in range(4): self.ld(64, g, ('A', g))
        e(f"s_load_dword s68, s[26:27], {WS_EPOCH}")
        def tag():
            e("s_mul_i32 s55, s68, 0x9e3779b1")
            e("s_add_u32 s55, s55, 0x7f4a7c15")
        if o['prof'] == 2: self.plog()
        e("s_add_u32 s32, s8, s60")
        e("s_addc_u32 s33, s9, 0")
        e("s_mov_b32 s34, 0x800000")
        e("s_mov_b32 s35, 0x20000")
        e("s_mov_b64 s[36:37], s[26:27]")
        self.srd(48, 24, 256)
        self.setup()
        e("s_cmp_lg_u32 s62, 0")
        e("s_cbranch_scc1 .Ljoin")
        e("v_lshlrev_b32 v17, 7, v29")
        e("v_lshl_add_u32 v17, v31, 3, v17")
        e("s_lshl_b32 s60, s52, 5")
        e(f"s_add_u32 s60, s60, {L_W}")
        e("v_add_u32 v17, s60, v17")
        e("s_waitcnt vmcnt(30)")
        for i in range(8):
            e(f"v_and_b32 v{184+2*i+1}, 0xffff0000, v{240+i}")
            e(f"v_lshlrev_b32 v{184+2*i}, 16, v{240+i}")
        self.layernorm16(184, 200, "s[64:65]")
        e("s_mov_b64 exec, s[64:65]")
        e(f"ds_write_b128 v28, v[184:187] offset:{L_XN}")
        e(f"ds_write_b128 v28, v[188:191] offset:{L_XN+16}")
        e("s_mov_b64 exec, -1")
        e("s_waitcnt lgkmcnt(0)")
        for ks in range(14):
            e(f"ds_read_b128 v[{128+4*ks}:{131+4*ks}], v30 offset:{L_XN + ks*64}")
        tag()
        e("v_mov_b32 v249, s55")
        e("v_and_b32 v13, 1, v1")
        e("v_lshlrev_b32 v14, 14, v13")
        e("v_cmp_eq_u32 vcc, 1, v13")
        e("v_lshrrev_b32 v13, 1, v1")
        e("v_lshl_add_u32 v14, v13, 3, v14")
        e("s_lshl_b32 s60, s96, 2")
        e("s_add_u32 s60, s60, s52")
        e("s_lshl_b32 s60, s60, 6")
        e(f"s_add_u32 s60, s60, {WS_Q}")
        e("s_waitcnt vmcnt(16)")
        e("s_barrier")
        for ks in range(14):
            e(f"ds_read_b64_tr_b16 v[{184+4*ks}:{185+4*ks}], v17 offset:{ks*4096}")
            e(f"ds_read_b64_tr_b16 v[{186+4*ks}:{187+4*ks}], v17 offset:{ks*4096 + 512}")
            if ks == 6:
                e("s_waitcnt lgkmcnt(6)")
        e("s_waitcnt lgkmcnt(0)")
        for ks in range(14):
            cin = "0" if ks == 0 else "v[240:243]"
            e(f"v_mfma_f32_16x16x32_bf16 v[240:243], v[{128+4*ks}:{131+4*ks}], v[{184+4*ks}:{187+4*ks}], {cin}")
        e("s_nop 7")
        e("v_mov_b32_dpp v244, v240 quad_perm:[1,0,3,2] row_mask:0xf bank_mask:0xf")
        e("v_mov_b32_dpp v245, v241 quad_perm:[1,0,3,2] row_mask:0xf bank_mask:0xf")
        e("v_cndmask_b32 v246, v240, v245, vcc")
        e("v_cndmask_b32 v247, v244, v241, vcc")
        e("v_cvt_pk_bf16_f32 v248, v246, v247")
        e("s_mov_b64 exec, 0xffff")
        e("buffer_store_dwordx2 v[248:249], v14, s[36:39], s60 offen sc1")
        e("s_mov_b64 exec, -1")
        e("s_setprio 0")
        self.label(".Ljoin")
        if o['rst'] == 'join': self.resets()
        for p in range(PD):
            e("s_add_u32 s56, s56, 32")
            self.tile_addr()
            for g in range(4):
                pace()
                self.ld(128 + 64 * p, g, (f'E{p}', g))
            if o['prof'] == 2: self.plog()
        e("s_cmp_eq_u32 s52, 0")
        e("s_cbranch_scc1 .Lw0")
        for p in range(PA):
            e(f"v_readlane_b32 s56, v23, {PD + 1 + p}")
            self.tile_addr()
            for g in range(4):
                pace()
                for j in range(4):
                    r = 64 * (PV + p) + g * 16 + j * 4
                    self.vm(f"buffer_load_dwordx4 a[{r}:{r+3}], v{2+g}, s[28:31], s57 offen offset:{j*128} {o['kvpol']}", (f'F{p}', g))
            if o['prof'] == 2: self.plog()
        for p in range(PV):
            e(f"v_readlane_b32 s56, v23, {NSH + p}")
            self.tile_addr()
            for g in range(4):
                pace()
                for j in range(4):
                    r = 64 * p + g * 16 + j * 4
                    self.vm(f"buffer_load_dwordx4 a[{r}:{r+3}], v{2+g}, s[32:35], s57 offen offset:{j*128} {o['kvpol']}", 'X')
            if o['prof'] == 2: self.plog()
        for p in range(PV if o['prof'] == 1 else 0): self.plog()
        e(f"s_mov_b32 s99, {E1}")
        e(f"s_mov_b32 s97, {NSH + PV}")
        e(f"s_mov_b32 s101, {NSH + XS + NO}")
        e(f"s_mov_b32 s62, {max(NSH, E1)}")
        e("s_branch .Lbar")
        self.label(".Lw0")
        e("s_lshl_b32 s60, s54, 10")
        e(f"s_add_u32 s60, s60, {WS_Q}")
        e("v_lshlrev_b32 v13, 4, v1")
        e("v_lshlrev_b32 v14, 3, v1")
        e(f"ds_write_b32 v15, v15 offset:{L_CNT}")
        e(f"ds_write_b32 v15, v15 offset:{L_CNT + 8}")
        NP = o['NP']
        def poll(k): e(f"buffer_load_dwordx4 v[{48+4*k}:{51+4*k}], v13, s[36:39], s60 offen sc1")
        for k in range(NP):
            if k: e(f"s_waitcnt vmcnt({16 - 3 * k})")
            poll(k)
        e("s_waitcnt lgkmcnt(0)")
        tag()
        self.poll_begin()
        self.label(".Lqpoll")
        for k in range(NP):
            e(f"s_waitcnt vmcnt({NP - 1})")
            e(f"v_cmp_ne_u32 vcc, s55, v{49+4*k}")
            e(f"v_cmp_ne_u32 s[66:67], s55, v{51+4*k}")
            e("s_or_b64 vcc, vcc, s[66:67]")
            e(f"s_cbranch_vccz .Lqok{k}")
            poll(k)
        self.poll_again(".Lqpoll")
        for k in range(NP):
            self.label(f".Lqok{k}")
            e(f"ds_write2_b32 v14, v{48+4*k}, v{50+4*k} offset0:{L_Q//4} offset1:{L_Q//4+1}")
            if k < NP - 1: e("s_branch .Lqok")
        self.label(".Lqok")
        e(f"s_mov_b32 s99, {PD + 1}")
        e(f"s_mov_b32 s97, {NSH}")
        e(f"s_mov_b32 s101, {NSH + NO}")
        e(f"s_mov_b32 s62, {NSH}")
        e("s_waitcnt lgkmcnt(0)")
        self.label(".Lbar")
        self.ts(1)
        e("s_barrier")
        self.ts(2)
        e("v_and_b32 v13, 7, v1")
        e("v_lshlrev_b32 v13, 4, v13")
        for j in range(4):
            e(f"ds_read_b128 v[{32+4*j}:{35+4*j}], v13 offset:{L_Q + j*128}")
        e("v_readlane_b32 s56, v23, s99")
        self.tile_addr()
        e("s_waitcnt lgkmcnt(0)")
        tag()
        self.ktile(64, lambda g: self.vwait(('A', g)), True, rtag='A2')
        for p in range(PD):
            self.ktile(128 + 64 * p, lambda g: self.vwait((f'E{p}', g)), False)
        if PA:
            e("s_cmp_eq_u32 s52, 0")
            e("s_cbranch_scc1 .Lkloop")
        for p in range(PA):
            def wa(g):
                self.vwait((f'F{p}', g))
                for i in range(16): e(f"v_accvgpr_read_b32 v{128 + 16 * g + i}, a{64 * (PV + p) + 16 * g + i}")
            self.ktile(128, wa, False)
        if o['rst'] == 'late': self.resets()
        else: self.checkin(".Lkloop")

        w12 = lambda g: e("s_waitcnt vmcnt(12)")
        self.label(".Lkloop")
        e("s_cmp_lg_u32 s99, s62")
        e("s_cbranch_scc1 .Lk0")
        e("s_lshl_b32 s60, s52, 11")
        e(f"s_add_u32 s60, s60, {L_SC}")
        e("v_lshl_add_u32 v14, v1, 4, s60")
        e("ds_read_b128 v[24:27], v14")
        e("s_lshl_b32 s60, s2, 2")
        e("s_add_u32 s60, s60, s52")
        e("s_lshl_b32 s60, s60, 9")
        e(f"s_add_u32 s60, s60, {WS_SC}")
        e("v_lshlrev_b32 v13, 4, v1")
        e(f"s_mov_b32 exec_lo, {hex((1 << (4 * NSH)) - 1)}")
        e("s_mov_b32 exec_hi, 0")
        e("s_waitcnt lgkmcnt(0)")
        e("buffer_store_dwordx4 v[24:27], v13, s[36:39], s60 offen sc1")
        e("s_mov_b64 exec, -1")
        e(f"s_mov_b32 s100, {B2}")
        e(f"s_mov_b32 s96, {o['c0']}")
        self.label(".Lk0")
        e("s_add_u32 s99, s99, 1")
        e("s_mov_b32 s58, s99")
        e("s_cmp_lt_u32 s99, s101")
        e("s_cbranch_scc1 .Lk2")
        e("s_waitcnt vmcnt(16)")
        e("v_readfirstlane_b32 s56, v22")
        e(f"s_add_u32 s56, s56, {B2}")
        e("s_cmp_lt_u32 s56, 512")
        e("s_cbranch_scc1 .Lk1")
        e("s_mov_b64 s[28:29], s[32:33]")
        e("s_mov_b32 s58, s97")
        e("s_mov_b32 s101, 0")
        e("s_branch .Lk2")
        self.label(".Lk1")
        e("s_add_u32 s100, s56, s96")
        e("s_min_u32 s100, s100, 512")
        e("s_sub_u32 s60, s56, s99")
        e("v_add_u32 v13, s60, v1")
        e("v_cmp_le_u32 vcc, s99, v1")
        e("s_sub_u32 s101, s100, s60")
        e("s_sub_u32 s96, 512, s100")
        e("v_cndmask_b32 v23, v23, v13, vcc")
        e(f"s_lshr_b32 s96, s96, {o['csh']}")
        e("s_max_u32 s96, s96, 1")
        e(f"s_min_u32 s96, s96, {o['cmax']}")
        self.label(".Lk2")
        e("v_readlane_b32 s56, v23, s58")
        e("s_add_u32 s60, s99, 1")
        e("s_cmp_lg_u32 s60, s101")
        e("s_cbranch_scc1 .Lk3")
        e("v_mov_b32 v22, 0x10000")
        e(f"s_cmp_gt_u32 s101, {32 - o['cmax']}")
        e("s_cbranch_scc1 .Lk3")
        self.ticket(128, "s96")
        self.label(".Lk3")
        self.tile_addr()
        self.ktile(64, w12, True)
        e("s_cmp_lg_u32 s101, 0")
        e("s_cbranch_scc1 .Lkloop")
        self.ts(6)
        e("s_lshl_b32 s60, s52, 11")
        e(f"s_add_u32 s60, s60, {L_SC}")
        e("v_lshl_add_u32 v13, v1, 4, s60")
        e("ds_read_b128 v[128:131], v13")
        e("ds_read_b128 v[144:147], v13 offset:1024")
        for i in range(16): e(f"v_mov_b32 v{48+i}, 0")
        e("v_lshrrev_b32 v19, 3, v1")
        e(f"s_add_u32 s60, s60, {NSH * 64}")
        e("v_lshl_add_u32 v19, v19, 3, s60")
        e("s_waitcnt lgkmcnt(0)")
        for i in range(4):
            e(f"v_and_b32 v{149+2*i}, 0xffff0000, v{144+i}")
            e(f"v_lshlrev_b32 v{148+2*i}, 16, v{144+i}")
        for i in range(4):
            e(f"v_and_b32 v{133+2*i}, 0xffff0000, v{128+i}")
            e(f"v_lshlrev_b32 v{132+2*i}, 16, v{128+i}")
        e("v_max3_f32 v140, v132, v133, v134")
        e("v_max3_f32 v141, v135, v136, v137")
        e("v_max3_f32 v140, v140, v138, v139")
        e("v_max3_f32 v141, v141, v148, v149")
        e("v_max3_f32 v140, v140, v150, v151")
        e("v_max3_f32 v141, v141, v152, v153")
        e("v_max3_f32 v140, v140, v154, v155")
        e("v_max_f32 v140, v140, v141")
        self.full_reduce("v_max_f32", "v140", "v141")
        e("v_mul_f32 v10, s59, v140")
        e("v_sub_f32 v10, 0, v10")
        for i in range(8): e(f"v_fma_f32 v{132+i}, v{132+i}, s59, v10")
        for i in range(8): e(f"v_fma_f32 v{148+i}, v{148+i}, s59, v10")
        for i in range(8): e(f"v_exp_f32 v{132+i}, v{132+i}")
        for i in range(8): e(f"v_exp_f32 v{148+i}, v{148+i}")
        e("s_nop 0")
        for i in range(8): e(f"v_add_f32 v{132+i}, v{132+i}, v{148+i}")
        for i in range(4): e(f"v_add_f32 v{132+i}, v{132+i}, v{136+i}")
        e("v_add_f32 v132, v132, v133")
        e("v_add_f32 v134, v134, v135")
        e("v_add_f32 v142, v132, v134")
        self.full_reduce("v_add_f32", "v142", "v141")
        e("v_mov_b32 v141, s55")
        e("v_mov_b32 v143, s55")
        e("s_lshl_b32 s60, s2, 2")
        e("s_add_u32 s60, s60, s52")
        e("s_lshl_b32 s60, s60, 4")
        e(f"s_add_u32 s60, s60, {WS_ML}")
        e("v_mov_b32 v13, 0")
        e("s_mov_b64 exec, 1")
        e("buffer_store_dwordx4 v[140:143], v13, s[36:39], s60 offen sc1")
        e("s_mov_b64 exec, -1")
        if o['rst'] == 'late':
            self.checkin(".Lnoci")
            self.label(".Lnoci")
        e("s_lshl_b32 s98, s54, 9")
        e(f"s_add_u32 s98, s98, {WS_ML}")
        e("v_and_b32 v28, 31, v1")
        e("v_lshlrev_b32 v28, 4, v28")
        e("s_add_u32 s58, s97, 1")
        e("s_sub_u32 s99, s99, 1")
        if PV:
            e("s_cmp_eq_u32 s52, 0")
            e("s_cbranch_scc1 .Lvloop")
            for p in range(PV):
                e("ds_read_b64 v[24:25], v19")
                e("v_add_u32 v19, 64, v19")
                e("s_waitcnt lgkmcnt(0)")
                self.pcalc(range(4))
                for g in range(4):
                    for j in range(4):
                        r = 64 * p + g * 16 + j * 4
                        e(f"v_mfma_f32_16x16x32_bf16 v[{48+4*j}:{51+4*j}], v[{32+4*g}:{35+4*g}], a[{r}:{r+3}], v[{48+4*j}:{51+4*j}]")
        self.label(".Lvloop")
        e("ds_read_b64 v[24:25], v19")
        e("v_add_u32 v19, 64, v19")
        e("v_readlane_b32 s56, v23, s58")
        e("s_cmp_lt_u32 s58, s99")
        e("s_cbranch_scc1 .Lv1")
        self.ticket()
        e("buffer_load_dwordx4 v[128:131], v28, s[36:39], s98 offen sc1")
        e("v_and_b32 v13, 7, v1")
        e("v_lshlrev_b32 v13, 2, v13")
        e("buffer_load_dword v23, v13, s[48:51], 0 offen sc1")
        self.label(".Lv1")
        self.tile_addr()
        e("s_add_u32 s58, s58, 1")
        e("s_waitcnt lgkmcnt(0)")
        self.pcalc(range(4))
        dum = o['dum']
        if dum:
            e("s_lshl_b32 s60, s2, 2")
            e("s_add_u32 s60, s60, s52")
            e("s_lshl_b32 s60, s60, 8")
            e(f"s_mul_i32 s63, s54, {o['dsp']}")
            e(f"s_add_u32 s60, {'s60' if dum[0] == 'p' else 's63'}, 0x200000")
            e("v_mov_b32 v26, 1")
            e("v_mov_b32 v27, 0")
            e("s_mov_b64 exec, 1")
            if dum[1] in 'SWXY':
                e("s_mov_b64 exec, 0xffffffff")
                e("v_lshlrev_b32 v27, 2, v1")
            op = {'X': "buffer_atomic_swap v26, v27, s[36:39], s60 offen sc1 nt", 'Y': "buffer_atomic_swap v26, v27, s[36:39], s60 offen nt", 'z': "buffer_atomic_add v26, v27, s[36:39], s60 offen sc0 nt", 'S': "buffer_store_dword v26, v27, s[36:39], s60 offen sc1", 'w': "buffer_store_dword v26, v27, s[36:39], s60 offen",
                  'u': "buffer_store_dword v26, v27, s[36:39], s60 offen sc1 nt", 'W': "buffer_store_dword v26, v27, s[36:39], s60 offen sc0 sc1", 'a': "buffer_atomic_add v26, v27, s[36:39], s60 offen sc0 sc1", 'l': "buffer_load_dword v26, v27, s[36:39], s60 offen sc1",
                  'n': "buffer_atomic_add v26, v27, s[36:39], s60 offen sc1", 'x': "buffer_atomic_add v26, v27, s[36:39], s60 offen sc0",
                  's': "buffer_store_dword v26, v27, s[36:39], s60 offen sc1", 't': "buffer_atomic_add v26, v27, s[36:39], s60 offen sc0 sc1 nt"}[dum[1]]
            e(op)
            e("s_mov_b64 exec, -1")
        for g in range(4): self.vgrp(g, 13 if dum else 12, True)
        self.plog()
        e("s_cmp_le_u32 s58, s99")
        e("s_cbranch_scc1 .Lvloop")
        if not o['dbgts']: self.ts(7)
        e("ds_read_b64 v[24:25], v19")
        e("s_waitcnt vmcnt(16)")
        self.poll_begin()
        self.label(".Lmlchk")
        e("v_cmp_ne_u32 vcc, s55, v129")
        e("v_cmp_ne_u32 s[66:67], s55, v131")
        e("s_or_b64 vcc, vcc, s[66:67]")
        e("s_cbranch_vccz .Lmlok")
        e("buffer_load_dwordx4 v[128:131], v28, s[36:39], s98 offen sc1")
        e("s_waitcnt vmcnt(0)")
        self.poll_again(".Lmlchk")
        self.label(".Lmlok")
        e("v_mov_b32 v132, v128")
        self.half_reduce("v_max_f32", "v132", "v133")
        e("v_sub_f32 v128, v128, v132")
        e("v_mul_f32 v128, s59, v128")
        e("v_exp_f32 v128, v128")
        e("s_nop 0")
        e("v_mul_f32 v130, v130, v128")
        self.half_reduce("v_add_f32", "v130", "v133")
        e("v_log_f32 v130, v130")
        e("s_nop 0")
        e("v_fma_f32 v130, v132, s59, v130")
        e("v_add_f32 v131, v10, v130")
        e("v_sub_f32 v10, 0, v130")
        e("v_exp_f32 v131, -v131")
        e("s_waitcnt lgkmcnt(0)")
        for i in range(16):
            e(f"v_mul_f32 v{48+i}, v{48+i}, v131")
        assert NH == 0
        e("v_and_b32 v13, 7, v1")
        e("v_lshlrev_b32 v13, 2, v13")
        self.poll_begin()
        self.label(".Lrd")
        e("v_mov_b32 v128, v23")
        e("v_mov_b32 v129, v23")
        for st in ("quad_perm:[1,0,3,2]", "quad_perm:[2,3,0,1]", "row_half_mirror"):
            e("s_nop 0")
            e(f"v_add_u32_dpp v128, v128, v128 {st} row_mask:0xf bank_mask:0xf")
            e(f"v_min_u32_dpp v129, v129, v129 {st} row_mask:0xf bank_mask:0xf")
        e("s_nop 0")
        e("v_readfirstlane_b32 s60, v128")
        e("v_readfirstlane_b32 s63, v129")
        e("s_cmp_ge_u32 s60, 256")
        e("s_cbranch_scc1 .Lrdok")
        e("buffer_load_dword v23, v13, s[48:51], 0 offen sc1")
        e("s_waitcnt vmcnt(0)")
        self.poll_again(".Lrd")
        self.label(".Lrdok")
        e("s_getreg_b32 s58, hwreg(HW_REG_XCC_ID, 0, 3)")
        e("s_lshl_b32 s100, s58, 2")
        e(f"s_cmp_lt_u32 s63, {14 if o['cls'] else 1000}")
        e("s_cselect_b32 s100, 64, s100")
        e("s_or_b32 s60, s2, s52")
        e("s_cbranch_scc1 .Ldloop")
        e("v_mov_b32 v128, s55")
        e("v_mov_b32 v13, 0")
        e("s_mov_b64 exec, 1")
        e(f"buffer_store_dword v128, v13, s[36:39], 0 offen offset:{WS_EPOCH} sc1")
        e("s_mov_b64 exec, -1")
        self.label(".Ldloop")
        e("s_waitcnt vmcnt(16)")
        e("v_readfirstlane_b32 s56, v22")
        self.pcalc(range(4))
        NB = o['NB']
        if NB:
            e(f"s_cmp_lt_u32 s56, {NB}")
            e("s_cbranch_scc1 .Ldbl")
            e(f"s_add_u32 s56, s56, {NB}")
        e(f"s_cmp_ge_u32 s56, {NF}")
        e("s_cbranch_scc1 .Lfx")
        self.label(".Ld1")
        self.tile_addr()
        self.sc_addr("s56")
        e("buffer_load_dwordx2 v[24:25], v20, s[36:39], s98 offen sc1")
        self.ticket()
        for g in range(4): self.vgrp(g, 14, True)
        self.plog()
        e("s_branch .Ldloop")
        if NB:
            self.label(".Ldbl")
            e("s_lshl_b32 s56, s56, 1")
            self.tile_addr()
            self.sc_addr("s56")
            e("buffer_load_dwordx2 v[24:25], v20, s[36:39], s98 offen sc1")
            for g in range(4): self.vgrp(g, 13, True)
            self.plog()
            e("s_add_u32 s56, s56, 1")
            e("s_waitcnt vmcnt(16)")
            self.pcalc(range(4))
            e("s_branch .Ld1")
        self.label(".Lfx")
        self.tail()
        nacc = 64 * (PV + PA)
        self.L.append('.section .rodata,"a"')
        self.L.append(".p2align 6")
        self.L.append(f".amdhsa_kernel {NAME}")
        self.L.append(f"  .amdhsa_next_free_vgpr {256 + nacc}")
        self.L.append("  .amdhsa_next_free_sgpr 102")
        self.L.append(f"  .amdhsa_accum_offset 256")
        self.L.append("  .amdhsa_group_segment_fixed_size 0")
        self.L.append("  .amdhsa_kernarg_size 96")
        self.L.append("  .amdhsa_user_sgpr_count 2")
        self.L.append("  .amdhsa_user_sgpr_kernarg_segment_ptr 1")
        self.L.append("  .amdhsa_system_sgpr_workgroup_id_x 1")
        self.L.append("  .amdhsa_float_denorm_mode_32 3")
        self.L.append(".end_amdhsa_kernel")
        return "\n".join(self.L) + "\n"

    def resets(self):
        e = self.e; o = self.o
        e("s_cmp_lg_u32 s52, 1")
        e("s_cbranch_scc1 .Lnoreset")
        for i in range(4): e(f"v_mov_b32 v{24+i}, -1")
        e("v_lshlrev_b32 v18, 4, v1")
        npc = (131072 + 28672 * o['NC'] + 200704) // 1024
        e("s_mov_b64 s[36:37], s[26:27]")
        e("s_lshl_b32 s63, s2, 10")
        e(f"s_add_u32 s63, s63, {WS_PART}")
        for i in range((npc + 255) // 256):
            if npc - 256 * i < 256:
                e(f"s_cmp_ge_u32 s2, {npc - 256 * i}")
                e("s_cbranch_scc1 .Lnoreset")
            e("buffer_store_dwordx4 v[24:27], v18, s[36:39], s63 offen sc1")
            e("s_add_u32 s63, s63, 0x40000")
        self.label(".Lnoreset")

    def checkin(self, skip):
        e = self.e
        e("s_cmp_lg_u32 s52, 1")
        e(f"s_cbranch_scc1 {skip}")
        e("v_mov_b32 v22, 1")
        e("s_getreg_b32 s60, hwreg(HW_REG_XCC_ID, 0, 3)")
        e("s_lshl_b32 s60, s60, 2")
        e("v_mov_b32 v13, s60")
        e("s_mov_b64 exec, 1")
        e(f"buffer_atomic_add v22, v13, s[48:51], 0 offen sc1 {self.o['cpol']}")
        e("s_mov_b64 exec, -1")

    def setup(self):
        e = self.e; o = self.o
        NSH = o['NSH']; XS = o['PV'] + o['XS']
        B1 = 32 * NSH + 24 * XS
        e(f"s_mov_b32 s59, {hex(f2u(math.log2(math.e) / 16.0))}")
        e("v_and_b32 v6, 1, v1")
        e("v_mov_b32 v10, 0xffff")
        e("v_lshlrev_b32 v6, 4, v6")
        e("v_lshlrev_b32 v10, v6, v10")
        e("v_bfe_u32 v11, v1, 1, 2")
        for r in range(4):
            e(f"v_cmp_eq_u32 vcc, {r}, v11")
            e("s_nop 1")
            e(f"v_cndmask_b32 v{6+r}, 0, v10, vcc")
        e("s_lshl_b32 s60, s54, 8")
        e(f"s_add_u32 s60, s60, {WS_CNT}")
        e("v_mov_b32 v21, s60")
        e("s_lshl_b32 s60, s52, 11")
        e(f"s_add_u32 s60, s60, {L_SC}")
        e("v_lshl_add_u32 v19, v20, 3, s60")
        e("v_lshl_add_u32 v27, v1, 4, s60")
        for i in range(4): e(f"v_mov_b32 v{32+i}, 0xff80ff80")
        e("ds_write_b128 v27, v[32:35]")
        e("ds_write_b128 v27, v[32:35] offset:1024")
        e("s_lshl_b32 s60, s54, 14")
        e(f"s_add_u32 s60, s60, {WS_SC}")
        e("v_lshl_add_u32 v20, v20, 3, s60")
        e("v_lshrrev_b32 v11, 4, v1")
        e("v_bfe_u32 v29, v1, 2, 2")
        e("v_lshl_add_u32 v29, v11, 3, v29")
        e("v_and_b32 v31, 3, v1")
        e("v_and_b32 v10, 1, v1")
        e("v_mul_u32_u24 v30, 896, v10")
        e("v_lshl_add_u32 v30, v11, 4, v30")
        e("s_cmp_eq_u32 s52, 0")
        e(f"s_cselect_b32 s63, 0, {XS}")
        e("s_lshl_b32 s60, s63, 5")
        e(f"s_sub_u32 s60, {B1 - 32 * NSH}, s60")
        e("v_lshl_add_u32 v23, v1, 5, s58")
        e("v_add_u32 v10, s60, v23")
        e(f"v_cmp_le_u32 vcc, {NSH}, v1")
        e("s_nop 1")
        e("v_cndmask_b32 v23, v23, v10, vcc")
        if XS:
            e("s_mul_i32 s60, s53, 3")
            e("s_add_u32 s60, s60, s52")
            e(f"s_add_u32 s60, s60, {8 * NSH - 1}")
            e("v_mov_b32 v10, s60")
            e("v_mad_u32_u24 v10, v1, 24, v10")
            e(f"v_subrev_u32 v11, {NSH}, v1")
            e("v_cmp_gt_u32 vcc, s63, v11")
            e("s_nop 1")
            e("v_cndmask_b32 v23, v23, v10, vcc")

    def mpoll(self, n, regs, addr, full, lab, m0=72):
        e = self.e
        self.poll_begin()
        e(f"s_branch {lab}chk")
        self.label(lab + "poll")
        for p in range(n):
            e(f"s_mov_b64 exec, s[{m0+2*p}:{m0+2*p+1}]")
            e(f"buffer_load_dwordx4 v[{regs+4*p}:{regs+4*p+3}], {addr(p)} sc1")
        e(f"s_mov_b64 exec, {full}")
        self.label(lab + "chk")
        for p in range(n):
            e(f"s_waitcnt vmcnt({n-1-p})")
            e(f"v_cmp_u_f32 s[{m0+2*p}:{m0+2*p+1}], v{regs+4*p}, v{regs+4*p+2}")
            if p == 1: e(f"s_or_b64 vcc, s[{m0}:{m0+1}], s[{m0+2}:{m0+3}]")
            elif p > 1: e(f"s_or_b64 vcc, vcc, s[{m0+2*p}:{m0+2*p+1}]")
        e(f"s_cbranch_scc0 {lab}ok")
        self.poll_again(lab + "poll")
        self.label(lab + "ok")

    def tail(self):
        e = self.e; o = self.o
        e("v_mov_b32 v16, 0")
        e("v_mov_b32 v17, 1")
        e("v_mov_b32 v26, 1")
        e("s_mov_b64 exec, 1")
        e(f"ds_add_rtn_u32 v18, v16, v17 offset:{L_CNT + 8}")
        e("s_mov_b64 exec, -1")
        e("v_lshrrev_b32 v13, 5, v1")
        e("v_lshlrev_b32 v13, 10, v13")
        e("v_and_b32 v14, 7, v1")
        e("v_lshl_add_u32 v13, v14, 5, v13")
        e("v_bfe_u32 v14, v1, 4, 1")
        e("v_lshl_add_u32 v13, v14, 4, v13")
        e("s_lshl_b32 s60, s52, 11")
        e("v_add_u32 v13, s60, v13")
        e("v_lshlrev_b32 v14, 4, v1")
        e("v_lshlrev_b32 v15, 3, v1")
        e("s_lshl_b32 s60, s2, 9")
        e(f"s_add_u32 s60, s60, {WS_PART}")
        e("s_waitcnt lgkmcnt(0)")
        e("v_readfirstlane_b32 s97, v18")
        e(f"s_cmp_lg_u32 s97, {o['RA']}")
        e("s_cbranch_scc1 .Lnr")
        e("s_mov_b64 exec, 1")
        e("buffer_atomic_add v26, v16, s[48:51], s100 offen offset:64 sc0 sc1")
        e("s_mov_b64 exec, -1")
        for g in range(4): self.vgrp(g, 13 - 4 * g, False)
        e("s_branch .Lrt")
        self.label(".Lnr")
        for g in range(4): self.vgrp(g, 12 - 4 * g, False)
        self.label(".Lrt")
        self.plog()
        self.ts(3)
        e("s_mov_b32 exec_lo, 0x00ff00ff")
        e("s_mov_b32 exec_hi, 0xff00ff00")
        e("s_nop 3")
        for j in range(4):
            e(f"ds_write_b128 v13, v[{48+4*j}:{51+4*j}] offset:{L_RED + j*256}")
        e("s_mov_b64 exec, 1")
        e(f"ds_add_rtn_u32 v18, v16, v17 offset:{L_CNT}")
        e("s_mov_b64 exec, -1")
        for p in range(8):
            e(f"ds_read_b128 v[{64+4*p}:{67+4*p}], v14 offset:{L_RED + p*1024}")
        e("s_waitcnt lgkmcnt(8)" if not o['ts'] else "s_waitcnt lgkmcnt(0)")
        e("v_readfirstlane_b32 s63, v18")
        e("s_cmp_lg_u32 s63, 3")
        e("s_cbranch_scc1 .Lnotlast")
        for p in range(0, 8, 2):
            e(f"s_waitcnt lgkmcnt({6-p})")
            for i in range(4): e(f"v_add_f32 v{64+4*p+i}, v{64+4*p+i}, v{68+4*p+i}")
            if p == 2:
                for i in range(4): e(f"v_add_f32 v{64+i}, v{64+i}, v{72+i}")
        for i in range(4): e(f"v_add_f32 v{80+i}, v{80+i}, v{88+i}")
        for i in range(4): e(f"v_add_f32 v{64+i}, v{64+i}, v{80+i}")
        e("v_cvt_pk_bf16_f32 v64, v64, v65")
        e("v_cvt_pk_bf16_f32 v65, v66, v67")
        e("v_min_u32 v64, -2, v64")
        e("v_min_u32 v65, -2, v65")
        e("buffer_store_dwordx2 v[64:65], v15, s[36:39], s60 offen sc1")
        self.ts(4)
        self.label(".Lnotlast")
        e(f"s_cmp_lg_u32 s97, {o['RA']}")
        e("s_cbranch_scc1 .Lrolewait" if not o['dry'] else "s_cbranch_scc1 .Ldry")
        e("s_waitcnt vmcnt(0)")
        self.ts(10)
        e("v_readfirstlane_b32 s69, v26")
        e("s_cmp_eq_u32 s100, 64")
        e("s_cbranch_scc1 .Lrgot")
        e("s_mul_i32 s60, s58, 7")
        e("s_cmp_lt_u32 s69, 7")
        if o['rord'] == 'GW': e("s_cselect_b32 s63, 0, 49")
        else: e("s_cselect_b32 s63, 56, -7")
        e("s_add_u32 s60, s60, s63")
        e("s_cmp_lt_u32 s69, 14")
        e("s_cselect_b32 s60, s60, 255")
        e("s_add_u32 s69, s69, s60")
        self.label(".Lrgot")
        e("s_mov_b64 exec, 1")
        e("v_mov_b32 v18, s69")
        e(f"ds_write_b32 v16, v18 offset:{L_CNT + 4}")
        e("s_mov_b64 exec, -1")
        e("s_cmp_ge_u32 s69, 112")
        e("s_cbranch_scc1 .Lrdone")
        e("s_cmp_lt_u32 s69, 56")
        e("s_cbranch_scc1 .Lldg")
        self.srd(40, 12, 3670016)
        e("s_sub_u32 s69, s69, 56")
        e("s_mul_i32 s60, s69, 37")
        e("s_lshr_b32 s60, s60, 8")
        e("s_mul_i32 s63, s60, 7")
        e("s_sub_u32 s63, s69, s63")
        e(f"s_mul_i32 s60, s60, {512*896}")
        e("s_lshl_b32 s63, s63, 7")
        e("s_add_u32 s60, s60, s63")
        e("v_lshrrev_b32 v13, 3, v1")
        e("v_mul_u32_u24 v13, 896, v13")
        e("v_and_b32 v18, 7, v1")
        e("v_lshl_add_u32 v13, v18, 4, v13")
        e(f"s_mov_b32 s63, {L_W}")
        self.label(".Lldw")
        e("s_mov_b32 m0, s63")
        e("s_add_u32 s63, s63, 1024")
        e(f"buffer_load_dwordx4 v13, s[40:43], s60 offen {o['wpol']} lds")
        e(f"s_add_u32 s60, s60, {8*896}")
        e(f"s_cmp_lt_u32 s63, {L_W + 65536}")
        e("s_cbranch_scc1 .Lldw")
        e("s_branch .Lrdone")
        self.label(".Lldg")
        self.srd(40, 16, 1605632)
        self.srd(44, 18, 1605632)
        e("s_lshl_b32 s60, s69, 6")
        e("v_lshrrev_b32 v13, 2, v1")
        e("v_mul_u32_u24 v13, 3584, v13")
        e("v_lshl_add_u32 v13, v31, 4, v13")
        e(f"s_mov_b32 s63, {L_W}")
        self.label(".Lldg1")
        e("s_mov_b32 m0, s63")
        e(f"s_add_u32 s96, s63, {L_U - L_W}")
        e(f"buffer_load_dwordx4 v13, s[40:43], s60 offen {o['wpol']} lds")
        e("s_mov_b32 m0, s96")
        e("s_add_u32 s63, s63, 1024")
        e(f"buffer_load_dwordx4 v13, s[44:47], s60 offen {o['wpol']} lds")
        e(f"s_add_u32 s60, s60, {16*3584}")
        e(f"s_cmp_lt_u32 s63, {L_U}")
        e("s_cbranch_scc1 .Lldg1")
        self.srd(40, 20, 1605632)
        e("s_mul_i32 s60, s69, 28672")
        e(f"s_mov_b32 s63, {L_D}")
        self.label(".Lldg2")
        e("s_mov_b32 m0, s63")
        e("s_add_u32 s63, s63, 1024")
        e(f"buffer_load_dwordx4 v14, s[40:43], s60 offen {o['dpol']} lds")
        e("s_add_u32 s60, s60, 1024")
        e(f"s_cmp_lt_u32 s63, {L_D + 28672}")
        e("s_cbranch_scc1 .Lldg2")
        self.label(".Lrdone")
        e("s_waitcnt lgkmcnt(0)")
        if o['dry']:
            e("s_branch .Lrolewait")
            self.label(".Ldry")
            e("s_cmp_gt_u32 s63, 1")
            e("s_cbranch_scc1 .Lrolewait")
            for r in (0, 24, 26, 48, 50, 64): e(f"s_mov_b64 s[{r}:{r+1}], 0")
            for r in (56, 57, 59, 61, 63, 96, 97, 98, 99, 100, 101): e(f"s_mov_b32 s{r}, 0")
            e("s_waitcnt lgkmcnt(0)")
            e("s_mov_b64 exec, 0")
            e("s_branch .Lwok")
            self.label(".Ldryend")
            e("s_mov_b64 exec, -1")
            if o['ts']:
                e("s_waitcnt lgkmcnt(0)")
                for k in (5, 11, 12): e(f"s_mov_b32 s{70+2*k}, 0")
        self.label(".Lrolewait")
        e("s_mov_b64 s[0:1], -1")
        e("s_barrier")
        e(f"ds_read_b32 v18, v16 offset:{L_CNT + 4}")
        e("s_waitcnt lgkmcnt(0)")
        e("v_readfirstlane_b32 s69, v18")
        e("s_mov_b32 s68, 3")
        e("s_cmp_ge_u32 s69, 112")
        e("s_cbranch_scc1 .Lfin")
        e("s_mov_b32 s68, 1")
        e("s_cmp_lt_u32 s69, 56")
        e("s_cbranch_scc1 .LstageG")
        e("s_mov_b32 s68, 0")
        e("s_sub_u32 s69, s69, 56")
        self.stageW()
        self.stageG()
        self.label(".Lfin")
        if o['ts']:
            self.ts(8)
            e("s_waitcnt lgkmcnt(0)")
            if o['dbgts']:
                e("s_mov_b64 s[48:49], s[84:85]")
                e("s_mov_b32 s50, 256")
                e("s_mov_b32 s51, 0x20000")
                e("s_not_b32 s60, s70")
                e("s_cmp_eq_u32 s68, 1")
                e("s_cselect_b32 s63, s80, 0")
                e("v_mov_b32 v13, 0")
                e("s_mov_b64 exec, 1")
                for i, r in enumerate(("s60", "s82", "s76", "s78", "s88", "s63", "s92", "s86")):
                    e(f"v_mov_b32 v14, {r}")
                    e(f"buffer_atomic_umax v14, v13, s[48:51], 0 offen offset:{32+4*i} sc1")
                e("s_mov_b64 exec, -1")
            e("s_lshl_b32 s60, s2, 2")
            e("s_add_u32 s60, s60, s52")
            e("s_lshl_b32 s60, s60, 6")
            e(f"s_add_u32 s60, s60, {WS_TS}")
            e("v_mov_b32 v13, 0")
            e("s_getreg_b32 s63, hwreg(HW_REG_XCC_ID)")
            for i in range(13):
                e(f"v_mov_b32 v{64+i}, s{70+2*i}")
            e("v_mov_b32 v77, s63")
            e("v_mov_b32 v78, s62")
            e("v_mov_b32 v79, s68")
            e("s_mov_b64 exec, 1")
            for i in range(4):
                e(f"buffer_store_dwordx4 v[{64+4*i}:{67+4*i}], v13, s[36:39], s60 offen offset:{16*i}")
            if o['prof']:
                e("s_mov_b64 exec, -1")
                e("s_lshl_b32 s60, s2, 2")
                e("s_add_u32 s60, s60, s52")
                e("s_lshl_b32 s60, s60, 8")
                e(f"s_add_u32 s60, s60, {WS_PROF}")
                e("v_lshlrev_b32 v13, 2, v1")
                e("buffer_store_dword v0, v13, s[36:39], s60 offen")
        self.label(".Lend")
        e("s_endpgm")

    def bar(self):
        e = self.e
        if self.o['dry']:
            l = self.newlab("nb")
            e(f"s_cbranch_execz {l}")
            e("s_barrier")
            self.label(l)
        else: e("s_barrier")

    def stageW(self):
        e = self.e; o = self.o
        NC = o['NC']; dry = o['dry']
        e("s_mul_i32 s60, s69, 37")
        e("s_lshr_b32 s60, s60, 8")
        e("s_lshl_b32 s60, s60, 1")
        e("s_lshr_b32 s63, s52, 1")
        e("s_add_u32 s60, s60, s63")
        e("s_lshl_b32 s60, s60, 12")
        e("s_and_b32 s63, s52, 1")
        e("s_lshl_b32 s63, s63, 8")
        e("s_add_u32 s60, s60, s63")
        e(f"s_add_u32 s60, s60, {WS_PART}")
        e("v_and_b32 v13, 1, v1")
        e("v_lshlrev_b32 v13, 16, v13")
        e("v_bfe_u32 v14, v1, 1, 3")
        e("v_lshl_add_u32 v13, v14, 9, v13")
        e("v_lshrrev_b32 v14, 4, v1")
        e("v_lshl_add_u32 v13, v14, 4, v13")
        def lds_():
            for t in range(4):
                e(f"buffer_load_dwordx4 v[{64+4*t}:{67+4*t}], v13, s[36:39], s60 offen offset:{t*64} sc1")
        lds_()
        e("v_lshlrev_b32 v14, 7, v29")
        e("v_lshl_add_u32 v14, v31, 3, v14")
        e("s_lshl_b32 s63, s52, 14")
        e("v_add_u32 v14, s63, v14")
        e("v_lshrrev_b32 v15, 5, v1")
        e("v_lshlrev_b32 v15, 8, v15")
        e("v_and_b32 v16, 31, v1")
        e("v_lshl_add_u32 v15, v16, 2, v15")
        e("s_lshl_b32 s63, s52, 9")
        e(f"s_add_u32 s63, s63, {L_R2}")
        e("v_add_u32 v15, s63, v15")
        e("v_lshlrev_b32 v16, 3, v1")
        e("s_lshl_b32 s63, s69, 9")
        e(f"s_add_u32 s63, s63, {WS_Y}")
        e("s_mul_i32 s96, s52, 28672")
        e("s_add_u32 s63, s63, s96")
        e(f"s_add_u32 s96, s63, {4*28672}")
        e(f"s_cmp_ge_u32 s52, {NC}")
        e("s_cselect_b32 s59, 1, 0")
        e("s_waitcnt vmcnt(4)")
        e("s_barrier")
        self.ts(9)
        for t in range(4):
            for ct in range(4):
                r = 128 + 16 * t + 4 * ct
                e(f"ds_read_b64_tr_b16 v[{r}:{r+1}], v14 offset:{L_W + t*4096 + ct*32}")
                e(f"ds_read_b64_tr_b16 v[{r+2}:{r+3}], v14 offset:{L_W + t*4096 + ct*32 + 512}")
            e("s_waitcnt lgkmcnt(4)" if not o["ts"] else "s_waitcnt lgkmcnt(0)")
        self.poll_begin()
        e("s_waitcnt lgkmcnt(0)")
        e("s_branch .Lwchk")
        self.label(".Lwpoll")
        lds_()
        self.label(".Lwchk")
        e("s_waitcnt vmcnt(2)")
        e("v_max3_u32 v98, v64, v66, v68")
        e("s_waitcnt vmcnt(0)")
        e("v_max3_u32 v99, v70, v72, v74")
        e("v_max3_u32 v98, v98, v76, v78")
        e("v_max_u32 v98, v98, v99")
        e("v_cmp_eq_u32 vcc, -1, v98")
        e("s_and_b64 exec, exec, vcc")
        e("s_cbranch_scc0 .Lwok")
        self.poll_again(".Lwpoll")
        self.label(".Lwok")
        e("s_mov_b64 exec, s[0:1]")
        self.ts(5)
        for t in range(4):
            for ct in range(4):
                cin = "0" if t == 0 else f"v[{80+4*ct}:{83+4*ct}]"
                r = 128 + 16 * t + 4 * ct
                e(f"v_mfma_f32_16x16x32_bf16 v[{80+4*ct}:{83+4*ct}], v[{64+4*t}:{67+4*t}], v[{r}:{r+3}], {cin}")
        e("s_cmp_lg_u32 s59, 0")
        e("s_nop 3")
        for ct in range(4):
            e(f"v_pk_add_f32 v[{80+4*ct}:{81+4*ct}], v[{80+4*ct}:{81+4*ct}], v[{82+4*ct}:{83+4*ct}]")
        for ct in range(4):
            e(f"v_permlane32_swap_b32 v{80+4*ct}, v{81+4*ct}")
        for ct in range(4):
            e(f"v_add_f32 v{80+4*ct}, v{80+4*ct}, v{81+4*ct}")
        e("v_permlane16_swap_b32 v80, v84")
        e("s_nop 0")
        e("v_permlane16_swap_b32 v88, v92")
        e("v_add_f32 v80, v80, v84")
        e("s_nop 0")
        e("v_add_f32 v88, v88, v92")
        e("ds_write2_b32 v15, v80, v88 offset0:0 offset1:32")
        e("s_waitcnt lgkmcnt(0)")
        self.bar()
        if NC < 4: e("s_cbranch_scc1 .Lfin")
        for w in range(4):
            e(f"ds_read_b64 v[{64+2*w}:{65+2*w}], v16 offset:{L_R2 + 512*w}")
        e("s_waitcnt lgkmcnt(2)")
        e("v_pk_add_f32 v[64:65], v[64:65], v[66:67]")
        e("s_waitcnt lgkmcnt(0)")
        e("v_pk_add_f32 v[68:69], v[68:69], v[70:71]")
        e("v_pk_add_f32 v[64:65], v[64:65], v[68:69]")
        e("buffer_store_dwordx2 v[64:65], v16, s[36:39], s63 offen sc1")
        if NC == 8:
            e("buffer_store_dwordx2 v[64:65], v16, s[36:39], s96 offen sc1")
        if dry: e("s_cbranch_execz .Lgok")
        e("s_branch .Lfin")

    def stageG(self):
        e = self.e; o = self.o; NC = o['NC']; dry = o['dry']; gts = o['gts']
        WS_P2 = WS_Y + NC * 28672
        self.label(".LstageG")
        e("s_and_b32 s60, s52, 1")
        e("s_mul_i32 s60, s60, 56")
        e("v_add_u32 v14, s60, v1")
        e("v_lshrrev_b32 v13, 4, v14")
        e("v_lshlrev_b32 v13, 9, v13")
        e("v_and_b32 v15, 15, v14")
        e("v_lshl_add_u32 v13, v15, 4, v13")
        e("s_lshr_b32 s63, s52, 1")
        e("s_lshl_b32 s60, s63, 8")
        e(f"s_add_u32 s60, s60, {WS_Y}")
        e("v_add_u32 v13, s60, v13")
        e("s_mul_i32 s63, s63, 896")
        e("v_lshl_add_u32 v16, v14, 3, s63")
        self.srd(40, 4, 1792)
        e("s_mov_b32 s64, -1")
        e("s_mov_b32 s65, 0x00ffffff")
        if NC == 8: e("s_mul_i32 s60, s58, 28672")
        for p in range(8):
            if NC == 8: e(f"s_add_u32 s{28+p}, s60, {3584*p}")
            elif NC == 2:
                e(f"s_mov_b32 s{28+p}, {3584*p}")
                e(f"s_cmp_eq_u32 s58, {p}")
                e(f"s_cselect_b32 s{28+p}, {3584*p + 28672}, s{28+p}")
            else: e(f"s_mov_b32 s{28+p}, {3584*p}")
        ya = lambda p: f"v13, s[36:39], s{28+p} offen"
        e("v_mov_b32 v96, 0")
        e("v_mov_b32 v97, 0")
        e("s_mov_b64 exec, s[64:65]")
        e("buffer_load_dwordx2 v[104:105], v16, s[40:43], 0 offen")
        for p in range(8):
            e(f"buffer_load_dwordx4 v[{64+4*p}:{67+4*p}], {ya(p)} sc1")
        e("s_mov_b64 exec, -1")
        e("s_lshl_b32 s60, s52, 3")
        e("v_mov_b32 v17, s60")
        e("s_and_b32 s60, s60, 16")
        e("v_mov_b32 v18, s60")
        e("v_bfe_u32 v14, v1, 3, 1")
        e("v_lshlrev_b32 v14, 4, v14")
        e("v_and_b32 v15, 7, v1")
        e("v_lshl_add_u32 v28, v15, 1, v14")
        e("s_lshl_b32 s60, s52, 5")
        e("v_add_u32 v28, s60, v28")
        e("v_lshrrev_b32 v14, 4, v1")
        e("v_and_b32 v19, 1, v1")
        e("v_lshlrev_b32 v19, 4, v19")
        e("v_lshl_add_u32 v19, v14, 5, v19")
        e("v_and_b32 v20, 15, v1")
        e("v_lshlrev_b32 v20, 3, v20")
        e(f"s_mul_i32 s60, s52, {7*7168}")
        e("s_lshl_b32 s63, s69, 7")
        e("s_add_u32 s60, s60, s63")
        PS = [96, 97, 98, 99, 100, 101, 57]
        for j in range(7): e(f"s_add_u32 s{PS[j]}, s60, {WS_P2 + 7168*j}")
        e("v_and_b32 v26, 1, v14")
        e("v_mul_u32_u24 v26, 896, v26")
        e("v_lshl_add_u32 v26, v15, 2, v26")
        e("v_and_b32 v14, 2, v14")
        e("v_add_u32 v26, v26, v14")
        e("s_min_u32 s60, s69, 27")
        e("s_lshl_b32 s60, s60, 5")
        e("v_add_u32 v26, s60, v26")
        e("v_lshlrev_b32 v27, 4, v1")
        e("s_mul_i32 s56, s69, 7168")
        e(f"s_add_u32 s56, s56, {WS_P2}")
        e("s_add_u32 s61, s56, 4096")
        self.srd(44, 22, 1792)
        e("s_cmp_ge_u32 s69, 28")
        e("s_cselect_b32 s59, 1, s52")
        e("s_mov_b32 s53, 0x3f803f80")
        e("s_mov_b32 s24, 0")
        e("s_mov_b32 s25, 0x80000000")
        e("s_mov_b64 s[26:27], 0x5555")
        e("s_mov_b64 s[48:49], 0xffff")
        e("s_mov_b32 s50, 0x00ff00ff")
        e("s_mov_b32 s51, 0x00ff00ff")
        k1 = -2.0 * math.sqrt(2.0 / math.pi) * math.log2(math.e)
        e(f"v_mov_b32 v21, {hex(f2u(k1))}")
        e("v_and_b32 v14, 8, v1")
        e("v_cmp_ne_u32 s[66:67], 0, v14")
        e("v_lshlrev_b32 v14, 6, v29")
        e("v_and_b32 v15, 1, v1")
        e("v_lshl_add_u32 v14, v15, 3, v14")
        e("v_bfe_u32 v15, v1, 1, 1")
        e(f"v_mul_u32_u24 v15, {L_U - L_W}, v15")
        e("v_add_u32 v14, v14, v15")
        e("s_lshl_b32 s60, s52, 4")
        e("v_add_u32 v14, s60, v14")
        e("v_mul_u32_u24 v15, 896, v29")
        e("v_lshl_add_u32 v15, v31, 3, v15")
        e("s_mul_i32 s60, s52, 224")
        e(f"s_add_u32 s60, s60, {L_D}")
        e("v_add_u32 v15, s60, v15")
        e("s_waitcnt vmcnt(9)")
        e("s_barrier")
        self.ts(9)
        for ks in range(14):
            e(f"ds_read_b64_tr_b16 v[{160+4*ks}:{161+4*ks}], v14 offset:{L_W + ks*2048}")
            e(f"ds_read_b64_tr_b16 v[{162+4*ks}:{163+4*ks}], v14 offset:{L_W + ks*2048 + 256}")
            if ks in (6, 10):
                e("s_waitcnt lgkmcnt(6)")
        e("s_waitcnt lgkmcnt(0)")
        for j in range(7):
            e(f"ds_read_b64_tr_b16 v[{216+4*j}:{217+4*j}], v15 offset:{j*32}")
            e(f"ds_read_b64_tr_b16 v[{218+4*j}:{219+4*j}], v15 offset:{j*32 + 3584}")
        e("s_waitcnt vmcnt(8)")
        e("v_lshlrev_b32 v100, 16, v104")
        e("v_and_b32 v101, 0xffff0000, v104")
        e("v_lshlrev_b32 v102, 16, v105")
        e("v_and_b32 v103, 0xffff0000, v105")
        e("s_mov_b64 exec, s[64:65]")
        self.mpoll(8, 64, ya, "s[64:65]", ".Lg", m0=6)
        self.ts(5)
        pk = lambda d, a, b: e(f"v_pk_add_f32 v[{d}:{d+1}], v[{a}:{a+1}], v[{b}:{b+1}]")
        for p in range(0, 8, 2):
            for i in (0, 2): pk(64+4*p+i, 64+4*p+i, 68+4*p+i)
        for i in (0, 2):
            pk(64+i, 64+i, 72+i); pk(80+i, 80+i, 88+i)
        for i in (0, 2): pk(108+i, 64+i, 80+i)
        def cvt():
            e("v_cvt_pk_bf16_f32 v112, v108, v109")
            e("v_cvt_pk_bf16_f32 v113, v110, v111")
        UP = ["v_lshlrev_b32 v108, 16, v112", "v_and_b32 v109, 0xffff0000, v112", "v_lshlrev_b32 v110, 16, v113", "v_and_b32 v111, 0xffff0000, v113"]
        cvt()
        for u in UP: e(u)
        pk(108, 108, 100); pk(110, 110, 102)
        cvt()
        e("v_dot2_f32_bf16 v96, v112, s53, 0")
        e("v_dot2_f32_bf16 v97, v112, v112, 0")
        e("v_dot2_f32_bf16 v96, v113, s53, v96")
        e("v_dot2_f32_bf16 v97, v113, v113, v97")
        e(f"ds_write_b64 v16, v[112:113] offset:{L_H}")
        e("s_mov_b64 exec, s[0:1]")
        e(UP[0])
        fill = UP[1:] + ["s_nop 0", "s_nop 0", "s_mov_b64 exec, s[24:25]"]
        for n, st in enumerate(("quad_perm:[1,0,3,2] row_mask:0xf bank_mask:0xf", "quad_perm:[2,3,0,1] row_mask:0xf bank_mask:0xf",
                   "row_half_mirror row_mask:0xf bank_mask:0xf", "row_mirror row_mask:0xf bank_mask:0xf",
                   "row_bcast:15 row_mask:0xa bank_mask:0xf", "row_bcast:31 row_mask:0xc bank_mask:0xf")):
            e(f"v_add_f32_dpp v96, v96, v96 {st}")
            e(f"v_add_f32_dpp v97, v97, v97 {st}")
            e(fill[n])
        e(f"ds_write_b64 v17, v[96:97] offset:{L_ST}")
        e("s_mov_b64 exec, s[0:1]")
        e("s_waitcnt lgkmcnt(0)")
        self.bar()
        if gts: self.ts(1)
        e(f"ds_read_b128 v[64:67], v18 offset:{L_ST}")
        e("s_waitcnt lgkmcnt(0)")
        pk(64, 64, 66)
        e(f"v_mul_f32 v64, {hex(f2u(1.0/448))}, v64")
        e(f"v_mul_f32 v65, {hex(f2u(1.0/448))}, v65")
        e("v_fma_f32 v65, -v64, v64, v65")
        e("v_cvt_pk_bf16_f32 v66, v64, v65")
        e("v_and_b32 v65, 0xffff0000, v66")
        e("v_lshlrev_b32 v64, 16, v66")
        e(f"v_add_f32 v65, {hex(f2u(1e-5))}, v65")
        e("v_cvt_pk_bf16_f32 v65, 0, v65")
        e("v_sqrt_f32 v65, v65")
        for i in (108, 110): e(f"v_pk_add_f32 v[{i}:{i+1}], v[{i}:{i+1}], v[64:65] op_sel_hi:[1,0] neg_lo:[0,1] neg_hi:[0,1]")
        e("v_cvt_pk_bf16_f32 v65, 0, v65")
        e("v_rcp_f32 v65, v65")
        cvt()
        for u in UP: e(u)
        for i in (108, 110): e(f"v_pk_mul_f32 v[{i}:{i+1}], v[{i}:{i+1}], v[64:65] op_sel:[0,1] op_sel_hi:[1,1]")
        e("s_mov_b64 exec, s[64:65]")
        cvt()
        e(f"ds_write_b64 v16, v[112:113] offset:{L_XN}")
        e("s_mov_b64 exec, s[0:1]")
        e("s_waitcnt lgkmcnt(0)")
        self.bar()
        if gts: self.ts(2)
        for ks in range(14):
            e(f"ds_read_b128 v[{104+4*ks}:{107+4*ks}], v30 offset:{L_XN + ks*64}")
        for ks in range(14):
            e(f"s_waitcnt lgkmcnt({13-ks if not gts else 0})")
            cin = "0" if ks == 0 else "v[64:67]"
            e(f"v_mfma_f32_16x16x32_bf16 v[64:67], v[{104+4*ks}:{107+4*ks}], v[{160+4*ks}:{163+4*ks}], {cin}")
        e(f"ds_read_u16 v25, v26 offset:{L_H}")
        e("s_nop 6")
        e("v_mov_b32_dpp v68, v64 row_ror:8 row_mask:0xf bank_mask:0xf")
        e("v_mov_b32_dpp v69, v65 row_ror:8 row_mask:0xf bank_mask:0xf")
        e("v_cndmask_b32 v70, v64, v69, s[66:67]")
        e("v_cndmask_b32 v71, v68, v65, s[66:67]")
        e("v_cvt_pk_bf16_f32 v70, 0, v70")
        e("v_mul_f32 v73, v70, v70")
        e(f"v_fmamk_f32 v73, v73, {hex(f2u(k1 * 0.044715))}, v21")
        e("v_mul_f32 v73, v73, v70")
        e("v_exp_f32 v73, v73")
        e("v_cvt_pk_bf16_f32 v71, 0, v71")
        e("v_add_f32 v73, 1.0, v73")
        e("v_rcp_f32 v73, v73")
        e("s_nop 0")
        e("v_mul_f32 v73, v73, v70")
        e("v_cvt_pk_bf16_f32 v73, 0, v73")
        e("v_mul_f32 v73, v73, v71")
        if gts: self.ts(6)
        e("s_mov_b64 exec, s[48:49]")
        e("v_cvt_pk_bf16_f32 v75, v73, v73")
        e(f"ds_write_b16 v28, v75 offset:{L_ACT}")
        e("s_mov_b64 exec, s[0:1]")
        e("s_waitcnt lgkmcnt(0)")
        self.bar()
        if gts: self.ts(7)
        e(f"ds_read_b128 v[104:107], v19 offset:{L_ACT}")
        e("v_lshlrev_b32 v25, 16, v25")
        e("s_cmp_lg_u32 s59, 0")
        e("s_waitcnt lgkmcnt(0)")
        for j in range(7):
            e(f"v_mfma_f32_16x16x32_bf16 v[{64+4*j}:{67+4*j}], v[104:107], v[{216+4*j}:{219+4*j}], 0")
        e("s_mov_b64 exec, s[48:49]")
        e("s_nop 0")
        for j in range(7):
            e(f"buffer_store_dwordx2 v[{64+4*j}:{65+4*j}], v20, s[36:39], s{PS[j]} offen sc1")
        e("s_mov_b64 exec, s[0:1]")
        self.ts(11)
        e("s_cbranch_scc1 .Lfin")
        ra = lambda p: f"v27, s[36:39], {'s56' if p < 4 else 's61'} offen offset:{(p&3)*1024}"
        for p in range(7):
            e(f"buffer_load_dwordx4 v[{108+4*p}:{111+4*p}], {ra(p)} sc1")
        self.mpoll(7, 108, ra, "-1", ".Lr", m0=6)
        if not o['prof']: self.ts(12)
        for p in range(0, 6, 2):
            for i in (0, 2): pk(108+4*p+i, 108+4*p+i, 112+4*p+i)
        for i in (0, 2):
            pk(108+i, 108+i, 116+i); pk(124+i, 124+i, 132+i)
        for i in (0, 2): pk(108+i, 108+i, 124+i)
        e("s_nop 0")
        e("v_permlane16_swap_b32 v108, v109")
        e("v_permlane16_swap_b32 v110, v111")
        e("s_nop 0")
        e("v_add_f32 v108, v108, v109")
        e("v_add_f32 v110, v110, v111")
        e("s_nop 1")
        e("v_permlane32_swap_b32 v108, v110")
        e("s_nop 1")
        e("v_add_f32 v108, v108, v110")
        e("s_nop 1")
        e("v_add_f32_dpp v108, v108, v108 row_ror:8 row_mask:0xf bank_mask:0xf")
        e("s_mov_b64 exec, s[50:51]")
        e("v_cvt_pk_bf16_f32 v108, 0, v108")
        e("v_add_f32 v108, v108, v25")
        e("v_cvt_pk_bf16_f32 v108, v108, v108")
        if dry: e("s_cbranch_execz .Ldryend")
        e(f"buffer_store_short v108, v26, s[44:47], 0 offen {o['opol']}")
        e("s_mov_b64 exec, -1")

if __name__ == "__main__":
    out = sys.argv[1]
    kw = json.loads(sys.argv[2]) if len(sys.argv) > 2 else {}
    open(out, "w").write(Gen(**kw).build())
```

```python
import sys, json
sys.path.insert(0,'dev')
from util import *
import gen5
a=sys.argv[1:]
for n,j in zip(a[::2],a[1::2]):
    open('dev/'+n,'w').write(gen5.Gen(**json.loads(j)).build())
    co,l=build('dev/'+n)
    p=cl.address_register_problem(co, l[0].kernel)
    print(n, "OK" if p is None else p[:900])
```

```python
import sys, json, struct, math
from gen2 import *
import gen2

WS_PART = 0x100000
WS_Y    = 0x120000
L_D     = L_W + 57344
L_H     = 2816
L_ACT   = 640
LDS_BYTES = L_D + 28672

class Gen(gen2.Gen):
    def __init__(self, **kw):
        d = dict(NSH=3, PV=4, NO=2, c0=2, cmax=3, csh=6, pace=14, late='', early=False, quit=(0,0,0), dyn='', order='DGW', gs=0, nodot=False, NB=0, dum='', dsp=256, tpol='', remap=None, PA=0, XS=0, epol='sc1', NP=4, cpol='', NC=8, RA=0, cls=True, dry=False, rst='late', rord='GW', gts=False, opol='')
        d.update(dict(NSH=4, PV=0, NO=6, NB=48, NH=0, dyn='WGD', order='GWD', wpol='', dpol='', tpol='nt', gs=1))
        d.update(kw)
        super().__init__(**d)
        if self.o['dyn']: self.o['late'] = self.o['dyn']

    def ktile(self, kb, wait, reissue, rtag=None):
        e = self.e
        for i in range(8):
            e(f"v_mov_b32 v{11+i}, 0")
        for g in range(4):
            wait(g)
            for i in range(16 if not self.o['nodot'] else 2):
                e(f"v_dot2c_f32_bf16 v{11+2*g+(i&1)}, v{kb+g*16+i}, v{32+i}")
            if reissue:
                self.ld(kb, g, rtag and (rtag, g))
        if reissue or self.o['prof'] != 2: self.plog()
        if not reissue: e("s_nop 2")
        for g in range(4):
            e(f"v_add_f32 v{11+2*g}, v{11+2*g}, v{12+2*g}")
        for st in ("quad_perm:[1,0,3,2]", "quad_perm:[2,3,0,1]", "row_half_mirror"):
            for g in range(4):
                e(f"v_add_f32_dpp v{11+2*g}, v{11+2*g}, v{11+2*g} {st} row_mask:0xf bank_mask:0xf")
        e("v_cvt_pk_bf16_f32 v24, v11, v13")
        e("v_cvt_pk_bf16_f32 v25, v15, v17")
        e("ds_write_b64 v19, v[24:25]")
        e("v_add_u32 v19, 64, v19")

    def pcalc(self, groups):
        e = self.e
        for g in groups:
            src = 24 if g < 2 else 25
            if g & 1: e(f"v_and_b32 v{11+g}, 0xffff0000, v{src}")
            else: e(f"v_lshlrev_b32 v{11+g}, 16, v{src}")
        for g in groups: e(f"v_fma_f32 v{11+g}, v{11+g}, s59, v10")
        for g in groups: e(f"v_exp_f32 v{11+g}, v{11+g}")
        for g in groups: e(f"v_cvt_pk_bf16_f32 v{15+g}, v{11+g}, v{11+g}")
        for g in groups:
            for r in range(4):
                e(f"v_and_b32 v{32+4*g+r}, v{6+r}, v{15+g}")

    def ticket(self, off=0, amount="1"):
        e = self.e
        e(f"v_mov_b32 v22, {amount}")
        e("s_mov_b64 exec, 1")
        e(f"buffer_atomic_add v22, v21, s[36:39], 0 offen offset:{off} sc0 sc1 {self.o['tpol']}")
        e("s_mov_b64 exec, -1")

    def tile_addr(self, src="s56"):
        k = self.o['gs']; e = self.e
        if k == 0: return super().tile_addr(src)
        e(f"s_lshr_b32 s57, {src}, {k}")
        e(f"s_lshl_b32 s57, s57, {14 + k}")
        e("s_add_u32 s57, s57, s61")
        e(f"s_and_b32 s63, {src}, {(1 << k) - 1}")
        e("s_lshl_b32 s63, s63, 12")
        e("s_add_u32 s57, s57, s63")
        e("s_and_b32 s57, s57, 0x7fffff")

    def sc_addr(self, t):
        e = self.e
        e(f"s_and_b32 s98, {t}, 31")
        e("s_lshl_b32 s98, s98, 9")
        e(f"s_lshr_b32 s63, {t}, 5")
        e("s_lshl_b32 s63, s63, 6")
        e("s_add_u32 s98, s98, s63")

    def build(self):
        o = self.o; e = self.e
        PD = o['PD']; NSH = o['NSH']; NH = o['NH']; PV = o['PV']; NO = o['NO']
        ND = 32 * NSH
        NF = ND - NH
        NTK = NF + 2 * NH
        PA = o['PA']; XS = o['XS'] + PV
        B1 = ND + 24 * XS
        B2 = B1 + 32 * NO
        E1 = PD + PA + 1
        assert 1 <= PD <= 2 and o['dyn'] == 'WGD' and PD + 1 <= NSH <= 8 and NO >= 2 and PV + PA <= 4 and B2 <= 512
        assert 2 * o['NB'] <= NF
        assert max(NSH, E1) + 2 <= NSH + XS + NO
        def pace():
            if o['pace']: e(f"s_waitcnt vmcnt({o['pace']})")
        self.L.append(f"; @launch grid=(256,1,1) block=(256,1,1) lds={LDS_BYTES}")
        self.L.append('.amdgcn_target "amdgcn-amd-amdhsa--gfx950"')
        self.L.append(".text")
        self.L.append(f".globl {NAME}")
        self.L.append(".p2align 8")
        self.L.append(f".type {NAME},@function")
        self.label(NAME)
        e("s_cmp_ge_u32 s2, 256")
        e("s_cbranch_scc1 .Lend")
        e("s_load_dwordx16 s[4:19], s[0:1], 0")
        e("s_load_dwordx8 s[20:27], s[0:1], 64")
        if o['ts']:
            self.ts(0)
            for i in range(72, 96): e(f"s_mov_b32 s{i}, 0")
        e("v_and_b32 v1, 63, v0")
        e("v_lshrrev_b32 v2, 6, v0")
        e("s_and_b32 s53, s2, 7")
        if o['prof']:
            e("s_mov_b32 s3, 0")
            e("v_mov_b32 v0, 0")
        e("v_readfirstlane_b32 s52, v2")
        e("s_lshr_b32 s54, s2, 3")
        e(f"s_mul_i32 s61, s54, {o['rot']}")
        e("v_lshrrev_b32 v20, 3, v1")
        e("v_lshlrev_b32 v2, 9, v20")
        e("v_and_b32 v3, 7, v1")
        e("v_lshlrev_b32 v13, 13, v20")
        e("v_lshl_or_b32 v2, v3, 4, v2")
        e("v_lshl_or_b32 v13, v3, 4, v13")
        S = 4096 << o['gs']
        e(f"v_add_u32 v3, {S}, v2")
        e(f"v_add_u32 v4, {2*S}, v2")
        e(f"v_add_u32 v5, {3*S}, v2")
        e("s_lshl_b32 s58, s53, 2")
        e("s_add_u32 s58, s58, s52")
        e("s_mov_b32 s56, s58")
        self.tile_addr()
        e("s_mov_b32 s30, 0x800000")
        e("s_mov_b32 s31, 0x20000")
        e("s_lshr_b32 s96, s53, 2")
        e("s_lshl_b32 s60, s54, 1")
        e("s_add_u32 s96, s96, s60")
        e(f"s_mul_i32 s60, s52, {112 * 8192}")
        e("s_lshl_b32 s63, s96, 7")
        e("s_add_u32 s60, s60, s63")
        e("v_add_u32 v13, s60, v13")
        e("v_and_b32 v16, 31, v1")
        e("v_cmp_gt_u32 s[64:65], 28, v16")
        e("v_lshrrev_b32 v14, 5, v1")
        e("v_mul_u32_u24 v14, 896, v14")
        e("v_lshl_add_u32 v28, v16, 5, v14")
        e("v_mov_b32 v16, 0x10000")
        e("v_cndmask_b32 v16, v16, v28, s[64:65]")
        e("v_mov_b32 v15, 0")
        e("s_mov_b32 s38, {0}".format(WS_SIZE))
        e("s_mov_b32 s39, 0x20000")
        e("s_mov_b32 s42, 1792")
        e("s_mov_b32 s43, 0x20000")
        e("s_mov_b32 s46, 3670016")
        e("s_mov_b32 s47, 0x20000")
        e(f"s_mul_i32 s97, s52, {14 * 1024}")
        e(f"s_add_u32 s97, s97, {L_W}")
        e("s_lshl_b32 s60, s54, 23")
        e("s_xor_b32 s62, s53, s54")
        e("s_and_b32 s62, s62, 3")
        e("s_waitcnt lgkmcnt(0)")
        if o['dbgts']: e("s_mov_b64 s[84:85], s[24:25]")
        e("s_cbranch_scc1 .Lnoprod1")
        e("s_setprio 3")
        e("s_mov_b64 s[40:41], s[4:5]")
        e("s_mov_b64 s[44:45], s[10:11]")
        e("s_and_b32 s63, s96, 3")
        e("s_or_b32 s63, s63, s52")
        e("s_cbranch_scc1 .Lnocinit")
        e("s_mov_b64 s[36:37], s[26:27]")
        e("s_lshl_b32 s63, s96, 6")
        e("v_and_b32 v14, 1, v1")
        e("v_lshlrev_b32 v14, 12, v14")
        e("v_lshrrev_b32 v17, 1, v1")
        e("v_lshl_add_u32 v14, v17, 7, v14")
        e(f"v_add_u32 v14, {WS_CNT}, v14")
        e("s_mov_b64 exec, 15")
        e("buffer_store_dword v15, v14, s[36:39], s63 offen sc1")
        e("s_mov_b64 exec, -1")
        self.label(".Lnocinit")
        e("buffer_load_dwordx4 v[240:243], v16, s[40:43], 0 offen")
        e("buffer_load_dwordx4 v[244:247], v16, s[40:43], 0 offen offset:16")
        for ks in range(14):
            e("s_mov_b32 m0, s97")
            e(f"s_mov_b32 s63, {ks * 65536}")
            e(f"buffer_load_dwordx4 v13, s[44:47], s63 offen {o['wqpol']} lds")
            if ks < 13: e("s_add_u32 s97, s97, 1024")
        self.label(".Lnoprod1")
        if o['rst'] == 'first': self.resets()
        e("s_add_u32 s28, s6, s60")
        e("s_addc_u32 s29, s7, 0")
        self.q = []
        for g in range(4): self.ld(64, g, ('A', g))
        e(f"s_load_dword s68, s[26:27], {WS_EPOCH}")
        def tag():
            e("s_mul_i32 s55, s68, 0x9e3779b1")
            e("s_add_u32 s55, s55, 0x7f4a7c15")
        if o['prof'] == 2: self.plog()
        e("s_add_u32 s32, s8, s60")
        e("s_addc_u32 s33, s9, 0")
        e("s_mov_b32 s34, 0x800000")
        e("s_mov_b32 s35, 0x20000")
        e("s_mov_b64 s[36:37], s[26:27]")
        self.srd(48, 24, 256)
        self.setup()
        e("s_cmp_lg_u32 s62, 0")
        e("s_cbranch_scc1 .Ljoin")
        e("v_lshlrev_b32 v17, 7, v29")
        e("v_lshl_add_u32 v17, v31, 3, v17")
        e("s_lshl_b32 s60, s52, 5")
        e(f"s_add_u32 s60, s60, {L_W}")
        e("v_add_u32 v17, s60, v17")
        e("s_waitcnt vmcnt(30)")
        for i in range(8):
            e(f"v_and_b32 v{184+2*i+1}, 0xffff0000, v{240+i}")
            e(f"v_lshlrev_b32 v{184+2*i}, 16, v{240+i}")
        self.layernorm16(184, 200, "s[64:65]")
        e("s_mov_b64 exec, s[64:65]")
        e(f"ds_write_b128 v28, v[184:187] offset:{L_XN}")
        e(f"ds_write_b128 v28, v[188:191] offset:{L_XN+16}")
        e("s_mov_b64 exec, -1")
        e("s_waitcnt lgkmcnt(0)")
        for ks in range(14):
            e(f"ds_read_b128 v[{128+4*ks}:{131+4*ks}], v30 offset:{L_XN + ks*64}")
        tag()
        e("v_mov_b32 v249, s55")
        e("v_and_b32 v13, 1, v1")
        e("v_lshlrev_b32 v14, 14, v13")
        e("v_cmp_eq_u32 vcc, 1, v13")
        e("v_lshrrev_b32 v13, 1, v1")
        e("v_lshl_add_u32 v14, v13, 3, v14")
        e("s_lshl_b32 s60, s96, 2")
        e("s_add_u32 s60, s60, s52")
        e("s_lshl_b32 s60, s60, 6")
        e(f"s_add_u32 s60, s60, {WS_Q}")
        e("s_waitcnt vmcnt(16)")
        e("s_barrier")
        for ks in range(14):
            e(f"ds_read_b64_tr_b16 v[{184+4*ks}:{185+4*ks}], v17 offset:{ks*4096}")
            e(f"ds_read_b64_tr_b16 v[{186+4*ks}:{187+4*ks}], v17 offset:{ks*4096 + 512}")
            if ks == 6:
                e("s_waitcnt lgkmcnt(6)")
        e("s_waitcnt lgkmcnt(0)")
        for ks in range(14):
            cin = "0" if ks == 0 else "v[240:243]"
            e(f"v_mfma_f32_16x16x32_bf16 v[240:243], v[{128+4*ks}:{131+4*ks}], v[{184+4*ks}:{187+4*ks}], {cin}")
        e("s_nop 7")
        e("v_mov_b32_dpp v244, v240 quad_perm:[1,0,3,2] row_mask:0xf bank_mask:0xf")
        e("v_mov_b32_dpp v245, v241 quad_perm:[1,0,3,2] row_mask:0xf bank_mask:0xf")
        e("v_cndmask_b32 v246, v240, v245, vcc")
        e("v_cndmask_b32 v247, v244, v241, vcc")
        e("v_cvt_pk_bf16_f32 v248, v246, v247")
        e("s_mov_b64 exec, 0xffff")
        e("buffer_store_dwordx2 v[248:249], v14, s[36:39], s60 offen sc1")
        e("s_mov_b64 exec, -1")
        e("s_setprio 0")
        self.label(".Ljoin")
        if o['rst'] == 'join': self.resets()
        for p in range(PD):
            e("s_add_u32 s56, s56, 32")
            self.tile_addr()
            for g in range(4):
                pace()
                self.ld(128 + 64 * p, g, (f'E{p}', g))
            if o['prof'] == 2: self.plog()
        e("s_cmp_eq_u32 s52, 0")
        e("s_cbranch_scc1 .Lw0")
        for p in range(PA):
            e(f"v_readlane_b32 s56, v23, {PD + 1 + p}")
            self.tile_addr()
            for g in range(4):
                pace()
                for j in range(4):
                    r = 64 * (PV + p) + g * 16 + j * 4
                    self.vm(f"buffer_load_dwordx4 a[{r}:{r+3}], v{2+g}, s[28:31], s57 offen offset:{j*128} {o['kvpol']}", (f'F{p}', g))
            if o['prof'] == 2: self.plog()
        for p in range(PV):
            e(f"v_readlane_b32 s56, v23, {NSH + p}")
            self.tile_addr()
            for g in range(4):
                pace()
                for j in range(4):
                    r = 64 * p + g * 16 + j * 4
                    self.vm(f"buffer_load_dwordx4 a[{r}:{r+3}], v{2+g}, s[32:35], s57 offen offset:{j*128} {o['kvpol']}", 'X')
            if o['prof'] == 2: self.plog()
        for p in range(PV if o['prof'] == 1 else 0): self.plog()
        e(f"s_mov_b32 s99, {E1}")
        e(f"s_mov_b32 s97, {NSH + PV}")
        e(f"s_mov_b32 s101, {NSH + XS + NO}")
        e(f"s_mov_b32 s62, {max(NSH, E1)}")
        e("s_branch .Lbar")
        self.label(".Lw0")
        e("s_lshl_b32 s60, s54, 10")
        e(f"s_add_u32 s60, s60, {WS_Q}")
        e("v_lshlrev_b32 v13, 4, v1")
        e("v_lshlrev_b32 v14, 3, v1")
        e(f"ds_write_b32 v15, v15 offset:{L_CNT}")
        e(f"ds_write_b32 v15, v15 offset:{L_CNT + 8}")
        NP = o['NP']
        def poll(k): e(f"buffer_load_dwordx4 v[{48+4*k}:{51+4*k}], v13, s[36:39], s60 offen sc1")
        for k in range(NP):
            if k: e(f"s_waitcnt vmcnt({16 - 3 * k})")
            poll(k)
        e("s_waitcnt lgkmcnt(0)")
        tag()
        self.poll_begin()
        self.label(".Lqpoll")
        for k in range(NP):
            e(f"s_waitcnt vmcnt({NP - 1})")
            e(f"v_cmp_ne_u32 vcc, s55, v{49+4*k}")
            e(f"v_cmp_ne_u32 s[66:67], s55, v{51+4*k}")
            e("s_or_b64 vcc, vcc, s[66:67]")
            e(f"s_cbranch_vccz .Lqok{k}")
            poll(k)
        self.poll_again(".Lqpoll")
        for k in range(NP):
            self.label(f".Lqok{k}")
            e(f"ds_write2_b32 v14, v{48+4*k}, v{50+4*k} offset0:{L_Q//4} offset1:{L_Q//4+1}")
            if k < NP - 1: e("s_branch .Lqok")
        self.label(".Lqok")
        e(f"s_mov_b32 s99, {PD + 1}")
        e(f"s_mov_b32 s97, {NSH}")
        e(f"s_mov_b32 s101, {NSH + NO}")
        e(f"s_mov_b32 s62, {NSH}")
        e("s_waitcnt lgkmcnt(0)")
        self.label(".Lbar")
        self.ts(1)
        e("s_barrier")
        self.ts(2)
        e("v_and_b32 v13, 7, v1")
        e("v_lshlrev_b32 v13, 4, v13")
        for j in range(4):
            e(f"ds_read_b128 v[{32+4*j}:{35+4*j}], v13 offset:{L_Q + j*128}")
        e("v_readlane_b32 s56, v23, s99")
        self.tile_addr()
        e("s_waitcnt lgkmcnt(0)")
        tag()
        self.ktile(64, lambda g: self.vwait(('A', g)), True, rtag='A2')
        for p in range(PD):
            self.ktile(128 + 64 * p, lambda g: self.vwait((f'E{p}', g)), False)
        if PA:
            e("s_cmp_eq_u32 s52, 0")
            e("s_cbranch_scc1 .Lkloop")
        for p in range(PA):
            def wa(g):
                self.vwait((f'F{p}', g))
                for i in range(16): e(f"v_accvgpr_read_b32 v{128 + 16 * g + i}, a{64 * (PV + p) + 16 * g + i}")
            self.ktile(128, wa, False)
        if o['rst'] == 'late': self.resets()
        else: self.checkin(".Lkloop")

        w12 = lambda g: e("s_waitcnt vmcnt(12)")
        self.label(".Lkloop")
        e("s_cmp_lg_u32 s99, s62")
        e("s_cbranch_scc1 .Lk0")
        e("s_lshl_b32 s60, s52, 11")
        e(f"s_add_u32 s60, s60, {L_SC}")
        e("v_lshl_add_u32 v14, v1, 4, s60")
        e("ds_read_b128 v[24:27], v14")
        e("s_lshl_b32 s60, s2, 2")
        e("s_add_u32 s60, s60, s52")
        e("s_lshl_b32 s60, s60, 9")
        e(f"s_add_u32 s60, s60, {WS_SC}")
        e("v_lshlrev_b32 v13, 4, v1")
        e(f"s_mov_b32 exec_lo, {hex((1 << (4 * NSH)) - 1)}")
        e("s_mov_b32 exec_hi, 0")
        e("s_waitcnt lgkmcnt(0)")
        e("buffer_store_dwordx4 v[24:27], v13, s[36:39], s60 offen sc1")
        e("s_mov_b64 exec, -1")
        e(f"s_mov_b32 s100, {B2}")
        e(f"s_mov_b32 s96, {o['c0']}")
        self.label(".Lk0")
        e("s_add_u32 s99, s99, 1")
        e("s_mov_b32 s58, s99")
        e("s_cmp_lt_u32 s99, s101")
        e("s_cbranch_scc1 .Lk2")
        e("s_waitcnt vmcnt(16)")
        e("v_readfirstlane_b32 s56, v22")
        e(f"s_add_u32 s56, s56, {B2}")
        e("s_cmp_lt_u32 s56, 512")
        e("s_cbranch_scc1 .Lk1")
        e("s_mov_b64 s[28:29], s[32:33]")
        e("s_mov_b32 s58, s97")
        e("s_mov_b32 s101, 0")
        e("s_branch .Lk2")
        self.label(".Lk1")
        e("s_add_u32 s100, s56, s96")
        e("s_min_u32 s100, s100, 512")
        e("s_sub_u32 s60, s56, s99")
        e("v_add_u32 v13, s60, v1")
        e("v_cmp_le_u32 vcc, s99, v1")
        e("s_sub_u32 s101, s100, s60")
        e("s_sub_u32 s96, 512, s100")
        e("v_cndmask_b32 v23, v23, v13, vcc")
        e(f"s_lshr_b32 s96, s96, {o['csh']}")
        e("s_max_u32 s96, s96, 1")
        e(f"s_min_u32 s96, s96, {o['cmax']}")
        self.label(".Lk2")
        e("v_readlane_b32 s56, v23, s58")
        e("s_add_u32 s60, s99, 1")
        e("s_cmp_lg_u32 s60, s101")
        e("s_cbranch_scc1 .Lk3")
        e("v_mov_b32 v22, 0x10000")
        e(f"s_cmp_gt_u32 s101, {32 - o['cmax']}")
        e("s_cbranch_scc1 .Lk3")
        self.ticket(128, "s96")
        self.label(".Lk3")
        self.tile_addr()
        self.ktile(64, w12, True)
        e("s_cmp_lg_u32 s101, 0")
        e("s_cbranch_scc1 .Lkloop")
        self.ts(6)
        e("s_lshl_b32 s60, s52, 11")
        e(f"s_add_u32 s60, s60, {L_SC}")
        e("v_lshl_add_u32 v13, v1, 4, s60")
        e("ds_read_b128 v[128:131], v13")
        e("ds_read_b128 v[144:147], v13 offset:1024")
        for i in range(16): e(f"v_mov_b32 v{48+i}, 0")
        e("v_lshrrev_b32 v19, 3, v1")
        e(f"s_add_u32 s60, s60, {NSH * 64}")
        e("v_lshl_add_u32 v19, v19, 3, s60")
        e("s_waitcnt lgkmcnt(0)")
        for i in range(4):
            e(f"v_and_b32 v{149+2*i}, 0xffff0000, v{144+i}")
            e(f"v_lshlrev_b32 v{148+2*i}, 16, v{144+i}")
        for i in range(4):
            e(f"v_and_b32 v{133+2*i}, 0xffff0000, v{128+i}")
            e(f"v_lshlrev_b32 v{132+2*i}, 16, v{128+i}")
        e("v_max3_f32 v140, v132, v133, v134")
        e("v_max3_f32 v141, v135, v136, v137")
        e("v_max3_f32 v140, v140, v138, v139")
        e("v_max3_f32 v141, v141, v148, v149")
        e("v_max3_f32 v140, v140, v150, v151")
        e("v_max3_f32 v141, v141, v152, v153")
        e("v_max3_f32 v140, v140, v154, v155")
        e("v_max_f32 v140, v140, v141")
        self.full_reduce("v_max_f32", "v140", "v141")
        e("v_mul_f32 v10, s59, v140")
        e("v_sub_f32 v10, 0, v10")
        for i in range(8): e(f"v_fma_f32 v{132+i}, v{132+i}, s59, v10")
        for i in range(8): e(f"v_fma_f32 v{148+i}, v{148+i}, s59, v10")
        for i in range(8): e(f"v_exp_f32 v{132+i}, v{132+i}")
        for i in range(8): e(f"v_exp_f32 v{148+i}, v{148+i}")
        e("s_nop 0")
        for i in range(8): e(f"v_add_f32 v{132+i}, v{132+i}, v{148+i}")
        for i in range(4): e(f"v_add_f32 v{132+i}, v{132+i}, v{136+i}")
        e("v_add_f32 v132, v132, v133")
        e("v_add_f32 v134, v134, v135")
        e("v_add_f32 v142, v132, v134")
        self.full_reduce("v_add_f32", "v142", "v141")
        e("v_mov_b32 v141, s55")
        e("v_mov_b32 v143, s55")
        e("s_lshl_b32 s60, s2, 2")
        e("s_add_u32 s60, s60, s52")
        e("s_lshl_b32 s60, s60, 4")
        e(f"s_add_u32 s60, s60, {WS_ML}")
        e("v_mov_b32 v13, 0")
        e("s_mov_b64 exec, 1")
        e("buffer_store_dwordx4 v[140:143], v13, s[36:39], s60 offen sc1")
        e("s_mov_b64 exec, -1")
        if o['rst'] == 'late':
            self.checkin(".Lnoci")
            self.label(".Lnoci")
        e("s_lshl_b32 s98, s54, 9")
        e(f"s_add_u32 s98, s98, {WS_ML}")
        e("v_and_b32 v28, 31, v1")
        e("v_lshlrev_b32 v28, 4, v28")
        e("s_add_u32 s58, s97, 1")
        e("s_sub_u32 s99, s99, 1")
        if PV:
            e("s_cmp_eq_u32 s52, 0")
            e("s_cbranch_scc1 .Lvloop")
            for p in range(PV):
                e("ds_read_b64 v[24:25], v19")
                e("v_add_u32 v19, 64, v19")
                e("s_waitcnt lgkmcnt(0)")
                self.pcalc(range(4))
                for g in range(4):
                    for j in range(4):
                        r = 64 * p + g * 16 + j * 4
                        e(f"v_mfma_f32_16x16x32_bf16 v[{48+4*j}:{51+4*j}], v[{32+4*g}:{35+4*g}], a[{r}:{r+3}], v[{48+4*j}:{51+4*j}]")
        self.label(".Lvloop")
        e("ds_read_b64 v[24:25], v19")
        e("v_add_u32 v19, 64, v19")
        e("v_readlane_b32 s56, v23, s58")
        e("s_cmp_lt_u32 s58, s99")
        e("s_cbranch_scc1 .Lv1")
        self.ticket()
        e("buffer_load_dwordx4 v[128:131], v28, s[36:39], s98 offen sc1")
        e("v_and_b32 v13, 7, v1")
        e("v_lshlrev_b32 v13, 2, v13")
        e("buffer_load_dword v23, v13, s[48:51], 0 offen sc1")
        self.label(".Lv1")
        self.tile_addr()
        e("s_add_u32 s58, s58, 1")
        e("s_waitcnt lgkmcnt(0)")
        self.pcalc(range(4))
        dum = o['dum']
        if dum:
            e("s_lshl_b32 s60, s2, 2")
            e("s_add_u32 s60, s60, s52")
            e("s_lshl_b32 s60, s60, 8")
            e(f"s_mul_i32 s63, s54, {o['dsp']}")
            e(f"s_add_u32 s60, {'s60' if dum[0] == 'p' else 's63'}, 0x200000")
            e("v_mov_b32 v26, 1")
            e("v_mov_b32 v27, 0")
            e("s_mov_b64 exec, 1")
            if dum[1] in 'SWXY':
                e("s_mov_b64 exec, 0xffffffff")
                e("v_lshlrev_b32 v27, 2, v1")
            op = {'X': "buffer_atomic_swap v26, v27, s[36:39], s60 offen sc1 nt", 'Y': "buffer_atomic_swap v26, v27, s[36:39], s60 offen nt", 'z': "buffer_atomic_add v26, v27, s[36:39], s60 offen sc0 nt", 'S': "buffer_store_dword v26, v27, s[36:39], s60 offen sc1", 'w': "buffer_store_dword v26, v27, s[36:39], s60 offen",
                  'u': "buffer_store_dword v26, v27, s[36:39], s60 offen sc1 nt", 'W': "buffer_store_dword v26, v27, s[36:39], s60 offen sc0 sc1", 'a': "buffer_atomic_add v26, v27, s[36:39], s60 offen sc0 sc1", 'l': "buffer_load_dword v26, v27, s[36:39], s60 offen sc1",
                  'n': "buffer_atomic_add v26, v27, s[36:39], s60 offen sc1", 'x': "buffer_atomic_add v26, v27, s[36:39], s60 offen sc0",
                  's': "buffer_store_dword v26, v27, s[36:39], s60 offen sc1", 't': "buffer_atomic_add v26, v27, s[36:39], s60 offen sc0 sc1 nt"}[dum[1]]
            e(op)
            e("s_mov_b64 exec, -1")
        for g in range(4): self.vgrp(g, 13 if dum else 12, True)
        self.plog()
        e("s_cmp_le_u32 s58, s99")
        e("s_cbranch_scc1 .Lvloop")
        if not o['dbgts']: self.ts(7)
        e("ds_read_b64 v[24:25], v19")
        e("s_waitcnt vmcnt(16)")
        self.poll_begin()
        self.label(".Lmlchk")
        e("v_cmp_ne_u32 vcc, s55, v129")
        e("v_cmp_ne_u32 s[66:67], s55, v131")
        e("s_or_b64 vcc, vcc, s[66:67]")
        e("s_cbranch_vccz .Lmlok")
        e("buffer_load_dwordx4 v[128:131], v28, s[36:39], s98 offen sc1")
        e("s_waitcnt vmcnt(0)")
        self.poll_again(".Lmlchk")
        self.label(".Lmlok")
        e("v_mov_b32 v132, v128")
        self.half_reduce("v_max_f32", "v132", "v133")
        e("v_sub_f32 v128, v128, v132")
        e("v_mul_f32 v128, s59, v128")
        e("v_exp_f32 v128, v128")
        e("s_nop 0")
        e("v_mul_f32 v130, v130, v128")
        self.half_reduce("v_add_f32", "v130", "v133")
        e("v_log_f32 v130, v130")
        e("s_nop 0")
        e("v_fma_f32 v130, v132, s59, v130")
        e("v_add_f32 v131, v10, v130")
        e("v_sub_f32 v10, 0, v130")
        e("v_exp_f32 v131, -v131")
        e("s_waitcnt lgkmcnt(0)")
        for i in range(16):
            e(f"v_mul_f32 v{48+i}, v{48+i}, v131")
        assert NH == 0
        e("v_and_b32 v13, 7, v1")
        e("v_lshlrev_b32 v13, 2, v13")
        self.poll_begin()
        self.label(".Lrd")
        e("v_mov_b32 v128, v23")
        e("v_mov_b32 v129, v23")
        for st in ("quad_perm:[1,0,3,2]", "quad_perm:[2,3,0,1]", "row_half_mirror"):
            e("s_nop 0")
            e(f"v_add_u32_dpp v128, v128, v128 {st} row_mask:0xf bank_mask:0xf")
            e(f"v_min_u32_dpp v129, v129, v129 {st} row_mask:0xf bank_mask:0xf")
        e("s_nop 0")
        e("v_readfirstlane_b32 s60, v128")
        e("v_readfirstlane_b32 s63, v129")
        e("s_cmp_ge_u32 s60, 256")
        e("s_cbranch_scc1 .Lrdok")
        e("buffer_load_dword v23, v13, s[48:51], 0 offen sc1")
        e("s_waitcnt vmcnt(0)")
        self.poll_again(".Lrd")
        self.label(".Lrdok")
        e("s_getreg_b32 s58, hwreg(HW_REG_XCC_ID, 0, 3)")
        e("s_lshl_b32 s100, s58, 2")
        e(f"s_cmp_lt_u32 s63, {14 if o['cls'] else 1000}")
        e("s_cselect_b32 s100, 64, s100")
        e("s_or_b32 s60, s2, s52")
        e("s_cbranch_scc1 .Ldloop")
        e("v_mov_b32 v128, s55")
        e("v_mov_b32 v13, 0")
        e("s_mov_b64 exec, 1")
        e(f"buffer_store_dword v128, v13, s[36:39], 0 offen offset:{WS_EPOCH} sc1")
        e("s_mov_b64 exec, -1")
        self.label(".Ldloop")
        e("s_waitcnt vmcnt(16)")
        e("v_readfirstlane_b32 s56, v22")
        self.pcalc(range(4))
        NB = o['NB']
        if NB:
            e(f"s_cmp_lt_u32 s56, {NB}")
            e("s_cbranch_scc1 .Ldbl")
            e(f"s_add_u32 s56, s56, {NB}")
        e(f"s_cmp_ge_u32 s56, {NF}")
        e("s_cbranch_scc1 .Lfx")
        self.label(".Ld1")
        self.tile_addr()
        self.sc_addr("s56")
        e("buffer_load_dwordx2 v[24:25], v20, s[36:39], s98 offen sc1")
        self.ticket()
        for g in range(4): self.vgrp(g, 14, True)
        self.plog()
        e("s_branch .Ldloop")
        if NB:
            self.label(".Ldbl")
            e("s_lshl_b32 s56, s56, 1")
            self.tile_addr()
            self.sc_addr("s56")
            e("buffer_load_dwordx2 v[24:25], v20, s[36:39], s98 offen sc1")
            for g in range(4): self.vgrp(g, 13, True)
            self.plog()
            e("s_add_u32 s56, s56, 1")
            e("s_waitcnt vmcnt(16)")
            self.pcalc(range(4))
            e("s_branch .Ld1")
        self.label(".Lfx")
        self.tail()
        nacc = 64 * (PV + PA)
        self.L.append('.section .rodata,"a"')
        self.L.append(".p2align 6")
        self.L.append(f".amdhsa_kernel {NAME}")
        self.L.append(f"  .amdhsa_next_free_vgpr {256 + nacc}")
        self.L.append("  .amdhsa_next_free_sgpr 102")
        self.L.append(f"  .amdhsa_accum_offset 256")
        self.L.append("  .amdhsa_group_segment_fixed_size 0")
        self.L.append("  .amdhsa_kernarg_size 96")
        self.L.append("  .amdhsa_user_sgpr_count 2")
        self.L.append("  .amdhsa_user_sgpr_kernarg_segment_ptr 1")
        self.L.append("  .amdhsa_system_sgpr_workgroup_id_x 1")
        self.L.append("  .amdhsa_float_denorm_mode_32 3")
        self.L.append(".end_amdhsa_kernel")
        return "\n".join(self.L) + "\n"

    def resets(self):
        e = self.e; o = self.o
        e("s_cmp_lg_u32 s52, 1")
        e("s_cbranch_scc1 .Lnoreset")
        for i in range(4): e(f"v_mov_b32 v{24+i}, -1")
        e("v_lshlrev_b32 v18, 4, v1")
        npc = (131072 + 28672 * o['NC'] + 200704) // 1024
        e("s_mov_b64 s[36:37], s[26:27]")
        e("s_lshl_b32 s63, s2, 10")
        e(f"s_add_u32 s63, s63, {WS_PART}")
        for i in range((npc + 255) // 256):
            if npc - 256 * i < 256:
                e(f"s_cmp_ge_u32 s2, {npc - 256 * i}")
                e("s_cbranch_scc1 .Lnoreset")
            e("buffer_store_dwordx4 v[24:27], v18, s[36:39], s63 offen sc1")
            e("s_add_u32 s63, s63, 0x40000")
        self.label(".Lnoreset")

    def checkin(self, skip):
        e = self.e
        e("s_cmp_lg_u32 s52, 1")
        e(f"s_cbranch_scc1 {skip}")
        e("v_mov_b32 v22, 1")
        e("s_getreg_b32 s60, hwreg(HW_REG_XCC_ID, 0, 3)")
        e("s_lshl_b32 s60, s60, 2")
        e("v_mov_b32 v13, s60")
        e("s_mov_b64 exec, 1")
        e(f"buffer_atomic_add v22, v13, s[48:51], 0 offen sc1 {self.o['cpol']}")
        e("s_mov_b64 exec, -1")

    def setup(self):
        e = self.e; o = self.o
        NSH = o['NSH']; XS = o['PV'] + o['XS']
        B1 = 32 * NSH + 24 * XS
        e(f"s_mov_b32 s59, {hex(f2u(math.log2(math.e) / 16.0))}")
        e("v_and_b32 v6, 1, v1")
        e("v_mov_b32 v10, 0xffff")
        e("v_lshlrev_b32 v6, 4, v6")
        e("v_lshlrev_b32 v10, v6, v10")
        e("v_bfe_u32 v11, v1, 1, 2")
        for r in range(4):
            e(f"v_cmp_eq_u32 vcc, {r}, v11")
            e("s_nop 1")
            e(f"v_cndmask_b32 v{6+r}, 0, v10, vcc")
        e("s_lshl_b32 s60, s54, 8")
        e(f"s_add_u32 s60, s60, {WS_CNT}")
        e("v_mov_b32 v21, s60")
        e("s_lshl_b32 s60, s52, 11")
        e(f"s_add_u32 s60, s60, {L_SC}")
        e("v_lshl_add_u32 v19, v20, 3, s60")
        e("v_lshl_add_u32 v27, v1, 4, s60")
        for i in range(4): e(f"v_mov_b32 v{32+i}, 0xff80ff80")
        e("ds_write_b128 v27, v[32:35]")
        e("ds_write_b128 v27, v[32:35] offset:1024")
        e("s_lshl_b32 s60, s54, 14")
        e(f"s_add_u32 s60, s60, {WS_SC}")
        e("v_lshl_add_u32 v20, v20, 3, s60")
        e("v_lshrrev_b32 v11, 4, v1")
        e("v_bfe_u32 v29, v1, 2, 2")
        e("v_lshl_add_u32 v29, v11, 3, v29")
        e("v_and_b32 v31, 3, v1")
        e("v_and_b32 v10, 1, v1")
        e("v_mul_u32_u24 v30, 896, v10")
        e("v_lshl_add_u32 v30, v11, 4, v30")
        e("s_cmp_eq_u32 s52, 0")
        e(f"s_cselect_b32 s63, 0, {XS}")
        e("s_lshl_b32 s60, s63, 5")
        e(f"s_sub_u32 s60, {B1 - 32 * NSH}, s60")
        e("v_lshl_add_u32 v23, v1, 5, s58")
        e("v_add_u32 v10, s60, v23")
        e(f"v_cmp_le_u32 vcc, {NSH}, v1")
        e("s_nop 1")
        e("v_cndmask_b32 v23, v23, v10, vcc")
        if XS:
            e("s_mul_i32 s60, s53, 3")
            e("s_add_u32 s60, s60, s52")
            e(f"s_add_u32 s60, s60, {8 * NSH - 1}")
            e("v_mov_b32 v10, s60")
            e("v_mad_u32_u24 v10, v1, 24, v10")
            e(f"v_subrev_u32 v11, {NSH}, v1")
            e("v_cmp_gt_u32 vcc, s63, v11")
            e("s_nop 1")
            e("v_cndmask_b32 v23, v23, v10, vcc")

    def mpoll(self, n, regs, addr, full, lab, m0=72):
        e = self.e
        self.poll_begin()
        e(f"s_branch {lab}chk")
        self.label(lab + "poll")
        for p in range(n):
            e(f"s_mov_b64 exec, s[{m0+2*p}:{m0+2*p+1}]")
            e(f"buffer_load_dwordx4 v[{regs+4*p}:{regs+4*p+3}], {addr(p)} sc1")
        e(f"s_mov_b64 exec, {full}")
        self.label(lab + "chk")
        for p in range(n):
            e(f"s_waitcnt vmcnt({n-1-p})")
            e(f"v_cmp_u_f32 s[{m0+2*p}:{m0+2*p+1}], v{regs+4*p}, v{regs+4*p+2}")
            if p == 1: e(f"s_or_b64 vcc, s[{m0}:{m0+1}], s[{m0+2}:{m0+3}]")
            elif p > 1: e(f"s_or_b64 vcc, vcc, s[{m0+2*p}:{m0+2*p+1}]")
        e(f"s_cbranch_scc0 {lab}ok")
        self.poll_again(lab + "poll")
        self.label(lab + "ok")

    def tail(self):
        e = self.e; o = self.o
        e("v_mov_b32 v16, 0")
        e("v_mov_b32 v17, 1")
        e("v_mov_b32 v26, 1")
        e("s_mov_b64 exec, 1")
        e(f"ds_add_rtn_u32 v18, v16, v17 offset:{L_CNT + 8}")
        e("s_mov_b64 exec, -1")
        e("v_lshrrev_b32 v13, 5, v1")
        e("v_lshlrev_b32 v13, 10, v13")
        e("v_and_b32 v14, 7, v1")
        e("v_lshl_add_u32 v13, v14, 5, v13")
        e("v_bfe_u32 v14, v1, 4, 1")
        e("v_lshl_add_u32 v13, v14, 4, v13")
        e("s_lshl_b32 s60, s52, 11")
        e("v_add_u32 v13, s60, v13")
        e("v_lshlrev_b32 v14, 4, v1")
        e("v_lshlrev_b32 v15, 3, v1")
        e("s_lshl_b32 s60, s2, 9")
        e(f"s_add_u32 s60, s60, {WS_PART}")
        e("s_waitcnt lgkmcnt(0)")
        e("v_readfirstlane_b32 s97, v18")
        e(f"s_cmp_lg_u32 s97, {o['RA']}")
        e("s_cbranch_scc1 .Lnr")
        e("s_mov_b64 exec, 1")
        e("buffer_atomic_add v26, v16, s[48:51], s100 offen offset:64 sc0 sc1")
        e("s_mov_b64 exec, -1")
        for g in range(4): self.vgrp(g, 13 - 4 * g, False)
        e("s_branch .Lrt")
        self.label(".Lnr")
        for g in range(4): self.vgrp(g, 12 - 4 * g, False)
        self.label(".Lrt")
        self.plog()
        self.ts(3)
        e("s_mov_b32 exec_lo, 0x00ff00ff")
        e("s_mov_b32 exec_hi, 0xff00ff00")
        e("s_nop 3")
        for j in range(4):
            e(f"ds_write_b128 v13, v[{48+4*j}:{51+4*j}] offset:{L_RED + j*256}")
        e("s_mov_b64 exec, 1")
        e(f"ds_add_rtn_u32 v18, v16, v17 offset:{L_CNT}")
        e("s_mov_b64 exec, -1")
        for p in range(8):
            e(f"ds_read_b128 v[{64+4*p}:{67+4*p}], v14 offset:{L_RED + p*1024}")
        e("s_waitcnt lgkmcnt(8)" if not o['ts'] else "s_waitcnt lgkmcnt(0)")
        e("v_readfirstlane_b32 s63, v18")
        e("s_cmp_lg_u32 s63, 3")
        e("s_cbranch_scc1 .Lnotlast")
        for p in range(0, 8, 2):
            e(f"s_waitcnt lgkmcnt({6-p})")
            for i in range(4): e(f"v_add_f32 v{64+4*p+i}, v{64+4*p+i}, v{68+4*p+i}")
            if p == 2:
                for i in range(4): e(f"v_add_f32 v{64+i}, v{64+i}, v{72+i}")
        for i in range(4): e(f"v_add_f32 v{80+i}, v{80+i}, v{88+i}")
        for i in range(4): e(f"v_add_f32 v{64+i}, v{64+i}, v{80+i}")
        e("v_cvt_pk_bf16_f32 v64, v64, v65")
        e("v_cvt_pk_bf16_f32 v65, v66, v67")
        e("v_min_u32 v64, -2, v64")
        e("v_min_u32 v65, -2, v65")
        e("buffer_store_dwordx2 v[64:65], v15, s[36:39], s60 offen sc1")
        self.ts(4)
        self.label(".Lnotlast")
        e(f"s_cmp_lg_u32 s97, {o['RA']}")
        e("s_cbranch_scc1 .Lrolewait" if not o['dry'] else "s_cbranch_scc1 .Ldry")
        e("s_waitcnt vmcnt(0)")
        self.ts(10)
        e("v_readfirstlane_b32 s69, v26")
        e("s_cmp_eq_u32 s100, 64")
        e("s_cbranch_scc1 .Lrgot")
        e("s_mul_i32 s60, s58, 7")
        e("s_cmp_lt_u32 s69, 7")
        if o['rord'] == 'GW': e("s_cselect_b32 s63, 0, 49")
        else: e("s_cselect_b32 s63, 56, -7")
        e("s_add_u32 s60, s60, s63")
        e("s_cmp_lt_u32 s69, 14")
        e("s_cselect_b32 s60, s60, 255")
        e("s_add_u32 s69, s69, s60")
        self.label(".Lrgot")
        e("s_mov_b64 exec, 1")
        e("v_mov_b32 v18, s69")
        e(f"ds_write_b32 v16, v18 offset:{L_CNT + 4}")
        e("s_mov_b64 exec, -1")
        e("s_cmp_ge_u32 s69, 112")
        e("s_cbranch_scc1 .Lrdone")
        e("s_cmp_lt_u32 s69, 56")
        e("s_cbranch_scc1 .Lldg")
        self.srd(40, 12, 3670016)
        e("s_sub_u32 s69, s69, 56")
        e("s_mul_i32 s60, s69, 37")
        e("s_lshr_b32 s60, s60, 8")
        e("s_mul_i32 s63, s60, 7")
        e("s_sub_u32 s63, s69, s63")
        e(f"s_mul_i32 s60, s60, {512*896}")
        e("s_lshl_b32 s63, s63, 7")
        e("s_add_u32 s60, s60, s63")
        e("v_lshrrev_b32 v13, 3, v1")
        e("v_mul_u32_u24 v13, 896, v13")
        e("v_and_b32 v18, 7, v1")
        e("v_lshl_add_u32 v13, v18, 4, v13")
        e(f"s_mov_b32 s63, {L_W}")
        self.label(".Lldw")
        e("s_mov_b32 m0, s63")
        e("s_add_u32 s63, s63, 1024")
        e(f"buffer_load_dwordx4 v13, s[40:43], s60 offen {o['wpol']} lds")
        e(f"s_add_u32 s60, s60, {8*896}")
        e(f"s_cmp_lt_u32 s63, {L_W + 65536}")
        e("s_cbranch_scc1 .Lldw")
        e("s_branch .Lrdone")
        self.label(".Lldg")
        self.srd(40, 16, 1605632)
        self.srd(44, 18, 1605632)
        e("s_lshl_b32 s60, s69, 6")
        e("v_lshrrev_b32 v13, 2, v1")
        e("v_mul_u32_u24 v13, 3584, v13")
        e("v_lshl_add_u32 v13, v31, 4, v13")
        e(f"s_mov_b32 s63, {L_W}")
        self.label(".Lldg1")
        e("s_mov_b32 m0, s63")
        e(f"s_add_u32 s96, s63, {L_U - L_W}")
        e(f"buffer_load_dwordx4 v13, s[40:43], s60 offen {o['wpol']} lds")
        e("s_mov_b32 m0, s96")
        e("s_add_u32 s63, s63, 1024")
        e(f"buffer_load_dwordx4 v13, s[44:47], s60 offen {o['wpol']} lds")
        e(f"s_add_u32 s60, s60, {16*3584}")
        e(f"s_cmp_lt_u32 s63, {L_U}")
        e("s_cbranch_scc1 .Lldg1")
        self.srd(40, 20, 1605632)
        e("s_mul_i32 s60, s69, 28672")
        e(f"s_mov_b32 s63, {L_D}")
        self.label(".Lldg2")
        e("s_mov_b32 m0, s63")
        e("s_add_u32 s63, s63, 1024")
        e(f"buffer_load_dwordx4 v14, s[40:43], s60 offen {o['dpol']} lds")
        e("s_add_u32 s60, s60, 1024")
        e(f"s_cmp_lt_u32 s63, {L_D + 28672}")
        e("s_cbranch_scc1 .Lldg2")
        self.label(".Lrdone")
        e("s_waitcnt lgkmcnt(0)")
        if o['dry']:
            e("s_branch .Lrolewait")
            self.label(".Ldry")
            e("s_cmp_gt_u32 s63, 1")
            e("s_cbranch_scc1 .Lrolewait")
            for r in (0, 24, 26, 48, 50, 64): e(f"s_mov_b64 s[{r}:{r+1}], 0")
            for r in (56, 57, 59, 61, 63, 96, 97, 98, 99, 100, 101): e(f"s_mov_b32 s{r}, 0")
            e("s_waitcnt lgkmcnt(0)")
            e("s_mov_b64 exec, 0")
            e("s_branch .Lwok")
            self.label(".Ldryend")
            e("s_mov_b64 exec, -1")
            if o['ts']:
                e("s_waitcnt lgkmcnt(0)")
                for k in (5, 11, 12): e(f"s_mov_b32 s{70+2*k}, 0")
        self.label(".Lrolewait")
        e("s_mov_b64 s[0:1], -1")
        e("s_barrier")
        e(f"ds_read_b32 v18, v16 offset:{L_CNT + 4}")
        e("s_waitcnt lgkmcnt(0)")
        e("v_readfirstlane_b32 s69, v18")
        e("s_mov_b32 s68, 3")
        e("s_cmp_ge_u32 s69, 112")
        e("s_cbranch_scc1 .Lfin")
        e("s_mov_b32 s68, 1")
        e("s_cmp_lt_u32 s69, 56")
        e("s_cbranch_scc1 .LstageG")
        e("s_mov_b32 s68, 0")
        e("s_sub_u32 s69, s69, 56")
        self.stageW()
        self.stageG()
        self.label(".Lfin")
        if o['ts']:
            self.ts(8)
            e("s_waitcnt lgkmcnt(0)")
            if o['dbgts']:
                e("s_cmp_eq_u32 s94, 0")
                e("s_cbranch_scc1 .Lnodbg")
                e("s_mov_b64 s[48:49], s[84:85]")
                e("s_mov_b32 s50, 256")
                e("s_mov_b32 s51, 0x20000")
                e("s_not_b32 s60, s70")
                e("v_mov_b32 v13, 0")
                e("s_mov_b64 exec, 1")
                for i, r in enumerate(("s60", "s82", "s76", "s88", "s80", "s92", "s94", "s86")):
                    e(f"v_mov_b32 v14, {r}")
                    e(f"buffer_atomic_umax v14, v13, s[48:51], 0 offen offset:{32+4*i} sc1")
                e("s_mov_b64 exec, -1")
                self.label(".Lnodbg")
            e("s_lshl_b32 s60, s2, 2")
            e("s_add_u32 s60, s60, s52")
            e("s_lshl_b32 s60, s60, 6")
            e(f"s_add_u32 s60, s60, {WS_TS}")
            e("v_mov_b32 v13, 0")
            e("s_getreg_b32 s63, hwreg(HW_REG_XCC_ID)")
            for i in range(13):
                e(f"v_mov_b32 v{64+i}, s{70+2*i}")
            e("v_mov_b32 v77, s63")
            e("v_mov_b32 v78, s62")
            e("v_mov_b32 v79, s68")
            e("s_mov_b64 exec, 1")
            for i in range(4):
                e(f"buffer_store_dwordx4 v[{64+4*i}:{67+4*i}], v13, s[36:39], s60 offen offset:{16*i}")
            if o['prof']:
                e("s_mov_b64 exec, -1")
                e("s_lshl_b32 s60, s2, 2")
                e("s_add_u32 s60, s60, s52")
                e("s_lshl_b32 s60, s60, 8")
                e(f"s_add_u32 s60, s60, {WS_PROF}")
                e("v_lshlrev_b32 v13, 2, v1")
                e("buffer_store_dword v0, v13, s[36:39], s60 offen")
        self.label(".Lend")
        e("s_endpgm")

    def bar(self):
        e = self.e
        if self.o['dry']:
            l = self.newlab("nb")
            e(f"s_cbranch_execz {l}")
            e("s_barrier")
            self.label(l)
        else: e("s_barrier")

    def stageW(self):
        e = self.e; o = self.o
        NC = o['NC']; dry = o['dry']
        e("s_mul_i32 s60, s69, 37")
        e("s_lshr_b32 s60, s60, 8")
        e("s_lshl_b32 s60, s60, 1")
        e("s_lshr_b32 s63, s52, 1")
        e("s_add_u32 s60, s60, s63")
        e("s_lshl_b32 s60, s60, 12")
        e("s_and_b32 s63, s52, 1")
        e("s_lshl_b32 s63, s63, 8")
        e("s_add_u32 s60, s60, s63")
        e(f"s_add_u32 s60, s60, {WS_PART}")
        e("v_and_b32 v13, 1, v1")
        e("v_lshlrev_b32 v13, 16, v13")
        e("v_bfe_u32 v14, v1, 1, 3")
        e("v_lshl_add_u32 v13, v14, 9, v13")
        e("v_lshrrev_b32 v14, 4, v1")
        e("v_lshl_add_u32 v13, v14, 4, v13")
        def lds_():
            for t in range(4):
                e(f"buffer_load_dwordx4 v[{64+4*t}:{67+4*t}], v13, s[36:39], s60 offen offset:{t*64} sc1")
        lds_()
        e("v_lshlrev_b32 v14, 7, v29")
        e("v_lshl_add_u32 v14, v31, 3, v14")
        e("s_lshl_b32 s63, s52, 14")
        e("v_add_u32 v14, s63, v14")
        e("v_lshrrev_b32 v15, 5, v1")
        e("v_lshlrev_b32 v15, 8, v15")
        e("v_and_b32 v16, 31, v1")
        e("v_lshl_add_u32 v15, v16, 2, v15")
        e("s_lshl_b32 s63, s52, 9")
        e(f"s_add_u32 s63, s63, {L_R2}")
        e("v_add_u32 v15, s63, v15")
        e("v_lshlrev_b32 v16, 3, v1")
        e("s_lshl_b32 s63, s69, 9")
        e(f"s_add_u32 s63, s63, {WS_Y}")
        e("s_mul_i32 s96, s52, 28672")
        e("s_add_u32 s63, s63, s96")
        e(f"s_add_u32 s96, s63, {4*28672}")
        e(f"s_cmp_ge_u32 s52, {NC}")
        e("s_cselect_b32 s59, 1, 0")
        e("s_waitcnt vmcnt(4)")
        e("s_barrier")
        self.ts(9)
        for t in range(4):
            for ct in range(4):
                r = 128 + 16 * t + 4 * ct
                e(f"ds_read_b64_tr_b16 v[{r}:{r+1}], v14 offset:{L_W + t*4096 + ct*32}")
                e(f"ds_read_b64_tr_b16 v[{r+2}:{r+3}], v14 offset:{L_W + t*4096 + ct*32 + 512}")
            e("s_waitcnt lgkmcnt(4)" if not o["ts"] else "s_waitcnt lgkmcnt(0)")
        self.poll_begin()
        e("s_waitcnt lgkmcnt(0)")
        e("s_branch .Lwchk")
        self.label(".Lwpoll")
        lds_()
        self.label(".Lwchk")
        e("s_waitcnt vmcnt(2)")
        e("v_max3_u32 v98, v64, v66, v68")
        e("s_waitcnt vmcnt(0)")
        e("v_max3_u32 v99, v70, v72, v74")
        e("v_max3_u32 v98, v98, v76, v78")
        e("v_max_u32 v98, v98, v99")
        e("v_cmp_eq_u32 vcc, -1, v98")
        e("s_and_b64 exec, exec, vcc")
        e("s_cbranch_scc0 .Lwok")
        self.poll_again(".Lwpoll")
        self.label(".Lwok")
        e("s_mov_b64 exec, s[0:1]")
        self.ts(5)
        for t in range(4):
            for ct in range(4):
                cin = "0" if t == 0 else f"v[{80+4*ct}:{83+4*ct}]"
                r = 128 + 16 * t + 4 * ct
                e(f"v_mfma_f32_16x16x32_bf16 v[{80+4*ct}:{83+4*ct}], v[{64+4*t}:{67+4*t}], v[{r}:{r+3}], {cin}")
        e("s_cmp_lg_u32 s59, 0")
        e("s_nop 3")
        for ct in range(4):
            e(f"v_pk_add_f32 v[{80+4*ct}:{81+4*ct}], v[{80+4*ct}:{81+4*ct}], v[{82+4*ct}:{83+4*ct}]")
        for ct in range(4):
            e(f"v_permlane32_swap_b32 v{80+4*ct}, v{81+4*ct}")
        for ct in range(4):
            e(f"v_add_f32 v{80+4*ct}, v{80+4*ct}, v{81+4*ct}")
        e("v_permlane16_swap_b32 v80, v84")
        e("s_nop 0")
        e("v_permlane16_swap_b32 v88, v92")
        e("v_add_f32 v80, v80, v84")
        e("s_nop 0")
        e("v_add_f32 v88, v88, v92")
        e("ds_write2_b32 v15, v80, v88 offset0:0 offset1:32")
        e("s_waitcnt lgkmcnt(0)")
        self.bar()
        if NC < 4: e("s_cbranch_scc1 .Lfin")
        for w in range(4):
            e(f"ds_read_b64 v[{64+2*w}:{65+2*w}], v16 offset:{L_R2 + 512*w}")
        e("s_waitcnt lgkmcnt(2)")
        e("v_pk_add_f32 v[64:65], v[64:65], v[66:67]")
        e("s_waitcnt lgkmcnt(0)")
        e("v_pk_add_f32 v[68:69], v[68:69], v[70:71]")
        e("v_pk_add_f32 v[64:65], v[64:65], v[68:69]")
        e("buffer_store_dwordx2 v[64:65], v16, s[36:39], s63 offen sc1")
        if NC == 8:
            e("buffer_store_dwordx2 v[64:65], v16, s[36:39], s96 offen sc1")
        if dry: e("s_cbranch_execz .Lgok")
        e("s_branch .Lfin")

    def stageG(self):
        e = self.e; o = self.o; NC = o['NC']; dry = o['dry']; gts = o['gts']
        WS_P2 = WS_Y + NC * 28672
        self.label(".LstageG")
        e("s_and_b32 s60, s52, 1")
        e("s_mul_i32 s60, s60, 56")
        e("v_add_u32 v14, s60, v1")
        e("v_lshrrev_b32 v13, 4, v14")
        e("v_lshlrev_b32 v13, 9, v13")
        e("v_and_b32 v15, 15, v14")
        e("v_lshl_add_u32 v13, v15, 4, v13")
        e("s_lshr_b32 s63, s52, 1")
        e("s_lshl_b32 s60, s63, 8")
        e(f"s_add_u32 s60, s60, {WS_Y}")
        e("v_add_u32 v13, s60, v13")
        e("s_mul_i32 s63, s63, 896")
        e("v_lshl_add_u32 v16, v14, 3, s63")
        self.srd(40, 4, 1792)
        e("s_mov_b32 s64, -1")
        e("s_mov_b32 s65, 0x00ffffff")
        if NC == 8: e("s_mul_i32 s60, s58, 28672")
        for p in range(8):
            if NC == 8: e(f"s_add_u32 s{28+p}, s60, {3584*p}")
            elif NC == 2:
                e(f"s_mov_b32 s{28+p}, {3584*p}")
                e(f"s_cmp_eq_u32 s58, {p}")
                e(f"s_cselect_b32 s{28+p}, {3584*p + 28672}, s{28+p}")
            else: e(f"s_mov_b32 s{28+p}, {3584*p}")
        ya = lambda p: f"v13, s[36:39], s{28+p} offen"
        e("v_mov_b32 v96, 0")
        e("v_mov_b32 v97, 0")
        e("s_mov_b64 exec, s[64:65]")
        e("buffer_load_dwordx2 v[104:105], v16, s[40:43], 0 offen")
        for p in range(8):
            e(f"buffer_load_dwordx4 v[{64+4*p}:{67+4*p}], {ya(p)} sc1")
        e("s_mov_b64 exec, -1")
        e("s_lshl_b32 s60, s52, 3")
        e("v_mov_b32 v17, s60")
        e("s_and_b32 s60, s60, 16")
        e("v_mov_b32 v18, s60")
        e("v_bfe_u32 v14, v1, 3, 1")
        e("v_lshlrev_b32 v14, 4, v14")
        e("v_and_b32 v15, 7, v1")
        e("v_lshl_add_u32 v28, v15, 1, v14")
        e("s_lshl_b32 s60, s52, 5")
        e("v_add_u32 v28, s60, v28")
        e("v_lshrrev_b32 v14, 4, v1")
        e("v_and_b32 v19, 1, v1")
        e("v_lshlrev_b32 v19, 4, v19")
        e("v_lshl_add_u32 v19, v14, 5, v19")
        e("v_and_b32 v20, 15, v1")
        e("v_lshlrev_b32 v20, 3, v20")
        e(f"s_mul_i32 s60, s52, {7*7168}")
        e("s_lshl_b32 s63, s69, 7")
        e("s_add_u32 s60, s60, s63")
        PS = [96, 97, 98, 99, 100, 101, 57]
        for j in range(7): e(f"s_add_u32 s{PS[j]}, s60, {WS_P2 + 7168*j}")
        e("v_and_b32 v26, 1, v14")
        e("v_mul_u32_u24 v26, 896, v26")
        e("v_lshl_add_u32 v26, v15, 2, v26")
        e("v_and_b32 v14, 2, v14")
        e("v_add_u32 v26, v26, v14")
        e("s_min_u32 s60, s69, 27")
        e("s_lshl_b32 s60, s60, 5")
        e("v_add_u32 v26, s60, v26")
        e("v_lshlrev_b32 v27, 4, v1")
        e("s_mul_i32 s56, s69, 7168")
        e(f"s_add_u32 s56, s56, {WS_P2}")
        e("s_add_u32 s61, s56, 4096")
        self.srd(44, 22, 1792)
        e("s_cmp_ge_u32 s69, 28")
        e("s_cselect_b32 s59, 1, s52")
        e("s_mov_b32 s53, 0x3f803f80")
        e("s_mov_b32 s24, 0")
        e("s_mov_b32 s25, 0x80000000")
        e("s_mov_b64 s[26:27], 0x5555")
        e("s_mov_b64 s[48:49], 0xffff")
        e("s_mov_b32 s50, 0x00ff00ff")
        e("s_mov_b32 s51, 0x00ff00ff")
        k1 = -2.0 * math.sqrt(2.0 / math.pi) * math.log2(math.e)
        e(f"v_mov_b32 v21, {hex(f2u(k1))}")
        e("v_and_b32 v14, 8, v1")
        e("v_cmp_ne_u32 s[66:67], 0, v14")
        e("v_lshlrev_b32 v14, 6, v29")
        e("v_and_b32 v15, 1, v1")
        e("v_lshl_add_u32 v14, v15, 3, v14")
        e("v_bfe_u32 v15, v1, 1, 1")
        e(f"v_mul_u32_u24 v15, {L_U - L_W}, v15")
        e("v_add_u32 v14, v14, v15")
        e("s_lshl_b32 s60, s52, 4")
        e("v_add_u32 v14, s60, v14")
        e("v_mul_u32_u24 v15, 896, v29")
        e("v_lshl_add_u32 v15, v31, 3, v15")
        e("s_mul_i32 s60, s52, 224")
        e(f"s_add_u32 s60, s60, {L_D}")
        e("v_add_u32 v15, s60, v15")
        e("s_waitcnt vmcnt(9)")
        e("s_barrier")
        self.ts(9)
        for ks in range(14):
            e(f"ds_read_b64_tr_b16 v[{160+4*ks}:{161+4*ks}], v14 offset:{L_W + ks*2048}")
            e(f"ds_read_b64_tr_b16 v[{162+4*ks}:{163+4*ks}], v14 offset:{L_W + ks*2048 + 256}")
            if ks in (6, 10):
                e("s_waitcnt lgkmcnt(6)")
        e("s_waitcnt lgkmcnt(0)")
        for j in range(7):
            e(f"ds_read_b64_tr_b16 v[{216+4*j}:{217+4*j}], v15 offset:{j*32}")
            e(f"ds_read_b64_tr_b16 v[{218+4*j}:{219+4*j}], v15 offset:{j*32 + 3584}")
        e("s_waitcnt vmcnt(8)")
        e("v_lshlrev_b32 v100, 16, v104")
        e("v_and_b32 v101, 0xffff0000, v104")
        e("v_lshlrev_b32 v102, 16, v105")
        e("v_and_b32 v103, 0xffff0000, v105")
        e("s_mov_b64 exec, s[64:65]")
        self.mpoll(8, 64, ya, "s[64:65]", ".Lg", m0=6)
        self.ts(5)
        pk = lambda d, a, b: e(f"v_pk_add_f32 v[{d}:{d+1}], v[{a}:{a+1}], v[{b}:{b+1}]")
        for p in range(0, 8, 2):
            for i in (0, 2): pk(64+4*p+i, 64+4*p+i, 68+4*p+i)
        for i in (0, 2):
            pk(64+i, 64+i, 72+i); pk(80+i, 80+i, 88+i)
        for i in (0, 2): pk(108+i, 64+i, 80+i)
        def cvt():
            e("v_cvt_pk_bf16_f32 v112, v108, v109")
            e("v_cvt_pk_bf16_f32 v113, v110, v111")
        UP = ["v_lshlrev_b32 v108, 16, v112", "v_and_b32 v109, 0xffff0000, v112", "v_lshlrev_b32 v110, 16, v113", "v_and_b32 v111, 0xffff0000, v113"]
        cvt()
        for u in UP: e(u)
        pk(108, 108, 100); pk(110, 110, 102)
        cvt()
        e("v_dot2_f32_bf16 v96, v112, s53, 0")
        e("v_dot2_f32_bf16 v97, v112, v112, 0")
        e("v_dot2_f32_bf16 v96, v113, s53, v96")
        e("v_dot2_f32_bf16 v97, v113, v113, v97")
        e(f"ds_write_b64 v16, v[112:113] offset:{L_H}")
        e("s_mov_b64 exec, s[0:1]")
        e(UP[0])
        fill = UP[1:] + ["s_nop 0", "s_nop 0", "s_mov_b64 exec, s[24:25]"]
        for n, st in enumerate(("quad_perm:[1,0,3,2] row_mask:0xf bank_mask:0xf", "quad_perm:[2,3,0,1] row_mask:0xf bank_mask:0xf",
                   "row_half_mirror row_mask:0xf bank_mask:0xf", "row_mirror row_mask:0xf bank_mask:0xf",
                   "row_bcast:15 row_mask:0xa bank_mask:0xf", "row_bcast:31 row_mask:0xc bank_mask:0xf")):
            e(f"v_add_f32_dpp v96, v96, v96 {st}")
            e(f"v_add_f32_dpp v97, v97, v97 {st}")
            e(fill[n])
        e(f"ds_write_b64 v17, v[96:97] offset:{L_ST}")
        e("s_mov_b64 exec, s[0:1]")
        e("s_waitcnt lgkmcnt(0)")
        self.bar()
        if gts: self.ts(1)
        e(f"ds_read_b128 v[64:67], v18 offset:{L_ST}")
        e("s_waitcnt lgkmcnt(0)")
        pk(64, 64, 66)
        e(f"v_mul_f32 v64, {hex(f2u(1.0/448))}, v64")
        e(f"v_mul_f32 v65, {hex(f2u(1.0/448))}, v65")
        e("v_fma_f32 v65, -v64, v64, v65")
        e("v_cvt_pk_bf16_f32 v66, v64, v65")
        e("v_and_b32 v65, 0xffff0000, v66")
        e("v_lshlrev_b32 v64, 16, v66")
        e(f"v_add_f32 v65, {hex(f2u(1e-5))}, v65")
        e("v_cvt_pk_bf16_f32 v65, 0, v65")
        e("v_sqrt_f32 v65, v65")
        for i in (108, 110): e(f"v_pk_add_f32 v[{i}:{i+1}], v[{i}:{i+1}], v[64:65] op_sel_hi:[1,0] neg_lo:[0,1] neg_hi:[0,1]")
        e("v_cvt_pk_bf16_f32 v65, 0, v65")
        e("v_rcp_f32 v65, v65")
        cvt()
        for u in UP: e(u)
        for i in (108, 110): e(f"v_pk_mul_f32 v[{i}:{i+1}], v[{i}:{i+1}], v[64:65] op_sel:[0,1] op_sel_hi:[1,1]")
        e("s_mov_b64 exec, s[64:65]")
        cvt()
        e(f"ds_write_b64 v16, v[112:113] offset:{L_XN}")
        e("s_mov_b64 exec, s[0:1]")
        e("s_waitcnt lgkmcnt(0)")
        self.bar()
        if gts: self.ts(2)
        for ks in range(14):
            e(f"ds_read_b128 v[{104+4*ks}:{107+4*ks}], v30 offset:{L_XN + ks*64}")
        for ks in range(14):
            e(f"s_waitcnt lgkmcnt({13-ks if not gts else 0})")
            cin = "0" if ks == 0 else "v[64:67]"
            e(f"v_mfma_f32_16x16x32_bf16 v[64:67], v[{104+4*ks}:{107+4*ks}], v[{160+4*ks}:{163+4*ks}], {cin}")
        e(f"ds_read_u16 v25, v26 offset:{L_H}")
        e("s_nop 6")
        e("v_mov_b32_dpp v68, v64 row_ror:8 row_mask:0xf bank_mask:0xf")
        e("v_mov_b32_dpp v69, v65 row_ror:8 row_mask:0xf bank_mask:0xf")
        e("v_cndmask_b32 v70, v64, v69, s[66:67]")
        e("v_cndmask_b32 v71, v68, v65, s[66:67]")
        e("v_cvt_pk_bf16_f32 v70, 0, v70")
        e("v_mul_f32 v73, v70, v70")
        e(f"v_fmamk_f32 v73, v73, {hex(f2u(k1 * 0.044715))}, v21")
        e("v_mul_f32 v73, v73, v70")
        e("v_exp_f32 v73, v73")
        e("v_cvt_pk_bf16_f32 v71, 0, v71")
        e("v_add_f32 v73, 1.0, v73")
        e("v_rcp_f32 v73, v73")
        e("s_nop 0")
        e("v_mul_f32 v73, v73, v70")
        e("v_cvt_pk_bf16_f32 v73, 0, v73")
        e("v_mul_f32 v73, v73, v71")
        if gts: self.ts(6)
        e("s_mov_b64 exec, s[48:49]")
        e("v_cvt_pk_bf16_f32 v75, v73, v73")
        e(f"ds_write_b16 v28, v75 offset:{L_ACT}")
        e("s_mov_b64 exec, s[0:1]")
        e("s_waitcnt lgkmcnt(0)")
        self.bar()
        if gts: self.ts(7)
        e(f"ds_read_b128 v[104:107], v19 offset:{L_ACT}")
        e("v_lshlrev_b32 v25, 16, v25")
        e("s_cmp_lg_u32 s59, 0")
        e("s_waitcnt lgkmcnt(0)")
        for j in range(7):
            e(f"v_mfma_f32_16x16x32_bf16 v[{64+4*j}:{67+4*j}], v[104:107], v[{216+4*j}:{219+4*j}], 0")
        e("s_mov_b64 exec, s[48:49]")
        e("s_nop 0")
        for j in range(7):
            e(f"buffer_store_dwordx2 v[{64+4*j}:{65+4*j}], v20, s[36:39], s{PS[j]} offen sc1")
        e("s_mov_b64 exec, s[0:1]")
        self.ts(11)
        e("s_cbranch_scc1 .Lfin")
        ra = lambda p: f"v27, s[36:39], {'s56' if p < 4 else 's61'} offen offset:{(p&3)*1024}"
        for p in range(7):
            e(f"buffer_load_dwordx4 v[{108+4*p}:{111+4*p}], {ra(p)} sc1")
        self.mpoll(7, 108, ra, "-1", ".Lr", m0=6)
        if not o['prof']: self.ts(12)
        for p in range(0, 6, 2):
            for i in (0, 2): pk(108+4*p+i, 108+4*p+i, 112+4*p+i)
        for i in (0, 2):
            pk(108+i, 108+i, 116+i); pk(124+i, 124+i, 132+i)
        for i in (0, 2): pk(108+i, 108+i, 124+i)
        e("s_nop 0")
        e("v_permlane16_swap_b32 v108, v109")
        e("v_permlane16_swap_b32 v110, v111")
        e("s_nop 0")
        e("v_add_f32 v108, v108, v109")
        e("v_add_f32 v110, v110, v111")
        e("s_nop 1")
        e("v_permlane32_swap_b32 v108, v110")
        e("s_nop 1")
        e("v_add_f32 v108, v108, v110")
        e("s_nop 1")
        e("v_add_f32_dpp v108, v108, v108 row_ror:8 row_mask:0xf bank_mask:0xf")
        e("s_mov_b64 exec, s[50:51]")
        e("v_cvt_pk_bf16_f32 v108, 0, v108")
        e("v_add_f32 v108, v108, v25")
        e("v_cvt_pk_bf16_f32 v108, v108, v108")
        if dry: e("s_cbranch_execz .Ldryend")
        e(f"buffer_store_short v108, v26, s[44:47], 0 offen {o['opol']}")
        e("s_mov_b64 exec, -1")

if __name__ == "__main__":
    out = sys.argv[1]
    kw = json.loads(sys.argv[2]) if len(sys.argv) > 2 else {}
    open(out, "w").write(Gen(**kw).build())
```

```python
import sys, json, struct, math
from gen2 import *
import gen2

WS_PART = 0x100000
WS_Y    = 0x120000
WS_P2I  = 0x130000
WS_RACE = 0x170000
L_D     = L_W + 57344
L_H     = 2816
L_ACT   = 640
LDS_BYTES = L_D + 28672

class Gen(gen2.Gen):
    def __init__(self, **kw):
        d = dict(NSH=3, PV=4, NO=2, c0=2, cmax=3, csh=6, pace=14, late='', early=False, quit=(0,0,0), dyn='', order='DGW', gs=0, nodot=False, NB=0, dum='', dsp=256, tpol='', remap=None, PA=0, XS=0, epol='sc1', NP=4, cpol='', NC=8, RA=0, cls=True, dry=False, rst='late', rord='GW', gts=False, opol='', pol={}, iod=True, cfix=None, race='join', fakew='', c2=True, elig=True, fold=True, nd1=3, kb2=5, ks2=11, rsq=False, rpm=1, fp=False, fpg=3, dpk=True, sp=True, EG=0, gfl=False, dq=False, ppk=True, il=(4,4), rdel=0, rw=0, gw=0, fresh='G', sg=False, sgp=14, ET=0, B1W=44, B1G=44)
        d.update(dict(NSH=4, PV=0, NO=6, NB=48, NH=0, dyn='WGD', order='GWD', wpol='nt', dpol='nt', tpol='nt', gs=1))
        d.update(kw)
        super().__init__(**d)
        if self.o['dyn']: self.o['late'] = self.o['dyn']
        if self.o['iod']: self.o['NC'] = 2
        self.cyc = False

    def P(self, t):
        return self.o['pol'].get(t, self.o['pol'].get(t[-1], 'sc1'))

    def ts(self, slot):
        if self.o['ts']:
            self.e(f"{'s_memtime' if self.cyc else 's_memrealtime'} s[{70 + 2 * slot}:{71 + 2 * slot}]")

    def ktile(self, kb, wait, reissue, rtag=None):
        e = self.e
        for i in range(8):
            e(f"v_mov_b32 v{11+i}, 0")
        for g in range(4):
            wait(g)
            for i in range(16 if not self.o['nodot'] else 2):
                e(f"v_dot2c_f32_bf16 v{11+2*g+(i&1)}, v{kb+g*16+i}, v{32+i}")
            if reissue:
                self.ld(kb, g, rtag and (rtag, g))
        if reissue or self.o['prof'] != 2: self.plog()
        if not reissue: e("s_nop 2")
        for g in range(4):
            e(f"v_add_f32 v{11+2*g}, v{11+2*g}, v{12+2*g}")
        for st in ("quad_perm:[1,0,3,2]", "quad_perm:[2,3,0,1]", "row_half_mirror"):
            for g in range(4):
                e(f"v_add_f32_dpp v{11+2*g}, v{11+2*g}, v{11+2*g} {st} row_mask:0xf bank_mask:0xf")
        e("v_cvt_pk_bf16_f32 v24, v11, v13")
        e("v_cvt_pk_bf16_f32 v25, v15, v17")
        e("ds_write_b64 v19, v[24:25]")
        e("v_add_u32 v19, 64, v19")

    def vgrp(self, g, n, reissue, base=64):
        e = self.e
        e(f"s_waitcnt vmcnt({n})")
        for j in range(4):
            r = base + g * 16 + j * 4
            e(f"v_mfma_f32_16x16x32_bf16 v[{48+4*j}:{51+4*j}], v[{32+4*g}:{35+4*g}], v[{r}:{r+3}], v[{48+4*j}:{51+4*j}]")
        if reissue:
            self.ld(64, g)

    def pcalc(self, groups):
        e = self.e
        for g in groups:
            src = 24 if g < 2 else 25
            if g & 1: e(f"v_and_b32 v{11+g}, 0xffff0000, v{src}")
            else: e(f"v_lshlrev_b32 v{11+g}, 16, v{src}")
        for g in groups: e(f"v_fma_f32 v{11+g}, v{11+g}, s59, v10")
        for g in groups: e(f"v_exp_f32 v{11+g}, v{11+g}")
        for g in groups: e(f"v_cvt_pk_bf16_f32 v{15+g}, v{11+g}, v{11+g}")
        for g in groups:
            for r in range(4):
                e(f"v_and_b32 v{32+4*g+r}, v{6+r}, v{15+g}")

    def ticket(self, off=0, amount="1"):
        e = self.e
        e(f"v_mov_b32 v22, {amount}")
        e("s_mov_b64 exec, 1")
        e(f"buffer_atomic_add v22, v21, s[36:39], 0 offen offset:{off} sc0 sc1 {self.o['tpol']}")
        e("s_mov_b64 exec, -1")

    def tile_addr(self, src="s56"):
        k = self.o['gs']; e = self.e
        if k == 0: return super().tile_addr(src)
        e(f"s_lshr_b32 s57, {src}, {k}")
        e(f"s_lshl_b32 s57, s57, {14 + k}")
        e("s_add_u32 s57, s57, s61")
        e(f"s_and_b32 s63, {src}, {(1 << k) - 1}")
        e("s_lshl_b32 s63, s63, 12")
        e("s_add_u32 s57, s57, s63")
        e("s_and_b32 s57, s57, 0x7fffff")

    def sc_addr(self, t):
        e = self.e
        e(f"s_and_b32 s98, {t}, 31")
        e("s_lshl_b32 s98, s98, 9")
        e(f"s_lshr_b32 s63, {t}, 5")
        e("s_lshl_b32 s63, s63, 6")
        e("s_add_u32 s98, s98, s63")

    def build(self):
        o = self.o; e = self.e
        PD = o['PD']; NSH = o['NSH']; NH = o['NH']; PV = o['PV']; NO = o['NO']
        ND = 32 * NSH
        NF = ND - NH
        NTK = NF + 2 * NH
        PA = o['PA']; XS = o['XS'] + PV
        B1 = ND + 24 * XS
        B2 = B1 + 32 * NO
        E1 = PD + PA + 1
        assert 1 <= PD <= 2 and o['dyn'] == 'WGD' and PD + 1 <= NSH <= 8 and NO >= 2 and PV + PA <= 4 and B2 <= 512
        assert 2 * o['NB'] <= NF
        assert max(NSH, E1) + 2 <= NSH + XS + NO
        def pace():
            if o['pace']: e(f"s_waitcnt vmcnt({o['pace']})")
        self.L.append(f"; @launch grid=(256,1,1) block=(256,1,1) lds={LDS_BYTES}")
        self.L.append('.amdgcn_target "amdgcn-amd-amdhsa--gfx950"')
        self.L.append(".text")
        self.L.append(f".globl {NAME}")
        self.L.append(".p2align 8")
        self.L.append(f".type {NAME},@function")
        self.label(NAME)
        e("s_cmp_ge_u32 s2, 256")
        e("s_cbranch_scc1 .Lend")
        e("s_load_dwordx16 s[4:19], s[0:1], 0")
        e("s_load_dwordx8 s[20:27], s[0:1], 64")
        if o['ts']:
            self.ts(0)
            for i in range(72, 96): e(f"s_mov_b32 s{i}, 0")
        e("v_and_b32 v1, 63, v0")
        e("v_lshrrev_b32 v2, 6, v0")
        e("s_and_b32 s53, s2, 7")
        if o['prof']:
            e("s_mov_b32 s3, 0")
            e("v_mov_b32 v0, 0")
        e("v_readfirstlane_b32 s52, v2")
        e("s_lshr_b32 s54, s2, 3")
        e(f"s_mul_i32 s61, s54, {o['rot']}")
        e("v_lshrrev_b32 v20, 3, v1")
        e("v_lshlrev_b32 v2, 9, v20")
        e("v_and_b32 v3, 7, v1")
        e("v_lshlrev_b32 v13, 13, v20")
        e("v_lshl_or_b32 v2, v3, 4, v2")
        e("v_lshl_or_b32 v13, v3, 4, v13")
        S = 4096 << o['gs']
        e(f"v_add_u32 v3, {S}, v2")
        e(f"v_add_u32 v4, {2*S}, v2")
        e(f"v_add_u32 v5, {3*S}, v2")
        e("s_lshl_b32 s58, s53, 2")
        e("s_add_u32 s58, s58, s52")
        e("s_mov_b32 s56, s58")
        self.tile_addr()
        e("s_mov_b32 s30, 0x800000")
        e("s_mov_b32 s31, 0x20000")
        e("s_lshr_b32 s96, s53, 2")
        e("s_lshl_b32 s60, s54, 1")
        e("s_add_u32 s96, s96, s60")
        e(f"s_mul_i32 s60, s52, {112 * 8192}")
        e("s_lshl_b32 s63, s96, 7")
        e("s_add_u32 s60, s60, s63")
        e("v_add_u32 v13, s60, v13")
        e("v_and_b32 v16, 31, v1")
        e("v_cmp_gt_u32 s[64:65], 28, v16")
        e("v_lshrrev_b32 v14, 5, v1")
        e("v_mul_u32_u24 v14, 896, v14")
        e("v_lshl_add_u32 v28, v16, 5, v14")
        e("v_mov_b32 v16, 0x10000")
        e("v_cndmask_b32 v16, v16, v28, s[64:65]")
        e("v_mov_b32 v15, 0")
        e("s_mov_b32 s38, {0}".format(WS_SIZE))
        e("s_mov_b32 s39, 0x20000")
        e("s_mov_b32 s42, 1792")
        e("s_mov_b32 s43, 0x20000")
        e("s_mov_b32 s46, 3670016")
        e("s_mov_b32 s47, 0x20000")
        e(f"s_mul_i32 s97, s52, {14 * 1024}")
        e(f"s_add_u32 s97, s97, {L_W}")
        e("s_lshl_b32 s60, s54, 23")
        e("s_xor_b32 s62, s53, s54")
        e("s_and_b32 s62, s62, 3")
        e("s_waitcnt lgkmcnt(0)")
        if o['dbgts']: e("s_mov_b64 s[84:85], s[24:25]")
        e("s_cbranch_scc1 .Lnoprod1")
        e("s_setprio 3")
        e("s_mov_b64 s[40:41], s[4:5]")
        e("s_mov_b64 s[44:45], s[10:11]")
        e("s_and_b32 s63, s96, 3")
        e("s_or_b32 s63, s63, s52")
        e("s_cbranch_scc1 .Lnocinit")
        e("s_mov_b64 s[36:37], s[26:27]")
        e("s_lshl_b32 s63, s96, 6")
        e("v_and_b32 v14, 1, v1")
        e("v_lshlrev_b32 v14, 12, v14")
        e("v_lshrrev_b32 v17, 1, v1")
        e("v_lshl_add_u32 v14, v17, 7, v14")
        e(f"v_add_u32 v14, {WS_CNT}, v14")
        e("s_mov_b64 exec, 15")
        e("buffer_store_dword v15, v14, s[36:39], s63 offen " + self.P("ciS"))
        e("s_mov_b64 exec, -1")
        self.label(".Lnocinit")
        e("buffer_load_dwordx4 v[240:243], v16, s[40:43], 0 offen")
        e("buffer_load_dwordx4 v[244:247], v16, s[40:43], 0 offen offset:16")
        for ks in range(14):
            e("s_mov_b32 m0, s97")
            e(f"s_mov_b32 s63, {ks * 65536}")
            e(f"buffer_load_dwordx4 v13, s[44:47], s63 offen {o['wqpol']} lds")
            if ks < 13: e("s_add_u32 s97, s97, 1024")
        self.label(".Lnoprod1")
        if o['rst'] == 'first': self.resets()
        e("s_add_u32 s28, s6, s60")
        e("s_addc_u32 s29, s7, 0")
        self.q = []
        for g in range(4): self.ld(64, g, ('A', g))
        e(f"s_load_dword s68, s[26:27], {WS_EPOCH}")
        def tag():
            e("s_mul_i32 s55, s68, 0x9e3779b1")
            e("s_add_u32 s55, s55, 0x7f4a7c15")
        if o['prof'] == 2: self.plog()
        e("s_add_u32 s32, s8, s60")
        e("s_addc_u32 s33, s9, 0")
        e("s_mov_b32 s34, 0x800000")
        e("s_mov_b32 s35, 0x20000")
        e("s_mov_b64 s[36:37], s[26:27]")
        self.srd(48, 24, 256)
        self.setup()
        e("s_cmp_lg_u32 s62, 0")
        e("s_cbranch_scc1 .Ljoin")
        e("v_lshlrev_b32 v17, 7, v29")
        e("v_lshl_add_u32 v17, v31, 3, v17")
        e("s_lshl_b32 s60, s52, 5")
        e(f"s_add_u32 s60, s60, {L_W}")
        e("v_add_u32 v17, s60, v17")
        e("s_waitcnt vmcnt(30)")
        for i in range(8):
            e(f"v_and_b32 v{184+2*i+1}, 0xffff0000, v{240+i}")
            e(f"v_lshlrev_b32 v{184+2*i}, 16, v{240+i}")
        self.layernorm16(184, 200, "s[64:65]")
        e("s_mov_b64 exec, s[64:65]")
        e(f"ds_write_b128 v28, v[184:187] offset:{L_XN}")
        e(f"ds_write_b128 v28, v[188:191] offset:{L_XN+16}")
        e("s_mov_b64 exec, -1")
        e("s_waitcnt lgkmcnt(0)")
        for ks in range(14):
            e(f"ds_read_b128 v[{128+4*ks}:{131+4*ks}], v30 offset:{L_XN + ks*64}")
        tag()
        e("v_mov_b32 v249, s55")
        e("v_and_b32 v13, 1, v1")
        e("v_lshlrev_b32 v14, 14, v13")
        e("v_cmp_eq_u32 vcc, 1, v13")
        e("v_lshrrev_b32 v13, 1, v1")
        e("v_lshl_add_u32 v14, v13, 3, v14")
        e("s_lshl_b32 s60, s96, 2")
        e("s_add_u32 s60, s60, s52")
        e("s_lshl_b32 s60, s60, 6")
        e(f"s_add_u32 s60, s60, {WS_Q}")
        e("s_waitcnt vmcnt(16)")
        e("s_barrier")
        for ks in range(14):
            e(f"ds_read_b64_tr_b16 v[{184+4*ks}:{185+4*ks}], v17 offset:{ks*4096}")
            e(f"ds_read_b64_tr_b16 v[{186+4*ks}:{187+4*ks}], v17 offset:{ks*4096 + 512}")
            if ks == 6:
                e("s_waitcnt lgkmcnt(6)")
        e("s_waitcnt lgkmcnt(0)")
        for ks in range(14):
            cin = "0" if ks == 0 else "v[240:243]"
            e(f"v_mfma_f32_16x16x32_bf16 v[240:243], v[{128+4*ks}:{131+4*ks}], v[{184+4*ks}:{187+4*ks}], {cin}")
        e("s_nop 7")
        e("v_mov_b32_dpp v244, v240 quad_perm:[1,0,3,2] row_mask:0xf bank_mask:0xf")
        e("v_mov_b32_dpp v245, v241 quad_perm:[1,0,3,2] row_mask:0xf bank_mask:0xf")
        e("v_cndmask_b32 v246, v240, v245, vcc")
        e("v_cndmask_b32 v247, v244, v241, vcc")
        e("v_cvt_pk_bf16_f32 v248, v246, v247")
        e("s_mov_b64 exec, 0xffff")
        e("buffer_store_dwordx2 v[248:249], v14, s[36:39], s60 offen " + self.P("qS"))
        e("s_mov_b64 exec, -1")
        e("s_setprio 0")
        self.label(".Ljoin")
        if o['rst'] == 'join': self.resets()
        if o['iod'] and o['race'] == 'join': self.race()
        for p in range(PD):
            e("s_add_u32 s56, s56, 32")
            self.tile_addr()
            for g in range(4):
                pace()
                self.ld(128 + 64 * p, g, (f'E{p}', g))
            if o['prof'] == 2: self.plog()
        e("s_cmp_eq_u32 s52, 0")
        e("s_cbranch_scc1 .Lw0")
        for p in range(PA):
            e(f"v_readlane_b32 s56, v23, {PD + 1 + p}")
            self.tile_addr()
            for g in range(4):
                pace()
                for j in range(4):
                    r = 64 * (PV + p) + g * 16 + j * 4
                    self.vm(f"buffer_load_dwordx4 a[{r}:{r+3}], v{2+g}, s[28:31], s57 offen offset:{j*128} {o['kvpol']}", (f'F{p}', g))
            if o['prof'] == 2: self.plog()
        for p in range(PV):
            e(f"v_readlane_b32 s56, v23, {NSH + p}")
            self.tile_addr()
            for g in range(4):
                pace()
                for j in range(4):
                    r = 64 * p + g * 16 + j * 4
                    self.vm(f"buffer_load_dwordx4 a[{r}:{r+3}], v{2+g}, s[32:35], s57 offen offset:{j*128} {o['kvpol']}", 'X')
            if o['prof'] == 2: self.plog()
        for p in range(PV if o['prof'] == 1 else 0): self.plog()
        if o['sg']: self.sgload()
        if o['iod'] and o['race'] == 'bar': self.race()
        e(f"s_mov_b32 s99, {E1}")
        e(f"s_mov_b32 s97, {NSH + PV}")
        e(f"s_mov_b32 s101, {NSH + XS + NO}")
        e(f"s_mov_b32 s62, {max(NSH, E1)}")
        e("s_branch .Lbar")
        self.label(".Lw0")
        e("s_lshl_b32 s60, s54, 10")
        e(f"s_add_u32 s60, s60, {WS_Q}")
        e("v_lshlrev_b32 v13, 4, v1")
        e("v_lshlrev_b32 v14, 3, v1")
        e(f"ds_write_b32 v15, v15 offset:{L_CNT}")
        e(f"ds_write_b32 v15, v15 offset:{L_CNT + 8}")
        e(f"ds_write_b32 v15, v15 offset:{L_CNT + 12}")
        if o['sg']:
            self.sgtest(".Lnosg0")
            e("v_mov_b32 v16, s69")
            e("v_mov_b32 v17, 0x1000")
            e(f"ds_write2_b32 v15, v16, v17 offset0:{L_CNT//4 + 1} offset1:{L_CNT//4 + 2}")
            self.label(".Lnosg0")
        NP = o['NP']
        def poll(k): e(f"buffer_load_dwordx4 v[{48+4*k}:{51+4*k}], v13, s[36:39], s60 offen " + self.P("qL"))
        for k in range(NP):
            if k: e(f"s_waitcnt vmcnt({16 - 3 * k})")
            poll(k)
        e("s_waitcnt lgkmcnt(0)")
        tag()
        self.poll_begin()
        self.label(".Lqpoll")
        for k in range(NP):
            e(f"s_waitcnt vmcnt({NP - 1})")
            e(f"v_cmp_ne_u32 vcc, s55, v{49+4*k}")
            e(f"v_cmp_ne_u32 s[66:67], s55, v{51+4*k}")
            e("s_or_b64 vcc, vcc, s[66:67]")
            e(f"s_cbranch_vccz .Lqok{k}")
            poll(k)
        self.poll_again(".Lqpoll")
        for k in range(NP):
            self.label(f".Lqok{k}")
            e(f"ds_write2_b32 v14, v{48+4*k}, v{50+4*k} offset0:{L_Q//4} offset1:{L_Q//4+1}")
            if k < NP - 1: e("s_branch .Lqok")
        self.label(".Lqok")
        e(f"s_mov_b32 s99, {PD + 1}")
        e(f"s_mov_b32 s97, {NSH}")
        e(f"s_mov_b32 s101, {NSH + NO}")
        e(f"s_mov_b32 s62, {NSH}")
        e("s_waitcnt lgkmcnt(0)")
        self.label(".Lbar")
        self.ts(1)
        e("s_barrier")
        self.ts(2)
        e("v_and_b32 v13, 7, v1")
        e("v_lshlrev_b32 v13, 4, v13")
        for j in range(4):
            e(f"ds_read_b128 v[{32+4*j}:{35+4*j}], v13 offset:{L_Q + j*128}")
        e("v_readlane_b32 s56, v23, s99")
        self.tile_addr()
        e("s_waitcnt lgkmcnt(0)")
        tag()
        self.ktile(64, lambda g: self.vwait(('A', g)), True, rtag='A2')
        for p in range(PD):
            self.ktile(128 + 64 * p, lambda g: self.vwait((f'E{p}', g)), False)
        if PA:
            e("s_cmp_eq_u32 s52, 0")
            e("s_cbranch_scc1 .Lkloop")
        for p in range(PA):
            def wa(g):
                self.vwait((f'F{p}', g))
                for i in range(16): e(f"v_accvgpr_read_b32 v{128 + 16 * g + i}, a{64 * (PV + p) + 16 * g + i}")
            self.ktile(128, wa, False)
        if o['rst'] == 'late': self.resets()
        else: self.checkin(".Lkloop")

        w12 = lambda g: e("s_waitcnt vmcnt(12)")
        self.label(".Lkloop")
        e("s_cmp_lg_u32 s99, s62")
        e("s_cbranch_scc1 .Lk0")
        e("s_lshl_b32 s60, s52, 11")
        e(f"s_add_u32 s60, s60, {L_SC}")
        e("v_lshl_add_u32 v14, v1, 4, s60")
        e("ds_read_b128 v[24:27], v14")
        e("s_lshl_b32 s60, s2, 2")
        e("s_add_u32 s60, s60, s52")
        e("s_lshl_b32 s60, s60, 9")
        e(f"s_add_u32 s60, s60, {WS_SC}")
        e("v_lshlrev_b32 v13, 4, v1")
        e(f"s_mov_b32 exec_lo, {hex((1 << (4 * NSH)) - 1)}")
        e("s_mov_b32 exec_hi, 0")
        e("s_waitcnt lgkmcnt(0)")
        e("buffer_store_dwordx4 v[24:27], v13, s[36:39], s60 offen " + self.P("scS"))
        e("s_mov_b64 exec, -1")
        e(f"s_mov_b32 s100, {B2}")
        e(f"s_mov_b32 s96, {o['c0']}")
        self.label(".Lk0")
        e("s_add_u32 s99, s99, 1")
        e("s_mov_b32 s58, s99")
        e("s_cmp_lt_u32 s99, s101")
        e("s_cbranch_scc1 .Lk2")
        e("s_waitcnt vmcnt(16)")
        e("v_readfirstlane_b32 s56, v22")
        e(f"s_add_u32 s56, s56, {B2}")
        e("s_cmp_lt_u32 s56, 512")
        e("s_cbranch_scc1 .Lk1")
        e("s_mov_b64 s[28:29], s[32:33]")
        e("s_mov_b32 s58, s97")
        e("s_mov_b32 s101, 0")
        e("s_branch .Lk2")
        self.label(".Lk1")
        e("s_add_u32 s100, s56, s96")
        e("s_min_u32 s100, s100, 512")
        e("s_sub_u32 s60, s56, s99")
        e("v_add_u32 v13, s60, v1")
        e("v_cmp_le_u32 vcc, s99, v1")
        e("s_sub_u32 s101, s100, s60")
        e("s_sub_u32 s96, 512, s100")
        e("v_cndmask_b32 v23, v23, v13, vcc")
        e(f"s_lshr_b32 s96, s96, {o['csh']}")
        e("s_max_u32 s96, s96, 1")
        e(f"s_min_u32 s96, s96, {o['cmax']}")
        self.label(".Lk2")
        e("v_readlane_b32 s56, v23, s58")
        e("s_add_u32 s60, s99, 1")
        e("s_cmp_lg_u32 s60, s101")
        e("s_cbranch_scc1 .Lk3")
        e("v_mov_b32 v22, 0x10000")
        e(f"s_cmp_gt_u32 s101, {32 - o['cmax']}")
        e("s_cbranch_scc1 .Lk3")
        self.ticket(128, "s96")
        self.label(".Lk3")
        self.tile_addr()
        self.ktile(64, w12, True)
        e("s_cmp_lg_u32 s101, 0")
        e("s_cbranch_scc1 .Lkloop")
        self.ts(6)
        e("s_lshl_b32 s60, s52, 11")
        e(f"s_add_u32 s60, s60, {L_SC}")
        e("v_lshl_add_u32 v13, v1, 4, s60")
        e("ds_read_b128 v[128:131], v13")
        e("ds_read_b128 v[144:147], v13 offset:1024")
        for i in range(16): e(f"v_mov_b32 v{48+i}, 0")
        e("v_lshrrev_b32 v19, 3, v1")
        e(f"s_add_u32 s60, s60, {NSH * 64}")
        e("v_lshl_add_u32 v19, v19, 3, s60")
        e("s_waitcnt lgkmcnt(0)")
        for i in range(4):
            e(f"v_and_b32 v{149+2*i}, 0xffff0000, v{144+i}")
            e(f"v_lshlrev_b32 v{148+2*i}, 16, v{144+i}")
        for i in range(4):
            e(f"v_and_b32 v{133+2*i}, 0xffff0000, v{128+i}")
            e(f"v_lshlrev_b32 v{132+2*i}, 16, v{128+i}")
        e("v_max3_f32 v140, v132, v133, v134")
        e("v_max3_f32 v141, v135, v136, v137")
        e("v_max3_f32 v140, v140, v138, v139")
        e("v_max3_f32 v141, v141, v148, v149")
        e("v_max3_f32 v140, v140, v150, v151")
        e("v_max3_f32 v141, v141, v152, v153")
        e("v_max3_f32 v140, v140, v154, v155")
        e("v_max_f32 v140, v140, v141")
        self.full_reduce("v_max_f32", "v140", "v141")
        e("v_mul_f32 v10, s59, v140")
        e("v_sub_f32 v10, 0, v10")
        for i in range(8): e(f"v_fma_f32 v{132+i}, v{132+i}, s59, v10")
        for i in range(8): e(f"v_fma_f32 v{148+i}, v{148+i}, s59, v10")
        for i in range(8): e(f"v_exp_f32 v{132+i}, v{132+i}")
        for i in range(8): e(f"v_exp_f32 v{148+i}, v{148+i}")
        e("s_nop 0")
        for i in range(8): e(f"v_add_f32 v{132+i}, v{132+i}, v{148+i}")
        for i in range(4): e(f"v_add_f32 v{132+i}, v{132+i}, v{136+i}")
        e("v_add_f32 v132, v132, v133")
        e("v_add_f32 v134, v134, v135")
        e("v_add_f32 v142, v132, v134")
        self.full_reduce("v_add_f32", "v142", "v141")
        e("v_mov_b32 v141, s55")
        e("v_mov_b32 v143, s55")
        e("s_lshl_b32 s60, s2, 2")
        e("s_add_u32 s60, s60, s52")
        e("s_lshl_b32 s60, s60, 4")
        e(f"s_add_u32 s60, s60, {WS_ML}")
        e("v_mov_b32 v13, 0")
        e("s_mov_b64 exec, 1")
        e("buffer_store_dwordx4 v[140:143], v13, s[36:39], s60 offen " + self.P("mlS"))
        e("s_mov_b64 exec, -1")
        if o['rst'] == 'late':
            self.checkin(".Lnoci")
            self.label(".Lnoci")
        e("s_lshl_b32 s98, s54, 9")
        e(f"s_add_u32 s98, s98, {WS_ML}")
        e("v_and_b32 v28, 31, v1")
        e("v_lshlrev_b32 v28, 4, v28")
        e("s_add_u32 s58, s97, 1")
        e("s_sub_u32 s99, s99, 1")
        if PV:
            e("s_cmp_eq_u32 s52, 0")
            e("s_cbranch_scc1 .Lvloop")
            for p in range(PV):
                e("ds_read_b64 v[24:25], v19")
                e("v_add_u32 v19, 64, v19")
                e("s_waitcnt lgkmcnt(0)")
                self.pcalc(range(4))
                for g in range(4):
                    for j in range(4):
                        r = 64 * p + g * 16 + j * 4
                        e(f"v_mfma_f32_16x16x32_bf16 v[{48+4*j}:{51+4*j}], v[{32+4*g}:{35+4*g}], a[{r}:{r+3}], v[{48+4*j}:{51+4*j}]")
        self.label(".Lvloop")
        e("ds_read_b64 v[24:25], v19")
        e("v_add_u32 v19, 64, v19")
        e("v_readlane_b32 s56, v23, s58")
        e("s_cmp_lt_u32 s58, s99")
        e("s_cbranch_scc1 .Lv1")
        self.ticket()
        e("buffer_load_dwordx4 v[128:131], v28, s[36:39], s98 offen " + self.P("mlL"))
        e("v_and_b32 v13, 7, v1")
        e("v_lshlrev_b32 v13, 2, v13")
        e("buffer_load_dword v23, v13, s[48:51], 0 offen sc1")
        self.label(".Lv1")
        self.tile_addr()
        e("s_add_u32 s58, s58, 1")
        e("s_waitcnt lgkmcnt(0)")
        self.pcalc(range(4))
        dum = o['dum']
        if dum:
            e("s_lshl_b32 s60, s2, 2")
            e("s_add_u32 s60, s60, s52")
            e("s_lshl_b32 s60, s60, 8")
            e(f"s_mul_i32 s63, s54, {o['dsp']}")
            e(f"s_add_u32 s60, {'s60' if dum[0] == 'p' else 's63'}, 0x200000")
            e("v_mov_b32 v26, 1")
            e("v_mov_b32 v27, 0")
            e("s_mov_b64 exec, 1")
            if dum[1] in 'SWXY':
                e("s_mov_b64 exec, 0xffffffff")
                e("v_lshlrev_b32 v27, 2, v1")
            op = {'X': "buffer_atomic_swap v26, v27, s[36:39], s60 offen sc1 nt", 'Y': "buffer_atomic_swap v26, v27, s[36:39], s60 offen nt", 'z': "buffer_atomic_add v26, v27, s[36:39], s60 offen sc0 nt", 'S': "buffer_store_dword v26, v27, s[36:39], s60 offen sc1", 'w': "buffer_store_dword v26, v27, s[36:39], s60 offen",
                  'u': "buffer_store_dword v26, v27, s[36:39], s60 offen sc1 nt", 'W': "buffer_store_dword v26, v27, s[36:39], s60 offen sc0 sc1", 'a': "buffer_atomic_add v26, v27, s[36:39], s60 offen sc0 sc1", 'l': "buffer_load_dword v26, v27, s[36:39], s60 offen sc1",
                  'n': "buffer_atomic_add v26, v27, s[36:39], s60 offen sc1", 'x': "buffer_atomic_add v26, v27, s[36:39], s60 offen sc0",
                  's': "buffer_store_dword v26, v27, s[36:39], s60 offen sc1", 't': "buffer_atomic_add v26, v27, s[36:39], s60 offen sc0 sc1 nt"}[dum[1]]
            e(op)
            e("s_mov_b64 exec, -1")
        for g in range(4): self.vgrp(g, 13 if dum else 12, True)
        self.plog()
        e("s_cmp_le_u32 s58, s99")
        e("s_cbranch_scc1 .Lvloop")
        if not o['dbgts']: self.ts(7)
        e("ds_read_b64 v[24:25], v19")
        e("s_waitcnt vmcnt(16)")
        self.poll_begin()
        self.label(".Lmlchk")
        e("v_cmp_ne_u32 vcc, s55, v129")
        e("v_cmp_ne_u32 s[66:67], s55, v131")
        e("s_or_b64 vcc, vcc, s[66:67]")
        e("s_cbranch_vccz .Lmlok")
        e("buffer_load_dwordx4 v[128:131], v28, s[36:39], s98 offen " + self.P("mlL"))
        e("s_waitcnt vmcnt(0)")
        self.poll_again(".Lmlchk")
        self.label(".Lmlok")
        e("v_mov_b32 v132, v128")
        self.half_reduce("v_max_f32", "v132", "v133")
        e("v_sub_f32 v128, v128, v132")
        e("v_mul_f32 v128, s59, v128")
        e("v_exp_f32 v128, v128")
        e("s_nop 0")
        e("v_mul_f32 v130, v130, v128")
        self.half_reduce("v_add_f32", "v130", "v133")
        e("v_log_f32 v130, v130")
        e("s_nop 0")
        e("v_fma_f32 v130, v132, s59, v130")
        e("v_add_f32 v131, v10, v130")
        e("v_sub_f32 v10, 0, v130")
        e("v_exp_f32 v131, -v131")
        e("s_waitcnt lgkmcnt(0)")
        for i in range(16):
            e(f"v_mul_f32 v{48+i}, v{48+i}, v131")
        assert NH == 0
        e("v_and_b32 v13, 7, v1")
        e("v_lshlrev_b32 v13, 2, v13")
        self.poll_begin()
        self.label(".Lrd")
        e("v_mov_b32 v128, v23")
        e("v_and_b32 v129, 0x3ff, v23")
        for st in ("quad_perm:[1,0,3,2]", "quad_perm:[2,3,0,1]", "row_half_mirror"):
            e("s_nop 0")
            e(f"v_add_u32_dpp v128, v128, v128 {st} row_mask:0xf bank_mask:0xf")
            e(f"{'v_add_u32_dpp' if o['c2'] and st[0] == 'q' else 'v_min_u32_dpp'} v129, v129, v129 {st} row_mask:0xf bank_mask:0xf")
        e("s_nop 0")
        e("v_readfirstlane_b32 s60, v128")
        e("v_readfirstlane_b32 s63, v129")
        e("s_and_b32 s100, s60, 0x3ff")
        e("s_cmp_ge_u32 s100, 256")
        e("s_cbranch_scc1 .Lrdok")
        e("buffer_load_dword v23, v13, s[48:51], 0 offen sc1")
        e("s_waitcnt vmcnt(0)")
        self.poll_again(".Lrd")
        self.label(".Lrdok")
        e("s_getreg_b32 s58, hwreg(HW_REG_XCC_ID, 0, 3)")
        e("s_lshl_b32 s100, s58, 2" if not o['c2'] else "s_and_b32 s100, s58, 4")
        e(f"s_cmp_lt_u32 s63, {(84 if o['sg'] else 56 if o['c2'] else 14) if o['cls'] else 1000}")
        e("s_cselect_b32 s100, 64, s100")
        e("v_mov_b32 v128, s55")
        e("v_mov_b32 v26, 1")
        e("v_mov_b32 v27, 0")
        e("s_mov_b32 s99, 0")
        if o['ts'] and not o['prof']: e("s_mov_b32 s3, 999")
        if o['elig']:
            e("v_mov_b32 v21, 4" if 0 else "v_mov_b32 v23, 4")
            e("s_mov_b64 exec, 1")
            e(f"ds_add_u32 v27, v26 offset:{L_CNT + 8}")
            e("s_mov_b64 exec, -1")
        e("s_bfe_u32 s63, s60, 0xa000a")
        e("s_lshr_b32 s60, s60, 20")
        e("s_cmp_gt_u32 s60, s63")
        e("s_cselect_b32 s55, 0x2000, 0")
        if o['cfix'] is not None: e(f"s_mov_b32 s55, {o['cfix'] << 13}")
        e("s_or_b32 s60, s2, s52")
        e("s_cbranch_scc1 .Ldloop")
        e("v_mov_b32 v13, 0")
        e("s_mov_b64 exec, 1")
        e(f"buffer_store_dword v128, v13, s[36:39], 0 offen offset:{WS_EPOCH} sc1")
        e("s_mov_b64 exec, -1")
        self.label(".Ldloop")
        e("s_waitcnt vmcnt(16)")
        e("v_readfirstlane_b32 s56, v22")
        self.pcalc(range(4))
        NB = o['NB']
        if NB:
            e(f"s_cmp_lt_u32 s56, {NB}")
            e("s_cbranch_scc1 .Ldbl")
            e(f"s_add_u32 s56, s56, {NB}")
        e(f"s_cmp_ge_u32 s56, {NF}")
        e("s_cbranch_scc1 .Lfx")
        self.label(".Ld1")
        if o['ts'] and not o['prof']:
            e("s_mov_b32 s3, s56")
            self.ts(2)
        self.tile_addr()
        self.sc_addr("s56")
        e("buffer_load_dwordx2 v[24:25], v20, s[36:39], s98 offen " + self.P("scL"))
        if o['ET']:
            e(f"s_cmp_ge_u32 s56, {NF - o['ET']}")
            e("s_cbranch_scc1 .Lde")
            self.label(".Ldt")
        self.ticket()
        self.label(".Ldg")
        EG = o['EG']
        if EG:
            assert EG <= NF - 2 * NB
            e(f"s_cmp_ge_u32 s56, {NF - EG}")
            e("s_cbranch_scc1 .Leg")
        for g in range(4): self.vgrp(g, 14, True)
        self.plog()
        e("s_branch .Ldloop")
        if EG:
            self.label(".Leg")
            for g in range(4): self.ld(128, g)
            for g in range(4): self.vgrp(g, 30 - 4 * g, False)
            self.plog()
            e("s_waitcnt vmcnt(16)")
            e("v_readfirstlane_b32 s56, v22")
            self.pcalc(range(4))
            e(f"s_add_u32 s56, s56, {NB}")
            e("s_mov_b32 s99, 1")
            e(f"s_cmp_ge_u32 s56, {NF}")
            e("s_cbranch_scc1 .Lfx")
            e("s_mov_b32 s99, 0")
            self.tile_addr()
            self.sc_addr("s56")
            e("buffer_load_dwordx2 v[24:25], v20, s[36:39], s98 offen " + self.P("scL"))
            self.ticket()
            for g in range(4): self.ld(64, g)
            for g in range(4): self.vgrp(g, 30 - 4 * g, False, 128)
            self.plog()
            e("s_branch .Ldloop")
        if o['ET']:
            self.label(".Lde")
            e("s_mov_b64 exec, 1")
            if o['elig']: e(f"ds_cmpst_rtn_b32 v28, v27, v23, v27 offset:{L_CNT + 8}")
            else: e(f"ds_add_rtn_u32 v28, v27, v26 offset:{L_CNT + 8}")
            e("s_waitcnt lgkmcnt(0)")
            e("v_readfirstlane_b32 s97, v28")
            e("s_mov_b64 exec, -1")
            if o['elig']: e("s_xor_b32 s97, s97, 4")
            else: e("s_cmp_lg_u32 s97, 0")
            e("s_cbranch_scc1 .Ldt")
            e("s_mov_b64 exec, 1")
            e("buffer_atomic_add v26, v27, s[48:51], s100 offen offset:64 sc0 sc1")
            e("s_mov_b64 exec, -1")
            e("v_mov_b32 v22, 0x10000")
            e("s_mov_b32 s101, 1")
            e("s_branch .Ldg")
        if NB:
            self.label(".Ldbl")
            e("s_lshl_b32 s56, s56, 1")
            self.tile_addr()
            self.sc_addr("s56")
            e("buffer_load_dwordx2 v[24:25], v20, s[36:39], s98 offen " + self.P("scL"))
            for g in range(4): self.vgrp(g, 13, True)
            self.plog()
            e("s_add_u32 s56, s56, 1")
            e("s_waitcnt vmcnt(16)")
            self.pcalc(range(4))
            e("s_branch .Ld1")
        self.label(".Lfx")
        self.tail()
        nacc = 64 * (PV + PA)
        self.L.append('.section .rodata,"a"')
        self.L.append(".p2align 6")
        self.L.append(f".amdhsa_kernel {NAME}")
        self.L.append(f"  .amdhsa_next_free_vgpr {256 + nacc}")
        self.L.append("  .amdhsa_next_free_sgpr 102")
        self.L.append(f"  .amdhsa_accum_offset 256")
        self.L.append("  .amdhsa_group_segment_fixed_size 0")
        self.L.append("  .amdhsa_kernarg_size 96")
        self.L.append("  .amdhsa_user_sgpr_count 2")
        self.L.append("  .amdhsa_user_sgpr_kernarg_segment_ptr 1")
        self.L.append("  .amdhsa_system_sgpr_workgroup_id_x 1")
        self.L.append("  .amdhsa_float_denorm_mode_32 3")
        self.L.append(".end_amdhsa_kernel")
        return "\n".join(self.L) + "\n"

    def resets(self):
        e = self.e; o = self.o
        e("s_cmp_lg_u32 s52, 1")
        e("s_cbranch_scc1 .Lnoreset")
        for i in range(4): e(f"v_mov_b32 v{24+i}, -1")
        e("v_lshlrev_b32 v18, 4, v1")
        npc = (131072 + 28672 * o['NC'] + 200704) // 1024 if not o['iod'] else 416
        e("s_mov_b64 s[36:37], s[26:27]")
        e("s_lshl_b32 s63, s2, 10")
        e(f"s_add_u32 s63, s63, {WS_PART}")
        for i in range((npc + 255) // 256):
            if npc - 256 * i < 256:
                e(f"s_cmp_ge_u32 s2, {npc - 256 * i}")
                e("s_cbranch_scc1 .Lnoreset")
            e("buffer_store_dwordx4 v[24:27], v18, s[36:39], s63 offen " + self.P("rsS"))
            e("s_add_u32 s63, s63, 0x40000")
        self.label(".Lnoreset")

    def sgtest(self, skip):
        e = self.e
        e("s_cmp_lg_u32 s62, 1")
        e(f"s_cbranch_scc1 {skip}")
        e("s_cmp_ge_u32 s54, 28")
        e(f"s_cbranch_scc1 {skip}")
        e("s_lshr_b32 s69, s53, 2")
        e("s_mul_i32 s69, s69, 28")
        e("s_add_u32 s69, s69, s54")

    def sgload(self):
        e = self.e; o = self.o
        self.sgtest(".Lnosg")
        e("s_mov_b32 s46, 1605632")
        e("s_mov_b32 s47, 0x20000")
        e("s_mov_b64 s[44:45], s[20:21]")
        e("v_lshlrev_b32 v13, 4, v1")
        e("s_mul_i32 s99, s69, 28672")
        e("s_movk_i32 s98, 1024")
        e(f"s_mov_b32 s96, {L_D}")
        e("s_cmp_eq_u32 s52, 3")
        e("s_cbranch_scc1 .Lsg1")
        e("s_mov_b64 s[44:45], s[18:19]")
        e("v_lshrrev_b32 v13, 2, v1")
        e("v_mul_u32_u24 v13, 3584, v13")
        e("v_lshl_add_u32 v13, v31, 4, v13")
        e("s_lshl_b32 s99, s69, 6")
        e(f"s_mov_b32 s98, {16*3584}")
        e(f"s_mov_b32 s96, {L_U}")
        e("s_cmp_eq_u32 s52, 2")
        e("s_cbranch_scc1 .Lsg1")
        e("s_mov_b64 s[44:45], s[16:17]")
        e(f"s_mov_b32 s96, {L_W}")
        self.label(".Lsg1")
        e("s_add_u32 s97, s96, 28672")
        self.label(".Lsg2")
        e("s_mov_b32 m0, s96")
        e("s_add_u32 s96, s96, 1024")
        if o['sgp']: e(f"s_waitcnt vmcnt({o['sgp']})")
        e(f"buffer_load_dwordx4 v13, s[44:47], s99 offen {o['wpol']} lds")
        e("s_add_u32 s99, s99, s98")
        e("s_cmp_lt_u32 s96, s97")
        e("s_cbranch_scc1 .Lsg2")
        self.label(".Lnosg")

    def race(self):
        e = self.e
        X = "0x5bd1e995"
        e("s_cmp_lg_u32 s52, 1")
        e("s_cbranch_scc1 .Lnorace")
        e("s_lshr_b32 s60, s2, 6")
        e("s_lshl_b32 s60, s60, 14")
        e("s_and_b32 s63, s2, 63")
        e("s_lshl_b32 s63, s63, 7")
        e("s_add_u32 s60, s60, s63")
        e("s_bfe_u32 s41, s2, 0x10003")
        e("s_lshl_b32 s63, s41, 13")
        e("s_add_u32 s60, s60, s63")
        e(f"s_add_u32 s60, s60, {WS_RACE}")
        e("s_xor_b32 s63, s60, 0x2000")
        e("s_getreg_b32 s40, hwreg(HW_REG_XCC_ID, 2, 1)")
        e("s_xor_b32 s41, s41, s40")
        e(f"s_mov_b32 s42, {X}")
        e(f"s_mov_b32 s43, {X}")
        e("s_waitcnt lgkmcnt(0)")
        e("s_load_dword s42, s[26:27], s60")
        e("s_load_dword s43, s[26:27], s63")
        e("s_waitcnt lgkmcnt(1)")
        e("s_mov_b64 s[44:45], s[42:43]")
        e(f"s_cmp_eq_u32 s44, {X}")
        e("s_cselect_b32 s44, 1, 0")
        e(f"s_cmp_eq_u32 s45, {X}")
        e("s_cselect_b32 s45, 1, 0")
        e("s_xor_b32 s41, s41, s44")
        e("s_cselect_b32 s40, 20, 10")
        e("s_lshl_b32 s40, 1, s40")
        e("s_add_u32 s40, s40, 1")
        e("s_cmp_eq_u32 s44, s45")
        e("s_cselect_b32 s40, 1, s40")
        self.label(".Lnorace")

    def checkin(self, skip):
        e = self.e
        e("s_cmp_lg_u32 s52, 1")
        e(f"s_cbranch_scc1 {skip}")
        e("v_mov_b32 v22, s40" if self.o['iod'] else "v_mov_b32 v22, 1")
        e("s_getreg_b32 s60, hwreg(HW_REG_XCC_ID, 0, 3)")
        e("s_lshl_b32 s60, s60, 2")
        e("v_mov_b32 v13, s60")
        e("s_mov_b64 exec, 1")
        e(f"buffer_atomic_add v22, v13, s[48:51], 0 offen sc1 {self.o['cpol']}")
        e("s_mov_b64 exec, -1")

    def setup(self):
        e = self.e; o = self.o
        NSH = o['NSH']; XS = o['PV'] + o['XS']
        B1 = 32 * NSH + 24 * XS
        e(f"s_mov_b32 s59, {hex(f2u(math.log2(math.e) / 16.0))}")
        e("v_and_b32 v6, 1, v1")
        e("v_mov_b32 v10, 0xffff")
        e("v_lshlrev_b32 v6, 4, v6")
        e("v_lshlrev_b32 v10, v6, v10")
        e("v_bfe_u32 v11, v1, 1, 2")
        for r in range(4):
            e(f"v_cmp_eq_u32 vcc, {r}, v11")
            e("s_nop 1")
            e(f"v_cndmask_b32 v{6+r}, 0, v10, vcc")
        e("s_lshl_b32 s60, s54, 8")
        e(f"s_add_u32 s60, s60, {WS_CNT}")
        e("v_mov_b32 v21, s60")
        e("s_lshl_b32 s60, s52, 11")
        e(f"s_add_u32 s60, s60, {L_SC}")
        e("v_lshl_add_u32 v19, v20, 3, s60")
        e("v_lshl_add_u32 v27, v1, 4, s60")
        for i in range(4): e(f"v_mov_b32 v{32+i}, 0xff80ff80")
        e("ds_write_b128 v27, v[32:35]")
        e("ds_write_b128 v27, v[32:35] offset:1024")
        e("s_lshl_b32 s60, s54, 14")
        e(f"s_add_u32 s60, s60, {WS_SC}")
        e("v_lshl_add_u32 v20, v20, 3, s60")
        e("v_lshrrev_b32 v11, 4, v1")
        e("v_bfe_u32 v29, v1, 2, 2")
        e("v_lshl_add_u32 v29, v11, 3, v29")
        e("v_and_b32 v31, 3, v1")
        e("v_and_b32 v10, 1, v1")
        e("v_mul_u32_u24 v30, 896, v10")
        e("v_lshl_add_u32 v30, v11, 4, v30")
        e("s_cmp_eq_u32 s52, 0")
        e(f"s_cselect_b32 s63, 0, {XS}")
        e("s_lshl_b32 s60, s63, 5")
        e(f"s_sub_u32 s60, {B1 - 32 * NSH}, s60")
        e("v_lshl_add_u32 v23, v1, 5, s58")
        e("v_add_u32 v10, s60, v23")
        e(f"v_cmp_le_u32 vcc, {NSH}, v1")
        e("s_nop 1")
        e("v_cndmask_b32 v23, v23, v10, vcc")
        if XS:
            e("s_mul_i32 s60, s53, 3")
            e("s_add_u32 s60, s60, s52")
            e(f"s_add_u32 s60, s60, {8 * NSH - 1}")
            e("v_mov_b32 v10, s60")
            e("v_mad_u32_u24 v10, v1, 24, v10")
            e(f"v_subrev_u32 v11, {NSH}, v1")
            e("v_cmp_gt_u32 vcc, s63, v11")
            e("s_nop 1")
            e("v_cndmask_b32 v23, v23, v10, vcc")

    def mpoll(self, n, regs, addr, full, lab, m0=72, pol=''):
        e = self.e
        self.poll_begin()
        e(f"s_branch {lab}chk")
        self.label(lab + "poll")
        for p in range(n):
            e(f"s_mov_b64 exec, s[{m0+2*p}:{m0+2*p+1}]")
            e(f"buffer_load_dwordx4 v[{regs+4*p}:{regs+4*p+3}], {addr(p)} " + self.P(pol))
        e(f"s_mov_b64 exec, {full}")
        self.label(lab + "chk")
        for p in range(n):
            e(f"s_waitcnt vmcnt({n-1-p})")
            e(f"v_cmp_u_f32 s[{m0+2*p}:{m0+2*p+1}], v{regs+4*p}, v{regs+4*p+2}")
            if p == 1: e(f"s_or_b64 vcc, s[{m0}:{m0+1}], s[{m0+2}:{m0+3}]")
            elif p > 1: e(f"s_or_b64 vcc, vcc, s[{m0+2*p}:{m0+2*p+1}]")
        e(f"s_cbranch_scc0 {lab}ok")
        self.poll_again(lab + "poll")
        self.label(lab + "ok")

    def pround(self, n, regs, addr, full, m0, pol):
        e = self.e
        for p in range(n):
            e(f"v_cmp_u_f32 s[{m0+2*p}:{m0+2*p+1}], v{regs+4*p}, v{regs+4*p+2}")
        for p in range(n):
            e(f"s_mov_b64 exec, s[{m0+2*p}:{m0+2*p+1}]")
            e(f"buffer_load_dwordx4 v[{regs+4*p}:{regs+4*p+3}], {addr(p)} " + self.P(pol))
        e(f"s_mov_b64 exec, {full}")

    def spoll(self, n, regs, addr, full, lab, tree, c0, c1, m0=6, pol=''):
        e = self.e
        self.poll_begin()
        e(f"s_branch {lab}chk")
        self.label(lab + "poll")
        e("s_sub_u32 s62, s62, 1")
        e(f"s_cbranch_scc1 {lab}ok")
        self.pround(n, regs, addr, full, m0, pol)
        self.label(lab + "chk")
        tree()
        e(f"v_cmp_u_f32 vcc, v{c0}, v{c1}")
        e(f"s_cbranch_vccnz {lab}poll")
        self.label(lab + "ok")

    def apoll(self, n, regs, addr, full, lab, win):
        e = self.e
        e(f"s_mov_b32 s62, {10 * self.o['spin']}")
        e(f"s_branch {lab}chk")
        for p in range(n):
            self.label(f"{lab}i{p}")
            e("s_mov_b64 exec, vcc")
            e(f"s_waitcnt vmcnt({win - 1})")
            e(f"buffer_load_dwordx4 v[{regs+4*p}:{regs+4*p+3}], {addr(p)} sc1")
            e(f"s_mov_b64 exec, {full}")
            if p < n - 1:
                e("s_mov_b32 s63, 1")
                e(f"s_branch {lab}b{p}")
        self.label(lab + "again")
        e("s_sub_u32 s62, s62, 1")
        e(f"s_cbranch_scc1 {lab}ok")
        self.label(lab + "chk")
        e("s_mov_b32 s63, 0")
        for p in range(n):
            e(f"v_cmp_u_f32 vcc, v{regs+4*p+1}, v{regs+4*p+3}")
            if p == n - 1: e("s_cmp_lg_u32 s63, 0")
            e(f"s_cbranch_vccnz {lab}i{p}")
            self.label(f"{lab}b{p}")
        e(f"s_cbranch_scc1 {lab}again")
        self.label(lab + "ok")

    def swap13(self):
        e = self.e
        e("s_lshr_b32 s63, s60, 2")
        e("s_xor_b32 s63, s63, s60")
        e("s_and_b32 s63, s63, 0x2000")
        e("s_mul_i32 s63, s63, 5")
        e("s_xor_b32 s60, s60, s63")
        e("s_xor_b32 s60, s60, s55")

    def tail(self):
        e = self.e; o = self.o
        assert o['RA'] == 0
        ET = o['ET']; B1W = o['B1W']; B1G = o['B1G']
        e("s_mov_b32 s54, 0")
        e("v_mov_b32 v16, 0")
        e("v_mov_b32 v17, 1")
        e("s_mov_b64 exec, 1")
        if o['elig']: e(f"ds_cmpst_rtn_b32 v18, v16, v23, v16 offset:{L_CNT + 8}")
        else: e(f"ds_add_rtn_u32 v18, v16, v17 offset:{L_CNT + 8}")
        e("s_mov_b64 exec, -1")
        e("v_lshrrev_b32 v13, 5, v1")
        e("v_lshlrev_b32 v13, 10, v13")
        e("v_and_b32 v14, 7, v1")
        e("v_lshl_add_u32 v13, v14, 5, v13")
        e("v_bfe_u32 v14, v1, 4, 1")
        e("v_lshl_add_u32 v13, v14, 4, v13")
        e("s_lshl_b32 s60, s52, 11")
        e("v_add_u32 v13, s60, v13")
        e("v_lshlrev_b32 v14, 4, v1")
        e("v_lshlrev_b32 v15, 3, v1")
        e("s_lshl_b32 s60, s2, 9")
        if o['iod']: self.swap13()
        e(f"s_add_u32 s60, s60, {WS_PART}")
        e("s_waitcnt lgkmcnt(0)")
        if ET:
            e("s_cmp_lg_u32 s101, 0")
            e("s_cbranch_scc1 .Ldec")
        e("v_readfirstlane_b32 s97, v18")
        e("s_xor_b32 s97, s97, 4" if o['elig'] else "s_cmp_lg_u32 s97, 0")
        e("s_cbranch_scc1 .Lnr")
        e("s_mov_b64 exec, 1")
        e("buffer_atomic_add v26, v16, s[48:51], s100 offen offset:64 sc0 sc1")
        e("s_mov_b64 exec, -1")
        def last(n):
            if o['EG']:
                assert not o['fp']
                l = self.newlab("la")
                e("s_cmp_eq_u32 s99, 0")
                e(f"s_cbranch_scc1 {l}")
                for g in range(4): self.vgrp(g, n - 4 * g, False, 128)
                e("s_branch .Lrt")
                self.label(l)
        if not o['fp']:
            last(13)
            for g in range(4): self.vgrp(g, 13 - 4 * g, False)
            e("s_branch .Lrt")
        else: assert not ET
        if ET:
            assert B1W == B1G
            self.label(".Lte2")
            e("s_mov_b32 s101, 2")
            for g in range(4): self.vgrp(g, B1W + 12 - 4 * g, False)
            e("s_branch .Lrt")
        self.label(".Lnr")
        last(12)
        if o['fp']:
            for i in range(3): e(f"v_xor_b32 v{176+i}, {2048*(i+1)}, v13")
            e("v_lshrrev_b32 v179, 5, v1")
            e("v_lshlrev_b32 v179, 7, v179")
            e("v_and_b32 v180, 7, v1")
            e("v_lshl_add_u32 v179, v180, 4, v179")
            e("v_bfe_u32 v180, v1, 4, 1")
            e("v_lshl_add_u32 v179, v180, 3, v179")
        FG = o['fpg'] if o['fp'] else 3
        for g in range(FG): self.vgrp(g, 12 - 4 * g, False)
        if o['fp']:
            e(f"ds_read_b32 v18, v16 offset:{L_CNT}")
            for i in range(3):
                for j in range(4):
                    e(f"ds_read_b128 v[{128+16*i+4*j}:{131+16*i+4*j}], v{176+i} offset:{L_RED + j*256}")
            e("s_waitcnt lgkmcnt(12)")
            e("v_readfirstlane_b32 s63, v18")
            e("s_cmp_lg_u32 s63, 3")
            e("s_cbranch_scc1 .Lslow")
            pk = lambda d, a, b: e(f"v_pk_add_f32 v[{d}:{d+1}], v[{a}:{a+1}], v[{b}:{b+1}]")
            for i in range(3):
                e(f"s_waitcnt lgkmcnt({8 - 4 * i})")
                for r in range(0, 16, 2): pk(48 + r, 48 + r, 128 + 16 * i + r)
            for g in range(FG, 4): self.vgrp(g, 12 - 4 * g, False)
            self.plog()
            self.ts(3)
            e("s_mov_b32 s64, 0x00ff00ff")
            e("s_mov_b32 s65, 0x00ff00ff")
            e("s_nop 3")
            for jj in (0, 8):
                for i in range(4): e(f"v_permlane32_swap_b32 v{48+jj+i}, v{52+jj+i}")
            for jj in (0, 8):
                for i in range(4): e(f"v_add_f32_dpp v{48+jj+i}, v{52+jj+i}, v{48+jj+i} row_ror:8 row_mask:0xf bank_mask:0xf")
            e("s_mov_b64 exec, s[64:65]")
            for jj in (0, 8):
                e(f"v_cvt_pk_bf16_f32 v{48+jj}, v{48+jj}, v{49+jj}")
                e(f"v_cvt_pk_bf16_f32 v{49+jj}, v{50+jj}, v{51+jj}")
                e(f"v_min_u32 v{48+jj}, -2, v{48+jj}")
                e(f"v_min_u32 v{49+jj}, -2, v{49+jj}")
                e(f"buffer_store_dwordx2 v[{48+jj}:{49+jj}], v179, s[36:39], s60 offen offset:{jj*32} " + self.P("paS"))
            e("s_mov_b64 exec, -1")
            self.ts(4)
            e("s_branch .Lnotlast")
            self.label(".Lslow")
        for g in range(FG, 4): self.vgrp(g, 12 - 4 * g, False)
        self.label(".Lrt")
        self.plog()
        self.ts(3)
        e("s_mov_b32 exec_lo, 0x00ff00ff")
        e("s_mov_b32 exec_hi, 0xff00ff00")
        e("s_nop 3")
        for j in range(4):
            e(f"ds_write_b128 v13, v[{48+4*j}:{51+4*j}] offset:{L_RED + j*256}")
        e("s_mov_b64 exec, 1")
        e(f"ds_add_rtn_u32 v18, v16, v17 offset:{L_CNT}")
        e("s_mov_b64 exec, -1")
        for p in range(8):
            e(f"ds_read_b128 v[{64+4*p}:{67+4*p}], v14 offset:{L_RED + p*1024}")
        if o['ppk']:
            pk = lambda d, a, b: e(f"v_pk_add_f32 v[{d}:{d+1}], v[{a}:{a+1}], v[{b}:{b+1}]")
            e("s_waitcnt lgkmcnt(6)")
            e("v_readfirstlane_b32 s63, v18")
            for i in (0, 2): pk(64+i, 64+i, 68+i)
            e("s_cmp_lg_u32 s63, 3")
            e("s_cbranch_scc1 .Lnotlast")
            e("s_waitcnt lgkmcnt(4)")
            for i in (0, 2): pk(72+i, 72+i, 76+i)
            e("s_waitcnt lgkmcnt(2)")
            for i in (0, 2): pk(80+i, 80+i, 84+i)
            for i in (0, 2): pk(64+i, 64+i, 72+i)
            e("s_waitcnt lgkmcnt(0)")
            for i in (0, 2): pk(88+i, 88+i, 92+i)
            for i in (0, 2): pk(64+i, 64+i, 80+i)
            for i in (0, 2): pk(64+i, 64+i, 88+i)
        else:
            e("s_waitcnt lgkmcnt(8)" if not o['ts'] else "s_waitcnt lgkmcnt(0)")
            e("v_readfirstlane_b32 s63, v18")
            e("s_cmp_lg_u32 s63, 3")
            e("s_cbranch_scc1 .Lnotlast")
            for p in range(0, 8, 2):
                e(f"s_waitcnt lgkmcnt({6-p})")
                for i in range(4): e(f"v_add_f32 v{64+4*p+i}, v{64+4*p+i}, v{68+4*p+i}")
                if p == 2:
                    for i in range(4): e(f"v_add_f32 v{64+i}, v{64+i}, v{72+i}")
            for i in range(4): e(f"v_add_f32 v{80+i}, v{80+i}, v{88+i}")
            for i in range(4): e(f"v_add_f32 v{64+i}, v{64+i}, v{80+i}")
        e("v_cvt_pk_bf16_f32 v64, v64, v65")
        e("v_cvt_pk_bf16_f32 v65, v66, v67")
        e("v_min_u32 v64, -2, v64")
        e("v_min_u32 v65, -2, v65")
        e("buffer_store_dwordx2 v[64:65], v15, s[36:39], s60 offen " + self.P("paS"))
        self.ts(4)
        self.label(".Lnotlast")
        e("s_cmp_lg_u32 s97, 0")
        e("s_cbranch_scc1 .Lrolewait" if not o['dry'] else "s_cbranch_scc1 .Ldry")
        if ET:
            e("s_cmp_eq_u32 s101, 0")
            e("s_cbranch_scc1 .Llate")
            e("s_cmp_ge_u32 s69, 112")
            e("s_cbranch_scc1 .Lrdone")
            e(f"s_mov_b32 s98, {L_U}")
            e("s_cmp_lt_u32 s69, 56")
            e("s_cbranch_scc1 .Lldg0")
            e(f"s_mov_b32 s98, {L_W + 65536}")
            e("s_branch .Lldw0")
            self.label(".Llate")
        e("s_waitcnt vmcnt(0)")
        self.label(".Ldec")
        self.ts(10)
        e("v_readfirstlane_b32 s69, v26")
        if o['sg']:
            assert o['c2'] and o['elig'] and o['rord'] == 'GW'
            e("s_add_u32 s69, s69, 56")
        e("s_cmp_eq_u32 s100, 64")
        e("s_cbranch_scc1 .Lrgot")
        if o['sg']: e("s_sub_u32 s69, s69, 28")
        Q = 28 if o['c2'] else 7
        e("s_mul_i32 s56, s58, 7" if not o['c2'] else "s_mul_i32 s56, s100, 7")
        e(f"s_cmp_lt_u32 s69, {Q}")
        if o['rord'] == 'GW': e(f"s_cselect_b32 s57, 0, {56 - Q}")
        else:
            e(f"s_cselect_b32 s57, {56 + Q}, 0")
            e(f"s_sub_u32 s57, s57, {Q}")
        e("s_add_u32 s56, s56, s57")
        e(f"s_cmp_lt_u32 s69, {2 * Q}")
        e("s_cselect_b32 s56, s56, 255")
        e("s_add_u32 s69, s69, s56")
        self.label(".Lrgot")
        e("s_mov_b64 exec, 1")
        e("v_mov_b32 v18, s69")
        e(f"ds_write_b32 v16, v18 offset:{L_CNT + 4}")
        e("s_mov_b64 exec, -1")
        e(f"s_mov_b32 s96, {L_W}")
        e("s_cmp_ge_u32 s69, 112")
        e("s_cbranch_scc1 .Lrnone")
        e("s_cmp_lt_u32 s69, 56")
        e("s_cbranch_scc1 .Lldg")
        e("s_sub_u32 s56, s69, 56")
        e("s_mul_i32 s99, s56, 37")
        e("s_lshr_b32 s99, s99, 8")
        e("s_mul_i32 s57, s99, 7")
        e("s_sub_u32 s57, s56, s57")
        e(f"s_mul_i32 s99, s99, {512*896}")
        e("s_lshl_b32 s57, s57, 7")
        e("s_add_u32 s99, s99, s57")
        e("v_lshrrev_b32 v27, 3, v1")
        e("v_mul_u32_u24 v27, 896, v27")
        e("v_and_b32 v18, 7, v1")
        e("v_lshl_add_u32 v27, v18, 4, v27")
        if 'W' in o['fakew']:
            e("v_mov_b32 v27, v14")
            e("s_lshl_b32 s99, s56, 16")
        e(f"s_mov_b32 s98, {L_W + 65536}")
        e("s_cmp_eq_u32 s101, 1")
        e(f"s_cselect_b32 s98, {L_W + 1024 * B1W}, s98")
        self.label(".Lldw0")
        self.srd(40, 12, 3670016)
        self.label(".Lldw")
        e("s_mov_b32 m0, s96")
        e("s_add_u32 s96, s96, 1024")
        e(f"buffer_load_dwordx4 v27, s[40:43], s99 offen {o['wpol']} lds")
        e(f"s_add_u32 s99, s99, {8*896 if 'W' not in o['fakew'] else 1024}")
        e("s_cmp_lt_u32 s96, s98")
        e("s_cbranch_scc1 .Lldw")
        if ET:
            e("s_cmp_eq_u32 s101, 1")
            e("s_cbranch_scc1 .Lte2")
        e("s_branch .Lrdone")
        self.label(".Lrnone")
        e("s_cmp_eq_u32 s101, 1")
        e("s_cbranch_scc1 .Lnr")
        e("s_branch .Lrdone")
        self.label(".Lldg")
        e("s_lshl_b32 s99, s69, 6")
        e("v_lshrrev_b32 v27, 2, v1")
        e("v_mul_u32_u24 v27, 3584, v27")
        e("v_lshl_add_u32 v27, v31, 4, v27")
        if 'G' in o['fakew']:
            e("v_mov_b32 v27, v14")
            e("s_mul_i32 s99, s69, 28672")
        e(f"s_mov_b32 s98, {L_U}")
        e("s_cmp_eq_u32 s101, 1")
        e(f"s_cselect_b32 s98, {L_W + 512 * B1G}, s98")
        self.label(".Lldg0")
        self.srd(40, 16, 1605632)
        self.srd(44, 18, 1605632)
        self.label(".Lldg1")
        e("s_mov_b32 m0, s96")
        e(f"s_add_u32 s57, s96, {L_U - L_W}")
        e(f"buffer_load_dwordx4 v27, s[40:43], s99 offen {o['wpol']} lds")
        e("s_mov_b32 m0, s57")
        e("s_add_u32 s96, s96, 1024")
        e(f"buffer_load_dwordx4 v27, s[44:47], s99 offen {o['wpol']} lds")
        e(f"s_add_u32 s99, s99, {16*3584 if 'G' not in o['fakew'] else 1024}")
        e("s_cmp_lt_u32 s96, s98")
        e("s_cbranch_scc1 .Lldg1")
        if ET:
            e("s_cmp_eq_u32 s101, 1")
            e("s_cbranch_scc1 .Lte2")
        if not o['dq']:
            self.srd(40, 20, 1605632)
            e("s_mul_i32 s99, s69, 28672")
            e(f"s_mov_b32 s96, {L_D}")
            self.label(".Lldg2")
            e("s_mov_b32 m0, s96")
            e("s_add_u32 s96, s96, 1024")
            e(f"buffer_load_dwordx4 v14, s[40:43], s99 offen {o['dpol']} lds")
            e("s_add_u32 s99, s99, 1024")
            e(f"s_cmp_lt_u32 s96, {L_D + 28672}")
            e("s_cbranch_scc1 .Lldg2")
        self.label(".Lrdone")
        e("s_mov_b32 s54, 1")
        e("s_waitcnt lgkmcnt(0)")
        if o['dry']:
            e("s_branch .Lrolewait")
            self.label(".Ldry")
            e("s_cmp_gt_u32 s63, 1")
            e("s_cbranch_scc1 .Lrolewait")
            for r in (0, 24, 26, 48, 50, 64): e(f"s_mov_b64 s[{r}:{r+1}], 0")
            for r in (56, 57, 59, 61, 63, 96, 97, 98, 99, 100, 101): e(f"s_mov_b32 s{r}, 0")
            e("s_waitcnt lgkmcnt(0)")
            e("s_mov_b64 exec, 0")
            e("s_branch .Lwok")
            self.label(".Ldryend")
            e("s_mov_b64 exec, -1")
            if o['ts']:
                e("s_waitcnt lgkmcnt(0)")
                for k in (5, 11, 12): e(f"s_mov_b32 s{70+2*k}, 0")
        self.label(".Lrolewait")
        e("s_mov_b64 s[0:1], -1")
        e("s_barrier")
        e(f"ds_read_b32 v18, v16 offset:{L_CNT + 4}")
        e("s_waitcnt lgkmcnt(0)")
        e("v_readfirstlane_b32 s69, v18")
        e("s_mov_b32 s68, 3")
        e("s_cmp_ge_u32 s69, 112")
        e("s_cbranch_scc1 .Lfin")
        e("s_mov_b32 s68, 1")
        e("s_cmp_lt_u32 s69, 56")
        e("s_cbranch_scc1 .LstageG")
        e("s_mov_b32 s68, 0")
        e("s_sub_u32 s69, s69, 56")
        self.stageW()
        self.stageG()
        self.label(".Lfin")
        if o['ts']:
            self.ts(8)
            e("s_waitcnt lgkmcnt(0)")
            if o['dbgts']:
                e("s_cmp_eq_u32 s94, 0")
                e("s_cbranch_scc1 .Lnodbg")
                e("s_mov_b64 s[48:49], s[84:85]")
                e("s_mov_b32 s50, 256")
                e("s_mov_b32 s51, 0x20000")
                e("s_not_b32 s60, s70")
                e("v_mov_b32 v13, 0")
                e("s_mov_b64 exec, 1")
                for i, r in enumerate(("s60", "s82", "s76", "s88", "s80", "s92", "s94", "s86")):
                    e(f"v_mov_b32 v14, {r}")
                    e(f"buffer_atomic_umax v14, v13, s[48:51], 0 offen offset:{32+4*i} sc1")
                e("s_mov_b64 exec, -1")
                self.label(".Lnodbg")
            e("s_lshl_b32 s60, s2, 2")
            e("s_add_u32 s60, s60, s52")
            e("s_lshl_b32 s60, s60, 6")
            e(f"s_add_u32 s60, s60, {WS_TS}")
            e("v_mov_b32 v13, 0")
            e("s_getreg_b32 s63, hwreg(HW_REG_XCC_ID)")
            for i in range(13):
                e(f"v_mov_b32 v{64+i}, s{70+2*i}")
            e("v_mov_b32 v77, s63")
            e("v_mov_b32 v78, s3")
            e("v_mov_b32 v79, s68")
            e("s_mov_b64 exec, 1")
            for i in range(4):
                e(f"buffer_store_dwordx4 v[{64+4*i}:{67+4*i}], v13, s[36:39], s60 offen offset:{16*i}")
            if o['prof']:
                e("s_mov_b64 exec, -1")
                e("s_lshl_b32 s60, s2, 2")
                e("s_add_u32 s60, s60, s52")
                e("s_lshl_b32 s60, s60, 8")
                e(f"s_add_u32 s60, s60, {WS_PROF}")
                e("v_lshlrev_b32 v13, 2, v1")
                e("buffer_store_dword v0, v13, s[36:39], s60 offen")
        self.label(".Lend")
        e("s_endpgm")

    def bar(self):
        e = self.e
        if self.o['dry']:
            l = self.newlab("nb")
            e(f"s_cbranch_execz {l}")
            e("s_barrier")
            self.label(l)
        else: e("s_barrier")

    def stageW(self):
        e = self.e; o = self.o
        NC = o['NC']; dry = o['dry']
        e("s_mul_i32 s60, s69, 37")
        e("s_lshr_b32 s60, s60, 8")
        e("s_lshl_b32 s60, s60, 1")
        e("s_lshr_b32 s63, s52, 1")
        e("s_add_u32 s60, s60, s63")
        e("s_lshl_b32 s60, s60, 12")
        if o['iod']: self.swap13()
        e("s_and_b32 s63, s52, 1")
        e("s_lshl_b32 s63, s63, 8")
        e("s_add_u32 s60, s60, s63")
        e(f"s_add_u32 s60, s60, {WS_PART}")
        e("v_and_b32 v13, 1, v1")
        e("v_lshlrev_b32 v13, 16, v13")
        e("v_bfe_u32 v14, v1, 1, 3")
        e("v_lshl_add_u32 v13, v14, 9, v13")
        e("v_lshrrev_b32 v14, 4, v1")
        e("v_lshl_add_u32 v13, v14, 4, v13")
        def lds_():
            for t in range(4):
                e(f"buffer_load_dwordx4 v[{64+4*t}:{67+4*t}], v13, s[36:39], s60 offen offset:{t*64} " + self.P("paL"))
        lds_()
        e("v_lshlrev_b32 v14, 7, v29")
        e("v_lshl_add_u32 v14, v31, 3, v14")
        e("s_lshl_b32 s63, s52, 14")
        e("v_add_u32 v14, s63, v14")
        e("v_lshrrev_b32 v15, 5, v1")
        e("v_lshlrev_b32 v15, 8, v15")
        e("v_and_b32 v16, 31, v1")
        e("v_lshl_add_u32 v15, v16, 2, v15")
        e("s_lshl_b32 s63, s52, 9")
        e(f"s_add_u32 s63, s63, {L_R2}")
        e("v_add_u32 v15, s63, v15")
        e("v_lshlrev_b32 v16, 3, v1")
        e("s_lshl_b32 s63, s69, 9")
        e(f"s_add_u32 s63, s63, {WS_Y}")
        if o['iod']:
            e("s_mul_i32 s96, s69, 147")
            e("s_lshr_b32 s96, s96, 11")
            e(f"s_mul_i32 s96, s96, {16384 - 7168}")
            e("s_add_u32 s63, s63, s96")
            e("s_and_b32 s96, s52, 1")
            e("s_lshl_b32 s96, s96, 13")
        else: e("s_mul_i32 s96, s52, 28672")
        e("s_add_u32 s63, s63, s96")
        e(f"s_add_u32 s96, s63, {4*28672}")
        e(f"s_cmp_ge_u32 s52, {NC}")
        e("s_cselect_b32 s59, 1, 0")
        e("s_waitcnt vmcnt(4)" if 'W' not in o['fresh'] else "s_waitcnt vmcnt(0)")
        if 'W' in o['fresh']:
            e("v_max3_u32 v98, v64, v66, v68")
            e("v_max3_u32 v99, v70, v72, v74")
            e("v_max3_u32 v98, v98, v76, v78")
            e("v_max_u32 v98, v98, v99")
            e("v_cmp_eq_u32 s[64:65], -1, v98")
            e("s_or_b32 s64, s64, 1")
        e("s_barrier")
        self.ts(9)
        if 'W' in o['fresh']:
            e("s_mov_b64 exec, s[64:65]")
            lds_()
            e("s_mov_b64 exec, -1")
        for t in range(4):
            for ct in range(4):
                r = 128 + 16 * t + 4 * ct
                e(f"ds_read_b64_tr_b16 v[{r}:{r+1}], v14 offset:{L_W + t*4096 + ct*32}")
                e(f"ds_read_b64_tr_b16 v[{r+2}:{r+3}], v14 offset:{L_W + t*4096 + ct*32 + 512}")
            e("s_waitcnt lgkmcnt(4)" if not o["ts"] else "s_waitcnt lgkmcnt(0)")
        self.poll_begin()
        e("s_waitcnt lgkmcnt(0)")
        if 'W' in o['fresh']: e("s_mov_b64 exec, s[64:65]")
        e("s_branch .Lwchk")
        self.label(".Lwpoll")
        lds_()
        self.label(".Lwchk")
        e("s_waitcnt vmcnt(2)")
        e("v_max3_u32 v98, v64, v66, v68")
        e("s_waitcnt vmcnt(0)")
        e("v_max3_u32 v99, v70, v72, v74")
        e("v_max3_u32 v98, v98, v76, v78")
        e("v_max_u32 v98, v98, v99")
        e("v_cmp_eq_u32 vcc, -1, v98")
        e("s_and_b64 exec, exec, vcc")
        e("s_cbranch_scc0 .Lwok")
        self.poll_again(".Lwpoll")
        self.label(".Lwok")
        e("s_mov_b64 exec, s[0:1]")
        self.ts(5)
        for t in range(4):
            for ct in range(4):
                cin = "0" if t == 0 else f"v[{80+4*ct}:{83+4*ct}]"
                r = 128 + 16 * t + 4 * ct
                e(f"v_mfma_f32_16x16x32_bf16 v[{80+4*ct}:{83+4*ct}], v[{64+4*t}:{67+4*t}], v[{r}:{r+3}], {cin}")
        e("s_cmp_lg_u32 s59, 0")
        e("s_nop 3")
        for ct in range(4):
            e(f"v_pk_add_f32 v[{80+4*ct}:{81+4*ct}], v[{80+4*ct}:{81+4*ct}], v[{82+4*ct}:{83+4*ct}]")
        for ct in range(4):
            e(f"v_permlane32_swap_b32 v{80+4*ct}, v{81+4*ct}")
        for ct in range(4):
            e(f"v_add_f32 v{80+4*ct}, v{80+4*ct}, v{81+4*ct}")
        e("v_permlane16_swap_b32 v80, v84")
        e("s_nop 0")
        e("v_permlane16_swap_b32 v88, v92")
        e("v_add_f32 v80, v80, v84")
        e("s_nop 0")
        e("v_add_f32 v88, v88, v92")
        e("ds_write2_b32 v15, v80, v88 offset0:0 offset1:32")
        e("s_waitcnt lgkmcnt(0)")
        self.bar()
        if NC < 4: e("s_cbranch_scc1 .Lfin")
        for w in range(4):
            e(f"ds_read_b64 v[{64+2*w}:{65+2*w}], v16 offset:{L_R2 + 512*w}")
        e("s_waitcnt lgkmcnt(2)")
        e("v_pk_add_f32 v[64:65], v[64:65], v[66:67]")
        e("s_waitcnt lgkmcnt(0)")
        e("v_pk_add_f32 v[68:69], v[68:69], v[70:71]")
        e("v_pk_add_f32 v[64:65], v[64:65], v[68:69]")
        e("buffer_store_dwordx2 v[64:65], v16, s[36:39], s63 offen " + self.P("yS"))
        if NC == 8:
            e("buffer_store_dwordx2 v[64:65], v16, s[36:39], s96 offen " + self.P("yS"))
        if dry: e("s_cbranch_execz .Lgok")
        e("s_branch .Lfin")

    def stageG(self):
        e = self.e; o = self.o; NC = o['NC']; dry = o['dry']; gts = o['gts']
        WS_P2 = WS_Y + NC * 28672
        iod = o['iod']
        self.cyc = gts
        if gts == 2: gts = False
        self.label(".LstageG")
        if o['dq']:
            self.srd(40, 20, 1605632)
            e("s_lshl_b32 s60, s69, 2")
            e("s_add_u32 s60, s60, s52")
            e("s_mul_i32 s99, s60, 7168")
            e("s_mul_i32 s96, s52, 7168")
            e(f"s_add_u32 s96, s96, {L_D}")
            for i in range(7):
                e("s_mov_b32 m0, s96")
                e("s_add_u32 s96, s96, 1024")
                e(f"buffer_load_dwordx4 v14, s[40:43], s99 offen {o['dpol']} lds")
                e("s_add_u32 s99, s99, 1024")
        e("s_and_b32 s60, s52, 1")
        e("s_mul_i32 s60, s60, 56")
        e("v_add_u32 v14, s60, v1")
        e("v_lshrrev_b32 v13, 4, v14")
        e("v_lshlrev_b32 v13, 9, v13")
        e("v_and_b32 v15, 15, v14")
        e("v_lshl_add_u32 v13, v15, 4, v13")
        e("s_lshr_b32 s63, s52, 1")
        e("s_lshl_b32 s60, s63, 8")
        e(f"s_add_u32 s60, s60, {WS_Y}")
        e("v_add_u32 v13, s60, v13")
        e("s_mul_i32 s63, s63, 896")
        e("v_lshl_add_u32 v16, v14, 3, s63")
        self.srd(40, 4, 1792)
        e("s_mov_b32 s64, -1")
        e("s_mov_b32 s65, 0x00ffffff")
        if NC == 8: e("s_mul_i32 s60, s58, 28672")
        if iod:
            e("s_lshr_b32 s60, s58, 2")
            e("s_lshl_b32 s60, s60, 13")
            e("s_xor_b32 s60, s60, s55")
        for p in range(8):
            if iod: e(f"s_add_u32 s{28+p}, s60, {3584*(p&1) + 16384*(p>>1)}")
            elif NC == 8: e(f"s_add_u32 s{28+p}, s60, {3584*p}")
            elif NC == 2:
                e(f"s_mov_b32 s{28+p}, {3584*p}")
                e(f"s_cmp_eq_u32 s58, {p}")
                e(f"s_cselect_b32 s{28+p}, {3584*p + 28672}, s{28+p}")
            else: e(f"s_mov_b32 s{28+p}, {3584*p}")
        ya = lambda p: f"v13, s[36:39], s{28+p} offen"
        e("v_mov_b32 v96, 0")
        e("v_mov_b32 v97, 0")
        for t in range(16): e(f"v_mov_b32 v{33+2*t}, -1")
        e("s_mov_b64 exec, s[64:65]")
        e("buffer_load_dwordx2 v[104:105], v16, s[40:43], 0 offen")
        def yl():
            for p in range(8):
                e(f"buffer_load_dwordx4 v[{32+4*p}:{35+4*p}], {ya(p)} " + self.P("yL"))
        if 'G' not in o['fresh']: yl()
        e("s_mov_b64 exec, -1")
        e("s_lshl_b32 s60, s52, 3")
        e("v_mov_b32 v17, s60")
        e("s_and_b32 s60, s60, 16")
        e("v_mov_b32 v18, s60")
        e("v_bfe_u32 v14, v1, 3, 1")
        e("v_lshlrev_b32 v14, 4, v14")
        e("v_and_b32 v15, 7, v1")
        e("v_lshl_add_u32 v28, v15, 1, v14")
        e("s_lshl_b32 s60, s52, 5")
        e("v_add_u32 v28, s60, v28")
        e("v_lshrrev_b32 v14, 4, v1")
        e("v_and_b32 v19, 1, v1")
        e("v_lshlrev_b32 v19, 4, v19")
        e("v_lshl_add_u32 v19, v14, 5, v19")
        e("v_and_b32 v20, 15, v1")
        e("v_lshlrev_b32 v20, 3, v20")
        if iod:
            e("s_and_b32 s60, s52, 1")
            e(f"s_mul_i32 s60, s60, {7*16384}")
            e("s_lshr_b32 s63, s52, 1")
            e("s_lshl_b32 s63, s63, 13")
            e("s_xor_b32 s63, s63, s55")
            e("s_add_u32 s60, s60, s63")
        else: e(f"s_mul_i32 s60, s52, {7*7168}")
        e("s_lshl_b32 s63, s69, 7")
        e("s_add_u32 s60, s60, s63")
        PS = [96, 97, 98, 99, 100, 101, 57]
        for j in range(7): e(f"s_add_u32 s{PS[j]}, s60, {WS_P2 + 7168*j if not iod else WS_P2I + 16384*j}")
        e("v_and_b32 v26, 1, v14")
        e("v_mul_u32_u24 v26, 896, v26")
        e("v_lshl_add_u32 v26, v15, 2, v26")
        e("v_and_b32 v14, 2, v14")
        e("v_add_u32 v26, v26, v14")
        e("s_min_u32 s60, s69, 27" if not iod else "s_lshr_b32 s60, s69, 1")
        e("s_lshl_b32 s60, s60, 5")
        e("v_add_u32 v26, s60, v26")
        e("v_lshlrev_b32 v27, 4, v1")
        if iod:
            e("s_lshl_b32 s56, s60, 9")
            e("s_cmp_ge_u32 s69, 28")
            e(f"s_cselect_b32 s61, {14*16384 - 0x2000}, 0")
            e("s_sub_u32 s56, s56, s61")
            e(f"s_add_u32 s56, s56, {WS_P2I}")
            e("s_xor_b32 s56, s56, s55")
            e("s_and_b32 s59, s69, 1")
            e("s_or_b32 s59, s59, s52")
        else:
            e("s_mul_i32 s56, s69, 7168")
            e(f"s_add_u32 s56, s56, {WS_P2}")
            e("s_cmp_ge_u32 s69, 28")
            e("s_cselect_b32 s59, 1, s52")
        e("s_add_u32 s61, s56, 4096")
        self.srd(44, 22, 1792)
        e("s_mov_b32 s53, 0x3f803f80")
        e("s_mov_b32 s24, 0")
        e("s_mov_b32 s25, 0x80000000")
        e("s_mov_b32 s26, -1")
        e("s_mov_b32 s27, 0xffff")
        e("s_mov_b64 s[48:49], 0xffff")
        e("s_mov_b32 s50, 0x00ff00ff")
        e("s_mov_b32 s51, 0x00ff00ff")
        k1 = -2.0 * math.sqrt(2.0 / math.pi) * math.log2(math.e)
        e(f"v_mov_b32 v21, {hex(f2u(k1))}")
        e("v_and_b32 v14, 8, v1")
        e("v_cmp_ne_u32 s[66:67], 0, v14")
        e("v_lshlrev_b32 v14, 6, v29")
        e("v_and_b32 v15, 1, v1")
        e("v_lshl_add_u32 v14, v15, 3, v14")
        e("v_bfe_u32 v15, v1, 1, 1")
        e(f"v_mul_u32_u24 v15, {L_U - L_W}, v15")
        e("v_add_u32 v14, v14, v15")
        e("s_lshl_b32 s60, s52, 4")
        e("v_add_u32 v14, s60, v14")
        e("v_mul_u32_u24 v15, 896, v29")
        e("v_lshl_add_u32 v15, v31, 3, v15")
        e("s_mul_i32 s60, s52, 224")
        e(f"s_add_u32 s60, s60, {L_D}")
        e("v_add_u32 v15, s60, v15")
        if o['dpk']:
            assert iod
            e("v_lshrrev_b32 v98, 4, v1")
            e("v_lshl_add_u32 v20, v98, 14, v20")
            e("v_bfe_u32 v98, v1, 2, 2")
            e("v_mov_b32 v99, 128")
            for G in range(4):
                e(f"v_cmp_eq_u32 vcc, {G}, v98")
                e(f"v_mov_b32 v{64+G}, 0")
                e("s_nop 0")
                e(f"v_cndmask_b32 v{244+G}, v99, v19, vcc")
            e(f"ds_write_b128 v99, v[64:67] offset:{L_ACT}")
            e("s_waitcnt lgkmcnt(0)")
        if o['fold']:
            e(f"v_mov_b32 v22, {hex(f2u(1.0/448))}")
            e(f"v_mov_b32 v23, {hex(f2u(1.0/448))}")
            e("v_and_b32 v18, 8, v1")
            e("v_lshlrev_b32 v18, 1, v18")
            e("v_min_u32 v30, 2, v31")
            e("v_mul_u32_u24 v30, 896, v30")
            e("v_lshrrev_b32 v98, 4, v1")
            e("v_lshl_add_u32 v30, v98, 4, v30")
            e("v_and_b32 v98, 2, v1")
            e("v_lshl_add_u32 v30, v98, 5, v30")
            for i in range(4): e(f"v_mov_b32 v{64+i}, s53")
            e("s_mov_b64 exec, s[64:65]")
            e(f"ds_write_b128 v27, v[64:67] offset:{L_XN + 1792 + 64}")
            e("s_mov_b64 exec, -1")
            e("s_waitcnt lgkmcnt(0)")
        if o['gfl']:
            e("v_mov_b32 v98, 0")
            e("v_mov_b32 v99, 1")
            e("s_waitcnt vmcnt(0)")
            e("s_cmp_eq_u32 s54, 0")
            e("s_cbranch_scc1 .Lgnl")
            e(f"ds_write_b32 v98, v99 offset:{L_CNT + 12}")
            self.label(".Lgnl")
            e("s_mov_b64 exec, s[64:65]")
            yl()
            self.poll_begin()
            e("s_branch .Lgpc")
            self.label(".Lgpre")
            e("s_waitcnt vmcnt(0)")
            self.pround(8, 32, ya, "s[64:65]", 6, "yL")
            e("s_sub_u32 s62, s62, 1")
            e("s_cbranch_scc1 .Lgtr")
            self.label(".Lgpc")
            e(f"ds_read_b32 v99, v98 offset:{L_CNT + 12}")
            e("s_waitcnt lgkmcnt(0)")
            e("v_cmp_eq_u32 vcc, 0, v99")
            e("s_cbranch_vccnz .Lgpre")
            self.label(".Lgtr")
            e("s_mov_b64 exec, -1")
            self.ts(9)
        else:
            e("s_waitcnt vmcnt(9)" if 'G' not in o['fresh'] else "s_waitcnt vmcnt(1)")
            e("s_barrier")
            self.ts(9)
            if 'G' in o['fresh']:
                e("s_mov_b64 exec, s[64:65]")
                yl()
                e("s_mov_b64 exec, -1")
        for ks in range(14):
            e(f"ds_read_b64_tr_b16 v[{160+4*ks}:{161+4*ks}], v14 offset:{L_W + ks*2048}")
            e(f"ds_read_b64_tr_b16 v[{162+4*ks}:{163+4*ks}], v14 offset:{L_W + ks*2048 + 256}")
            if ks in (6, 10):
                e("s_waitcnt lgkmcnt(6)")
        e("s_waitcnt lgkmcnt(0)")
        for j in range(7):
            e(f"ds_read_b64_tr_b16 v[{216+4*j}:{217+4*j}], v15 offset:{j*32}")
            e(f"ds_read_b64_tr_b16 v[{218+4*j}:{219+4*j}], v15 offset:{j*32 + 3584}")
        e("s_waitcnt vmcnt(8)")
        e("v_lshlrev_b32 v100, 16, v104")
        e("v_and_b32 v101, 0xffff0000, v104")
        e("v_lshlrev_b32 v102, 16, v105")
        e("v_and_b32 v103, 0xffff0000, v105")
        e("s_mov_b64 exec, s[64:65]")
        pk = lambda d, a, b: e(f"v_pk_add_f32 v[{d}:{d+1}], v[{a}:{a+1}], v[{b}:{b+1}]")
        if o['sp']:
            assert o['fold']
            def gtree():
                e("s_waitcnt vmcnt(7)")
                for i in (0, 2): pk(64+i, 32+i, 100+i)
                e("s_waitcnt vmcnt(5)")
                for i in (0, 2): pk(68+i, 36+i, 40+i)
                e("s_waitcnt vmcnt(3)")
                for i in (0, 2): pk(72+i, 44+i, 48+i)
                for i in (0, 2): pk(64+i, 64+i, 68+i)
                e("s_waitcnt vmcnt(1)")
                for i in (0, 2): pk(76+i, 52+i, 56+i)
                for i in (0, 2): pk(64+i, 64+i, 72+i)
                e("s_waitcnt vmcnt(0)")
                for i in (0, 2): pk(76+i, 76+i, 60+i)
                for i in (0, 2): pk(108+i, 64+i, 76+i)
            self.spoll(8, 32, ya, "s[64:65]", ".Lg", gtree, 108, 110, pol="yL")
            self.ts(5)
        else:
            if o['gw']: self.apoll(8, 32, ya, "s[64:65]", ".Lg", o['gw'])
            else: self.mpoll(8, 32, ya, "s[64:65]", ".Lg", m0=6, pol="yL")
            self.ts(5)
            for p in range(0, 8, 2):
                for i in (0, 2): pk(64+4*p+i, 32+4*p+i, 36+4*p+i)
            for i in (0, 2):
                pk(64+i, 64+i, 72+i); pk(80+i, 80+i, 88+i)
        if o['fold']:
            DP = ("quad_perm:[1,0,3,2] row_mask:0xf bank_mask:0xf", "quad_perm:[2,3,0,1] row_mask:0xf bank_mask:0xf",
                  "row_half_mirror row_mask:0xf bank_mask:0xf", "row_mirror row_mask:0xf bank_mask:0xf",
                  "row_bcast:15 row_mask:0xa bank_mask:0xf", "row_bcast:31 row_mask:0xc bank_mask:0xf")
            def dp(n, fill):
                e(f"v_add_f32_dpp v96, v96, v96 {DP[n]}")
                e(f"v_add_f32_dpp v97, v97, v97 {DP[n]}")
                e(fill)
            if not o['sp']:
                for i in (0, 2): pk(64+i, 64+i, 100+i)
                for i in (0, 2): pk(108+i, 64+i, 80+i)
            e("v_cvt_pk_bf16_f32 v112, v108, v109")
            e("v_cvt_pk_bf16_f32 v113, v110, v111")
            e(f"ds_write_b64 v16, v[112:113] offset:{L_XN}")
            e("v_dot2_f32_bf16 v96, v112, s53, 0")
            e("v_dot2_f32_bf16 v97, v112, v112, 0")
            e("v_dot2_f32_bf16 v96, v113, s53, v96")
            e("v_dot2_f32_bf16 v97, v113, v113, v97")
            e("s_mov_b64 exec, s[0:1]")
            e("s_nop 1")
            ND1 = o['nd1']
            for n in range(ND1): dp(n, "s_nop 0" if n < ND1 - 1 else "s_waitcnt lgkmcnt(0)")
            self.bar()
            if gts: self.ts(1)
            def ar(ks): e(f"ds_read_b128 v[{104+4*ks}:{107+4*ks}], v30 offset:{L_XN + ks*64}")
            def mf(ks):
                cin = "0" if ks == 0 else "v[64:67]"
                e(f"v_mfma_f32_16x16x32_bf16 v[64:67], v[{104+4*ks}:{107+4*ks}], v[{160+4*ks}:{163+4*ks}], {cin}")
            I1, I2 = o['il']
            KB = o['kb2']
            KS = o['ks2']
            q = []
            def rd(x):
                if x == 'h': e(f"ds_read_u16 v25, v26 offset:{L_XN}")
                elif x == 'st': e(f"ds_read_b128 v[76:79], v18 offset:{L_ST}")
                elif x == 'sw': e(f"ds_write_b64 v17, v[96:97] offset:{L_ST}")
                else: ar(x)
                q.append(x)
            def need(x):
                if x in q:
                    i = q.index(x)
                    e(f"s_waitcnt lgkmcnt({len(q) - 1 - i})")
                    del q[:i + 1]
            for ks in range(I1): rd(ks)
            for n in range(ND1, 6): dp(n, "s_nop 0" if n < 5 else "s_mov_b64 exec, s[24:25]")
            rd('sw')
            e("s_mov_b64 exec, s[0:1]")
            for ks in range(I1, I2): rd(ks)
            todo = list(range(I2, 14)) + ['h']
            for ks in range(KS):
                if ks == KB:
                    need('sw')
                    self.bar()
                    if gts: self.ts(2)
                    rd('st')
                need(ks); mf(ks)
                n = o['rpm']
                for x in todo[:n]: rd(x)
                del todo[:n]
            assert not todo
            need('st')
            if o['rsq']:
                st = ["v_pk_add_f32 v[76:77], v[76:77], v[78:79]",
                      "v_pk_mul_f32 v[76:77], v[76:77], v[22:23]",
                      "v_fma_f32 v77, -v76, v76, v77",
                      f"v_add_f32 v77, {hex(f2u(1e-5))}, v77",
                      "v_rsq_f32 v77, v77"]
            else:
                st = ["v_pk_add_f32 v[76:77], v[76:77], v[78:79]",
                  "v_pk_mul_f32 v[76:77], v[76:77], v[22:23]",
                  "v_fma_f32 v77, -v76, v76, v77",
                  "v_cvt_pk_bf16_f32 v78, v76, v77",
                  "v_and_b32 v77, 0xffff0000, v78",
                  f"v_add_f32 v77, {hex(f2u(1e-5))}, v77",
                  "v_cvt_pk_bf16_f32 v77, 0, v77",
                  "v_sqrt_f32 v77, v77",
                  "v_lshlrev_b32 v76, 16, v78",
                  "v_cvt_pk_bf16_f32 v77, 0, v77",
                  "v_rcp_f32 v77, v77"]
            for ks in range(KS, 14):
                for x in st[:2]: e(x)
                del st[:2]
                need(ks); mf(ks)
            for x in st: e(x)
            pad = 8 - len(st) - (1 if KS == 14 else 0)
            assert not o['rw']
            if pad > 0: e(f"s_nop {pad - 1}")
            if gts: self.ts(3)
            e("v_mov_b32_dpp v69, v65 row_ror:8 row_mask:0xf bank_mask:0xf")
            e("v_mov_b32_dpp v72, v66 row_ror:8 row_mask:0xf bank_mask:0xf")
            e("v_cndmask_b32 v70, v64, v69, s[66:67]")
            e("v_cndmask_b32 v74, v66, v72, s[66:67]")
            e("v_fma_f32 v70, -v76, v74, v70")
            e("v_mul_f32 v70, v70, v77")
            e("v_cvt_pk_bf16_f32 v70, 0, v70")
            e("v_mul_f32 v73, v70, v70")
            e(f"v_fmamk_f32 v73, v73, {hex(f2u(k1 * 0.044715))}, v21")
            e("v_mul_f32 v73, v73, v70")
            e("v_exp_f32 v73, v73")
            e("v_mov_b32_dpp v68, v64 row_ror:8 row_mask:0xf bank_mask:0xf")
            e("v_cndmask_b32 v74, v72, v66, s[66:67]")
            e("v_add_f32 v73, 1.0, v73")
            e("v_rcp_f32 v73, v73")
            e("v_cndmask_b32 v71, v68, v65, s[66:67]")
            e("v_fma_f32 v71, -v76, v74, v71")
            e("v_mul_f32 v73, v73, v70")
            e("v_mul_f32 v71, v71, v77")
            e("v_cvt_pk_bf16_f32 v73, 0, v73")
            e("v_cvt_pk_bf16_f32 v71, 0, v71")
            e("v_mul_f32 v73, v73, v71")
        else:
            for i in (0, 2): pk(108+i, 64+i, 80+i)
            def cvt():
                e("v_cvt_pk_bf16_f32 v112, v108, v109")
                e("v_cvt_pk_bf16_f32 v113, v110, v111")
            UP = ["v_lshlrev_b32 v108, 16, v112", "v_and_b32 v109, 0xffff0000, v112", "v_lshlrev_b32 v110, 16, v113", "v_and_b32 v111, 0xffff0000, v113"]
            cvt()
            for u in UP: e(u)
            pk(108, 108, 100); pk(110, 110, 102)
            cvt()
            e("v_dot2_f32_bf16 v96, v112, s53, 0")
            e("v_dot2_f32_bf16 v97, v112, v112, 0")
            e("v_dot2_f32_bf16 v96, v113, s53, v96")
            e("v_dot2_f32_bf16 v97, v113, v113, v97")
            e(f"ds_write_b64 v16, v[112:113] offset:{L_H}")
            e("s_mov_b64 exec, s[0:1]")
            e(UP[0])
            fill = UP[1:] + ["s_nop 0", "s_nop 0", "s_mov_b64 exec, s[24:25]"]
            for n, st in enumerate(("quad_perm:[1,0,3,2] row_mask:0xf bank_mask:0xf", "quad_perm:[2,3,0,1] row_mask:0xf bank_mask:0xf",
                       "row_half_mirror row_mask:0xf bank_mask:0xf", "row_mirror row_mask:0xf bank_mask:0xf",
                       "row_bcast:15 row_mask:0xa bank_mask:0xf", "row_bcast:31 row_mask:0xc bank_mask:0xf")):
                e(f"v_add_f32_dpp v96, v96, v96 {st}")
                e(f"v_add_f32_dpp v97, v97, v97 {st}")
                e(fill[n])
            e(f"ds_write_b64 v17, v[96:97] offset:{L_ST}")
            e("s_mov_b64 exec, s[0:1]")
            e("s_waitcnt lgkmcnt(0)")
            self.bar()
            if gts: self.ts(1)
            e(f"ds_read_b128 v[64:67], v18 offset:{L_ST}")
            e("s_waitcnt lgkmcnt(0)")
            pk(64, 64, 66)
            e(f"v_mul_f32 v64, {hex(f2u(1.0/448))}, v64")
            e(f"v_mul_f32 v65, {hex(f2u(1.0/448))}, v65")
            e("v_fma_f32 v65, -v64, v64, v65")
            e("v_cvt_pk_bf16_f32 v66, v64, v65")
            e("v_and_b32 v65, 0xffff0000, v66")
            e("v_lshlrev_b32 v64, 16, v66")
            e(f"v_add_f32 v65, {hex(f2u(1e-5))}, v65")
            e("v_cvt_pk_bf16_f32 v65, 0, v65")
            e("v_sqrt_f32 v65, v65")
            for i in (108, 110): e(f"v_pk_add_f32 v[{i}:{i+1}], v[{i}:{i+1}], v[64:65] op_sel_hi:[1,0] neg_lo:[0,1] neg_hi:[0,1]")
            e("v_cvt_pk_bf16_f32 v65, 0, v65")
            e("v_rcp_f32 v65, v65")
            cvt()
            for u in UP: e(u)
            for i in (108, 110): e(f"v_pk_mul_f32 v[{i}:{i+1}], v[{i}:{i+1}], v[64:65] op_sel:[0,1] op_sel_hi:[1,1]")
            e("s_mov_b64 exec, s[64:65]")
            cvt()
            e(f"ds_write_b64 v16, v[112:113] offset:{L_XN}")
            e("s_mov_b64 exec, s[0:1]")
            e("s_waitcnt lgkmcnt(0)")
            self.bar()
            if gts: self.ts(2)
            for ks in range(14):
                e(f"ds_read_b128 v[{104+4*ks}:{107+4*ks}], v30 offset:{L_XN + ks*64}")
            for ks in range(14):
                e(f"s_waitcnt lgkmcnt({13-ks if not gts else 0})")
                cin = "0" if ks == 0 else "v[64:67]"
                e(f"v_mfma_f32_16x16x32_bf16 v[64:67], v[{104+4*ks}:{107+4*ks}], v[{160+4*ks}:{163+4*ks}], {cin}")
            e(f"ds_read_u16 v25, v26 offset:{L_H}")
            if o['rw']:
                for t in range(7): e(f"v_mov_b32 v{161+2*t}, -1")
            else: e("s_nop 6")
            e("v_mov_b32_dpp v68, v64 row_ror:8 row_mask:0xf bank_mask:0xf")
            e("v_mov_b32_dpp v69, v65 row_ror:8 row_mask:0xf bank_mask:0xf")
            e("v_cndmask_b32 v70, v64, v69, s[66:67]")
            e("v_cndmask_b32 v71, v68, v65, s[66:67]")
            e("v_cvt_pk_bf16_f32 v70, 0, v70")
            e("v_mul_f32 v73, v70, v70")
            e(f"v_fmamk_f32 v73, v73, {hex(f2u(k1 * 0.044715))}, v21")
            e("v_mul_f32 v73, v73, v70")
            e("v_exp_f32 v73, v73")
            e("v_cvt_pk_bf16_f32 v71, 0, v71")
            e("v_add_f32 v73, 1.0, v73")
            e("v_rcp_f32 v73, v73")
            e("s_nop 0")
            e("v_mul_f32 v73, v73, v70")
            e("v_cvt_pk_bf16_f32 v73, 0, v73")
            e("v_mul_f32 v73, v73, v71")
        if gts: self.ts(6)
        e("s_mov_b64 exec, s[48:49]")
        e("v_cvt_pk_bf16_f32 v75, v73, v73")
        e(f"ds_write_b16 v28, v75 offset:{L_ACT}")
        e("s_mov_b64 exec, s[0:1]")
        if o['rw']:
            for t in range(7, 14): e(f"v_mov_b32 v{161+2*t}, -1")
        e("s_waitcnt lgkmcnt(0)")
        self.bar()
        if gts: self.ts(7)
        if o['dpk']:
            for G in range(4): e(f"ds_read_b128 v[{104+4*G}:{107+4*G}], v{244+G} offset:{L_ACT}")
            e("v_lshlrev_b32 v25, 16, v25")
            e("s_cmp_lg_u32 s59, 0")
            for j in range(7):
                if j < 4: e(f"s_waitcnt lgkmcnt({3-j})")
                d = 64 + 4 * (j >> 2)
                e(f"v_mfma_f32_16x16x32_bf16 v[{d}:{d+3}], v[{104+4*(j&3)}:{107+4*(j&3)}], v[{216+4*j}:{219+4*j}], {'0' if j & 3 == 0 else f'v[{d}:{d+3}]'}")
            e("s_nop 4")
            e(f"buffer_store_dwordx2 v[64:65], v20, s[36:39], s{PS[0]} offen " + self.P("p2S"))
            e("s_mov_b64 exec, s[26:27]")
            e("s_nop 0")
            e(f"buffer_store_dwordx2 v[68:69], v20, s[36:39], s{PS[4]} offen " + self.P("p2S"))
        else:
            e(f"ds_read_b128 v[104:107], v19 offset:{L_ACT}")
            e("v_lshlrev_b32 v25, 16, v25")
            e("s_cmp_lg_u32 s59, 0")
            e("s_waitcnt lgkmcnt(0)")
            for j in range(7):
                e(f"v_mfma_f32_16x16x32_bf16 v[{64+4*j}:{67+4*j}], v[104:107], v[{216+4*j}:{219+4*j}], 0")
            e("s_mov_b64 exec, s[48:49]")
            e("s_nop 0")
            for j in range(7):
                e(f"buffer_store_dwordx2 v[{64+4*j}:{65+4*j}], v20, s[36:39], s{PS[j]} offen " + self.P("p2S"))
        e("s_mov_b64 exec, s[0:1]")
        self.ts(11)
        e("s_cbranch_scc1 .Lfin")
        for i in range(o['rdel']): e("s_nop 15")
        ra = lambda p: f"v27, s[36:39], {'s56' if p < 4 else 's61'} offen offset:{(p&3)*1024}"
        for p in range(7):
            e(f"buffer_load_dwordx4 v[{160+4*p}:{163+4*p}], {ra(p)} " + self.P("p2L"))
        if o['sp']:
            def rtree():
                e("s_waitcnt vmcnt(5)")
                for i in (0, 2): pk(108+i, 160+i, 164+i)
                e("s_waitcnt vmcnt(3)")
                for i in (0, 2): pk(112+i, 168+i, 172+i)
                e("s_waitcnt vmcnt(1)")
                for i in (0, 2): pk(116+i, 176+i, 180+i)
                for i in (0, 2): pk(108+i, 108+i, 112+i)
                e("s_waitcnt vmcnt(0)")
                for i in (0, 2): pk(116+i, 116+i, 184+i)
                for i in (0, 2): pk(108+i, 108+i, 116+i)
            self.spoll(7, 160, ra, "-1", ".Lr", rtree, 108, 110, pol="p2L")
            if not o['prof']: self.ts(12)
        else:
            if o['rw']: self.apoll(7, 160, ra, "-1", ".Lr", o['rw'])
            else: self.mpoll(7, 160, ra, "-1", ".Lr", m0=6, pol="p2L")
            if not o['prof']: self.ts(12)
            for p in range(0, 6, 2):
                for i in (0, 2): pk(108+4*p+i, 160+4*p+i, 164+4*p+i)
            for i in (0, 2):
                pk(108+i, 108+i, 116+i); pk(124+i, 124+i, 184+i)
            for i in (0, 2): pk(108+i, 108+i, 124+i)
        e("s_nop 0")
        e("v_permlane16_swap_b32 v108, v109")
        e("v_permlane16_swap_b32 v110, v111")
        e("s_nop 0")
        e("v_add_f32 v108, v108, v109")
        e("v_add_f32 v110, v110, v111")
        e("s_nop 1")
        e("v_permlane32_swap_b32 v108, v110")
        e("s_nop 1")
        e("v_add_f32 v108, v108, v110")
        e("s_nop 1")
        e("v_add_f32_dpp v108, v108, v108 row_ror:8 row_mask:0xf bank_mask:0xf")
        e("s_mov_b64 exec, s[50:51]")
        e("v_cvt_pk_bf16_f32 v108, 0, v108")
        e("v_add_f32 v108, v108, v25")
        e("v_cvt_pk_bf16_f32 v108, v108, v108")
        if dry: e("s_cbranch_execz .Ldryend")
        e(f"buffer_store_short v108, v26, s[44:47], 0 offen {o['opol']}")
        e("s_mov_b64 exec, -1")

if __name__ == "__main__":
    out = sys.argv[1]
    kw = json.loads(sys.argv[2]) if len(sys.argv) > 2 else {}
    open(out, "w").write(Gen(**kw).build())
```

```python
import sys, json, struct, math
from gen2 import *
import gen2

WS_PART = 0x100000
WS_Y    = 0x120000
WS_P2I  = 0x130000
WS_RACE = 0x170000
L_D     = L_W + 57344
L_H     = 2816
L_ACT   = 640
LDS_BYTES = L_D + 28672
L_RED2  = 24576 - L_RED
WS_PART2 = 0x80000

class Gen(gen2.Gen):
    def __init__(self, **kw):
        d = dict(NSH=3, PV=4, NO=2, c0=2, cmax=3, csh=6, pace=14, late='', early=False, quit=(0,0,0), dyn='', order='DGW', gs=0, nodot=False, NB=0, dum='', dsp=256, tpol='', remap=None, PA=0, XS=0, epol='sc1', NP=4, cpol='', NC=8, RA=0, cls=True, dry=False, rst='late', rord='GW', gts=False, opol='', pol={}, iod=True, cfix=None, race='join', fakew='', c2=True, elig=True, fold=True, nd1=3, kb2=5, ks2=11, rsq=False, rpm=1, fp=False, fpg=3, dpk=True, sp=True, EG=0, gfl=False, dq=False, ppk=True, il=(4,4), rdel=0, rw=0, gw=0, fresh='G', sg=False, sgp=14, ET=0, B1W=44, B1G=44, aw=0, awpol='', tlbw=0, wp=False, hp=None, hx=1, cut=(64,28), hts=False, pa1=None, ep=None, qdry=False, xq='', p2s=False, trim=False, scb=0x80000, p2z=0, gch=None, wch=None)
        d.update(dict(NSH=4, PV=0, NO=6, NB=48, NH=0, dyn='WGD', order='GWD', wpol='nt', dpol='nt', tpol='nt', gs=1))
        d.update(kw)
        super().__init__(**d)
        if self.o['dyn']: self.o['late'] = self.o['dyn']
        if self.o['iod']: self.o['NC'] = 2
        self.cyc = False
        self.wide = False

    def P(self, t):
        return self.o['pol'].get(t, self.o['pol'].get(t[-1], 'sc1'))

    def hts(self, slot):
        if self.o['hts']: self.e(f"s_memrealtime s[{70 + 2 * slot}:{71 + 2 * slot}]")

    def ts(self, slot):
        if self.o['hts'] and slot in (2, 4, 5, 7, 9, 10, 11, 12): return
        if self.o['ts']:
            self.e(f"{'s_memtime' if self.cyc else 's_memrealtime'} s[{70 + 2 * slot}:{71 + 2 * slot}]")

    def tick(self, k):
        if self.o['wp'] and k is not None:
            e = self.e
            e("s_memtime s[94:95]")
            e("s_waitcnt lgkmcnt(0)")
            e("s_sub_u32 s93, s94, s92")
            e("s_mov_b32 s92, s94")
            e(f"v_add_u32 v{224+k}, s93, v{224+k}")
            e(f"v_add_u32 v{240+k}, 1, v{240+k}")

    def awld(self, n0, cnt, tag=None):
        for n in range(n0, min(n0 + cnt, 56)):
            g, j = divmod(n, 7)
            t = f"buffer_load_dwordx4 a[{4*n}:{4*n+3}], v28, s[44:47], s{41 + (g >> 2)} offen offset:{(g & 3) * 896 + j * 128} {self.o['awpol']}"
            if tag is not None: self.vm(t, tag)
            else: self.e(t)

    def ktile(self, kb, wait, reissue, rtag=None, extra=None):
        e = self.e
        for i in range(8):
            e(f"v_mov_b32 v{11+i}, 0")
        for g in range(4):
            wait(g)
            for i in range(16 if not self.o['nodot'] else 2):
                e(f"v_dot2c_f32_bf16 v{11+2*g+(i&1)}, v{kb+g*16+i}, v{32+i}")
            if reissue:
                self.ld(kb, g, rtag and (rtag, g))
            if extra: extra(g)
        if reissue or self.o['prof'] != 2: self.plog()
        if not reissue: e("s_nop 2")
        for g in range(4):
            e(f"v_add_f32 v{11+2*g}, v{11+2*g}, v{12+2*g}")
        for st in ("quad_perm:[1,0,3,2]", "quad_perm:[2,3,0,1]", "row_half_mirror"):
            for g in range(4):
                e(f"v_add_f32_dpp v{11+2*g}, v{11+2*g}, v{11+2*g} {st} row_mask:0xf bank_mask:0xf")
        e("v_cvt_pk_bf16_f32 v24, v11, v13")
        e("v_cvt_pk_bf16_f32 v25, v15, v17")
        e("ds_write_b64 v19, v[24:25]")
        e("v_add_u32 v19, 64, v19")

    def vgrp(self, g, n, reissue, base=64, tk=None):
        e = self.e
        e(f"s_waitcnt vmcnt({n})")
        self.tick(tk)
        for j in range(4):
            r = base + g * 16 + j * 4
            e(f"v_mfma_f32_16x16x32_bf16 v[{48+4*j}:{51+4*j}], v[{32+4*g}:{35+4*g}], v[{r}:{r+3}], v[{48+4*j}:{51+4*j}]")
        if reissue:
            self.ld(64, g)

    def pcalc(self, groups):
        e = self.e
        for g in groups:
            src = 24 if g < 2 else 25
            if g & 1: e(f"v_and_b32 v{11+g}, 0xffff0000, v{src}")
            else: e(f"v_lshlrev_b32 v{11+g}, 16, v{src}")
        for g in groups: e(f"v_fma_f32 v{11+g}, v{11+g}, s59, v10")
        for g in groups: e(f"v_exp_f32 v{11+g}, v{11+g}")
        for g in groups: e(f"v_cvt_pk_bf16_f32 v{15+g}, v{11+g}, v{11+g}")
        for g in groups:
            for r in range(4):
                e(f"v_and_b32 v{32+4*g+r}, v{6+r}, v{15+g}")

    def ticket(self, off=0, amount="1"):
        e = self.e
        if self.o['hp'] and off == 0:
            e("s_xor_b32 s60, s44, 1")
            e("v_xor_b32 v22, s60, v1")
            e("s_mov_b64 exec, 3")
            e(f"buffer_atomic_add v22, v21, s[36:39], 0 offen sc0 sc1 {self.o['tpol']}")
            e("s_mov_b64 exec, -1")
            return
        e(f"v_mov_b32 v22, {amount}")
        e("s_mov_b64 exec, 1")
        e(f"buffer_atomic_add v22, v21, s[36:39], 0 offen offset:{off} sc0 sc1 {self.o['tpol']}")
        e("s_mov_b64 exec, -1")

    def tile_addr(self, src="s56"):
        k = self.o['gs']; e = self.e
        if k == 0: return super().tile_addr(src)
        e(f"s_lshr_b32 s57, {src}, {k}")
        e(f"s_lshl_b32 s57, s57, {14 + k}")
        e("s_add_u32 s57, s57, s61")
        e(f"s_and_b32 s63, {src}, {(1 << k) - 1}")
        e("s_lshl_b32 s63, s63, 12")
        e("s_add_u32 s57, s57, s63")
        e("s_and_b32 s57, s57, 0x7fffff")
        if self.wide: e("s_add_u32 s57, s57, s41")

    def sc_addr(self, t):
        e = self.e
        e(f"s_and_b32 s98, {t}, 31")
        e(f"s_lshl_b32 s98, s98, {8 if self.o['p2s'] else 9}")
        e(f"s_lshr_b32 s63, {t}, 5")
        e("s_lshl_b32 s63, s63, 6")
        e("s_add_u32 s98, s98, s63")

    def build(self):
        o = self.o; e = self.e
        PD = o['PD']; NSH = o['NSH']; NH = o['NH']; PV = o['PV']; NO = o['NO']
        ND = 32 * NSH
        NF = ND - NH
        NTK = NF + 2 * NH
        PA = o['PA']; XS = o['XS'] + PV
        B1 = ND + 24 * XS
        B2 = B1 + 32 * NO
        E1 = PD + PA + 1
        assert 1 <= PD <= 2 and o['dyn'] == 'WGD' and PD + 1 <= NSH <= 8 and NO >= 2 and PV + PA <= 4 and B2 <= 512
        assert 2 * o['NB'] <= NF
        assert max(NSH, E1) + 2 <= NSH + XS + NO
        def pace():
            if o['pace']: e(f"s_waitcnt vmcnt({o['pace']})")
        self.L.append(f"; @launch grid=(256,1,1) block=(256,1,1) lds={LDS_BYTES}")
        self.L.append('.amdgcn_target "amdgcn-amd-amdhsa--gfx950"')
        self.L.append(".text")
        self.L.append(f".globl {NAME}")
        self.L.append(".p2align 8")
        self.L.append(f".type {NAME},@function")
        self.label(NAME)
        e("s_cmp_ge_u32 s2, 256")
        e("s_cbranch_scc1 .Lend")
        e("s_load_dwordx16 s[4:19], s[0:1], 0")
        e("s_load_dwordx8 s[20:27], s[0:1], 64")
        if o['ts']:
            self.ts(0)
            for i in range(72, 96): e(f"s_mov_b32 s{i}, 0")
        e("v_and_b32 v1, 63, v0")
        e("v_lshrrev_b32 v2, 6, v0")
        e("s_and_b32 s53, s2, 7")
        if o['prof']:
            e("s_mov_b32 s3, 0")
            e("v_mov_b32 v0, 0")
        e("v_readfirstlane_b32 s52, v2")
        e("s_lshr_b32 s54, s2, 3")
        e(f"s_mul_i32 s61, s54, {o['rot']}")
        e("v_lshrrev_b32 v20, 3, v1")
        e("v_lshlrev_b32 v2, 9, v20")
        e("v_and_b32 v3, 7, v1")
        e("v_lshlrev_b32 v13, 13, v20")
        e("v_lshl_or_b32 v2, v3, 4, v2")
        e("v_lshl_or_b32 v13, v3, 4, v13")
        S = 4096 << o['gs']
        e(f"v_add_u32 v3, {S}, v2")
        e(f"v_add_u32 v4, {2*S}, v2")
        e(f"v_add_u32 v5, {3*S}, v2")
        e("s_lshl_b32 s58, s53, 2")
        e("s_add_u32 s58, s58, s52")
        e("s_mov_b32 s56, s58")
        self.tile_addr()
        e("s_mov_b32 s30, 0x800000")
        e("s_mov_b32 s31, 0x20000")
        e("s_lshr_b32 s96, s53, 2")
        e("s_lshl_b32 s60, s54, 1")
        e("s_add_u32 s96, s96, s60")
        e(f"s_mul_i32 s60, s52, {112 * 8192}")
        e("s_lshl_b32 s63, s96, 7")
        e("s_add_u32 s60, s60, s63")
        e("v_add_u32 v13, s60, v13")
        e("v_and_b32 v16, 31, v1")
        e("v_cmp_gt_u32 s[64:65], 28, v16")
        e("v_lshrrev_b32 v14, 5, v1")
        e("v_mul_u32_u24 v14, 896, v14")
        e("v_lshl_add_u32 v28, v16, 5, v14")
        e("v_mov_b32 v16, 0x10000")
        e("v_cndmask_b32 v16, v16, v28, s[64:65]")
        e("v_mov_b32 v15, 0")
        e("s_mov_b32 s38, {0}".format(WS_SIZE))
        e("s_mov_b32 s39, 0x20000")
        e("s_mov_b32 s42, 1792")
        e("s_mov_b32 s43, 0x20000")
        e("s_mov_b32 s46, 3670016")
        e("s_mov_b32 s47, 0x20000")
        e(f"s_mul_i32 s97, s52, {14 * 1024}")
        e(f"s_add_u32 s97, s97, {L_W}")
        e("s_lshl_b32 s60, s54, 23")
        e("s_xor_b32 s62, s53, s54")
        e("s_and_b32 s62, s62, 3")
        e("s_waitcnt lgkmcnt(0)")
        if o['dbgts']: e("s_mov_b64 s[84:85], s[24:25]")
        self.hts(2)
        e("s_cbranch_scc1 .Lnoprod1")
        e("s_setprio 3")
        e("s_mov_b64 s[40:41], s[4:5]")
        e("s_mov_b64 s[44:45], s[10:11]")
        e("s_and_b32 s63, s96, 3")
        e("s_or_b32 s63, s63, s52")
        e("s_cbranch_scc1 .Lnocinit")
        e("s_mov_b64 s[36:37], s[26:27]")
        e("s_lshl_b32 s63, s96, 6")
        e("v_and_b32 v14, 1, v1")
        e("v_lshlrev_b32 v14, 12, v14")
        e("v_lshrrev_b32 v17, 1, v1")
        e("v_lshl_add_u32 v14, v17, 7, v14")
        e(f"v_add_u32 v14, {WS_CNT}, v14")
        e("s_mov_b64 exec, 15")
        e("buffer_store_dword v15, v14, s[36:39], s63 offen " + self.P("ciS"))
        e("s_mov_b64 exec, -1")
        self.label(".Lnocinit")
        if 'p' in o['xq']:
            e("s_setprio 0")
            e("s_mov_b32 s62, 1")
            e("s_branch .Lnoprod1")
        e("buffer_load_dwordx4 v[240:243], v16, s[40:43], 0 offen")
        e("buffer_load_dwordx4 v[244:247], v16, s[40:43], 0 offen offset:16")
        for ks in range(14):
            e("s_mov_b32 m0, s97")
            e(f"s_mov_b32 s63, {ks * 65536}")
            e(f"buffer_load_dwordx4 v13, s[44:47], s63 offen {o['wqpol']} lds")
            if ks < 13: e("s_add_u32 s97, s97, 1024")
        PA1 = o['pa1']
        if PA1 is not None:
            assert o['rst'] != 'first'
            e("s_add_u32 s28, s6, s60")
            e("s_addc_u32 s29, s7, 0")
            e("s_branch .Lprod2")
        self.label(".Lnoprod1")
        if o['rst'] == 'first': self.resets()
        e("s_add_u32 s28, s6, s60")
        e("s_addc_u32 s29, s7, 0")
        self.q = []
        for g in range(4): self.ld(64, g, ('A', g))
        self.label(".Lprod2")
        self.hts(4)
        e(f"s_load_dword s68, s[26:27], {WS_EPOCH}")
        def tag():
            e("s_mul_i32 s55, s68, 0x9e3779b1")
            e("s_add_u32 s55, s55, 0x7f4a7c15")
        if o['prof'] == 2: self.plog()
        e("s_add_u32 s32, s8, s60")
        e("s_addc_u32 s33, s9, 0")
        e("s_mov_b32 s34, 0x800000")
        e("s_mov_b32 s35, 0x20000")
        e("s_mov_b64 s[36:37], s[26:27]")
        self.srd(48, 24, 256)
        self.setup()
        e("s_cmp_lg_u32 s62, 0")
        e("s_cbranch_scc1 .Ljoin")
        e("v_lshlrev_b32 v17, 7, v29")
        e("v_lshl_add_u32 v17, v31, 3, v17")
        e("s_lshl_b32 s60, s52, 5")
        e(f"s_add_u32 s60, s60, {L_W}")
        e("v_add_u32 v17, s60, v17")
        e(f"s_waitcnt vmcnt({30 if PA1 is None else 14})")
        self.hts(5)
        for i in range(8):
            e(f"v_and_b32 v{184+2*i+1}, 0xffff0000, v{240+i}")
            e(f"v_lshlrev_b32 v{184+2*i}, 16, v{240+i}")
        self.layernorm16(184, 200, "s[64:65]")
        e("s_mov_b64 exec, s[64:65]")
        e(f"ds_write_b128 v28, v[184:187] offset:{L_XN}")
        e(f"ds_write_b128 v28, v[188:191] offset:{L_XN+16}")
        e("s_mov_b64 exec, -1")
        e("s_waitcnt lgkmcnt(0)")
        for ks in range(14):
            e(f"ds_read_b128 v[{128+4*ks}:{131+4*ks}], v30 offset:{L_XN + ks*64}")
        tag()
        e("v_mov_b32 v249, s55")
        e("v_and_b32 v13, 1, v1")
        e("v_lshlrev_b32 v14, 14, v13")
        e("v_cmp_eq_u32 vcc, 1, v13")
        e("v_lshrrev_b32 v13, 1, v1")
        e("v_lshl_add_u32 v14, v13, 3, v14")
        e("s_lshl_b32 s60, s96, 2")
        e("s_add_u32 s60, s60, s52")
        e("s_lshl_b32 s60, s60, 6")
        e(f"s_add_u32 s60, s60, {WS_Q}")
        if o['qdry']:
            e("s_mov_b64 exec, 0")
            e("s_branch .Lqgo")
            self.label(".Lqdry")
            e("s_mov_b64 exec, -1")
        self.hts(7)
        for g in range(PA1 or 0): self.ld(64, g)
        e(f"s_waitcnt vmcnt({16 if PA1 is None else 4 * PA1})")
        self.hts(9)
        e("s_barrier")
        self.hts(10)
        self.label(".Lqgo")
        for ks in range(14):
            e(f"ds_read_b64_tr_b16 v[{184+4*ks}:{185+4*ks}], v17 offset:{ks*4096}")
            e(f"ds_read_b64_tr_b16 v[{186+4*ks}:{187+4*ks}], v17 offset:{ks*4096 + 512}")
            if ks == 6:
                e("s_waitcnt lgkmcnt(6)")
        e("s_waitcnt lgkmcnt(0)")
        for ks in range(14):
            cin = "0" if ks == 0 else "v[240:243]"
            e(f"v_mfma_f32_16x16x32_bf16 v[240:243], v[{128+4*ks}:{131+4*ks}], v[{184+4*ks}:{187+4*ks}], {cin}")
        e("s_nop 7")
        e("v_mov_b32_dpp v244, v240 quad_perm:[1,0,3,2] row_mask:0xf bank_mask:0xf")
        e("v_mov_b32_dpp v245, v241 quad_perm:[1,0,3,2] row_mask:0xf bank_mask:0xf")
        e("v_cndmask_b32 v246, v240, v245, vcc")
        e("v_cndmask_b32 v247, v244, v241, vcc")
        e("v_cvt_pk_bf16_f32 v248, v246, v247")
        if o['qdry']: e("s_cbranch_execz .Lqdry")
        e("s_mov_b64 exec, 0xffff")
        e("buffer_store_dwordx2 v[248:249], v14, s[36:39], s60 offen " + self.P("qS"))
        e("s_mov_b64 exec, -1")
        e("s_setprio 0")
        self.hts(11)
        for g in range(4 if PA1 is None else PA1, 4): self.ld(64, g)
        self.label(".Ljoin")
        if o['rst'] == 'join': self.resets()
        if o['iod'] and o['race'] == 'join': self.race()
        EP = o['ep']
        NP = o['NP']
        def poll(k): e(f"buffer_load_dwordx4 v[{48+4*k}:{51+4*k}], v13, s[36:39], s60 offen " + self.P("qL"))
        if EP:
            assert len(EP) == NP
            e("s_lshl_b32 s60, s54, 10")
            e(f"s_add_u32 s60, s60, {WS_Q}")
            e("v_lshlrev_b32 v13, 4, v1")
        pq = []
        for p in range(PD):
            e("s_add_u32 s56, s56, 32")
            self.tile_addr()
            for g in range(4):
                pace()
                self.ld(128 + 64 * p, g, (f'E{p}', g))
                pq += ['x'] * 4
                if EP and 4 * p + g in EP:
                    k = EP.index(4 * p + g)
                    e("s_cmp_lg_u32 s52, 0")
                    e(f"s_cbranch_scc1 .Lnp{k}")
                    poll(k)
                    self.label(f".Lnp{k}")
                    pq.append(k)
            if o['prof'] == 2: self.plog()
        self.hts(12)
        e("s_cmp_eq_u32 s52, 0")
        e("s_cbranch_scc1 .Lw0")
        for p in range(PA):
            e(f"v_readlane_b32 s56, v23, {PD + 1 + p}")
            self.tile_addr()
            for g in range(4):
                pace()
                for j in range(4):
                    r = 64 * (PV + p) + g * 16 + j * 4
                    self.vm(f"buffer_load_dwordx4 a[{r}:{r+3}], v{2+g}, s[28:31], s57 offen offset:{j*128} {o['kvpol']}", (f'F{p}', g))
            if o['prof'] == 2: self.plog()
        for p in range(PV):
            e(f"v_readlane_b32 s56, v23, {NSH + p}")
            self.tile_addr()
            for g in range(4):
                pace()
                for j in range(4):
                    r = 64 * p + g * 16 + j * 4
                    self.vm(f"buffer_load_dwordx4 a[{r}:{r+3}], v{2+g}, s[32:35], s57 offen offset:{j*128} {o['kvpol']}", 'X')
            if o['prof'] == 2: self.plog()
        for p in range(PV if o['prof'] == 1 else 0): self.plog()
        if o['sg']: self.sgload()
        if o['iod'] and o['race'] == 'bar': self.race()
        e(f"s_mov_b32 s99, {E1}")
        e(f"s_mov_b32 s97, {NSH + PV}")
        e(f"s_mov_b32 s101, {NSH + XS + NO}")
        e(f"s_mov_b32 s62, {max(NSH, E1)}")
        e("s_branch .Lbar")
        self.label(".Lw0")
        e("s_lshl_b32 s60, s54, 10")
        e(f"s_add_u32 s60, s60, {WS_Q}")
        e("v_lshlrev_b32 v13, 4, v1")
        e("v_lshlrev_b32 v14, 3, v1")
        e(f"ds_write_b32 v15, v15 offset:{L_CNT}")
        e(f"ds_write_b32 v15, v15 offset:{L_CNT + 8}")
        e(f"ds_write_b32 v15, v15 offset:{L_CNT + 12}")
        if o['sg']:
            self.sgtest(".Lnosg0")
            e("v_mov_b32 v16, s69")
            e("v_mov_b32 v17, 0x1000")
            e(f"ds_write2_b32 v15, v16, v17 offset0:{L_CNT//4 + 1} offset1:{L_CNT//4 + 2}")
            self.label(".Lnosg0")
        if 'q' in o['xq']: e("s_branch .Lqok")
        for k in range(NP if not EP else 0):
            if k: e(f"s_waitcnt vmcnt({16 - 3 * k})")
            poll(k)
        e("s_waitcnt lgkmcnt(0)")
        tag()
        for k in range(NP if EP else 0):
            e(f"s_waitcnt vmcnt({len(pq) - 1 - pq.index(k)})")
            e(f"v_cmp_ne_u32 vcc, s55, v{49+4*k}")
            e(f"v_cmp_ne_u32 s[66:67], s55, v{51+4*k}")
            e("s_or_b64 vcc, vcc, s[66:67]")
            e(f"s_cbranch_vccz .Lqok{k}")
            poll(k)
            pq.append('y')
        self.poll_begin()
        self.label(".Lqpoll")
        for k in range(NP):
            e(f"s_waitcnt vmcnt({NP - 1})")
            e(f"v_cmp_ne_u32 vcc, s55, v{49+4*k}")
            e(f"v_cmp_ne_u32 s[66:67], s55, v{51+4*k}")
            e("s_or_b64 vcc, vcc, s[66:67]")
            e(f"s_cbranch_vccz .Lqok{k}")
            poll(k)
        self.poll_again(".Lqpoll")
        for k in range(NP):
            self.label(f".Lqok{k}")
            e(f"ds_write2_b32 v14, v{48+4*k}, v{50+4*k} offset0:{L_Q//4} offset1:{L_Q//4+1}")
            if k < NP - 1: e("s_branch .Lqok")
        self.label(".Lqok")
        e(f"s_mov_b32 s99, {PD + 1}")
        e(f"s_mov_b32 s97, {NSH}")
        e(f"s_mov_b32 s101, {NSH + NO}")
        e(f"s_mov_b32 s62, {NSH}")
        e("s_waitcnt lgkmcnt(0)")
        self.label(".Lbar")
        self.ts(1)
        e("s_barrier")
        self.ts(2)
        e("v_and_b32 v13, 7, v1")
        e("v_lshlrev_b32 v13, 4, v13")
        for j in range(4):
            e(f"ds_read_b128 v[{32+4*j}:{35+4*j}], v13 offset:{L_Q + j*128}")
        e("v_readlane_b32 s56, v23, s99")
        self.tile_addr()
        e("s_waitcnt lgkmcnt(0)")
        tag()
        AW = o['aw']
        if AW:
            self.srd(44, 12, 3670016)
            e("s_and_b32 s41, s54, 15")
            e("s_lshl_b32 s41, s41, 2")
            e("s_add_u32 s41, s41, s52")
            e(f"s_mul_i32 s41, s41, {64 * 896}")
            e(f"s_add_u32 s42, s41, {4 * 896}")
            e("v_lshrrev_b32 v28, 3, v1")
            e(f"v_mul_u32_u24 v28, {8 * 896}, v28")
            e("v_add_u32 v28, v28, v13")
        self.ktile(64, lambda g: self.vwait(('A', g)), True, rtag='A2', extra=(lambda g: self.awld(2 * g, 2, 'aw')) if AW else None)
        for p in range(PD):
            self.ktile(128 + 64 * p, lambda g: self.vwait((f'E{p}', g)), False)
        if PA:
            e("s_cmp_eq_u32 s52, 0")
            e("s_cbranch_scc1 .Lkloop")
        for p in range(PA):
            def wa(g):
                self.vwait((f'F{p}', g))
                for i in range(16): e(f"v_accvgpr_read_b32 v{128 + 16 * g + i}, a{64 * (PV + p) + 16 * g + i}")
            self.ktile(128, wa, False)
        if o['rst'] == 'late': self.resets()
        else: self.checkin(".Lkloop")
        if o['tlbw']:
            n, sh = o['tlbw']
            e(f"v_lshlrev_b32 v251, {sh}, v1")
            e("s_lshl_b32 s60, s2, 2")
            e("s_add_u32 s60, s60, s52")
            e("s_and_b32 s60, s60, 31")
            e("s_lshl_b32 s60, s60, 7")
            e(f"s_mov_b64 exec, {hex((1 << n) - 1)}")
            e("buffer_load_dword v250, v251, s[32:35], s60 offen nt")
            e("buffer_load_dword v252, v251, s[28:31], s60 offen nt")
            e("s_mov_b64 exec, -1")

        def kiter(sx, wait, extra):
            self.label(".Lkloop" + sx)
            e("s_cmp_lg_u32 s99, s62")
            e("s_cbranch_scc1 .Lk0" + sx)
            e("s_lshl_b32 s60, s52, 11")
            e(f"s_add_u32 s60, s60, {L_SC}")
            e("v_lshl_add_u32 v14, v1, 4, s60")
            e("ds_read_b128 v[24:27], v14")
            e("s_lshl_b32 s60, s2, 2")
            e("s_add_u32 s60, s60, s52")
            e(f"s_lshl_b32 s60, s60, {8 if o['p2s'] else 9}")
            e(f"s_add_u32 s60, s60, {self.o['scb']}")
            e("v_lshlrev_b32 v13, 4, v1")
            e(f"s_mov_b32 exec_lo, {hex((1 << (4 * NSH)) - 1)}")
            e("s_mov_b32 exec_hi, 0")
            e("s_waitcnt lgkmcnt(0)")
            if 's' not in o['xq']: e("buffer_store_dwordx4 v[24:27], v13, s[36:39], s60 offen " + self.P("scS"))
            e("s_mov_b64 exec, -1")
            e(f"s_mov_b32 s100, {B2}")
            e(f"s_mov_b32 s96, {o['c0']}")
            self.label(".Lk0" + sx)
            e("s_add_u32 s99, s99, 1")
            e("s_mov_b32 s58, s99")
            e("s_cmp_lt_u32 s99, s101")
            e("s_cbranch_scc1 .Lk2" + sx)
            e(f"s_waitcnt vmcnt({24 if sx else 16})")
            self.tick(0)
            e("v_readfirstlane_b32 s56, v22")
            e(f"s_add_u32 s56, s56, {B2}")
            e("s_cmp_lt_u32 s56, 512")
            e("s_cbranch_scc1 .Lk1" + sx)
            e("s_mov_b64 s[28:29], s[32:33]")
            e("s_mov_b32 s58, s97")
            e("s_mov_b32 s101, 0")
            e("s_branch .Lk2" + sx)
            self.label(".Lk1" + sx)
            e("s_add_u32 s100, s56, s96")
            e("s_min_u32 s100, s100, 512")
            e("s_sub_u32 s60, s56, s99")
            e("v_add_u32 v13, s60, v1")
            e("v_cmp_le_u32 vcc, s99, v1")
            e("s_sub_u32 s101, s100, s60")
            e("s_sub_u32 s96, 512, s100")
            e("v_cndmask_b32 v23, v23, v13, vcc")
            e(f"s_lshr_b32 s96, s96, {o['csh']}")
            e("s_max_u32 s96, s96, 1")
            e(f"s_min_u32 s96, s96, {o['cmax']}")
            self.label(".Lk2" + sx)
            e("v_readlane_b32 s56, v23, s58")
            e("s_add_u32 s60, s99, 1")
            e("s_cmp_lg_u32 s60, s101")
            e("s_cbranch_scc1 .Lk3" + sx)
            e("v_mov_b32 v22, 0x10000")
            e(f"s_cmp_gt_u32 s101, {32 - o['cmax']}")
            e("s_cbranch_scc1 .Lk3" + sx)
            self.ticket(128, "s96")
            self.label(".Lk3" + sx)
            self.tile_addr()
            self.ktile(64, wait, True, extra=extra)
            if not sx:
                e("s_cmp_lg_u32 s101, 0")
                e("s_cbranch_scc1 .Lkloop")
        if AW:
            assert NSH + NO >= 10 and PD == 2 and not PA and not XS
            for it in range(1, 7):
                kiter(f"_u{it}", lambda g: e("s_waitcnt vmcnt(18)"), lambda g: self.awld(8 * it + 2 * g, 2))
            kiter("_u7", lambda g: e(f"s_waitcnt vmcnt({18 - 2 * g})"), None)
            e("s_cmp_eq_u32 s101, 0")
            e("s_cbranch_scc1 .Lkend")
        if o['wp']:
            for i in range(32): e(f"v_mov_b32 v{224+i}, 0")
            self.tick(15)
        kiter("", lambda g: (e("s_waitcnt vmcnt(12)"), self.tick(1 + g)), None)
        self.label(".Lkend")
        self.ts(6)
        e("s_lshl_b32 s60, s52, 11")
        e(f"s_add_u32 s60, s60, {L_SC}")
        e("v_lshl_add_u32 v13, v1, 4, s60")
        e("ds_read_b128 v[128:131], v13")
        e("ds_read_b128 v[144:147], v13 offset:1024")
        for i in range(16): e(f"v_mov_b32 v{48+i}, 0")
        e("v_lshrrev_b32 v19, 3, v1")
        e(f"s_add_u32 s60, s60, {NSH * 64}")
        e("v_lshl_add_u32 v19, v19, 3, s60")
        e("s_waitcnt lgkmcnt(0)")
        for i in range(4):
            e(f"v_and_b32 v{149+2*i}, 0xffff0000, v{144+i}")
            e(f"v_lshlrev_b32 v{148+2*i}, 16, v{144+i}")
        for i in range(4):
            e(f"v_and_b32 v{133+2*i}, 0xffff0000, v{128+i}")
            e(f"v_lshlrev_b32 v{132+2*i}, 16, v{128+i}")
        e("v_max3_f32 v140, v132, v133, v134")
        e("v_max3_f32 v141, v135, v136, v137")
        e("v_max3_f32 v140, v140, v138, v139")
        e("v_max3_f32 v141, v141, v148, v149")
        e("v_max3_f32 v140, v140, v150, v151")
        e("v_max3_f32 v141, v141, v152, v153")
        e("v_max3_f32 v140, v140, v154, v155")
        e("v_max_f32 v140, v140, v141")
        self.full_reduce("v_max_f32", "v140", "v141")
        e("v_mul_f32 v10, s59, v140")
        e("v_sub_f32 v10, 0, v10")
        for i in range(8): e(f"v_fma_f32 v{132+i}, v{132+i}, s59, v10")
        for i in range(8): e(f"v_fma_f32 v{148+i}, v{148+i}, s59, v10")
        for i in range(8): e(f"v_exp_f32 v{132+i}, v{132+i}")
        for i in range(8): e(f"v_exp_f32 v{148+i}, v{148+i}")
        e("s_nop 0")
        for i in range(8): e(f"v_add_f32 v{132+i}, v{132+i}, v{148+i}")
        for i in range(4): e(f"v_add_f32 v{132+i}, v{132+i}, v{136+i}")
        e("v_add_f32 v132, v132, v133")
        e("v_add_f32 v134, v134, v135")
        e("v_add_f32 v142, v132, v134")
        self.full_reduce("v_add_f32", "v142", "v141")
        e("v_mov_b32 v141, s55")
        e("v_mov_b32 v143, s55")
        e("s_lshl_b32 s60, s2, 2")
        e("s_add_u32 s60, s60, s52")
        e("s_lshl_b32 s60, s60, 4")
        e(f"s_add_u32 s60, s60, {WS_ML}")
        e("v_mov_b32 v13, 0")
        e("s_mov_b64 exec, 1")
        e("buffer_store_dwordx4 v[140:143], v13, s[36:39], s60 offen " + self.P("mlS"))
        e("s_mov_b64 exec, -1")
        if o['rst'] == 'late':
            self.checkin(".Lnoci")
            self.label(".Lnoci")
        e("s_lshl_b32 s98, s54, 9")
        e(f"s_add_u32 s98, s98, {WS_ML}")
        e("v_and_b32 v28, 31, v1")
        e("v_lshlrev_b32 v28, 4, v28")
        HP = o['hp']
        if HP:
            assert o['rot'] == 262144 and o['gs'] and not o['EG'] and not o['fp'] and not o['gfl'] and o['iod']
            e("s_lshl_b32 s42, s53, 2")
            e(f"s_or_b32 s42, s42, {o['hx']}")
            e("s_xor_b32 s60, s54, s42")
            e("s_lshl_b32 s63, s60, 9")
            e("s_lshl_b32 s98, s54, 9")
            e("v_cmp_gt_u32 vcc, 32, v1")
            e("v_mov_b32 v13, s63")
            e("v_mov_b32 v14, s98")
            e("v_cndmask_b32 v13, v13, v14, vcc")
            e("v_add_u32 v28, v28, v13")
            e(f"s_mov_b32 s98, {WS_ML}")
            e("s_lshl_b32 s60, s60, 8")
            e(f"s_add_u32 s60, s60, {WS_CNT}")
            e("v_writelane_b32 v21, s60, 1")
            e("s_lshl_b32 s41, s54, 23")
            e("s_mov_b32 s43, 0")
            e("s_mov_b32 s44, 0")
            e("s_mov_b32 s45, 0")
            for i in range(16): e(f"v_mov_b32 v{160+i}, 0")
        e("s_add_u32 s58, s97, 1")
        e("s_sub_u32 s99, s99, 1")
        if PV:
            e("s_cmp_eq_u32 s52, 0")
            e("s_cbranch_scc1 .Lvloop")
            for p in range(PV):
                e("ds_read_b64 v[24:25], v19")
                e("v_add_u32 v19, 64, v19")
                e("s_waitcnt lgkmcnt(0)")
                self.pcalc(range(4))
                for g in range(4):
                    for j in range(4):
                        r = 64 * p + g * 16 + j * 4
                        e(f"v_mfma_f32_16x16x32_bf16 v[{48+4*j}:{51+4*j}], v[{32+4*g}:{35+4*g}], a[{r}:{r+3}], v[{48+4*j}:{51+4*j}]")
        self.tick(15)
        self.label(".Lvloop")
        e("ds_read_b64 v[24:25], v19")
        e("v_add_u32 v19, 64, v19")
        e("v_readlane_b32 s56, v23, s58")
        e("s_cmp_lt_u32 s58, s99")
        e("s_cbranch_scc1 .Lv1")
        self.ticket()
        e("buffer_load_dwordx4 v[128:131], v28, s[36:39], s98 offen " + self.P("mlL"))
        e("v_and_b32 v13, 7, v1")
        e("v_lshlrev_b32 v13, 2, v13")
        e("buffer_load_dword v23, v13, s[48:51], 0 offen sc1")
        self.label(".Lv1")
        self.tile_addr()
        e("s_add_u32 s58, s58, 1")
        e("s_waitcnt lgkmcnt(0)")
        self.pcalc(range(4))
        dum = o['dum']
        if dum:
            e("s_lshl_b32 s60, s2, 2")
            e("s_add_u32 s60, s60, s52")
            e("s_lshl_b32 s60, s60, 8")
            e(f"s_mul_i32 s63, s54, {o['dsp']}")
            e(f"s_add_u32 s60, {'s60' if dum[0] == 'p' else 's63'}, 0x200000")
            e("v_mov_b32 v26, 1")
            e("v_mov_b32 v27, 0")
            e("s_mov_b64 exec, 1")
            if dum[1] in 'SWXY':
                e("s_mov_b64 exec, 0xffffffff")
                e("v_lshlrev_b32 v27, 2, v1")
            op = {'X': "buffer_atomic_swap v26, v27, s[36:39], s60 offen sc1 nt", 'Y': "buffer_atomic_swap v26, v27, s[36:39], s60 offen nt", 'z': "buffer_atomic_add v26, v27, s[36:39], s60 offen sc0 nt", 'S': "buffer_store_dword v26, v27, s[36:39], s60 offen sc1", 'w': "buffer_store_dword v26, v27, s[36:39], s60 offen",
                  'u': "buffer_store_dword v26, v27, s[36:39], s60 offen sc1 nt", 'W': "buffer_store_dword v26, v27, s[36:39], s60 offen sc0 sc1", 'a': "buffer_atomic_add v26, v27, s[36:39], s60 offen sc0 sc1", 'l': "buffer_load_dword v26, v27, s[36:39], s60 offen sc1",
                  'n': "buffer_atomic_add v26, v27, s[36:39], s60 offen sc1", 'x': "buffer_atomic_add v26, v27, s[36:39], s60 offen sc0",
                  's': "buffer_store_dword v26, v27, s[36:39], s60 offen sc1", 't': "buffer_atomic_add v26, v27, s[36:39], s60 offen sc0 sc1 nt"}[dum[1]]
            e(op)
            e("s_mov_b64 exec, -1")
        for g in range(4): self.vgrp(g, 13 if dum else 12, True, tk=5 + g)
        self.plog()
        e("s_cmp_le_u32 s58, s99")
        e("s_cbranch_scc1 .Lvloop")
        if not o['dbgts']: self.ts(7)
        e("ds_read_b64 v[24:25], v19")
        e("s_waitcnt vmcnt(16)")
        self.poll_begin()
        self.label(".Lmlchk")
        e("v_cmp_ne_u32 vcc, s55, v129")
        e("v_cmp_ne_u32 s[66:67], s55, v131")
        e("s_or_b64 vcc, vcc, s[66:67]")
        e("s_cbranch_vccz .Lmlok")
        e("buffer_load_dwordx4 v[128:131], v28, s[36:39], s98 offen " + self.P("mlL"))
        e("s_waitcnt vmcnt(0)")
        self.poll_again(".Lmlchk")
        self.label(".Lmlok")
        e("v_mov_b32 v132, v128")
        self.half_reduce("v_max_f32", "v132", "v133")
        e("v_sub_f32 v128, v128, v132")
        e("v_mul_f32 v128, s59, v128")
        e("v_exp_f32 v128, v128")
        e("s_nop 0")
        e("v_mul_f32 v130, v130, v128")
        self.half_reduce("v_add_f32", "v130", "v133")
        e("v_log_f32 v130, v130")
        e("s_nop 0")
        e("v_fma_f32 v130, v132, s59, v130")
        if HP:
            e("s_nop 0")
            e("v_readlane_b32 s60, v130, 0")
            e("v_readlane_b32 s63, v130, 32")
            e("s_mov_b64 s[28:29], s[8:9]")
            e("s_mov_b32 s30, 0x10000000")
            e("v_mov_b32 v130, s60")
            e("v_sub_f32 v159, 0, s63")
            self.wide = True
        e("v_add_f32 v131, v10, v130")
        e("v_sub_f32 v10, 0, v130")
        e("v_exp_f32 v131, -v131")
        e("s_waitcnt lgkmcnt(0)")
        for i in range(16):
            e(f"v_mul_f32 v{48+i}, v{48+i}, v131")
        assert NH == 0
        e("v_and_b32 v13, 7, v1")
        e("v_lshlrev_b32 v13, 2, v13")
        self.poll_begin()
        self.label(".Lrd")
        e("v_mov_b32 v128, v23")
        e("v_and_b32 v129, 0x3ff, v23")
        for st in ("quad_perm:[1,0,3,2]", "quad_perm:[2,3,0,1]", "row_half_mirror"):
            e("s_nop 0")
            e(f"v_add_u32_dpp v128, v128, v128 {st} row_mask:0xf bank_mask:0xf")
            e(f"{'v_add_u32_dpp' if o['c2'] and st[0] == 'q' else 'v_min_u32_dpp'} v129, v129, v129 {st} row_mask:0xf bank_mask:0xf")
        e("s_nop 0")
        e("v_readfirstlane_b32 s60, v128")
        e("v_readfirstlane_b32 s63, v129")
        e("s_and_b32 s100, s60, 0x3ff")
        e("s_cmp_ge_u32 s100, 256")
        e("s_cbranch_scc1 .Lrdok")
        e("buffer_load_dword v23, v13, s[48:51], 0 offen sc1")
        e("s_waitcnt vmcnt(0)")
        self.poll_again(".Lrd")
        self.label(".Lrdok")
        e("s_getreg_b32 s58, hwreg(HW_REG_XCC_ID, 0, 3)")
        e("s_lshl_b32 s100, s58, 2" if not o['c2'] else "s_and_b32 s100, s58, 4")
        e(f"s_cmp_lt_u32 s63, {(84 if o['sg'] else 56 if o['c2'] else 14) if o['cls'] else 1000}")
        e("s_cselect_b32 s100, 64, s100")
        e("v_mov_b32 v128, s55")
        e("v_mov_b32 v26, 1")
        e("v_mov_b32 v27, 0")
        e("s_mov_b32 s99, 0")
        if o['ts'] and not o['prof']: e("s_mov_b32 s3, 999")
        if o['elig']:
            e("v_mov_b32 v21, 4" if 0 else "v_mov_b32 v23, 4")
            e("s_mov_b64 exec, 1")
            e(f"ds_add_u32 v27, v26 offset:{L_CNT + 8}")
            e("s_mov_b64 exec, -1")
        e("s_bfe_u32 s63, s60, 0xa000a")
        e("s_lshr_b32 s60, s60, 20")
        e("s_cmp_gt_u32 s60, s63")
        e("s_cselect_b32 s55, 0x2000, 0")
        if o['cfix'] is not None: e(f"s_mov_b32 s55, {o['cfix'] << 13}")
        e("s_or_b32 s60, s2, s52")
        e("s_cbranch_scc1 .Ldloop")
        e("v_mov_b32 v13, 0")
        e("s_mov_b64 exec, 1")
        e(f"buffer_store_dword v128, v13, s[36:39], 0 offen offset:{WS_EPOCH} sc1")
        e("s_mov_b64 exec, -1")
        self.label(".Ldloop")
        e("s_waitcnt vmcnt(16)")
        self.tick(9)
        NB = o['NB']
        LIM = NF - NB
        def swp(l):
            e("s_cmp_lg_u32 s43, 0")
            e(f"s_cbranch_scc1 .Lswp{l}")
            self.label(f".Lswb{l}")
        def swo(l):
            self.label(f".Lswp{l}")
            for i in range(16): e(f"v_swap_b32 v{48+i}, v{160+i}")
            e("v_swap_b32 v10, v159")
            e("s_mov_b32 s43, 0")
            e(f"s_branch .Lswb{l}")
        def rdtk():
            e("v_readlane_b32 s46, v22, 0")
            e("v_readlane_b32 s47, v22, 1")
            e("s_cmp_eq_u32 s44, 0")
            e("s_cselect_b32 s56, s46, s47")
        def ctx():
            e("s_xor_b32 s43, s44, s45")
            e("s_mul_i32 s60, s43, s42")
            e("s_mov_b32 s45, s44")
            e("s_lshl_b32 s60, s60, 14")
            e("v_xor_b32 v20, s60, v20")
            e("s_lshl_b32 s60, s60, 4")
            e("s_xor_b32 s61, s61, s60")
            e("s_lshl_b32 s41, s61, 5")
            e(f"s_add_u32 s60, s47, {HP[0]}")
            e(f"s_min_u32 s63, s46, {LIM - HP[1] + HP[0]}")
            e("s_cmp_lt_u32 s60, s63")
            e("s_cselect_b32 s44, 1, 0")
        if HP:
            assert not o['ET']
            swp(0)
            rdtk()
        else: e("v_readfirstlane_b32 s56, v22")
        self.pcalc(range(4))
        if HP:
            e(f"s_cmp_ge_u32 s56, {LIM}")
            e("s_cbranch_scc1 .Lhx")
            ctx()
        if NB:
            e(f"s_cmp_lt_u32 s56, {NB}")
            e("s_cbranch_scc1 .Ldbl")
            e(f"s_add_u32 s56, s56, {NB}")
        e(f"s_cmp_ge_u32 s56, {NF}")
        e("s_cbranch_scc1 .Lfx")
        self.label(".Ld1")
        if o['ts'] and not o['prof']:
            e("s_mov_b32 s3, s56")
            self.ts(2)
        self.tile_addr()
        self.sc_addr("s56")
        e("buffer_load_dwordx2 v[24:25], v20, s[36:39], s98 offen " + self.P("scL"))
        if o['ET']:
            e(f"s_cmp_ge_u32 s56, {NF - o['ET']}")
            e("s_cbranch_scc1 .Lde")
            self.label(".Ldt")
        self.ticket()
        self.label(".Ldg")
        EG = o['EG']
        if EG:
            assert EG <= NF - 2 * NB
            e(f"s_cmp_ge_u32 s56, {NF - EG}")
            e("s_cbranch_scc1 .Leg")
        for g in range(4): self.vgrp(g, 14, True, tk=10 + g)
        self.plog()
        e("s_branch .Ldloop")
        if EG:
            self.label(".Leg")
            for g in range(4): self.ld(128, g)
            for g in range(4): self.vgrp(g, 30 - 4 * g, False)
            self.plog()
            e("s_waitcnt vmcnt(16)")
            e("v_readfirstlane_b32 s56, v22")
            self.pcalc(range(4))
            e(f"s_add_u32 s56, s56, {NB}")
            e("s_mov_b32 s99, 1")
            e(f"s_cmp_ge_u32 s56, {NF}")
            e("s_cbranch_scc1 .Lfx")
            e("s_mov_b32 s99, 0")
            self.tile_addr()
            self.sc_addr("s56")
            e("buffer_load_dwordx2 v[24:25], v20, s[36:39], s98 offen " + self.P("scL"))
            self.ticket()
            for g in range(4): self.ld(64, g)
            for g in range(4): self.vgrp(g, 30 - 4 * g, False, 128)
            self.plog()
            e("s_branch .Ldloop")
        if o['ET']:
            self.label(".Lde")
            e("s_mov_b64 exec, 1")
            if o['elig']: e(f"ds_cmpst_rtn_b32 v28, v27, v23, v27 offset:{L_CNT + 8}")
            else: e(f"ds_add_rtn_u32 v28, v27, v26 offset:{L_CNT + 8}")
            e("s_waitcnt lgkmcnt(0)")
            e("v_readfirstlane_b32 s97, v28")
            e("s_mov_b64 exec, -1")
            if o['elig']: e("s_xor_b32 s97, s97, 4")
            else: e("s_cmp_lg_u32 s97, 0")
            e("s_cbranch_scc1 .Ldt")
            e("s_mov_b64 exec, 1")
            e("buffer_atomic_add v26, v27, s[48:51], s100 offen offset:64 sc0 sc1")
            e("s_mov_b64 exec, -1")
            e("v_mov_b32 v22, 0x10000")
            e("s_mov_b32 s101, 1")
            e("s_branch .Ldg")
        if NB:
            self.label(".Ldbl")
            e("s_lshl_b32 s56, s56, 1")
            self.tile_addr()
            self.sc_addr("s56")
            e("buffer_load_dwordx2 v[24:25], v20, s[36:39], s98 offen " + self.P("scL"))
            for g in range(4): self.vgrp(g, 13, True, tk=10 + g)
            self.plog()
            e("s_add_u32 s56, s56, 1")
            self.label(".Ldbl2")
            e("s_waitcnt vmcnt(16)")
            self.tick(14)
            if HP: swp(1)
            self.pcalc(range(4))
            e("s_branch .Ld1")
        if HP:
            swo(0); swo(1)
            self.label(".Lhx")
            e(f"s_cmp_ge_u32 s46, {LIM}")
            e("s_cbranch_scc1 .Lfx")
            e("s_mov_b32 s44, 0")
            self.ticket()
            for g in range(4): self.vgrp(g, 13 - 4 * g, False)
            self.plog()
            e("s_waitcnt vmcnt(0)")
            rdtk()
            e(f"s_cmp_ge_u32 s56, {LIM}")
            e("s_cbranch_scc1 .Lhz")
            ctx()
            e("s_lshl_b32 s60, s56, 1")
            e(f"s_add_u32 s56, s56, {NB}")
            e("s_min_u32 s56, s56, s60")
            self.tile_addr()
            self.sc_addr("s56")
            e("buffer_load_dwordx2 v[24:25], v20, s[36:39], s98 offen " + self.P("scL"))
            e(f"s_cmp_lt_u32 s56, {2 * NB}")
            e("s_cbranch_scc1 .Lhd")
            self.ticket()
            for g in range(4): self.ld(64, g)
            e("s_branch .Ldloop")
            self.label(".Lhd")
            for g in range(4): self.ld(64, g)
            e("s_add_u32 s56, s56, 1")
            e("s_branch .Ldbl2")
            self.label(".Lhz")
            for i in range(16): e(f"v_mov_b32 v{32+i}, 0")
        self.label(".Lfx")
        if o['wp']:
            e("s_lshl_b32 s60, s2, 2")
            e("s_add_u32 s60, s60, s52")
            e("s_lshl_b32 s60, s60, 8")
            e(f"s_add_u32 s60, s60, {WS_PROF}")
            e("v_mov_b32 v13, 0")
            e("s_mov_b64 exec, 1")
            for i in range(8): e(f"buffer_store_dwordx4 v[{224+4*i}:{227+4*i}], v13, s[36:39], s60 offen offset:{16*i}")
            e("s_mov_b64 exec, -1")
            e("s_waitcnt vmcnt(0)")
        self.tail()
        nacc = 64 * (PV + PA) if not o['aw'] else 224
        self.L.append('.section .rodata,"a"')
        self.L.append(".p2align 6")
        self.L.append(f".amdhsa_kernel {NAME}")
        self.L.append(f"  .amdhsa_next_free_vgpr {256 + nacc}")
        self.L.append("  .amdhsa_next_free_sgpr 102")
        self.L.append(f"  .amdhsa_accum_offset 256")
        self.L.append("  .amdhsa_group_segment_fixed_size 0")
        self.L.append("  .amdhsa_kernarg_size 96")
        self.L.append("  .amdhsa_user_sgpr_count 2")
        self.L.append("  .amdhsa_user_sgpr_kernarg_segment_ptr 1")
        self.L.append("  .amdhsa_system_sgpr_workgroup_id_x 1")
        self.L.append("  .amdhsa_float_denorm_mode_32 3")
        self.L.append(".end_amdhsa_kernel")
        return "\n".join(self.L) + "\n"

    def resets(self):
        e = self.e; o = self.o
        if 'r' in o['xq']: return
        e("s_cmp_lg_u32 s52, 1")
        e("s_cbranch_scc1 .Lnoreset")
        for i in range(4): e(f"v_mov_b32 v{24+i}, -1")
        e("v_lshlrev_b32 v18, 4, v1")
        npc = (131072 + 28672 * o['NC'] + 200704) // 1024 if not o['iod'] else 416
        if o['p2s']:
            assert o['NSH'] == 4 and o['iod'] and o['dpk'] and o['sp'] and not o['hp']
            npc = 192
            if o['trim']:
                e("s_and_b32 s63, s2, 0x87")
                e("s_cmp_eq_u32 s63, 0x87")
                e("s_cbranch_scc1 .Lnoreset")
        e("s_mov_b64 s[36:37], s[26:27]")
        e("s_lshl_b32 s63, s2, 10")
        e(f"s_add_u32 s63, s63, {WS_PART}")
        if o['hp']:
            e("s_cmp_lt_u32 s2, 128")
            e("s_cbranch_scc1 .Lnoreset2")
            e(f"s_add_u32 s60, s63, {WS_PART2 - 0x20000}")
            e("buffer_store_dwordx4 v[24:27], v18, s[36:39], s60 offen " + self.P("rsS"))
            self.label(".Lnoreset2")
        for i in range((npc + 255) // 256):
            if npc - 256 * i < 256:
                e(f"s_cmp_ge_u32 s2, {npc - 256 * i}")
                e("s_cbranch_scc1 .Lnoreset")
            e("buffer_store_dwordx4 v[24:27], v18, s[36:39], s63 offen " + self.P("rsS"))
            e("s_add_u32 s63, s63, 0x40000")
        self.label(".Lnoreset")

    def sgtest(self, skip):
        e = self.e
        e("s_cmp_lg_u32 s62, 1")
        e(f"s_cbranch_scc1 {skip}")
        e("s_cmp_ge_u32 s54, 28")
        e(f"s_cbranch_scc1 {skip}")
        e("s_lshr_b32 s69, s53, 2")
        e("s_mul_i32 s69, s69, 28")
        e("s_add_u32 s69, s69, s54")

    def sgload(self):
        e = self.e; o = self.o
        self.sgtest(".Lnosg")
        e("s_mov_b32 s46, 1605632")
        e("s_mov_b32 s47, 0x20000")
        e("s_mov_b64 s[44:45], s[20:21]")
        e("v_lshlrev_b32 v13, 4, v1")
        e("s_mul_i32 s99, s69, 28672")
        e("s_movk_i32 s98, 1024")
        e(f"s_mov_b32 s96, {L_D}")
        e("s_cmp_eq_u32 s52, 3")
        e("s_cbranch_scc1 .Lsg1")
        e("s_mov_b64 s[44:45], s[18:19]")
        e("v_lshrrev_b32 v13, 2, v1")
        e("v_mul_u32_u24 v13, 3584, v13")
        e("v_lshl_add_u32 v13, v31, 4, v13")
        e("s_lshl_b32 s99, s69, 6")
        e(f"s_mov_b32 s98, {16*3584}")
        e(f"s_mov_b32 s96, {L_U}")
        e("s_cmp_eq_u32 s52, 2")
        e("s_cbranch_scc1 .Lsg1")
        e("s_mov_b64 s[44:45], s[16:17]")
        e(f"s_mov_b32 s96, {L_W}")
        self.label(".Lsg1")
        e("s_add_u32 s97, s96, 28672")
        self.label(".Lsg2")
        e("s_mov_b32 m0, s96")
        e("s_add_u32 s96, s96, 1024")
        if o['sgp']: e(f"s_waitcnt vmcnt({o['sgp']})")
        e(f"buffer_load_dwordx4 v13, s[44:47], s99 offen {o['wpol']} lds")
        e("s_add_u32 s99, s99, s98")
        e("s_cmp_lt_u32 s96, s97")
        e("s_cbranch_scc1 .Lsg2")
        self.label(".Lnosg")

    def race(self):
        e = self.e
        X = "0x5bd1e995"
        e("s_cmp_lg_u32 s52, 1")
        e("s_cbranch_scc1 .Lnorace")
        e("s_lshr_b32 s60, s2, 6")
        e("s_lshl_b32 s60, s60, 14")
        e("s_and_b32 s63, s2, 63")
        e("s_lshl_b32 s63, s63, 7")
        e("s_add_u32 s60, s60, s63")
        e("s_bfe_u32 s41, s2, 0x10003")
        e("s_lshl_b32 s63, s41, 13")
        e("s_add_u32 s60, s60, s63")
        e(f"s_add_u32 s60, s60, {WS_RACE}")
        e("s_xor_b32 s63, s60, 0x2000")
        e("s_getreg_b32 s40, hwreg(HW_REG_XCC_ID, 2, 1)")
        e("s_xor_b32 s41, s41, s40")
        e(f"s_mov_b32 s42, {X}")
        e(f"s_mov_b32 s43, {X}")
        e("s_waitcnt lgkmcnt(0)")
        e("s_load_dword s42, s[26:27], s60")
        e("s_load_dword s43, s[26:27], s63")
        e("s_waitcnt lgkmcnt(1)")
        e("s_mov_b64 s[44:45], s[42:43]")
        e(f"s_cmp_eq_u32 s44, {X}")
        e("s_cselect_b32 s44, 1, 0")
        e(f"s_cmp_eq_u32 s45, {X}")
        e("s_cselect_b32 s45, 1, 0")
        e("s_xor_b32 s41, s41, s44")
        e("s_cselect_b32 s40, 20, 10")
        e("s_lshl_b32 s40, 1, s40")
        e("s_add_u32 s40, s40, 1")
        e("s_cmp_eq_u32 s44, s45")
        e("s_cselect_b32 s40, 1, s40")
        self.label(".Lnorace")

    def checkin(self, skip):
        e = self.e
        e("s_cmp_lg_u32 s52, 1")
        e(f"s_cbranch_scc1 {skip}")
        e("v_mov_b32 v22, s40" if self.o['iod'] else "v_mov_b32 v22, 1")
        e("s_getreg_b32 s60, hwreg(HW_REG_XCC_ID, 0, 3)")
        e("s_lshl_b32 s60, s60, 2")
        e("v_mov_b32 v13, s60")
        e("s_mov_b64 exec, 1")
        e(f"buffer_atomic_add v22, v13, s[48:51], 0 offen sc1 {self.o['cpol']}")
        e("s_mov_b64 exec, -1")

    def setup(self):
        e = self.e; o = self.o
        NSH = o['NSH']; XS = o['PV'] + o['XS']
        B1 = 32 * NSH + 24 * XS
        e(f"s_mov_b32 s59, {hex(f2u(math.log2(math.e) / 16.0))}")
        e("v_and_b32 v6, 1, v1")
        e("v_mov_b32 v10, 0xffff")
        e("v_lshlrev_b32 v6, 4, v6")
        e("v_lshlrev_b32 v10, v6, v10")
        e("v_bfe_u32 v11, v1, 1, 2")
        for r in range(4):
            e(f"v_cmp_eq_u32 vcc, {r}, v11")
            e("s_nop 1")
            e(f"v_cndmask_b32 v{6+r}, 0, v10, vcc")
        e("s_lshl_b32 s60, s54, 8")
        e(f"s_add_u32 s60, s60, {WS_CNT}")
        e("v_mov_b32 v21, s60")
        e("s_lshl_b32 s60, s52, 11")
        e(f"s_add_u32 s60, s60, {L_SC}")
        e("v_lshl_add_u32 v19, v20, 3, s60")
        e("v_lshl_add_u32 v27, v1, 4, s60")
        for i in range(4): e(f"v_mov_b32 v{32+i}, 0xff80ff80")
        e("ds_write_b128 v27, v[32:35]")
        e("ds_write_b128 v27, v[32:35] offset:1024")
        e(f"s_lshl_b32 s60, s54, {13 if o['p2s'] else 14}")
        e(f"s_add_u32 s60, s60, {self.o['scb']}")
        e("v_lshl_add_u32 v20, v20, 3, s60")
        e("v_lshrrev_b32 v11, 4, v1")
        e("v_bfe_u32 v29, v1, 2, 2")
        e("v_lshl_add_u32 v29, v11, 3, v29")
        e("v_and_b32 v31, 3, v1")
        e("v_and_b32 v10, 1, v1")
        e("v_mul_u32_u24 v30, 896, v10")
        e("v_lshl_add_u32 v30, v11, 4, v30")
        e("s_cmp_eq_u32 s52, 0")
        e(f"s_cselect_b32 s63, 0, {XS}")
        e("s_lshl_b32 s60, s63, 5")
        e(f"s_sub_u32 s60, {B1 - 32 * NSH}, s60")
        e("v_lshl_add_u32 v23, v1, 5, s58")
        e("v_add_u32 v10, s60, v23")
        e(f"v_cmp_le_u32 vcc, {NSH}, v1")
        e("s_nop 1")
        e("v_cndmask_b32 v23, v23, v10, vcc")
        if XS:
            e("s_mul_i32 s60, s53, 3")
            e("s_add_u32 s60, s60, s52")
            e(f"s_add_u32 s60, s60, {8 * NSH - 1}")
            e("v_mov_b32 v10, s60")
            e("v_mad_u32_u24 v10, v1, 24, v10")
            e(f"v_subrev_u32 v11, {NSH}, v1")
            e("v_cmp_gt_u32 vcc, s63, v11")
            e("s_nop 1")
            e("v_cndmask_b32 v23, v23, v10, vcc")

    def mpoll(self, n, regs, addr, full, lab, m0=72, pol=''):
        e = self.e
        self.poll_begin()
        e(f"s_branch {lab}chk")
        self.label(lab + "poll")
        for p in range(n):
            e(f"s_mov_b64 exec, s[{m0+2*p}:{m0+2*p+1}]")
            e(f"buffer_load_dwordx4 v[{regs+4*p}:{regs+4*p+3}], {addr(p)} " + self.P(pol))
        e(f"s_mov_b64 exec, {full}")
        self.label(lab + "chk")
        for p in range(n):
            e(f"s_waitcnt vmcnt({n-1-p})")
            e(f"v_cmp_u_f32 s[{m0+2*p}:{m0+2*p+1}], v{regs+4*p}, v{regs+4*p+2}")
            if p == 1: e(f"s_or_b64 vcc, s[{m0}:{m0+1}], s[{m0+2}:{m0+3}]")
            elif p > 1: e(f"s_or_b64 vcc, vcc, s[{m0+2*p}:{m0+2*p+1}]")
        e(f"s_cbranch_scc0 {lab}ok")
        self.poll_again(lab + "poll")
        self.label(lab + "ok")

    def pround(self, n, regs, addr, full, m0, pol, mk=False):
        e = self.e
        if mk: e("s_movk_i32 s63, 0x8000")
        for p in range(n):
            if mk:
                e(f"v_and_or_b32 v121, v{regs+4*p+1}, v{regs+4*p+3}, s63")
                e(f"v_cmp_ne_u32 s[{m0+2*p}:{m0+2*p+1}], -1, v121")
            else: e(f"v_cmp_u_f32 s[{m0+2*p}:{m0+2*p+1}], v{regs+4*p}, v{regs+4*p+2}")
        for p in range(n):
            e(f"s_mov_b64 exec, s[{m0+2*p}:{m0+2*p+1}]")
            e(f"buffer_load_dwordx4 v[{regs+4*p}:{regs+4*p+3}], {addr(p)} " + self.P(pol))
        e(f"s_mov_b64 exec, {full}")

    def spoll(self, n, regs, addr, full, lab, tree, c0, c1, m0=6, pol='', mk=False):
        e = self.e
        self.poll_begin()
        e(f"s_branch {lab}chk")
        self.label(lab + "poll")
        e("s_sub_u32 s62, s62, 1")
        e(f"s_cbranch_scc1 {lab}ok")
        self.pround(n, regs, addr, full, m0, pol, mk)
        self.label(lab + "chk")
        tree()
        e(f"v_cmp_u_f32 vcc, v{c0}, v{c1}" if not mk else "v_cmp_ne_u32 vcc, -1, v120")
        e(f"s_cbranch_vccnz {lab}poll")
        self.label(lab + "ok")

    def apoll(self, n, regs, addr, full, lab, win):
        e = self.e
        e(f"s_mov_b32 s62, {10 * self.o['spin']}")
        e(f"s_branch {lab}chk")
        for p in range(n):
            self.label(f"{lab}i{p}")
            e("s_mov_b64 exec, vcc")
            e(f"s_waitcnt vmcnt({win - 1})")
            e(f"buffer_load_dwordx4 v[{regs+4*p}:{regs+4*p+3}], {addr(p)} sc1")
            e(f"s_mov_b64 exec, {full}")
            if p < n - 1:
                e("s_mov_b32 s63, 1")
                e(f"s_branch {lab}b{p}")
        self.label(lab + "again")
        e("s_sub_u32 s62, s62, 1")
        e(f"s_cbranch_scc1 {lab}ok")
        self.label(lab + "chk")
        e("s_mov_b32 s63, 0")
        for p in range(n):
            e(f"v_cmp_u_f32 vcc, v{regs+4*p+1}, v{regs+4*p+3}")
            if p == n - 1: e("s_cmp_lg_u32 s63, 0")
            e(f"s_cbranch_vccnz {lab}i{p}")
            self.label(f"{lab}b{p}")
        e(f"s_cbranch_scc1 {lab}again")
        self.label(lab + "ok")

    def swap13(self):
        e = self.e
        e("s_lshr_b32 s63, s60, 2")
        e("s_xor_b32 s63, s63, s60")
        e("s_and_b32 s63, s63, 0x2000")
        e("s_mul_i32 s63, s63, 5")
        e("s_xor_b32 s60, s60, s63")
        e("s_xor_b32 s60, s60, s55")

    def tail(self):
        e = self.e; o = self.o
        assert o['RA'] == 0
        ET = o['ET']; B1W = o['B1W']; B1G = o['B1G']
        e("s_mov_b32 s54, 0")
        e("v_mov_b32 v16, 0")
        e("v_mov_b32 v17, 1")
        e("s_mov_b64 exec, 1")
        if o['elig']: e(f"ds_cmpst_rtn_b32 v18, v16, v23, v16 offset:{L_CNT + 8}")
        else: e(f"ds_add_rtn_u32 v18, v16, v17 offset:{L_CNT + 8}")
        e("s_mov_b64 exec, -1")
        e("v_lshrrev_b32 v13, 5, v1")
        e("v_lshlrev_b32 v13, 10, v13")
        e("v_and_b32 v14, 7, v1")
        e("v_lshl_add_u32 v13, v14, 5, v13")
        e("v_bfe_u32 v14, v1, 4, 1")
        e("v_lshl_add_u32 v13, v14, 4, v13")
        e("s_lshl_b32 s60, s52, 11")
        e("v_add_u32 v13, s60, v13")
        e("v_lshlrev_b32 v14, 4, v1")
        e("v_lshlrev_b32 v15, 3, v1")
        HP = o['hp']
        if HP:
            e("s_lshl_b32 s60, s42, 3")
            e("s_xor_b32 s60, s60, s2")
            e("s_lshl_b32 s60, s60, 9")
            self.swap13()
            e(f"s_add_u32 s66, s60, {WS_PART + WS_PART2}")
        e("s_lshl_b32 s60, s2, 9")
        if o['iod']: self.swap13()
        e(f"s_add_u32 s60, s60, {WS_PART}")
        e("s_waitcnt lgkmcnt(0)")
        if ET:
            e("s_cmp_lg_u32 s101, 0")
            e("s_cbranch_scc1 .Ldec")
        e("v_readfirstlane_b32 s97, v18")
        e("s_xor_b32 s97, s97, 4" if o['elig'] else "s_cmp_lg_u32 s97, 0")
        e("s_cbranch_scc1 .Lnr" if not HP else "s_cbranch_scc1 .Lnr0")
        e("s_mov_b64 exec, 1")
        e("buffer_atomic_add v26, v16, s[48:51], s100 offen offset:64 sc0 sc1")
        e("s_mov_b64 exec, -1")
        RD = "v14"; CA = "v16"
        if HP:
            self.label(".Lnr0")
            RD = "v178"; CA = "v179"
            e("s_cmp_eq_u32 s45, 0")
            e("s_cselect_b32 s67, s66, s60")
            e("s_cselect_b32 s60, s60, s66")
            e(f"s_cselect_b32 s64, {L_RED2}, 0")
            e(f"s_cselect_b32 s65, 0, {L_RED2}")
            e("s_cselect_b32 s63, 12, 0")
            e("v_add_u32 v176, s64, v13")
            e("v_add_u32 v177, s64, v14")
            e("v_add_u32 v13, s65, v13")
            e("v_add_u32 v178, s65, v14")
            e("v_mov_b32 v179, s63")
            e("s_mov_b32 exec_lo, 0x00ff00ff")
            e("s_mov_b32 exec_hi, 0xff00ff00")
            for j in range(4):
                e(f"ds_write_b128 v176, v[{160+4*j}:{163+4*j}] offset:{L_RED + j*256}")
            e("s_mov_b64 exec, 1")
            e(f"ds_add_rtn_u32 v18, v179, v17 offset:{L_CNT}")
            e("s_mov_b64 exec, -1")
            e("v_xor_b32 v179, 12, v179")
            e("s_waitcnt lgkmcnt(0)")
            e("v_readfirstlane_b32 s66, v18")
            e("s_cmp_lg_u32 s66, 3")
            e("s_cbranch_scc1 .Lnr1")
            for p in range(8):
                e(f"ds_read_b128 v[{180+4*p}:{183+4*p}], v177 offset:{L_RED + p*1024}")
            pk = lambda d, a, b: e(f"v_pk_add_f32 v[{d}:{d+1}], v[{a}:{a+1}], v[{b}:{b+1}]")
            for p in range(1, 8):
                e(f"s_waitcnt lgkmcnt({7-p})")
                for i in (0, 2): pk(180+i, 180+i, 180+4*p+i)
            e("v_cvt_pk_bf16_f32 v180, v180, v181")
            e("v_cvt_pk_bf16_f32 v181, v182, v183")
            e("v_min_u32 v180, -2, v180")
            e("v_min_u32 v181, -2, v181")
            self.label(".Lnr1")
            e("s_cmp_lg_u32 s97, 0")
            e("s_cbranch_scc1 .Lnr")
        def last(n):
            if o['EG']:
                assert not o['fp']
                l = self.newlab("la")
                e("s_cmp_eq_u32 s99, 0")
                e(f"s_cbranch_scc1 {l}")
                for g in range(4): self.vgrp(g, n - 4 * g, False, 128)
                e("s_branch .Lrt")
                self.label(l)
        if not o['fp']:
            last(13)
            for g in range(4): self.vgrp(g, 13 - 4 * g, False)
            e("s_branch .Lrt")
        else: assert not ET
        if ET:
            assert B1W == B1G
            self.label(".Lte2")
            e("s_mov_b32 s101, 2")
            for g in range(4): self.vgrp(g, B1W + 12 - 4 * g, False)
            e("s_branch .Lrt")
        self.label(".Lnr")
        last(12)
        if o['fp']:
            for i in range(3): e(f"v_xor_b32 v{176+i}, {2048*(i+1)}, v13")
            e("v_lshrrev_b32 v179, 5, v1")
            e("v_lshlrev_b32 v179, 7, v179")
            e("v_and_b32 v180, 7, v1")
            e("v_lshl_add_u32 v179, v180, 4, v179")
            e("v_bfe_u32 v180, v1, 4, 1")
            e("v_lshl_add_u32 v179, v180, 3, v179")
        FG = o['fpg'] if o['fp'] else 3
        for g in range(FG): self.vgrp(g, 12 - 4 * g, False)
        if o['fp']:
            e(f"ds_read_b32 v18, v16 offset:{L_CNT}")
            for i in range(3):
                for j in range(4):
                    e(f"ds_read_b128 v[{128+16*i+4*j}:{131+16*i+4*j}], v{176+i} offset:{L_RED + j*256}")
            e("s_waitcnt lgkmcnt(12)")
            e("v_readfirstlane_b32 s63, v18")
            e("s_cmp_lg_u32 s63, 3")
            e("s_cbranch_scc1 .Lslow")
            pk = lambda d, a, b: e(f"v_pk_add_f32 v[{d}:{d+1}], v[{a}:{a+1}], v[{b}:{b+1}]")
            for i in range(3):
                e(f"s_waitcnt lgkmcnt({8 - 4 * i})")
                for r in range(0, 16, 2): pk(48 + r, 48 + r, 128 + 16 * i + r)
            for g in range(FG, 4): self.vgrp(g, 12 - 4 * g, False)
            self.plog()
            self.ts(3)
            e("s_mov_b32 s64, 0x00ff00ff")
            e("s_mov_b32 s65, 0x00ff00ff")
            e("s_nop 3")
            for jj in (0, 8):
                for i in range(4): e(f"v_permlane32_swap_b32 v{48+jj+i}, v{52+jj+i}")
            for jj in (0, 8):
                for i in range(4): e(f"v_add_f32_dpp v{48+jj+i}, v{52+jj+i}, v{48+jj+i} row_ror:8 row_mask:0xf bank_mask:0xf")
            e("s_mov_b64 exec, s[64:65]")
            for jj in (0, 8):
                e(f"v_cvt_pk_bf16_f32 v{48+jj}, v{48+jj}, v{49+jj}")
                e(f"v_cvt_pk_bf16_f32 v{49+jj}, v{50+jj}, v{51+jj}")
                e(f"v_min_u32 v{48+jj}, -2, v{48+jj}")
                e(f"v_min_u32 v{49+jj}, -2, v{49+jj}")
                e(f"buffer_store_dwordx2 v[{48+jj}:{49+jj}], v179, s[36:39], s60 offen offset:{jj*32} " + self.P("paS"))
            e("s_mov_b64 exec, -1")
            self.ts(4)
            e("s_branch .Lnotlast")
            self.label(".Lslow")
        for g in range(FG, 4): self.vgrp(g, 12 - 4 * g, False)
        self.label(".Lrt")
        self.plog()
        self.ts(3)
        if HP:
            e("s_cmp_lg_u32 s66, 3")
            e("s_cbranch_scc1 .Lrt1")
            e("buffer_store_dwordx2 v[180:181], v15, s[36:39], s67 offen " + self.P("paS"))
            self.label(".Lrt1")
        e("s_mov_b32 exec_lo, 0x00ff00ff")
        e("s_mov_b32 exec_hi, 0xff00ff00")
        e("s_nop 3" if not HP else "s_nop 1")
        for j in range(4):
            e(f"ds_write_b128 v13, v[{48+4*j}:{51+4*j}] offset:{L_RED + j*256}")
        e("s_mov_b64 exec, 1")
        e(f"ds_add_rtn_u32 v18, {CA}, v17 offset:{L_CNT}")
        e("s_mov_b64 exec, -1")
        for p in range(8):
            e(f"ds_read_b128 v[{64+4*p}:{67+4*p}], {RD} offset:{L_RED + p*1024}")
        if o['ppk']:
            pk = lambda d, a, b: e(f"v_pk_add_f32 v[{d}:{d+1}], v[{a}:{a+1}], v[{b}:{b+1}]")
            e("s_waitcnt lgkmcnt(6)")
            e("v_readfirstlane_b32 s63, v18")
            for i in (0, 2): pk(64+i, 64+i, 68+i)
            e("s_cmp_lg_u32 s63, 3")
            e("s_cbranch_scc1 .Lnotlast")
            e("s_waitcnt lgkmcnt(4)")
            for i in (0, 2): pk(72+i, 72+i, 76+i)
            e("s_waitcnt lgkmcnt(2)")
            for i in (0, 2): pk(80+i, 80+i, 84+i)
            for i in (0, 2): pk(64+i, 64+i, 72+i)
            e("s_waitcnt lgkmcnt(0)")
            for i in (0, 2): pk(88+i, 88+i, 92+i)
            for i in (0, 2): pk(64+i, 64+i, 80+i)
            for i in (0, 2): pk(64+i, 64+i, 88+i)
        else:
            e("s_waitcnt lgkmcnt(8)" if not o['ts'] else "s_waitcnt lgkmcnt(0)")
            e("v_readfirstlane_b32 s63, v18")
            e("s_cmp_lg_u32 s63, 3")
            e("s_cbranch_scc1 .Lnotlast")
            for p in range(0, 8, 2):
                e(f"s_waitcnt lgkmcnt({6-p})")
                for i in range(4): e(f"v_add_f32 v{64+4*p+i}, v{64+4*p+i}, v{68+4*p+i}")
                if p == 2:
                    for i in range(4): e(f"v_add_f32 v{64+i}, v{64+i}, v{72+i}")
            for i in range(4): e(f"v_add_f32 v{80+i}, v{80+i}, v{88+i}")
            for i in range(4): e(f"v_add_f32 v{64+i}, v{64+i}, v{80+i}")
        e("v_cvt_pk_bf16_f32 v64, v64, v65")
        e("v_cvt_pk_bf16_f32 v65, v66, v67")
        e("v_min_u32 v64, -2, v64")
        e("v_min_u32 v65, -2, v65")
        e("buffer_store_dwordx2 v[64:65], v15, s[36:39], s60 offen " + self.P("paS"))
        self.ts(4)
        self.label(".Lnotlast")
        e("s_cmp_lg_u32 s97, 0")
        e("s_cbranch_scc1 .Lrolewait" if not o['dry'] else "s_cbranch_scc1 .Ldry")
        if ET:
            e("s_cmp_eq_u32 s101, 0")
            e("s_cbranch_scc1 .Llate")
            e("s_cmp_ge_u32 s69, 112")
            e("s_cbranch_scc1 .Lrdone")
            e(f"s_mov_b32 s98, {L_U}")
            e("s_cmp_lt_u32 s69, 56")
            e("s_cbranch_scc1 .Lldg0")
            e(f"s_mov_b32 s98, {L_W + 65536}")
            e("s_branch .Lldw0")
            self.label(".Llate")
        e("s_waitcnt vmcnt(0)")
        self.label(".Ldec")
        self.ts(10)
        e("v_readfirstlane_b32 s69, v26")
        if o['sg']:
            assert o['c2'] and o['elig'] and o['rord'] == 'GW'
            e("s_add_u32 s69, s69, 56")
        e("s_cmp_eq_u32 s100, 64")
        e("s_cbranch_scc1 .Lrgot")
        if o['sg']: e("s_sub_u32 s69, s69, 28")
        Q = 28 if o['c2'] else 7
        e("s_mul_i32 s56, s58, 7" if not o['c2'] else "s_mul_i32 s56, s100, 7")
        e(f"s_cmp_lt_u32 s69, {Q}")
        if o['rord'] == 'GW': e(f"s_cselect_b32 s57, 0, {56 - Q}")
        else:
            e(f"s_cselect_b32 s57, {56 + Q}, 0")
            e(f"s_sub_u32 s57, s57, {Q}")
        e("s_add_u32 s56, s56, s57")
        e(f"s_cmp_lt_u32 s69, {2 * Q}")
        e("s_cselect_b32 s56, s56, 255")
        e("s_add_u32 s69, s69, s56")
        self.label(".Lrgot")
        e("s_mov_b64 exec, 1")
        e("v_mov_b32 v18, s69")
        e(f"ds_write_b32 v16, v18 offset:{L_CNT + 4}")
        e("s_mov_b64 exec, -1")
        e(f"s_mov_b32 s96, {L_W}")
        e("s_cmp_ge_u32 s69, 112")
        e("s_cbranch_scc1 .Lrnone")
        e("s_cmp_lt_u32 s69, 56")
        e("s_cbranch_scc1 .Lldg")
        e("s_sub_u32 s56, s69, 56")
        e("s_mul_i32 s99, s56, 37")
        e("s_lshr_b32 s99, s99, 8")
        e("s_mul_i32 s57, s99, 7")
        e("s_sub_u32 s57, s56, s57")
        e(f"s_mul_i32 s99, s99, {512*896}")
        e("s_lshl_b32 s57, s57, 7")
        e("s_add_u32 s99, s99, s57")
        e("v_lshrrev_b32 v27, 3, v1")
        e("v_mul_u32_u24 v27, 896, v27")
        e("v_and_b32 v18, 7, v1")
        e("v_lshl_add_u32 v27, v18, 4, v27")
        if 'W' in o['fakew']:
            e("v_mov_b32 v27, v14")
            e("s_lshl_b32 s99, s56, 16")
        e(f"s_mov_b32 s98, {L_W + 1024 * o['cut'][0]}")
        e("s_cmp_eq_u32 s101, 1")
        e(f"s_cselect_b32 s98, {L_W + 1024 * B1W}, s98")
        self.label(".Lldw0")
        self.srd(40, 12, 3670016)
        self.label(".Lldw")
        if o['wch']:
            assert not ET and not o['fakew']
            for i in range(4):
                e("s_mov_b32 m0, s96")
                e(f"s_add_u32 s96, s96, {1024 * (1 if i < 3 else 13)}")
                e(f"buffer_load_dwordx4 v27, s[40:43], s99 offen {o['wpol']} lds")
                e(f"s_add_u32 s99, s99, {8 * 896 * (1 if i < 3 else 13)}")
            e("s_cmp_lt_u32 s96, s98")
            e("s_cbranch_scc1 .Lldw")
            e(f"s_sub_u32 s96, s96, {1024 * 60}")
            e(f"s_sub_u32 s99, s99, {8 * 896 * 60}")
            e(f"s_cmp_lt_u32 s96, {L_W + 16384}")
            e("s_cbranch_scc1 .Lldw")
        else:
            e("s_mov_b32 m0, s96")
            e("s_add_u32 s96, s96, 1024")
            e(f"buffer_load_dwordx4 v27, s[40:43], s99 offen {o['wpol']} lds")
            e(f"s_add_u32 s99, s99, {8*896 if 'W' not in o['fakew'] else 1024}")
            e("s_cmp_lt_u32 s96, s98")
            e("s_cbranch_scc1 .Lldw")
        if ET:
            e("s_cmp_eq_u32 s101, 1")
            e("s_cbranch_scc1 .Lte2")
        e("s_branch .Lrdone")
        self.label(".Lrnone")
        e("s_cmp_eq_u32 s101, 1")
        e("s_cbranch_scc1 .Lnr")
        e("s_branch .Lrdone")
        self.label(".Lldg")
        def dload():
            self.srd(40, 20, 1605632)
            e("s_mul_i32 s99, s69, 28672")
            e(f"s_mov_b32 s96, {L_D}")
            self.label(".Lldg2")
            e("s_mov_b32 m0, s96")
            e("s_add_u32 s96, s96, 1024")
            e(f"buffer_load_dwordx4 v14, s[40:43], s99 offen {o['dpol']} lds")
            e("s_add_u32 s99, s99, 1024")
            e(f"s_cmp_lt_u32 s96, {L_D + 1024 * o['cut'][1]}")
            e("s_cbranch_scc1 .Lldg2")
        if o['gch']:
            assert not ET and not o['dq'] and 'G' in o['fresh'] and not o['gfl']
            dload()
            e(f"s_mov_b32 s96, {L_W}")
        e("s_lshl_b32 s99, s69, 6")
        e("v_lshrrev_b32 v27, 2, v1")
        e("v_mul_u32_u24 v27, 3584, v27")
        e("v_lshl_add_u32 v27, v31, 4, v27")
        if 'G' in o['fakew']:
            e("v_mov_b32 v27, v14")
            e("s_mul_i32 s99, s69, 28672")
        e(f"s_mov_b32 s98, {L_U}")
        e("s_cmp_eq_u32 s101, 1")
        e(f"s_cselect_b32 s98, {L_W + 512 * B1G}, s98")
        self.label(".Lldg0")
        self.srd(40, 16, 1605632)
        self.srd(44, 18, 1605632)
        self.label(".Lldg1")
        e("s_mov_b32 m0, s96")
        e(f"s_add_u32 s57, s96, {L_U - L_W}")
        e(f"buffer_load_dwordx4 v27, s[40:43], s99 offen {o['wpol']} lds")
        e("s_mov_b32 m0, s57")
        e("s_add_u32 s96, s96, 1024")
        e(f"buffer_load_dwordx4 v27, s[44:47], s99 offen {o['wpol']} lds")
        e(f"s_add_u32 s99, s99, {16*3584 if 'G' not in o['fakew'] else 1024}")
        e("s_cmp_lt_u32 s96, s98")
        e("s_cbranch_scc1 .Lldg1")
        if ET:
            e("s_cmp_eq_u32 s101, 1")
            e("s_cbranch_scc1 .Lte2")
        if not o['dq'] and not o['gch']: dload()
        self.label(".Lrdone")
        e("s_mov_b32 s54, 1")
        e("s_waitcnt lgkmcnt(0)")
        if o['dry']:
            e("s_branch .Lrolewait")
            self.label(".Ldry")
            e("s_cmp_gt_u32 s63, 1")
            e("s_cbranch_scc1 .Lrolewait")
            for r in (0, 24, 26, 48, 50, 64): e(f"s_mov_b64 s[{r}:{r+1}], 0")
            for r in (56, 57, 59, 61, 63, 96, 97, 98, 99, 100, 101): e(f"s_mov_b32 s{r}, 0")
            e("s_waitcnt lgkmcnt(0)")
            e("s_mov_b64 exec, 0")
            e("s_branch .Lwok")
            self.label(".Ldryend")
            e("s_mov_b64 exec, -1")
            if o['ts']:
                e("s_waitcnt lgkmcnt(0)")
                for k in (5, 11, 12) if not o['hts'] else (): e(f"s_mov_b32 s{70+2*k}, 0")
        self.label(".Lrolewait")
        e("s_mov_b64 s[0:1], -1")
        e("s_barrier")
        e(f"ds_read_b32 v18, v16 offset:{L_CNT + 4}")
        e("s_waitcnt lgkmcnt(0)")
        e("v_readfirstlane_b32 s69, v18")
        e("s_mov_b32 s68, 3")
        e("s_cmp_ge_u32 s69, 112")
        e("s_cbranch_scc1 .Lfin")
        e("s_mov_b32 s68, 1")
        e("s_cmp_lt_u32 s69, 56")
        e("s_cbranch_scc1 .LstageG")
        e("s_mov_b32 s68, 0")
        e("s_sub_u32 s69, s69, 56")
        self.stageW()
        self.stageG()
        self.label(".Lfin")
        if o['ts']:
            self.ts(8)
            e("s_waitcnt lgkmcnt(0)")
            if o['dbgts']:
                e("s_cmp_eq_u32 s94, 0")
                e("s_cbranch_scc1 .Lnodbg")
                e("s_mov_b64 s[48:49], s[84:85]")
                e("s_mov_b32 s50, 256")
                e("s_mov_b32 s51, 0x20000")
                e("s_not_b32 s60, s70")
                e("v_mov_b32 v13, 0")
                e("s_mov_b64 exec, 1")
                for i, r in enumerate(("s60", "s82", "s76", "s88", "s80", "s92", "s94", "s86")):
                    e(f"v_mov_b32 v14, {r}")
                    e(f"buffer_atomic_umax v14, v13, s[48:51], 0 offen offset:{32+4*i} sc1")
                e("s_mov_b64 exec, -1")
                self.label(".Lnodbg")
            e("s_lshl_b32 s60, s2, 2")
            e("s_add_u32 s60, s60, s52")
            e("s_lshl_b32 s60, s60, 6")
            e(f"s_add_u32 s60, s60, {WS_TS}")
            e("v_mov_b32 v13, 0")
            e("s_getreg_b32 s63, hwreg(HW_REG_XCC_ID)")
            for i in range(13):
                e(f"v_mov_b32 v{64+i}, s{70+2*i}")
            e("v_mov_b32 v77, s63")
            e("v_mov_b32 v78, s3")
            e("v_mov_b32 v79, s68")
            e("s_mov_b64 exec, 1")
            for i in range(4):
                e(f"buffer_store_dwordx4 v[{64+4*i}:{67+4*i}], v13, s[36:39], s60 offen offset:{16*i}")
            if o['prof']:
                e("s_mov_b64 exec, -1")
                e("s_lshl_b32 s60, s2, 2")
                e("s_add_u32 s60, s60, s52")
                e("s_lshl_b32 s60, s60, 8")
                e(f"s_add_u32 s60, s60, {WS_PROF}")
                e("v_lshlrev_b32 v13, 2, v1")
                e("buffer_store_dword v0, v13, s[36:39], s60 offen")
        self.label(".Lend")
        e("s_endpgm")

    def bar(self):
        e = self.e
        if self.o['dry']:
            l = self.newlab("nb")
            e(f"s_cbranch_execz {l}")
            e("s_barrier")
            self.label(l)
        else: e("s_barrier")

    def stageW(self):
        e = self.e; o = self.o
        NC = o['NC']; dry = o['dry']
        e("s_mul_i32 s60, s69, 37")
        e("s_lshr_b32 s60, s60, 8")
        e("s_lshl_b32 s60, s60, 1")
        e("s_lshr_b32 s63, s52, 1")
        e("s_add_u32 s60, s60, s63")
        e("s_lshl_b32 s60, s60, 12")
        if o['iod']: self.swap13()
        e("s_and_b32 s63, s52, 1")
        e("s_lshl_b32 s63, s63, 8")
        e("s_add_u32 s60, s60, s63")
        e(f"s_add_u32 s60, s60, {WS_PART}")
        e("v_and_b32 v13, 1, v1")
        e("v_lshlrev_b32 v13, 16, v13")
        e("v_bfe_u32 v14, v1, 1, 3")
        e("v_lshl_add_u32 v13, v14, 9, v13")
        e("v_lshrrev_b32 v14, 4, v1")
        e("v_lshl_add_u32 v13, v14, 4, v13")
        HP = o['hp']
        if HP:
            assert 'W' not in o['fresh']
            e(f"s_add_u32 s61, s60, {WS_PART2}")
        def lds_():
            for t in range(4):
                e(f"buffer_load_dwordx4 v[{64+4*t}:{67+4*t}], v13, s[36:39], s60 offen offset:{t*64} " + self.P("paL"))
            for t in range(4 if HP else 0):
                e(f"buffer_load_dwordx4 v[{100+4*t}:{103+4*t}], v13, s[36:39], s61 offen offset:{t*64} " + self.P("paL"))
        lds_()
        e("v_lshlrev_b32 v14, 7, v29")
        e("v_lshl_add_u32 v14, v31, 3, v14")
        e("s_lshl_b32 s63, s52, 14")
        e("v_add_u32 v14, s63, v14")
        e("v_lshrrev_b32 v15, 5, v1")
        e("v_lshlrev_b32 v15, 8, v15")
        e("v_and_b32 v16, 31, v1")
        e("v_lshl_add_u32 v15, v16, 2, v15")
        e("s_lshl_b32 s63, s52, 9")
        e(f"s_add_u32 s63, s63, {L_R2}")
        e("v_add_u32 v15, s63, v15")
        e("v_lshlrev_b32 v16, 3, v1")
        e("s_lshl_b32 s63, s69, 9")
        e(f"s_add_u32 s63, s63, {WS_Y}")
        if o['iod']:
            e("s_mul_i32 s96, s69, 147")
            e("s_lshr_b32 s96, s96, 11")
            e(f"s_mul_i32 s96, s96, {16384 - 7168}")
            e("s_add_u32 s63, s63, s96")
            e("s_and_b32 s96, s52, 1")
            e("s_lshl_b32 s96, s96, 13")
        else: e("s_mul_i32 s96, s52, 28672")
        e("s_add_u32 s63, s63, s96")
        e(f"s_add_u32 s96, s63, {4*28672}")
        e(f"s_cmp_ge_u32 s52, {NC}")
        e("s_cselect_b32 s59, 1, 0")
        def wtr(t):
            for ct in range(4):
                r = 128 + 16 * t + 4 * ct
                e(f"ds_read_b64_tr_b16 v[{r}:{r+1}], v14 offset:{L_W + t*4096 + ct*32}")
                e(f"ds_read_b64_tr_b16 v[{r+2}:{r+3}], v14 offset:{L_W + t*4096 + ct*32 + 512}")
            e("s_waitcnt lgkmcnt(4)" if not o["ts"] else "s_waitcnt lgkmcnt(0)")
        t0 = 0
        for t1 in (o['wch'] or []):
            assert 'W' not in o['fresh']
            e(f"s_waitcnt vmcnt({(8 if HP else 4) + 16 * (4 - t1)})")
            e("s_barrier")
            for t in range(t0, t1): wtr(t)
            t0 = t1
        e(f"s_waitcnt vmcnt({8 if HP else 4})" if 'W' not in o['fresh'] else "s_waitcnt vmcnt(0)")
        if 'W' in o['fresh']:
            e("v_max3_u32 v98, v64, v66, v68")
            e("v_max3_u32 v99, v70, v72, v74")
            e("v_max3_u32 v98, v98, v76, v78")
            e("v_max_u32 v98, v98, v99")
            e("v_cmp_eq_u32 s[64:65], -1, v98")
            e("s_or_b32 s64, s64, 1")
        e("s_barrier")
        self.ts(9)
        if 'W' in o['fresh']:
            e("s_mov_b64 exec, s[64:65]")
            lds_()
            e("s_mov_b64 exec, -1")
        for t in range(t0, 4): wtr(t)
        self.poll_begin()
        e("s_waitcnt lgkmcnt(0)")
        if 'W' in o['fresh']: e("s_mov_b64 exec, s[64:65]")
        e("s_branch .Lwchk")
        self.label(".Lwpoll")
        lds_()
        self.label(".Lwchk")
        if HP:
            e("s_waitcnt vmcnt(4)")
            e("v_max3_u32 v98, v64, v66, v68")
            e("v_max3_u32 v99, v70, v72, v74")
            e("v_max3_u32 v98, v98, v76, v78")
            e("s_waitcnt vmcnt(2)")
            e("v_max3_u32 v99, v99, v100, v102")
            e("v_max3_u32 v98, v98, v104, v106")
            e("s_waitcnt vmcnt(0)")
            e("v_max3_u32 v99, v99, v108, v110")
            e("v_max3_u32 v98, v98, v112, v114")
        else:
            e("s_waitcnt vmcnt(2)")
            e("v_max3_u32 v98, v64, v66, v68")
            e("s_waitcnt vmcnt(0)")
            e("v_max3_u32 v99, v70, v72, v74")
            e("v_max3_u32 v98, v98, v76, v78")
        e("v_max_u32 v98, v98, v99")
        e("v_cmp_eq_u32 vcc, -1, v98")
        e("s_and_b64 exec, exec, vcc")
        e("s_cbranch_scc0 .Lwok")
        self.poll_again(".Lwpoll")
        self.label(".Lwok")
        e("s_mov_b64 exec, s[0:1]")
        self.ts(5)
        for t in range(4):
            for ct in range(4):
                cin = "0" if t == 0 else f"v[{80+4*ct}:{83+4*ct}]"
                r = 128 + 16 * t + 4 * ct
                e(f"v_mfma_f32_16x16x32_bf16 v[{80+4*ct}:{83+4*ct}], v[{64+4*t}:{67+4*t}], v[{r}:{r+3}], {cin}")
        for t in range(4 if HP else 0):
            for ct in range(4):
                r = 128 + 16 * t + 4 * ct
                e(f"v_mfma_f32_16x16x32_bf16 v[{80+4*ct}:{83+4*ct}], v[{100+4*t}:{103+4*t}], v[{r}:{r+3}], v[{80+4*ct}:{83+4*ct}]")
        e("s_cmp_lg_u32 s59, 0")
        e("s_nop 3")
        for ct in range(4):
            e(f"v_pk_add_f32 v[{80+4*ct}:{81+4*ct}], v[{80+4*ct}:{81+4*ct}], v[{82+4*ct}:{83+4*ct}]")
        for ct in range(4):
            e(f"v_permlane32_swap_b32 v{80+4*ct}, v{81+4*ct}")
        for ct in range(4):
            e(f"v_add_f32 v{80+4*ct}, v{80+4*ct}, v{81+4*ct}")
        e("v_permlane16_swap_b32 v80, v84")
        e("s_nop 0")
        e("v_permlane16_swap_b32 v88, v92")
        e("v_add_f32 v80, v80, v84")
        e("s_nop 0")
        e("v_add_f32 v88, v88, v92")
        e("ds_write2_b32 v15, v80, v88 offset0:0 offset1:32")
        e("s_waitcnt lgkmcnt(0)")
        self.bar()
        if NC < 4: e("s_cbranch_scc1 .Lfin")
        for w in range(4):
            e(f"ds_read_b64 v[{64+2*w}:{65+2*w}], v16 offset:{L_R2 + 512*w}")
        e("s_waitcnt lgkmcnt(2)")
        e("v_pk_add_f32 v[64:65], v[64:65], v[66:67]")
        e("s_waitcnt lgkmcnt(0)")
        e("v_pk_add_f32 v[68:69], v[68:69], v[70:71]")
        e("v_pk_add_f32 v[64:65], v[64:65], v[68:69]")
        e("buffer_store_dwordx2 v[64:65], v16, s[36:39], s63 offen " + self.P("yS"))
        if NC == 8:
            e("buffer_store_dwordx2 v[64:65], v16, s[36:39], s96 offen " + self.P("yS"))
        if dry: e("s_cbranch_execz .Lgok")
        e("s_branch .Lfin")

    def stageG(self):
        e = self.e; o = self.o; NC = o['NC']; dry = o['dry']; gts = o['gts']
        WS_P2 = WS_Y + NC * 28672
        P2S = o['p2s']
        WS_P2I = globals()['WS_P2I'] if not P2S else o['scb']
        iod = o['iod']
        self.cyc = gts
        if gts == 2: gts = False
        self.label(".LstageG")
        if o['dq']:
            self.srd(40, 20, 1605632)
            e("s_lshl_b32 s60, s69, 2")
            e("s_add_u32 s60, s60, s52")
            e("s_mul_i32 s99, s60, 7168")
            e("s_mul_i32 s96, s52, 7168")
            e(f"s_add_u32 s96, s96, {L_D}")
            for i in range(7):
                e("s_mov_b32 m0, s96")
                e("s_add_u32 s96, s96, 1024")
                e(f"buffer_load_dwordx4 v14, s[40:43], s99 offen {o['dpol']} lds")
                e("s_add_u32 s99, s99, 1024")
        e("s_and_b32 s60, s52, 1")
        e("s_mul_i32 s60, s60, 56")
        e("v_add_u32 v14, s60, v1")
        e("v_lshrrev_b32 v13, 4, v14")
        e("v_lshlrev_b32 v13, 9, v13")
        e("v_and_b32 v15, 15, v14")
        e("v_lshl_add_u32 v13, v15, 4, v13")
        e("s_lshr_b32 s63, s52, 1")
        e("s_lshl_b32 s60, s63, 8")
        e(f"s_add_u32 s60, s60, {WS_Y}")
        e("v_add_u32 v13, s60, v13")
        e("s_mul_i32 s63, s63, 896")
        e("v_lshl_add_u32 v16, v14, 3, s63")
        self.srd(40, 4, 1792)
        e("s_mov_b32 s64, -1")
        e("s_mov_b32 s65, 0x00ffffff")
        if NC == 8: e("s_mul_i32 s60, s58, 28672")
        if iod:
            e("s_lshr_b32 s60, s58, 2")
            e("s_lshl_b32 s60, s60, 13")
            e("s_xor_b32 s60, s60, s55")
        for p in range(8):
            if iod: e(f"s_add_u32 s{28+p}, s60, {3584*(p&1) + 16384*(p>>1)}")
            elif NC == 8: e(f"s_add_u32 s{28+p}, s60, {3584*p}")
            elif NC == 2:
                e(f"s_mov_b32 s{28+p}, {3584*p}")
                e(f"s_cmp_eq_u32 s58, {p}")
                e(f"s_cselect_b32 s{28+p}, {3584*p + 28672}, s{28+p}")
            else: e(f"s_mov_b32 s{28+p}, {3584*p}")
        ya = lambda p: f"v13, s[36:39], s{28+p} offen"
        e("v_mov_b32 v96, 0")
        e("v_mov_b32 v97, 0")
        for t in range(16): e(f"v_mov_b32 v{33+2*t}, -1")
        e("s_mov_b64 exec, s[64:65]")
        e("buffer_load_dwordx2 v[104:105], v16, s[40:43], 0 offen")
        def yl():
            for p in range(8):
                e(f"buffer_load_dwordx4 v[{32+4*p}:{35+4*p}], {ya(p)} " + self.P("yL"))
        if 'G' not in o['fresh']: yl()
        e("s_mov_b64 exec, -1")
        e("s_lshl_b32 s60, s52, 3")
        e("v_mov_b32 v17, s60")
        e("s_and_b32 s60, s60, 16")
        e("v_mov_b32 v18, s60")
        e("v_bfe_u32 v14, v1, 3, 1")
        e("v_lshlrev_b32 v14, 4, v14")
        e("v_and_b32 v15, 7, v1")
        e("v_lshl_add_u32 v28, v15, 1, v14")
        e("s_lshl_b32 s60, s52, 5")
        e("v_add_u32 v28, s60, v28")
        e("v_lshrrev_b32 v14, 4, v1")
        e("v_and_b32 v19, 1, v1")
        e("v_lshlrev_b32 v19, 4, v19")
        e("v_lshl_add_u32 v19, v14, 5, v19")
        e("v_and_b32 v20, 15, v1")
        e("v_lshlrev_b32 v20, 3, v20")
        if iod:
            e("s_and_b32 s60, s52, 1")
            e(f"s_mul_i32 s60, s60, {7*16384}")
            e("s_lshr_b32 s63, s52, 1")
            e("s_lshl_b32 s63, s63, 13")
            e("s_xor_b32 s63, s63, s55")
            e("s_add_u32 s60, s60, s63")
        else: e(f"s_mul_i32 s60, s52, {7*7168}")
        e("s_lshl_b32 s63, s69, 7")
        e("s_add_u32 s60, s60, s63")
        PS = [96, 97, 98, 99, 100, 101, 57]
        for j in range(7): e(f"s_add_u32 s{PS[j]}, s60, {WS_P2 + 7168*j if not iod else WS_P2I + 16384*j}")
        e("v_and_b32 v26, 1, v14")
        e("v_mul_u32_u24 v26, 896, v26")
        e("v_lshl_add_u32 v26, v15, 2, v26")
        e("v_and_b32 v14, 2, v14")
        e("v_add_u32 v26, v26, v14")
        e("s_min_u32 s60, s69, 27" if not iod else "s_lshr_b32 s60, s69, 1")
        e("s_lshl_b32 s60, s60, 5")
        e("v_add_u32 v26, s60, v26")
        e("v_lshlrev_b32 v27, 4, v1")
        if iod:
            e("s_lshl_b32 s56, s60, 9")
            e("s_cmp_ge_u32 s69, 28")
            e(f"s_cselect_b32 s61, {14*16384 - 0x2000}, 0")
            e("s_sub_u32 s56, s56, s61")
            e(f"s_add_u32 s56, s56, {WS_P2I}")
            e("s_xor_b32 s56, s56, s55")
            e("s_and_b32 s59, s69, 1")
            e("s_or_b32 s59, s59, s52")
        else:
            e("s_mul_i32 s56, s69, 7168")
            e(f"s_add_u32 s56, s56, {WS_P2}")
            e("s_cmp_ge_u32 s69, 28")
            e("s_cselect_b32 s59, 1, s52")
        e("s_add_u32 s61, s56, 4096")
        self.srd(44, 22, 1792)
        e("s_mov_b32 s53, 0x3f803f80")
        e("s_mov_b32 s24, 0")
        e("s_mov_b32 s25, 0x80000000")
        e("s_mov_b32 s26, -1")
        e("s_mov_b32 s27, 0xffff")
        e("s_mov_b64 s[48:49], 0xffff")
        e("s_mov_b32 s50, 0x00ff00ff")
        e("s_mov_b32 s51, 0x00ff00ff")
        k1 = -2.0 * math.sqrt(2.0 / math.pi) * math.log2(math.e)
        e(f"v_mov_b32 v21, {hex(f2u(k1))}")
        e("v_and_b32 v14, 8, v1")
        e("v_cmp_ne_u32 s[66:67], 0, v14")
        e("v_lshlrev_b32 v14, 6, v29")
        e("v_and_b32 v15, 1, v1")
        e("v_lshl_add_u32 v14, v15, 3, v14")
        e("v_bfe_u32 v15, v1, 1, 1")
        e(f"v_mul_u32_u24 v15, {L_U - L_W}, v15")
        e("v_add_u32 v14, v14, v15")
        e("s_lshl_b32 s60, s52, 4")
        e("v_add_u32 v14, s60, v14")
        e("v_mul_u32_u24 v15, 896, v29")
        e("v_lshl_add_u32 v15, v31, 3, v15")
        e("s_mul_i32 s60, s52, 224")
        e(f"s_add_u32 s60, s60, {L_D}")
        e("v_add_u32 v15, s60, v15")
        if o['dpk']:
            assert iod
            e("v_lshrrev_b32 v98, 4, v1")
            e("v_lshl_add_u32 v20, v98, 14, v20")
            e("v_bfe_u32 v98, v1, 2, 2")
            e("v_mov_b32 v99, 128")
            for G in range(4):
                e(f"v_cmp_eq_u32 vcc, {G}, v98")
                e(f"v_mov_b32 v{64+G}, 0")
                e("s_nop 0")
                e(f"v_cndmask_b32 v{244+G}, v99, v19, vcc")
            e(f"ds_write_b128 v99, v[64:67] offset:{L_ACT}")
            e("s_waitcnt lgkmcnt(0)")
        if o['fold']:
            e(f"v_mov_b32 v22, {hex(f2u(1.0/448))}")
            e(f"v_mov_b32 v23, {hex(f2u(1.0/448))}")
            e("v_and_b32 v18, 8, v1")
            e("v_lshlrev_b32 v18, 1, v18")
            e("v_min_u32 v30, 2, v31")
            e("v_mul_u32_u24 v30, 896, v30")
            e("v_lshrrev_b32 v98, 4, v1")
            e("v_lshl_add_u32 v30, v98, 4, v30")
            e("v_and_b32 v98, 2, v1")
            e("v_lshl_add_u32 v30, v98, 5, v30")
            for i in range(4): e(f"v_mov_b32 v{64+i}, s53")
            e("s_mov_b64 exec, s[64:65]")
            e(f"ds_write_b128 v27, v[64:67] offset:{L_XN + 1792 + 64}")
            e("s_mov_b64 exec, -1")
            e("s_waitcnt lgkmcnt(0)")
        k0 = 0
        def gtr(a, b):
            for ks in range(a, b):
                e(f"ds_read_b64_tr_b16 v[{160+4*ks}:{161+4*ks}], v14 offset:{L_W + ks*2048}")
                e(f"ds_read_b64_tr_b16 v[{162+4*ks}:{163+4*ks}], v14 offset:{L_W + ks*2048 + 256}")
                if ks - a in (6, 10):
                    e("s_waitcnt lgkmcnt(6)")
        def dtr():
            for j in range(7):
                e(f"ds_read_b64_tr_b16 v[{216+4*j}:{217+4*j}], v15 offset:{j*32}")
                e(f"ds_read_b64_tr_b16 v[{218+4*j}:{219+4*j}], v15 offset:{j*32 + 3584}")
        if o['gfl']:
            e("v_mov_b32 v98, 0")
            e("v_mov_b32 v99, 1")
            e("s_waitcnt vmcnt(0)")
            e("s_cmp_eq_u32 s54, 0")
            e("s_cbranch_scc1 .Lgnl")
            e(f"ds_write_b32 v98, v99 offset:{L_CNT + 12}")
            self.label(".Lgnl")
            e("s_mov_b64 exec, s[64:65]")
            yl()
            self.poll_begin()
            e("s_branch .Lgpc")
            self.label(".Lgpre")
            e("s_waitcnt vmcnt(0)")
            self.pround(8, 32, ya, "s[64:65]", 6, "yL")
            e("s_sub_u32 s62, s62, 1")
            e("s_cbranch_scc1 .Lgtr")
            self.label(".Lgpc")
            e(f"ds_read_b32 v99, v98 offset:{L_CNT + 12}")
            e("s_waitcnt lgkmcnt(0)")
            e("v_cmp_eq_u32 vcc, 0, v99")
            e("s_cbranch_vccnz .Lgpre")
            self.label(".Lgtr")
            e("s_mov_b64 exec, -1")
            self.ts(9)
        else:
            for n, kc in enumerate(o['gch'] or []):
                e(f"s_waitcnt vmcnt({1 + 4 * (14 - kc)})")
                e("s_barrier")
                if n == 0:
                    dtr()
                    e("s_waitcnt lgkmcnt(0)")
                gtr(k0, kc)
                e("s_waitcnt lgkmcnt(0)")
                k0 = kc
            e("s_waitcnt vmcnt(9)" if 'G' not in o['fresh'] else "s_waitcnt vmcnt(1)")
            e("s_barrier")
            self.ts(9)
            if 'G' in o['fresh']:
                e("s_mov_b64 exec, s[64:65]")
                yl()
                e("s_mov_b64 exec, -1")
        gtr(k0, 14)
        if not o['gch']:
            e("s_waitcnt lgkmcnt(0)")
            dtr()
        e("s_waitcnt vmcnt(8)")
        e("v_lshlrev_b32 v100, 16, v104")
        e("v_and_b32 v101, 0xffff0000, v104")
        e("v_lshlrev_b32 v102, 16, v105")
        e("v_and_b32 v103, 0xffff0000, v105")
        e("s_mov_b64 exec, s[64:65]")
        pk = lambda d, a, b: e(f"v_pk_add_f32 v[{d}:{d+1}], v[{a}:{a+1}], v[{b}:{b+1}]")
        if o['sp']:
            assert o['fold']
            def gtree():
                e("s_waitcnt vmcnt(7)")
                for i in (0, 2): pk(64+i, 32+i, 100+i)
                e("s_waitcnt vmcnt(5)")
                for i in (0, 2): pk(68+i, 36+i, 40+i)
                e("s_waitcnt vmcnt(3)")
                for i in (0, 2): pk(72+i, 44+i, 48+i)
                for i in (0, 2): pk(64+i, 64+i, 68+i)
                e("s_waitcnt vmcnt(1)")
                for i in (0, 2): pk(76+i, 52+i, 56+i)
                for i in (0, 2): pk(64+i, 64+i, 72+i)
                e("s_waitcnt vmcnt(0)")
                for i in (0, 2): pk(76+i, 76+i, 60+i)
                for i in (0, 2): pk(108+i, 64+i, 76+i)
            self.spoll(8, 32, ya, "s[64:65]", ".Lg", gtree, 108, 110, pol="yL")
            self.ts(5)
        else:
            if o['gw']: self.apoll(8, 32, ya, "s[64:65]", ".Lg", o['gw'])
            else: self.mpoll(8, 32, ya, "s[64:65]", ".Lg", m0=6, pol="yL")
            self.ts(5)
            for p in range(0, 8, 2):
                for i in (0, 2): pk(64+4*p+i, 32+4*p+i, 36+4*p+i)
            for i in (0, 2):
                pk(64+i, 64+i, 72+i); pk(80+i, 80+i, 88+i)
        if o['fold']:
            DP = ("quad_perm:[1,0,3,2] row_mask:0xf bank_mask:0xf", "quad_perm:[2,3,0,1] row_mask:0xf bank_mask:0xf",
                  "row_half_mirror row_mask:0xf bank_mask:0xf", "row_mirror row_mask:0xf bank_mask:0xf",
                  "row_bcast:15 row_mask:0xa bank_mask:0xf", "row_bcast:31 row_mask:0xc bank_mask:0xf")
            def dp(n, fill):
                e(f"v_add_f32_dpp v96, v96, v96 {DP[n]}")
                e(f"v_add_f32_dpp v97, v97, v97 {DP[n]}")
                e(fill)
            if not o['sp']:
                for i in (0, 2): pk(64+i, 64+i, 100+i)
                for i in (0, 2): pk(108+i, 64+i, 80+i)
            e("v_cvt_pk_bf16_f32 v112, v108, v109")
            e("v_cvt_pk_bf16_f32 v113, v110, v111")
            e(f"ds_write_b64 v16, v[112:113] offset:{L_XN}")
            e("v_dot2_f32_bf16 v96, v112, s53, 0")
            e("v_dot2_f32_bf16 v97, v112, v112, 0")
            e("v_dot2_f32_bf16 v96, v113, s53, v96")
            e("v_dot2_f32_bf16 v97, v113, v113, v97")
            e("s_mov_b64 exec, s[0:1]")
            e("s_nop 1")
            ND1 = o['nd1']
            for n in range(ND1): dp(n, "s_nop 0" if n < ND1 - 1 else "s_waitcnt lgkmcnt(0)")
            self.bar()
            if gts: self.ts(1)
            def ar(ks): e(f"ds_read_b128 v[{104+4*ks}:{107+4*ks}], v30 offset:{L_XN + ks*64}")
            def mf(ks):
                cin = "0" if ks == 0 else "v[64:67]"
                e(f"v_mfma_f32_16x16x32_bf16 v[64:67], v[{104+4*ks}:{107+4*ks}], v[{160+4*ks}:{163+4*ks}], {cin}")
            I1, I2 = o['il']
            KB = o['kb2']
            KS = o['ks2']
            q = []
            def rd(x):
                if x == 'h': e(f"ds_read_u16 v25, v26 offset:{L_XN}")
                elif x == 'st': e(f"ds_read_b128 v[76:79], v18 offset:{L_ST}")
                elif x == 'sw': e(f"ds_write_b64 v17, v[96:97] offset:{L_ST}")
                else: ar(x)
                q.append(x)
            def need(x):
                if x in q:
                    i = q.index(x)
                    e(f"s_waitcnt lgkmcnt({len(q) - 1 - i})")
                    del q[:i + 1]
            for ks in range(I1): rd(ks)
            if o['p2z']:
                e(f"buffer_store_dwordx2 v[22:23], v20, s[36:39], s{PS[0]} offen " + self.P("p2S"))
                e("s_mov_b64 exec, s[26:27]")
                e(f"buffer_store_dwordx2 v[22:23], v20, s[36:39], s{PS[4]} offen " + self.P("p2S"))
                e("s_mov_b64 exec, s[0:1]")
            for n in range(ND1, 6): dp(n, "s_nop 0" if n < 5 else "s_mov_b64 exec, s[24:25]")
            rd('sw')
            e("s_mov_b64 exec, s[0:1]")
            for ks in range(I1, I2): rd(ks)
            todo = list(range(I2, 14)) + ['h']
            for ks in range(KS):
                if ks == KB:
                    need('sw')
                    self.bar()
                    if gts: self.ts(2)
                    rd('st')
                need(ks); mf(ks)
                n = o['rpm']
                for x in todo[:n]: rd(x)
                del todo[:n]
            assert not todo
            need('st')
            if o['rsq']:
                st = ["v_pk_add_f32 v[76:77], v[76:77], v[78:79]",
                      "v_pk_mul_f32 v[76:77], v[76:77], v[22:23]",
                      "v_fma_f32 v77, -v76, v76, v77",
                      f"v_add_f32 v77, {hex(f2u(1e-5))}, v77",
                      "v_rsq_f32 v77, v77"]
            else:
                st = ["v_pk_add_f32 v[76:77], v[76:77], v[78:79]",
                  "v_pk_mul_f32 v[76:77], v[76:77], v[22:23]",
                  "v_fma_f32 v77, -v76, v76, v77",
                  "v_cvt_pk_bf16_f32 v78, v76, v77",
                  "v_and_b32 v77, 0xffff0000, v78",
                  f"v_add_f32 v77, {hex(f2u(1e-5))}, v77",
                  "v_cvt_pk_bf16_f32 v77, 0, v77",
                  "v_sqrt_f32 v77, v77",
                  "v_lshlrev_b32 v76, 16, v78",
                  "v_cvt_pk_bf16_f32 v77, 0, v77",
                  "v_rcp_f32 v77, v77"]
            for ks in range(KS, 14):
                for x in st[:2]: e(x)
                del st[:2]
                need(ks); mf(ks)
            for x in st: e(x)
            pad = 8 - len(st) - (1 if KS == 14 else 0)
            assert not o['rw']
            if pad > 0: e(f"s_nop {pad - 1}")
            if gts: self.ts(3)
            e("v_mov_b32_dpp v69, v65 row_ror:8 row_mask:0xf bank_mask:0xf")
            e("v_mov_b32_dpp v72, v66 row_ror:8 row_mask:0xf bank_mask:0xf")
            e("v_cndmask_b32 v70, v64, v69, s[66:67]")
            e("v_cndmask_b32 v74, v66, v72, s[66:67]")
            e("v_fma_f32 v70, -v76, v74, v70")
            e("v_mul_f32 v70, v70, v77")
            e("v_cvt_pk_bf16_f32 v70, 0, v70")
            e("v_mul_f32 v73, v70, v70")
            e(f"v_fmamk_f32 v73, v73, {hex(f2u(k1 * 0.044715))}, v21")
            e("v_mul_f32 v73, v73, v70")
            e("v_exp_f32 v73, v73")
            e("v_mov_b32_dpp v68, v64 row_ror:8 row_mask:0xf bank_mask:0xf")
            e("v_cndmask_b32 v74, v72, v66, s[66:67]")
            e("v_add_f32 v73, 1.0, v73")
            e("v_rcp_f32 v73, v73")
            e("v_cndmask_b32 v71, v68, v65, s[66:67]")
            e("v_fma_f32 v71, -v76, v74, v71")
            e("v_mul_f32 v73, v73, v70")
            e("v_mul_f32 v71, v71, v77")
            e("v_cvt_pk_bf16_f32 v73, 0, v73")
            e("v_cvt_pk_bf16_f32 v71, 0, v71")
            e("v_mul_f32 v73, v73, v71")
        else:
            for i in (0, 2): pk(108+i, 64+i, 80+i)
            def cvt():
                e("v_cvt_pk_bf16_f32 v112, v108, v109")
                e("v_cvt_pk_bf16_f32 v113, v110, v111")
            UP = ["v_lshlrev_b32 v108, 16, v112", "v_and_b32 v109, 0xffff0000, v112", "v_lshlrev_b32 v110, 16, v113", "v_and_b32 v111, 0xffff0000, v113"]
            cvt()
            for u in UP: e(u)
            pk(108, 108, 100); pk(110, 110, 102)
            cvt()
            e("v_dot2_f32_bf16 v96, v112, s53, 0")
            e("v_dot2_f32_bf16 v97, v112, v112, 0")
            e("v_dot2_f32_bf16 v96, v113, s53, v96")
            e("v_dot2_f32_bf16 v97, v113, v113, v97")
            e(f"ds_write_b64 v16, v[112:113] offset:{L_H}")
            e("s_mov_b64 exec, s[0:1]")
            e(UP[0])
            fill = UP[1:] + ["s_nop 0", "s_nop 0", "s_mov_b64 exec, s[24:25]"]
            for n, st in enumerate(("quad_perm:[1,0,3,2] row_mask:0xf bank_mask:0xf", "quad_perm:[2,3,0,1] row_mask:0xf bank_mask:0xf",
                       "row_half_mirror row_mask:0xf bank_mask:0xf", "row_mirror row_mask:0xf bank_mask:0xf",
                       "row_bcast:15 row_mask:0xa bank_mask:0xf", "row_bcast:31 row_mask:0xc bank_mask:0xf")):
                e(f"v_add_f32_dpp v96, v96, v96 {st}")
                e(f"v_add_f32_dpp v97, v97, v97 {st}")
                e(fill[n])
            e(f"ds_write_b64 v17, v[96:97] offset:{L_ST}")
            e("s_mov_b64 exec, s[0:1]")
            e("s_waitcnt lgkmcnt(0)")
            self.bar()
            if gts: self.ts(1)
            e(f"ds_read_b128 v[64:67], v18 offset:{L_ST}")
            e("s_waitcnt lgkmcnt(0)")
            pk(64, 64, 66)
            e(f"v_mul_f32 v64, {hex(f2u(1.0/448))}, v64")
            e(f"v_mul_f32 v65, {hex(f2u(1.0/448))}, v65")
            e("v_fma_f32 v65, -v64, v64, v65")
            e("v_cvt_pk_bf16_f32 v66, v64, v65")
            e("v_and_b32 v65, 0xffff0000, v66")
            e("v_lshlrev_b32 v64, 16, v66")
            e(f"v_add_f32 v65, {hex(f2u(1e-5))}, v65")
            e("v_cvt_pk_bf16_f32 v65, 0, v65")
            e("v_sqrt_f32 v65, v65")
            for i in (108, 110): e(f"v_pk_add_f32 v[{i}:{i+1}], v[{i}:{i+1}], v[64:65] op_sel_hi:[1,0] neg_lo:[0,1] neg_hi:[0,1]")
            e("v_cvt_pk_bf16_f32 v65, 0, v65")
            e("v_rcp_f32 v65, v65")
            cvt()
            for u in UP: e(u)
            for i in (108, 110): e(f"v_pk_mul_f32 v[{i}:{i+1}], v[{i}:{i+1}], v[64:65] op_sel:[0,1] op_sel_hi:[1,1]")
            e("s_mov_b64 exec, s[64:65]")
            cvt()
            e(f"ds_write_b64 v16, v[112:113] offset:{L_XN}")
            e("s_mov_b64 exec, s[0:1]")
            e("s_waitcnt lgkmcnt(0)")
            self.bar()
            if gts: self.ts(2)
            for ks in range(14):
                e(f"ds_read_b128 v[{104+4*ks}:{107+4*ks}], v30 offset:{L_XN + ks*64}")
            for ks in range(14):
                e(f"s_waitcnt lgkmcnt({13-ks if not gts else 0})")
                cin = "0" if ks == 0 else "v[64:67]"
                e(f"v_mfma_f32_16x16x32_bf16 v[64:67], v[{104+4*ks}:{107+4*ks}], v[{160+4*ks}:{163+4*ks}], {cin}")
            e(f"ds_read_u16 v25, v26 offset:{L_H}")
            if o['rw']:
                for t in range(7): e(f"v_mov_b32 v{161+2*t}, -1")
            else: e("s_nop 6")
            e("v_mov_b32_dpp v68, v64 row_ror:8 row_mask:0xf bank_mask:0xf")
            e("v_mov_b32_dpp v69, v65 row_ror:8 row_mask:0xf bank_mask:0xf")
            e("v_cndmask_b32 v70, v64, v69, s[66:67]")
            e("v_cndmask_b32 v71, v68, v65, s[66:67]")
            e("v_cvt_pk_bf16_f32 v70, 0, v70")
            e("v_mul_f32 v73, v70, v70")
            e(f"v_fmamk_f32 v73, v73, {hex(f2u(k1 * 0.044715))}, v21")
            e("v_mul_f32 v73, v73, v70")
            e("v_exp_f32 v73, v73")
            e("v_cvt_pk_bf16_f32 v71, 0, v71")
            e("v_add_f32 v73, 1.0, v73")
            e("v_rcp_f32 v73, v73")
            e("s_nop 0")
            e("v_mul_f32 v73, v73, v70")
            e("v_cvt_pk_bf16_f32 v73, 0, v73")
            e("v_mul_f32 v73, v73, v71")
        if gts: self.ts(6)
        e("s_mov_b64 exec, s[48:49]")
        e("v_cvt_pk_bf16_f32 v75, v73, v73")
        e(f"ds_write_b16 v28, v75 offset:{L_ACT}")
        e("s_mov_b64 exec, s[0:1]")
        if o['rw']:
            for t in range(7, 14): e(f"v_mov_b32 v{161+2*t}, -1")
        e("s_waitcnt lgkmcnt(0)")
        self.bar()
        if gts: self.ts(7)
        if o['dpk']:
            for G in range(4): e(f"ds_read_b128 v[{104+4*G}:{107+4*G}], v{244+G} offset:{L_ACT}")
            e("v_lshlrev_b32 v25, 16, v25")
            e("s_cmp_lg_u32 s59, 0")
            for j in range(7):
                if j < 4: e(f"s_waitcnt lgkmcnt({3-j})")
                d = 64 + 4 * (j >> 2)
                e(f"v_mfma_f32_16x16x32_bf16 v[{d}:{d+3}], v[{104+4*(j&3)}:{107+4*(j&3)}], v[{216+4*j}:{219+4*j}], {'0' if j & 3 == 0 else f'v[{d}:{d+3}]'}")
            e("s_nop 4")
            CM = hex(f2u(1.0 - 0.7213 / 512))
            if P2S:
                e(f"v_mul_f32 v65, {CM}, v65")
                e("v_or_b32 v65, 0x7fff, v65")
            e(f"buffer_store_dwordx2 v[64:65], v20, s[36:39], s{PS[0]} offen " + self.P("p2S"))
            if P2S:
                e(f"v_mul_f32 v69, {CM}, v69")
                e("s_mov_b64 exec, s[26:27]")
                e("v_or_b32 v69, 0x7fff, v69")
            else:
                e("s_mov_b64 exec, s[26:27]")
                e("s_nop 0")
            e(f"buffer_store_dwordx2 v[68:69], v20, s[36:39], s{PS[4]} offen " + self.P("p2S"))
        else:
            e(f"ds_read_b128 v[104:107], v19 offset:{L_ACT}")
            e("v_lshlrev_b32 v25, 16, v25")
            e("s_cmp_lg_u32 s59, 0")
            e("s_waitcnt lgkmcnt(0)")
            for j in range(7):
                e(f"v_mfma_f32_16x16x32_bf16 v[{64+4*j}:{67+4*j}], v[104:107], v[{216+4*j}:{219+4*j}], 0")
            e("s_mov_b64 exec, s[48:49]")
            e("s_nop 0")
            for j in range(7):
                e(f"buffer_store_dwordx2 v[{64+4*j}:{65+4*j}], v20, s[36:39], s{PS[j]} offen " + self.P("p2S"))
        e("s_mov_b64 exec, s[0:1]")
        self.ts(11)
        e("s_cbranch_scc1 .Lfin")
        for i in range(o['rdel']): e("s_nop 15")
        ra = lambda p: f"v27, s[36:39], {'s56' if p < 4 else 's61'} offen offset:{(p&3)*1024}"
        for p in range(7):
            e(f"buffer_load_dwordx4 v[{160+4*p}:{163+4*p}], {ra(p)} " + self.P("p2L"))
        if o['sp']:
            def an(d, a, p):
                if P2S: e(f"v_bitop3_b32 v{d}, v{a}, v{161+4*p}, v{163+4*p} bitop3:0x80")
            def rtree():
                e("s_waitcnt vmcnt(5)")
                for i in (0, 2): pk(108+i, 160+i, 164+i)
                an(120, 161, 0); an(120, 120, 1)
                e("s_waitcnt vmcnt(3)")
                for i in (0, 2): pk(112+i, 168+i, 172+i)
                an(120, 120, 2); an(120, 120, 3)
                e("s_waitcnt vmcnt(1)")
                for i in (0, 2): pk(116+i, 176+i, 180+i)
                for i in (0, 2): pk(108+i, 108+i, 112+i)
                an(120, 120, 4); an(120, 120, 5)
                e("s_waitcnt vmcnt(0)")
                an(120, 120, 6)
                for i in (0, 2): pk(116+i, 116+i, 184+i)
                if P2S: e("v_or_b32 v120, 0xffff8000, v120")
                for i in (0, 2): pk(108+i, 108+i, 116+i)
            self.spoll(7, 160, ra, "-1", ".Lr", rtree, 108, 110, pol="p2L", mk=P2S)
            if not o['prof']: self.ts(12)
        else:
            if o['rw']: self.apoll(7, 160, ra, "-1", ".Lr", o['rw'])
            else: self.mpoll(7, 160, ra, "-1", ".Lr", m0=6, pol="p2L")
            if not o['prof']: self.ts(12)
            for p in range(0, 6, 2):
                for i in (0, 2): pk(108+4*p+i, 160+4*p+i, 164+4*p+i)
            for i in (0, 2):
                pk(108+i, 108+i, 116+i); pk(124+i, 124+i, 184+i)
            for i in (0, 2): pk(108+i, 108+i, 124+i)
        e("s_nop 0")
        e("v_permlane16_swap_b32 v108, v109")
        e("v_permlane16_swap_b32 v110, v111")
        e("s_nop 0")
        e("v_add_f32 v108, v108, v109")
        e("v_add_f32 v110, v110, v111")
        e("s_nop 1")
        e("v_permlane32_swap_b32 v108, v110")
        e("s_nop 1")
        e("v_add_f32 v108, v108, v110")
        e("s_nop 1")
        e("v_add_f32_dpp v108, v108, v108 row_ror:8 row_mask:0xf bank_mask:0xf")
        e("s_mov_b64 exec, s[50:51]")
        e("v_cvt_pk_bf16_f32 v108, 0, v108")
        e("v_add_f32 v108, v108, v25")
        e("v_cvt_pk_bf16_f32 v108, v108, v108")
        if dry: e("s_cbranch_execz .Ldryend")
        e(f"buffer_store_short v108, v26, s[44:47], 0 offen {o['opol']}")
        e("s_mov_b64 exec, -1")

if __name__ == "__main__":
    out = sys.argv[1]
    kw = json.loads(sys.argv[2]) if len(sys.argv) > 2 else {}
    open(out, "w").write(Gen(**kw).build())
```

```python
import sys, json
sys.path.insert(0,'dev')
from util import *
import gen6
a=sys.argv[1:]
for n,j in zip(a[::2],a[1::2]):
    open('dev/'+n,'w').write(gen6.Gen(**json.loads(j)).build())
    co,l=build('dev/'+n)
    p=cl.address_register_problem(co, l[0].kernel)
    print(n, "OK" if p is None else p[:900])
```

```python
import sys, json, struct, math
from gen2 import *
import gen2

WS_PART = 0x100000
WS_Y    = 0x120000
WS_P2I  = 0x130000
WS_RACE = 0x170000
L_D     = L_W + 57344
L_H     = 2816
L_ACT   = 640
LDS_BYTES = L_D + 28672
L_RED2  = 24576 - L_RED
WS_PART2 = 0x80000

class Gen(gen2.Gen):
    def __init__(self, **kw):
        d = dict(NSH=3, PV=4, NO=2, c0=2, cmax=3, csh=6, pace=14, late='', early=False, quit=(0,0,0), dyn='', order='DGW', gs=0, nodot=False, NB=0, dum='', dsp=256, tpol='', remap=None, PA=0, XS=0, epol='sc1', NP=4, cpol='', NC=8, RA=0, cls=True, dry=False, rst='late', rord='GW', gts=False, opol='', pol={}, iod=True, cfix=None, race='join', fakew='', c2=True, elig=True, fold=True, nd1=3, kb2=5, ks2=11, rsq=False, rpm=1, fp=False, fpg=3, dpk=True, sp=True, EG=0, gfl=False, dq=False, ppk=True, il=(4,4), rdel=0, rw=0, gw=0, fresh='G', sg=False, sgp=14, ET=0, B1W=44, B1G=44, aw=0, awpol='', tlbw=0, wp=False, hp=None, hx=1, cut=(64,28), hts=False, pa1=None, ep=None, qdry=False, xq='', p2s=False, trim=False, scb=0x80000, p2z=0, gch=None, wch=None)
        d.update(dict(p2s=True, trim=True, pa1=2, ep=[4,5,6,7], p2z=1, gch=[10], gpol=None, coop=False, lim=None, limP=None, fine=False, pb=0, w0=1))
        d.update(dict(NSH=4, PV=0, NO=6, NB=48, NH=0, dyn='WGD', order='GWD', wpol='nt', dpol='nt', tpol='nt', gs=1))
        d.update(kw)
        super().__init__(**d)
        if self.o['dyn']: self.o['late'] = self.o['dyn']
        if self.o['iod']: self.o['NC'] = 2
        self.cyc = False
        self.wide = False
        self.ph = 1

    def P(self, t):
        return self.o['pol'].get(t, self.o['pol'].get(t[-1], 'sc1'))

    def kts(self, slot, once=False):
        if self.o['hts'] == 2:
            if once:
                l = self.newlab("kt")
                self.e(f"s_cmp_lg_u32 s{70 + 2 * slot}, 0")
                self.e(f"s_cbranch_scc1 {l}")
            self.e(f"s_memrealtime s[{70 + 2 * slot}:{71 + 2 * slot}]")
            if once:
                self.e("s_waitcnt lgkmcnt(0)")
                self.label(l)

    def hts(self, slot):
        if self.o['hts'] == 1: self.e(f"s_memrealtime s[{70 + 2 * slot}:{71 + 2 * slot}]")

    def ts(self, slot):
        if self.o['hts'] and slot in (2, 4, 5, 7, 9, 10, 11, 12): return
        if self.o['ts']:
            self.e(f"{'s_memtime' if self.cyc else 's_memrealtime'} s[{70 + 2 * slot}:{71 + 2 * slot}]")

    def tick(self, k):
        if self.o['wp'] and k is not None:
            e = self.e
            e("s_memtime s[94:95]")
            e("s_waitcnt lgkmcnt(0)")
            e("s_sub_u32 s93, s94, s92")
            e("s_mov_b32 s92, s94")
            e(f"v_add_u32 v{224+k}, s93, v{224+k}")
            e(f"v_add_u32 v{240+k}, 1, v{240+k}")

    def awld(self, n0, cnt, tag=None):
        for n in range(n0, min(n0 + cnt, 56)):
            g, j = divmod(n, 7)
            t = f"buffer_load_dwordx4 a[{4*n}:{4*n+3}], v28, s[44:47], s{41 + (g >> 2)} offen offset:{(g & 3) * 896 + j * 128} {self.o['awpol']}"
            if tag is not None: self.vm(t, tag)
            else: self.e(t)

    def ld(self, base, g, tag=None, lim=None, js=range(4)):
        for j in js:
            r = base + g * 16 + j * 4
            if lim: self.e(f"s_waitcnt vmcnt({(lim if isinstance(lim, int) else lim[(4 * g + j) % len(lim)]) - 1})")
            s = f"buffer_load_dwordx4 v[{r}:{r+3}], v{2+g}, s[28:31], s57 offen offset:{j*128} {self.o['kvpol']}"
            if tag is not None: self.vm(s, tag)
            else: self.e(s)

    def ktile(self, kb, wait, reissue, rtag=None, extra=None, li=3):
        e = self.e
        lim = self.o['lim'] and self.o['lim'][li]
        for i in range(8):
            e(f"v_mov_b32 v{11+i}, 0")
        for g in range(4):
            wait(g)
            for i in range(16 if not self.o['nodot'] else 2):
                e(f"v_dot2c_f32_bf16 v{11+2*g+(i&1)}, v{kb+g*16+i}, v{32+i}")
                if reissue and self.o['fine'] and i & 3 == 3:
                    self.ld(kb, g, rtag and (rtag, g), lim, [i >> 2])
            if reissue and not self.o['fine']:
                self.ld(kb, g, rtag and (rtag, g), lim)
            if extra: extra(g)
        if reissue or self.o['prof'] != 2: self.plog()
        if not reissue: e("s_nop 2")
        for g in range(4):
            e(f"v_add_f32 v{11+2*g}, v{11+2*g}, v{12+2*g}")
        for st in ("quad_perm:[1,0,3,2]", "quad_perm:[2,3,0,1]", "row_half_mirror"):
            for g in range(4):
                e(f"v_add_f32_dpp v{11+2*g}, v{11+2*g}, v{11+2*g} {st} row_mask:0xf bank_mask:0xf")
        e("v_cvt_pk_bf16_f32 v24, v11, v13")
        e("v_cvt_pk_bf16_f32 v25, v15, v17")
        e("ds_write_b64 v19, v[24:25]")
        e("v_add_u32 v19, 64, v19")

    def vgrp(self, g, n, reissue, base=64, tk=None):
        e = self.e
        e(f"s_waitcnt vmcnt({n})")
        self.tick(tk)
        for j in range(4):
            r = base + g * 16 + j * 4
            e(f"v_mfma_f32_16x16x32_bf16 v[{48+4*j}:{51+4*j}], v[{32+4*g}:{35+4*g}], v[{r}:{r+3}], v[{48+4*j}:{51+4*j}]")
        if reissue:
            self.ld(64, g, None, self.o['lim'] and self.o['lim'][self.ph])

    def pcalc(self, groups):
        e = self.e
        for g in groups:
            src = 24 if g < 2 else 25
            if g & 1: e(f"v_and_b32 v{11+g}, 0xffff0000, v{src}")
            else: e(f"v_lshlrev_b32 v{11+g}, 16, v{src}")
        for g in groups: e(f"v_fma_f32 v{11+g}, v{11+g}, s59, v10")
        for g in groups: e(f"v_exp_f32 v{11+g}, v{11+g}")
        for g in groups: e(f"v_cvt_pk_bf16_f32 v{15+g}, v{11+g}, v{11+g}")
        for g in groups:
            for r in range(4):
                e(f"v_and_b32 v{32+4*g+r}, v{6+r}, v{15+g}")

    def ticket(self, off=0, amount="1"):
        e = self.e
        if self.o['hp'] and off == 0:
            e("s_xor_b32 s60, s44, 1")
            e("v_xor_b32 v22, s60, v1")
            e("s_mov_b64 exec, 3")
            e(f"buffer_atomic_add v22, v21, s[36:39], 0 offen sc0 sc1 {self.o['tpol']}")
            e("s_mov_b64 exec, -1")
            return
        e(f"v_mov_b32 v22, {amount}")
        e("s_mov_b64 exec, 1")
        e(f"buffer_atomic_add v22, v21, s[36:39], 0 offen offset:{off} sc0 sc1 {self.o['tpol']}")
        e("s_mov_b64 exec, -1")

    def tile_addr(self, src="s56"):
        k = self.o['gs']; e = self.e
        if k == 0: return super().tile_addr(src)
        e(f"s_lshr_b32 s57, {src}, {k}")
        e(f"s_lshl_b32 s57, s57, {14 + k}")
        e("s_add_u32 s57, s57, s61")
        e(f"s_and_b32 s63, {src}, {(1 << k) - 1}")
        e("s_lshl_b32 s63, s63, 12")
        e("s_add_u32 s57, s57, s63")
        e("s_and_b32 s57, s57, 0x7fffff")
        if self.wide: e("s_add_u32 s57, s57, s41")

    def sc_addr(self, t):
        e = self.e
        e(f"s_and_b32 s98, {t}, 31")
        e(f"s_lshl_b32 s98, s98, {8 if self.o['p2s'] else 9}")
        e(f"s_lshr_b32 s63, {t}, 5")
        e("s_lshl_b32 s63, s63, 6")
        e("s_add_u32 s98, s98, s63")

    def build(self):
        o = self.o; e = self.e
        PD = o['PD']; NSH = o['NSH']; NH = o['NH']; PV = o['PV']; NO = o['NO']
        ND = 32 * NSH
        NF = ND - NH
        NTK = NF + 2 * NH
        PA = o['PA']; XS = o['XS'] + PV
        B1 = ND + 24 * XS
        B2 = B1 + 32 * NO
        NPUB = 4 if o['p2s'] else NSH
        LIM_ = o['lim']
        E1 = PD + PA + 1
        assert 1 <= PD <= 2 and o['dyn'] == 'WGD' and (PD + 1 <= NSH or o['p2s']) and NSH <= 8 and NO >= 2 and PV + PA <= 4 and B2 <= 512
        assert 2 * o['NB'] <= NF
        assert max(NSH, E1) + 2 <= NSH + XS + NO
        def pace():
            if o['pace']: e(f"s_waitcnt vmcnt({o['pace']})")
        self.L.append(f"; @launch grid=(256,1,1) block=(256,1,1) lds={LDS_BYTES}")
        self.L.append('.amdgcn_target "amdgcn-amd-amdhsa--gfx950"')
        self.L.append(".text")
        self.L.append(f".globl {NAME}")
        self.L.append(".p2align 8")
        self.L.append(f".type {NAME},@function")
        self.label(NAME)
        e("s_cmp_ge_u32 s2, 256")
        e("s_cbranch_scc1 .Lend")
        e("s_load_dwordx16 s[4:19], s[0:1], 0")
        e("s_load_dwordx8 s[20:27], s[0:1], 64")
        if o['ts']:
            self.ts(0)
            for i in range(72, 96): e(f"s_mov_b32 s{i}, 0")
        e("v_and_b32 v1, 63, v0")
        e("v_lshrrev_b32 v2, 6, v0")
        e("s_and_b32 s53, s2, 7")
        if o['prof']:
            e("s_mov_b32 s3, 0")
            e("v_mov_b32 v0, 0")
        e("v_readfirstlane_b32 s52, v2")
        e("s_lshr_b32 s54, s2, 3")
        e(f"s_mul_i32 s61, s54, {o['rot']}")
        e("v_lshrrev_b32 v20, 3, v1")
        e("v_lshlrev_b32 v2, 9, v20")
        e("v_and_b32 v3, 7, v1")
        e("v_lshlrev_b32 v13, 13, v20")
        e("v_lshl_or_b32 v2, v3, 4, v2")
        e("v_lshl_or_b32 v13, v3, 4, v13")
        S = 4096 << o['gs']
        e(f"v_add_u32 v3, {S}, v2")
        e(f"v_add_u32 v4, {2*S}, v2")
        e(f"v_add_u32 v5, {3*S}, v2")
        e("s_lshl_b32 s58, s53, 2")
        e("s_add_u32 s58, s58, s52")
        e("s_mov_b32 s56, s58")
        self.tile_addr()
        e("s_mov_b32 s30, 0x800000")
        e("s_mov_b32 s31, 0x20000")
        e("s_lshr_b32 s96, s53, 2")
        e("s_lshl_b32 s60, s54, 1")
        e("s_add_u32 s96, s96, s60")
        e(f"s_mul_i32 s60, s52, {112 * 8192}")
        e("s_lshl_b32 s63, s96, 7")
        e("s_add_u32 s60, s60, s63")
        e("v_add_u32 v13, s60, v13")
        e("v_and_b32 v16, 31, v1")
        e("v_cmp_gt_u32 s[64:65], 28, v16")
        e("v_lshrrev_b32 v14, 5, v1")
        e("v_mul_u32_u24 v14, 896, v14")
        e("v_lshl_add_u32 v28, v16, 5, v14")
        e("v_mov_b32 v16, 0x10000")
        e("v_cndmask_b32 v16, v16, v28, s[64:65]")
        e("v_mov_b32 v15, 0")
        e("s_mov_b32 s38, {0}".format(WS_SIZE))
        e("s_mov_b32 s39, 0x20000")
        e("s_mov_b32 s42, 1792")
        e("s_mov_b32 s43, 0x20000")
        e("s_mov_b32 s46, 3670016")
        e("s_mov_b32 s47, 0x20000")
        e(f"s_mul_i32 s97, s52, {14 * 1024}")
        e(f"s_add_u32 s97, s97, {L_W}")
        e("s_lshl_b32 s60, s54, 23")
        e("s_xor_b32 s62, s53, s54")
        e("s_and_b32 s62, s62, 3")
        e("s_waitcnt lgkmcnt(0)")
        if o['dbgts']: e("s_mov_b64 s[84:85], s[24:25]")
        self.hts(2)
        e("s_cbranch_scc1 .Lnoprod1")
        e("s_setprio 3")
        e("s_mov_b64 s[40:41], s[4:5]")
        e("s_mov_b64 s[44:45], s[10:11]")
        e("s_and_b32 s63, s96, 3")
        e("s_or_b32 s63, s63, s52")
        e("s_cbranch_scc1 .Lnocinit")
        e("s_mov_b64 s[36:37], s[26:27]")
        e("s_lshl_b32 s63, s96, 6")
        e("v_and_b32 v14, 1, v1")
        e("v_lshlrev_b32 v14, 12, v14")
        e("v_lshrrev_b32 v17, 1, v1")
        e("v_lshl_add_u32 v14, v17, 7, v14")
        e(f"v_add_u32 v14, {WS_CNT}, v14")
        e("s_mov_b64 exec, 15")
        e("buffer_store_dword v15, v14, s[36:39], s63 offen " + self.P("ciS"))
        e("s_mov_b64 exec, -1")
        self.label(".Lnocinit")
        if 'p' in o['xq']:
            e("s_setprio 0")
            e("s_mov_b32 s62, 1")
            e("s_branch .Lnoprod1")
        e("buffer_load_dwordx4 v[240:243], v16, s[40:43], 0 offen")
        e("buffer_load_dwordx4 v[244:247], v16, s[40:43], 0 offen offset:16")
        for ks in range(14):
            e("s_mov_b32 m0, s97")
            e(f"s_mov_b32 s63, {ks * 65536}")
            e(f"buffer_load_dwordx4 v13, s[44:47], s63 offen {o['wqpol']} lds")
            if ks < 13: e("s_add_u32 s97, s97, 1024")
        PA1 = o['pa1']
        if PA1 is not None:
            assert o['rst'] != 'first'
            e("s_add_u32 s28, s6, s60")
            e("s_addc_u32 s29, s7, 0")
            e("s_branch .Lprod2")
        self.label(".Lnoprod1")
        if o['rst'] == 'first': self.resets()
        e("s_add_u32 s28, s6, s60")
        e("s_addc_u32 s29, s7, 0")
        self.q = []
        for g in range(4): self.ld(64, g, ('A', g))
        self.label(".Lprod2")
        self.hts(4)
        e(f"s_load_dword s68, s[26:27], {WS_EPOCH}")
        def tag():
            e("s_mul_i32 s55, s68, 0x9e3779b1")
            e("s_add_u32 s55, s55, 0x7f4a7c15")
        if o['prof'] == 2: self.plog()
        e("s_add_u32 s32, s8, s60")
        e("s_addc_u32 s33, s9, 0")
        e("s_mov_b32 s34, 0x800000")
        e("s_mov_b32 s35, 0x20000")
        e("s_mov_b64 s[36:37], s[26:27]")
        self.srd(48, 24, 256)
        self.setup()
        e("s_cmp_lg_u32 s62, 0")
        e("s_cbranch_scc1 .Ljoin")
        e("v_lshlrev_b32 v17, 7, v29")
        e("v_lshl_add_u32 v17, v31, 3, v17")
        e("s_lshl_b32 s60, s52, 5")
        e(f"s_add_u32 s60, s60, {L_W}")
        e("v_add_u32 v17, s60, v17")
        e(f"s_waitcnt vmcnt({30 if PA1 is None else 14})")
        self.hts(5)
        for i in range(8):
            e(f"v_and_b32 v{184+2*i+1}, 0xffff0000, v{240+i}")
            e(f"v_lshlrev_b32 v{184+2*i}, 16, v{240+i}")
        self.layernorm16(184, 200, "s[64:65]")
        e("s_mov_b64 exec, s[64:65]")
        e(f"ds_write_b128 v28, v[184:187] offset:{L_XN}")
        e(f"ds_write_b128 v28, v[188:191] offset:{L_XN+16}")
        e("s_mov_b64 exec, -1")
        e("s_waitcnt lgkmcnt(0)")
        for ks in range(14):
            e(f"ds_read_b128 v[{128+4*ks}:{131+4*ks}], v30 offset:{L_XN + ks*64}")
        tag()
        e("v_mov_b32 v249, s55")
        e("v_and_b32 v13, 1, v1")
        e("v_lshlrev_b32 v14, 14, v13")
        e("v_cmp_eq_u32 vcc, 1, v13")
        e("v_lshrrev_b32 v13, 1, v1")
        e("v_lshl_add_u32 v14, v13, 3, v14")
        e("s_lshl_b32 s60, s96, 2")
        e("s_add_u32 s60, s60, s52")
        e("s_lshl_b32 s60, s60, 6")
        e(f"s_add_u32 s60, s60, {WS_Q}")
        if o['qdry']:
            e("s_mov_b64 exec, 0")
            e("s_branch .Lqgo")
            self.label(".Lqdry")
            e("s_mov_b64 exec, -1")
        self.hts(7)
        for g in range(PA1 or 0): self.ld(64, g)
        e(f"s_waitcnt vmcnt({16 if PA1 is None else 4 * PA1})")
        self.hts(9)
        e("s_barrier")
        self.hts(10)
        self.label(".Lqgo")
        for ks in range(14):
            e(f"ds_read_b64_tr_b16 v[{184+4*ks}:{185+4*ks}], v17 offset:{ks*4096}")
            e(f"ds_read_b64_tr_b16 v[{186+4*ks}:{187+4*ks}], v17 offset:{ks*4096 + 512}")
            if ks == 6:
                e("s_waitcnt lgkmcnt(6)")
        e("s_waitcnt lgkmcnt(0)")
        for ks in range(14):
            cin = "0" if ks == 0 else "v[240:243]"
            e(f"v_mfma_f32_16x16x32_bf16 v[240:243], v[{128+4*ks}:{131+4*ks}], v[{184+4*ks}:{187+4*ks}], {cin}")
        e("s_nop 7")
        e("v_mov_b32_dpp v244, v240 quad_perm:[1,0,3,2] row_mask:0xf bank_mask:0xf")
        e("v_mov_b32_dpp v245, v241 quad_perm:[1,0,3,2] row_mask:0xf bank_mask:0xf")
        e("v_cndmask_b32 v246, v240, v245, vcc")
        e("v_cndmask_b32 v247, v244, v241, vcc")
        e("v_cvt_pk_bf16_f32 v248, v246, v247")
        if o['qdry']: e("s_cbranch_execz .Lqdry")
        e("s_mov_b64 exec, 0xffff")
        e("buffer_store_dwordx2 v[248:249], v14, s[36:39], s60 offen " + self.P("qS"))
        e("s_mov_b64 exec, -1")
        e("s_setprio 0")
        self.hts(11)
        for g in range(4 if PA1 is None else PA1, 4): self.ld(64, g)
        self.label(".Ljoin")
        if o['rst'] == 'join': self.resets()
        if o['iod'] and o['race'] == 'join': self.race()
        EP = o['ep']
        NP = o['NP']
        def poll(k): e(f"buffer_load_dwordx4 v[{48+4*k}:{51+4*k}], v13, s[36:39], s60 offen " + self.P("qL"))
        if EP:
            assert len(EP) == NP
            e("s_lshl_b32 s60, s54, 10")
            e(f"s_add_u32 s60, s60, {WS_Q}")
            e("v_lshlrev_b32 v13, 4, v1")
        pq = []
        for p in range(PD):
            e("s_add_u32 s56, s56, 32")
            self.tile_addr()
            for g in range(4):
                pace()
                self.ld(128 + 64 * p, g, (f'E{p}', g), o['limP'])
                pq += ['x'] * 4
                if EP and 4 * p + g in EP:
                    k = EP.index(4 * p + g)
                    e("s_cmp_lg_u32 s52, 0")
                    e(f"s_cbranch_scc1 .Lnp{k}")
                    poll(k)
                    self.label(f".Lnp{k}")
                    pq.append(k)
            if o['prof'] == 2: self.plog()
        self.hts(12)
        e("s_cmp_eq_u32 s52, 0")
        e("s_cbranch_scc1 .Lw0")
        for p in range(PA):
            e(f"v_readlane_b32 s56, v23, {PD + 1 + p}")
            self.tile_addr()
            for g in range(4):
                pace()
                for j in range(4):
                    r = 64 * (PV + p) + g * 16 + j * 4
                    self.vm(f"buffer_load_dwordx4 a[{r}:{r+3}], v{2+g}, s[28:31], s57 offen offset:{j*128} {o['kvpol']}", (f'F{p}', g))
            if o['prof'] == 2: self.plog()
        for p in range(PV):
            e(f"v_readlane_b32 s56, v23, {NSH + p}")
            self.tile_addr()
            for g in range(4):
                pace()
                for j in range(4):
                    r = 64 * p + g * 16 + j * 4
                    self.vm(f"buffer_load_dwordx4 a[{r}:{r+3}], v{2+g}, s[32:35], s57 offen offset:{j*128} {o['kvpol']}", 'X')
            if o['prof'] == 2: self.plog()
        for p in range(PV if o['prof'] == 1 else 0): self.plog()
        if o['sg']: self.sgload()
        if o['iod'] and o['race'] == 'bar': self.race()
        e(f"s_mov_b32 s99, {E1}")
        e(f"s_mov_b32 s97, {NSH + PV}")
        e(f"s_mov_b32 s101, {NSH + XS + NO}")
        e(f"s_mov_b32 s62, {max(NPUB, E1)}")
        e("s_branch .Lbar")
        self.label(".Lw0")
        e("s_lshl_b32 s60, s54, 10")
        e(f"s_add_u32 s60, s60, {WS_Q}")
        e("v_lshlrev_b32 v13, 4, v1")
        e("v_lshlrev_b32 v14, 3, v1")
        e(f"ds_write_b32 v15, v15 offset:{L_CNT}")
        e(f"ds_write_b32 v15, v15 offset:{L_CNT + 8}")
        e(f"ds_write_b32 v15, v15 offset:{L_CNT + 12}")
        if o['coop']:
            e("v_mov_b32 v16, -1")
            e(f"ds_write_b32 v15, v16 offset:{L_CNT + 4}")
        if o['sg']:
            self.sgtest(".Lnosg0")
            e("v_mov_b32 v16, s69")
            e("v_mov_b32 v17, 0x1000")
            e(f"ds_write2_b32 v15, v16, v17 offset0:{L_CNT//4 + 1} offset1:{L_CNT//4 + 2}")
            self.label(".Lnosg0")
        if 'q' in o['xq']: e("s_branch .Lqok")
        for k in range(NP if not EP else 0):
            if k: e(f"s_waitcnt vmcnt({16 - 3 * k})")
            poll(k)
        e("s_waitcnt lgkmcnt(0)")
        tag()
        for k in range(NP if EP else 0):
            e(f"s_waitcnt vmcnt({len(pq) - 1 - pq.index(k)})")
            e(f"v_cmp_ne_u32 vcc, s55, v{49+4*k}")
            e(f"v_cmp_ne_u32 s[66:67], s55, v{51+4*k}")
            e("s_or_b64 vcc, vcc, s[66:67]")
            e(f"s_cbranch_vccz .Lqok{k}")
            poll(k)
            pq.append('y')
        self.poll_begin()
        self.label(".Lqpoll")
        for k in range(NP):
            e(f"s_waitcnt vmcnt({NP - 1})")
            e(f"v_cmp_ne_u32 vcc, s55, v{49+4*k}")
            e(f"v_cmp_ne_u32 s[66:67], s55, v{51+4*k}")
            e("s_or_b64 vcc, vcc, s[66:67]")
            e(f"s_cbranch_vccz .Lqok{k}")
            poll(k)
        self.poll_again(".Lqpoll")
        for k in range(NP):
            self.label(f".Lqok{k}")
            e(f"ds_write2_b32 v14, v{48+4*k}, v{50+4*k} offset0:{L_Q//4} offset1:{L_Q//4+1}")
            if k < NP - 1: e("s_branch .Lqok")
        self.label(".Lqok")
        e(f"s_mov_b32 s99, {PD + 1}")
        e(f"s_mov_b32 s97, {NSH}")
        e(f"s_mov_b32 s101, {NSH + NO}")
        e(f"s_mov_b32 s62, {NPUB}")
        e("s_waitcnt lgkmcnt(0)")
        self.label(".Lbar")
        self.ts(1)
        e("s_barrier")
        self.ts(2)
        e("v_and_b32 v13, 7, v1")
        e("v_lshlrev_b32 v13, 4, v13")
        for j in range(4):
            e(f"ds_read_b128 v[{32+4*j}:{35+4*j}], v13 offset:{L_Q + j*128}")
        e("v_readlane_b32 s56, v23, s99")
        self.tile_addr()
        e("s_waitcnt lgkmcnt(0)")
        tag()
        AW = o['aw']
        if AW:
            self.srd(44, 12, 3670016)
            e("s_and_b32 s41, s54, 15")
            e("s_lshl_b32 s41, s41, 2")
            e("s_add_u32 s41, s41, s52")
            e(f"s_mul_i32 s41, s41, {64 * 896}")
            e(f"s_add_u32 s42, s41, {4 * 896}")
            e("v_lshrrev_b32 v28, 3, v1")
            e(f"v_mul_u32_u24 v28, {8 * 896}, v28")
            e("v_add_u32 v28, v28, v13")
        self.ktile(64, lambda g: self.vwait(('A', g)), True, rtag='A2', extra=(lambda g: self.awld(2 * g, 2, 'aw')) if AW else None)
        for p in range(PD):
            self.ktile(128 + 64 * p, lambda g: self.vwait((f'E{p}', g)), False)
        if PA:
            e("s_cmp_eq_u32 s52, 0")
            e("s_cbranch_scc1 .Lkloop")
        for p in range(PA):
            def wa(g):
                self.vwait((f'F{p}', g))
                for i in range(16): e(f"v_accvgpr_read_b32 v{128 + 16 * g + i}, a{64 * (PV + p) + 16 * g + i}")
            self.ktile(128, wa, False)
        if o['rst'] == 'late': self.resets()
        else: self.checkin(".Lkloop")
        if o['tlbw']:
            n, sh = o['tlbw']
            e(f"v_lshlrev_b32 v251, {sh}, v1")
            e("s_lshl_b32 s60, s2, 2")
            e("s_add_u32 s60, s60, s52")
            e("s_and_b32 s60, s60, 31")
            e("s_lshl_b32 s60, s60, 7")
            e(f"s_mov_b64 exec, {hex((1 << n) - 1)}")
            e("buffer_load_dword v250, v251, s[32:35], s60 offen nt")
            e("buffer_load_dword v252, v251, s[28:31], s60 offen nt")
            e("s_mov_b64 exec, -1")

        if LIM_:
            e("s_xor_b32 s69, s53, s54")
            e("s_and_b32 s69, s69, 3")
            e(f"s_cselect_b32 s69, {o['w0']}, {max(2, o['w0']) + o['pb']}")
        def kiter(sx, wait, extra):
            self.label(".Lkloop" + sx)
            e("s_cmp_lg_u32 s99, s62")
            e("s_cbranch_scc1 .Lk0" + sx)
            e("s_lshl_b32 s60, s52, 11")
            e(f"s_add_u32 s60, s60, {L_SC}")
            e("v_lshl_add_u32 v14, v1, 4, s60")
            e("ds_read_b128 v[24:27], v14")
            e("s_lshl_b32 s60, s2, 2")
            e("s_add_u32 s60, s60, s52")
            e(f"s_lshl_b32 s60, s60, {8 if o['p2s'] else 9}")
            e(f"s_add_u32 s60, s60, {self.o['scb']}")
            e("v_lshlrev_b32 v13, 4, v1")
            e(f"s_mov_b32 exec_lo, {hex((1 << (4 * NPUB)) - 1)}")
            e("s_mov_b32 exec_hi, 0")
            e("s_waitcnt lgkmcnt(0)")
            if 's' not in o['xq']: e("buffer_store_dwordx4 v[24:27], v13, s[36:39], s60 offen " + self.P("scS"))
            e("s_mov_b64 exec, -1")
            e(f"s_mov_b32 s100, {B2}")
            e(f"s_mov_b32 s96, {o['c0']}")
            if LIM_: e("s_max_u32 s69, s69, 1")
            self.label(".Lk0" + sx)
            e("s_add_u32 s99, s99, 1")
            e("s_mov_b32 s58, s99")
            e("s_cmp_lt_u32 s99, s101")
            e("s_cbranch_scc1 .Lk2" + sx)
            e(f"s_waitcnt vmcnt({24 if sx else 16})")
            self.tick(0)
            e("v_readfirstlane_b32 s56, v22")
            e(f"s_add_u32 s56, s56, {B2}")
            e("s_cmp_lt_u32 s56, 512")
            e("s_cbranch_scc1 .Lk1" + sx)
            e("s_mov_b64 s[28:29], s[32:33]")
            self.kts(7)
            e("s_mov_b32 s58, s97")
            e("s_mov_b32 s101, 0")
            if LIM_: e("s_max_u32 s69, s69, 1")
            e("s_branch .Lk2" + sx)
            self.label(".Lk1" + sx)
            e("s_add_u32 s100, s56, s96")
            e("s_min_u32 s100, s100, 512")
            e("s_sub_u32 s60, s56, s99")
            e("v_add_u32 v13, s60, v1")
            e("v_cmp_le_u32 vcc, s99, v1")
            e("s_sub_u32 s101, s100, s60")
            e("s_sub_u32 s96, 512, s100")
            e("v_cndmask_b32 v23, v23, v13, vcc")
            e(f"s_lshr_b32 s96, s96, {o['csh']}")
            e("s_max_u32 s96, s96, 1")
            e(f"s_min_u32 s96, s96, {o['cmax']}")
            self.label(".Lk2" + sx)
            e("v_readlane_b32 s56, v23, s58")
            e("s_add_u32 s60, s99, 1")
            e("s_cmp_lg_u32 s60, s101")
            e("s_cbranch_scc1 .Lk3" + sx)
            e("v_mov_b32 v22, 0x10000")
            if B2 < 512:
                e(f"s_cmp_gt_u32 s101, {32 - o['cmax']}")
                e("s_cbranch_scc1 .Lk3" + sx)
                self.ticket(128, "s96")
                if LIM_: e("s_max_u32 s69, s69, 1")
            self.label(".Lk3" + sx)
            self.tile_addr()
            if LIM_:
                assert not sx
                e("s_cmp_lg_u32 s69, 0")
                e("s_cbranch_scc1 .Lkw")
                self.kts(10, True)
                self.ktile(64, wait, True, li=0)
                e("s_branch .Lkloop")
                self.label(".Lkw")
                e("s_sub_u32 s69, s69, 1")
            self.ktile(64, wait, True, extra=extra)
            if not sx:
                e("s_cmp_lg_u32 s101, 0")
                e("s_cbranch_scc1 .Lkloop")
        if AW:
            assert NSH + NO >= 10 and PD == 2 and not PA and not XS
            for it in range(1, 7):
                kiter(f"_u{it}", lambda g: e("s_waitcnt vmcnt(18)"), lambda g: self.awld(8 * it + 2 * g, 2))
            kiter("_u7", lambda g: e(f"s_waitcnt vmcnt({18 - 2 * g})"), None)
            e("s_cmp_eq_u32 s101, 0")
            e("s_cbranch_scc1 .Lkend")
        if o['wp']:
            for i in range(32): e(f"v_mov_b32 v{224+i}, 0")
            self.tick(15)
        kiter("", lambda g: (e("s_waitcnt vmcnt(12)"), self.tick(1 + g)), None)
        self.label(".Lkend")
        self.ts(6)
        e("s_lshl_b32 s60, s52, 11")
        e(f"s_add_u32 s60, s60, {L_SC}")
        e("v_lshl_add_u32 v13, v1, 4, s60")
        e("ds_read_b128 v[128:131], v13")
        e("ds_read_b128 v[144:147], v13 offset:1024")
        for i in range(16): e(f"v_mov_b32 v{48+i}, 0")
        e("v_lshrrev_b32 v19, 3, v1")
        e(f"s_add_u32 s60, s60, {NSH * 64}")
        e("v_lshl_add_u32 v19, v19, 3, s60")
        e("s_waitcnt lgkmcnt(0)")
        for i in range(4):
            e(f"v_and_b32 v{149+2*i}, 0xffff0000, v{144+i}")
            e(f"v_lshlrev_b32 v{148+2*i}, 16, v{144+i}")
        for i in range(4):
            e(f"v_and_b32 v{133+2*i}, 0xffff0000, v{128+i}")
            e(f"v_lshlrev_b32 v{132+2*i}, 16, v{128+i}")
        e("v_max3_f32 v140, v132, v133, v134")
        e("v_max3_f32 v141, v135, v136, v137")
        e("v_max3_f32 v140, v140, v138, v139")
        e("v_max3_f32 v141, v141, v148, v149")
        e("v_max3_f32 v140, v140, v150, v151")
        e("v_max3_f32 v141, v141, v152, v153")
        e("v_max3_f32 v140, v140, v154, v155")
        e("v_max_f32 v140, v140, v141")
        self.full_reduce("v_max_f32", "v140", "v141")
        e("v_mul_f32 v10, s59, v140")
        e("v_sub_f32 v10, 0, v10")
        for i in range(8): e(f"v_fma_f32 v{132+i}, v{132+i}, s59, v10")
        for i in range(8): e(f"v_fma_f32 v{148+i}, v{148+i}, s59, v10")
        for i in range(8): e(f"v_exp_f32 v{132+i}, v{132+i}")
        for i in range(8): e(f"v_exp_f32 v{148+i}, v{148+i}")
        e("s_nop 0")
        for i in range(8): e(f"v_add_f32 v{132+i}, v{132+i}, v{148+i}")
        for i in range(4): e(f"v_add_f32 v{132+i}, v{132+i}, v{136+i}")
        e("v_add_f32 v132, v132, v133")
        e("v_add_f32 v134, v134, v135")
        e("v_add_f32 v142, v132, v134")
        self.full_reduce("v_add_f32", "v142", "v141")
        e("v_mov_b32 v141, s55")
        e("v_mov_b32 v143, s55")
        e("s_lshl_b32 s60, s2, 2")
        e("s_add_u32 s60, s60, s52")
        e("s_lshl_b32 s60, s60, 4")
        e(f"s_add_u32 s60, s60, {WS_ML}")
        e("v_mov_b32 v13, 0")
        e("s_mov_b64 exec, 1")
        e("buffer_store_dwordx4 v[140:143], v13, s[36:39], s60 offen " + self.P("mlS"))
        e("s_mov_b64 exec, -1")
        if o['rst'] == 'late':
            self.checkin(".Lnoci")
            self.label(".Lnoci")
        e("s_lshl_b32 s98, s54, 9")
        e(f"s_add_u32 s98, s98, {WS_ML}")
        e("v_and_b32 v28, 31, v1")
        e("v_lshlrev_b32 v28, 4, v28")
        HP = o['hp']
        if HP:
            assert o['rot'] == 262144 and o['gs'] and not o['EG'] and not o['fp'] and not o['gfl'] and o['iod']
            e("s_lshl_b32 s42, s53, 2")
            e(f"s_or_b32 s42, s42, {o['hx']}")
            e("s_xor_b32 s60, s54, s42")
            e("s_lshl_b32 s63, s60, 9")
            e("s_lshl_b32 s98, s54, 9")
            e("v_cmp_gt_u32 vcc, 32, v1")
            e("v_mov_b32 v13, s63")
            e("v_mov_b32 v14, s98")
            e("v_cndmask_b32 v13, v13, v14, vcc")
            e("v_add_u32 v28, v28, v13")
            e(f"s_mov_b32 s98, {WS_ML}")
            e("s_lshl_b32 s60, s60, 8")
            e(f"s_add_u32 s60, s60, {WS_CNT}")
            e("v_writelane_b32 v21, s60, 1")
            e("s_lshl_b32 s41, s54, 23")
            e("s_mov_b32 s43, 0")
            e("s_mov_b32 s44, 0")
            e("s_mov_b32 s45, 0")
            for i in range(16): e(f"v_mov_b32 v{160+i}, 0")
        e("s_add_u32 s58, s97, 1")
        e("s_sub_u32 s99, s99, 1")
        if PV:
            e("s_cmp_eq_u32 s52, 0")
            e("s_cbranch_scc1 .Lvloop")
            for p in range(PV):
                e("ds_read_b64 v[24:25], v19")
                e("v_add_u32 v19, 64, v19")
                e("s_waitcnt lgkmcnt(0)")
                self.pcalc(range(4))
                for g in range(4):
                    for j in range(4):
                        r = 64 * p + g * 16 + j * 4
                        e(f"v_mfma_f32_16x16x32_bf16 v[{48+4*j}:{51+4*j}], v[{32+4*g}:{35+4*g}], a[{r}:{r+3}], v[{48+4*j}:{51+4*j}]")
        self.tick(15)
        if LIM_: e("s_mov_b32 s69, 1")
        self.kts(2)
        self.label(".Lvloop")
        e("ds_read_b64 v[24:25], v19")
        e("v_add_u32 v19, 64, v19")
        e("v_readlane_b32 s56, v23, s58")
        e("s_cmp_lt_u32 s58, s99")
        e("s_cbranch_scc1 .Lv1")
        self.ticket()
        e("buffer_load_dwordx4 v[128:131], v28, s[36:39], s98 offen " + self.P("mlL"))
        e("v_and_b32 v13, 7, v1")
        e("v_lshlrev_b32 v13, 2, v13")
        e("buffer_load_dword v23, v13, s[48:51], 0 offen sc1")
        if LIM_: e("s_mov_b32 s69, 1")
        self.label(".Lv1")
        self.tile_addr()
        e("s_add_u32 s58, s58, 1")
        e("s_waitcnt lgkmcnt(0)")
        self.pcalc(range(4))
        dum = o['dum']
        if dum:
            e("s_lshl_b32 s60, s2, 2")
            e("s_add_u32 s60, s60, s52")
            e("s_lshl_b32 s60, s60, 8")
            e(f"s_mul_i32 s63, s54, {o['dsp']}")
            e(f"s_add_u32 s60, {'s60' if dum[0] == 'p' else 's63'}, 0x200000")
            e("v_mov_b32 v26, 1")
            e("v_mov_b32 v27, 0")
            e("s_mov_b64 exec, 1")
            if dum[1] in 'SWXY':
                e("s_mov_b64 exec, 0xffffffff")
                e("v_lshlrev_b32 v27, 2, v1")
            op = {'X': "buffer_atomic_swap v26, v27, s[36:39], s60 offen sc1 nt", 'Y': "buffer_atomic_swap v26, v27, s[36:39], s60 offen nt", 'z': "buffer_atomic_add v26, v27, s[36:39], s60 offen sc0 nt", 'S': "buffer_store_dword v26, v27, s[36:39], s60 offen sc1", 'w': "buffer_store_dword v26, v27, s[36:39], s60 offen",
                  'u': "buffer_store_dword v26, v27, s[36:39], s60 offen sc1 nt", 'W': "buffer_store_dword v26, v27, s[36:39], s60 offen sc0 sc1", 'a': "buffer_atomic_add v26, v27, s[36:39], s60 offen sc0 sc1", 'l': "buffer_load_dword v26, v27, s[36:39], s60 offen sc1",
                  'n': "buffer_atomic_add v26, v27, s[36:39], s60 offen sc1", 'x': "buffer_atomic_add v26, v27, s[36:39], s60 offen sc0",
                  's': "buffer_store_dword v26, v27, s[36:39], s60 offen sc1", 't': "buffer_atomic_add v26, v27, s[36:39], s60 offen sc0 sc1 nt"}[dum[1]]
            e(op)
            e("s_mov_b64 exec, -1")
        if LIM_:
            e("s_cmp_lg_u32 s69, 0")
            e("s_cbranch_scc1 .Lvw")
            for g in range(4): self.vgrp(g, 12, True)
            self.plog()
            self.kts(9)
            self.kts(5, True)
            e("s_branch .Lvloop")
            self.label(".Lvw")
            e("s_mov_b32 s69, 0")
            self.ph = 3
        for g in range(4): self.vgrp(g, 13 if dum else 12, True, tk=5 + g)
        self.plog()
        self.kts(4, True)
        e("s_cmp_le_u32 s58, s99")
        e("s_cbranch_scc1 .Lvloop")
        if not o['dbgts']: self.ts(7)
        e("ds_read_b64 v[24:25], v19")
        e("s_waitcnt vmcnt(16)")
        self.poll_begin()
        self.label(".Lmlchk")
        e("v_cmp_ne_u32 vcc, s55, v129")
        e("v_cmp_ne_u32 s[66:67], s55, v131")
        e("s_or_b64 vcc, vcc, s[66:67]")
        e("s_cbranch_vccz .Lmlok")
        e("buffer_load_dwordx4 v[128:131], v28, s[36:39], s98 offen " + self.P("mlL"))
        e("s_waitcnt vmcnt(0)")
        self.poll_again(".Lmlchk")
        self.label(".Lmlok")
        e("v_mov_b32 v132, v128")
        self.half_reduce("v_max_f32", "v132", "v133")
        e("v_sub_f32 v128, v128, v132")
        e("v_mul_f32 v128, s59, v128")
        e("v_exp_f32 v128, v128")
        e("s_nop 0")
        e("v_mul_f32 v130, v130, v128")
        self.half_reduce("v_add_f32", "v130", "v133")
        e("v_log_f32 v130, v130")
        e("s_nop 0")
        e("v_fma_f32 v130, v132, s59, v130")
        if HP:
            e("s_nop 0")
            e("v_readlane_b32 s60, v130, 0")
            e("v_readlane_b32 s63, v130, 32")
            e("s_mov_b64 s[28:29], s[8:9]")
            e("s_mov_b32 s30, 0x10000000")
            e("v_mov_b32 v130, s60")
            e("v_sub_f32 v159, 0, s63")
            self.wide = True
        e("v_add_f32 v131, v10, v130")
        e("v_sub_f32 v10, 0, v130")
        e("v_exp_f32 v131, -v131")
        e("s_waitcnt lgkmcnt(0)")
        for i in range(16):
            e(f"v_mul_f32 v{48+i}, v{48+i}, v131")
        assert NH == 0
        e("v_and_b32 v13, 7, v1")
        e("v_lshlrev_b32 v13, 2, v13")
        self.poll_begin()
        self.label(".Lrd")
        e("v_mov_b32 v128, v23")
        e("v_and_b32 v129, 0x3ff, v23")
        for st in ("quad_perm:[1,0,3,2]", "quad_perm:[2,3,0,1]", "row_half_mirror"):
            e("s_nop 0")
            e(f"v_add_u32_dpp v128, v128, v128 {st} row_mask:0xf bank_mask:0xf")
            e(f"{'v_add_u32_dpp' if o['c2'] and st[0] == 'q' else 'v_min_u32_dpp'} v129, v129, v129 {st} row_mask:0xf bank_mask:0xf")
        e("s_nop 0")
        e("v_readfirstlane_b32 s60, v128")
        e("v_readfirstlane_b32 s63, v129")
        e("s_and_b32 s100, s60, 0x3ff")
        e("s_cmp_ge_u32 s100, 256")
        e("s_cbranch_scc1 .Lrdok")
        e("buffer_load_dword v23, v13, s[48:51], 0 offen sc1")
        e("s_waitcnt vmcnt(0)")
        self.poll_again(".Lrd")
        self.label(".Lrdok")
        e("s_getreg_b32 s58, hwreg(HW_REG_XCC_ID, 0, 3)")
        e("s_lshl_b32 s100, s58, 2" if not o['c2'] else "s_and_b32 s100, s58, 4")
        e(f"s_cmp_lt_u32 s63, {(84 if o['sg'] else 56 if o['c2'] else 14) if o['cls'] else 1000}")
        e("s_cselect_b32 s100, 64, s100")
        e("v_mov_b32 v128, s55")
        e("v_mov_b32 v26, 1")
        e("v_mov_b32 v27, 0")
        e("s_mov_b32 s99, 0")
        if o['ts'] and not o['prof']: e("s_mov_b32 s3, 999")
        if o['elig']:
            e("v_mov_b32 v21, 4" if 0 else "v_mov_b32 v23, 4")
            e("s_mov_b64 exec, 1")
            e(f"ds_add_u32 v27, v26 offset:{L_CNT + 8}")
            e("s_mov_b64 exec, -1")
        e("s_bfe_u32 s63, s60, 0xa000a")
        e("s_lshr_b32 s60, s60, 20")
        e("s_cmp_gt_u32 s60, s63")
        e("s_cselect_b32 s55, 0x2000, 0")
        if o['cfix'] is not None: e(f"s_mov_b32 s55, {o['cfix'] << 13}")
        e("s_or_b32 s60, s2, s52")
        e("s_cbranch_scc1 .Ldloop")
        e("v_mov_b32 v13, 0")
        e("s_mov_b64 exec, 1")
        e(f"buffer_store_dword v128, v13, s[36:39], 0 offen offset:{WS_EPOCH} sc1")
        e("s_mov_b64 exec, -1")
        self.ph = 2
        self.label(".Ldloop")
        e("s_waitcnt vmcnt(16)")
        self.tick(9)
        NB = o['NB']
        LIM = NF - NB
        def swp(l):
            e("s_cmp_lg_u32 s43, 0")
            e(f"s_cbranch_scc1 .Lswp{l}")
            self.label(f".Lswb{l}")
        def swo(l):
            self.label(f".Lswp{l}")
            for i in range(16): e(f"v_swap_b32 v{48+i}, v{160+i}")
            e("v_swap_b32 v10, v159")
            e("s_mov_b32 s43, 0")
            e(f"s_branch .Lswb{l}")
        def rdtk():
            e("v_readlane_b32 s46, v22, 0")
            e("v_readlane_b32 s47, v22, 1")
            e("s_cmp_eq_u32 s44, 0")
            e("s_cselect_b32 s56, s46, s47")
        def ctx():
            e("s_xor_b32 s43, s44, s45")
            e("s_mul_i32 s60, s43, s42")
            e("s_mov_b32 s45, s44")
            e("s_lshl_b32 s60, s60, 14")
            e("v_xor_b32 v20, s60, v20")
            e("s_lshl_b32 s60, s60, 4")
            e("s_xor_b32 s61, s61, s60")
            e("s_lshl_b32 s41, s61, 5")
            e(f"s_add_u32 s60, s47, {HP[0]}")
            e(f"s_min_u32 s63, s46, {LIM - HP[1] + HP[0]}")
            e("s_cmp_lt_u32 s60, s63")
            e("s_cselect_b32 s44, 1, 0")
        if HP:
            assert not o['ET']
            swp(0)
            rdtk()
        else: e("v_readfirstlane_b32 s56, v22")
        self.pcalc(range(4))
        if HP:
            e(f"s_cmp_ge_u32 s56, {LIM}")
            e("s_cbranch_scc1 .Lhx")
            ctx()
        if NB:
            e(f"s_cmp_lt_u32 s56, {NB}")
            e("s_cbranch_scc1 .Ldbl")
            e(f"s_add_u32 s56, s56, {NB}")
        e(f"s_cmp_ge_u32 s56, {NF}")
        e("s_cbranch_scc1 .Lfx")
        self.label(".Ld1")
        if o['ts'] and not o['prof']:
            e("s_mov_b32 s3, s56")
            self.ts(2)
        self.tile_addr()
        self.sc_addr("s56")
        e("buffer_load_dwordx2 v[24:25], v20, s[36:39], s98 offen " + self.P("scL"))
        if o['ET']:
            e(f"s_cmp_ge_u32 s56, {NF - o['ET']}")
            e("s_cbranch_scc1 .Lde")
            self.label(".Ldt")
        self.ticket()
        self.label(".Ldg")
        EG = o['EG']
        if EG:
            assert EG <= NF - 2 * NB
            e(f"s_cmp_ge_u32 s56, {NF - EG}")
            e("s_cbranch_scc1 .Leg")
        for g in range(4): self.vgrp(g, 14, True, tk=10 + g)
        self.plog()
        e("s_branch .Ldloop")
        if EG:
            self.label(".Leg")
            for g in range(4): self.ld(128, g)
            for g in range(4): self.vgrp(g, 30 - 4 * g, False)
            self.plog()
            e("s_waitcnt vmcnt(16)")
            e("v_readfirstlane_b32 s56, v22")
            self.pcalc(range(4))
            e(f"s_add_u32 s56, s56, {NB}")
            e("s_mov_b32 s99, 1")
            e(f"s_cmp_ge_u32 s56, {NF}")
            e("s_cbranch_scc1 .Lfx")
            e("s_mov_b32 s99, 0")
            self.tile_addr()
            self.sc_addr("s56")
            e("buffer_load_dwordx2 v[24:25], v20, s[36:39], s98 offen " + self.P("scL"))
            self.ticket()
            for g in range(4): self.ld(64, g)
            for g in range(4): self.vgrp(g, 30 - 4 * g, False, 128)
            self.plog()
            e("s_branch .Ldloop")
        if o['ET']:
            self.label(".Lde")
            e("s_mov_b64 exec, 1")
            if o['elig']: e(f"ds_cmpst_rtn_b32 v28, v27, v23, v27 offset:{L_CNT + 8}")
            else: e(f"ds_add_rtn_u32 v28, v27, v26 offset:{L_CNT + 8}")
            e("s_waitcnt lgkmcnt(0)")
            e("v_readfirstlane_b32 s97, v28")
            e("s_mov_b64 exec, -1")
            if o['elig']: e("s_xor_b32 s97, s97, 4")
            else: e("s_cmp_lg_u32 s97, 0")
            e("s_cbranch_scc1 .Ldt")
            e("s_mov_b64 exec, 1")
            e("buffer_atomic_add v26, v27, s[48:51], s100 offen offset:64 sc0 sc1")
            e("s_mov_b64 exec, -1")
            e("v_mov_b32 v22, 0x10000")
            e("s_mov_b32 s101, 1")
            e("s_branch .Ldg")
        if NB:
            self.label(".Ldbl")
            e("s_lshl_b32 s56, s56, 1")
            self.tile_addr()
            self.sc_addr("s56")
            e("buffer_load_dwordx2 v[24:25], v20, s[36:39], s98 offen " + self.P("scL"))
            for g in range(4): self.vgrp(g, 13, True, tk=10 + g)
            self.plog()
            e("s_add_u32 s56, s56, 1")
            self.label(".Ldbl2")
            e("s_waitcnt vmcnt(16)")
            self.tick(14)
            if HP: swp(1)
            self.pcalc(range(4))
            e("s_branch .Ld1")
        if HP:
            swo(0); swo(1)
            self.label(".Lhx")
            e(f"s_cmp_ge_u32 s46, {LIM}")
            e("s_cbranch_scc1 .Lfx")
            e("s_mov_b32 s44, 0")
            self.ticket()
            for g in range(4): self.vgrp(g, 13 - 4 * g, False)
            self.plog()
            e("s_waitcnt vmcnt(0)")
            rdtk()
            e(f"s_cmp_ge_u32 s56, {LIM}")
            e("s_cbranch_scc1 .Lhz")
            ctx()
            e("s_lshl_b32 s60, s56, 1")
            e(f"s_add_u32 s56, s56, {NB}")
            e("s_min_u32 s56, s56, s60")
            self.tile_addr()
            self.sc_addr("s56")
            e("buffer_load_dwordx2 v[24:25], v20, s[36:39], s98 offen " + self.P("scL"))
            e(f"s_cmp_lt_u32 s56, {2 * NB}")
            e("s_cbranch_scc1 .Lhd")
            self.ticket()
            for g in range(4): self.ld(64, g)
            e("s_branch .Ldloop")
            self.label(".Lhd")
            for g in range(4): self.ld(64, g)
            e("s_add_u32 s56, s56, 1")
            e("s_branch .Ldbl2")
            self.label(".Lhz")
            for i in range(16): e(f"v_mov_b32 v{32+i}, 0")
        self.label(".Lfx")
        if o['wp']:
            e("s_lshl_b32 s60, s2, 2")
            e("s_add_u32 s60, s60, s52")
            e("s_lshl_b32 s60, s60, 8")
            e(f"s_add_u32 s60, s60, {WS_PROF}")
            e("v_mov_b32 v13, 0")
            e("s_mov_b64 exec, 1")
            for i in range(8): e(f"buffer_store_dwordx4 v[{224+4*i}:{227+4*i}], v13, s[36:39], s60 offen offset:{16*i}")
            e("s_mov_b64 exec, -1")
            e("s_waitcnt vmcnt(0)")
        self.tail()
        nacc = 64 * (PV + PA) if not o['aw'] else 224
        self.L.append('.section .rodata,"a"')
        self.L.append(".p2align 6")
        self.L.append(f".amdhsa_kernel {NAME}")
        self.L.append(f"  .amdhsa_next_free_vgpr {256 + nacc}")
        self.L.append("  .amdhsa_next_free_sgpr 102")
        self.L.append(f"  .amdhsa_accum_offset 256")
        self.L.append("  .amdhsa_group_segment_fixed_size 0")
        self.L.append("  .amdhsa_kernarg_size 96")
        self.L.append("  .amdhsa_user_sgpr_count 2")
        self.L.append("  .amdhsa_user_sgpr_kernarg_segment_ptr 1")
        self.L.append("  .amdhsa_system_sgpr_workgroup_id_x 1")
        self.L.append("  .amdhsa_float_denorm_mode_32 3")
        self.L.append(".end_amdhsa_kernel")
        return "\n".join(self.L) + "\n"

    def resets(self):
        e = self.e; o = self.o
        if 'r' in o['xq']: return
        e("s_cmp_lg_u32 s52, 1")
        e("s_cbranch_scc1 .Lnoreset")
        for i in range(4): e(f"v_mov_b32 v{24+i}, -1")
        e("v_lshlrev_b32 v18, 4, v1")
        npc = (131072 + 28672 * o['NC'] + 200704) // 1024 if not o['iod'] else 416
        if o['p2s']:
            assert o['NSH'] <= 4 and o['iod'] and o['dpk'] and o['sp'] and not o['hp']
            npc = 192
            if o['trim']:
                e("s_and_b32 s63, s2, 0x87")
                e("s_cmp_eq_u32 s63, 0x87")
                e("s_cbranch_scc1 .Lnoreset")
        e("s_mov_b64 s[36:37], s[26:27]")
        e("s_lshl_b32 s63, s2, 10")
        e(f"s_add_u32 s63, s63, {WS_PART}")
        if o['hp']:
            e("s_cmp_lt_u32 s2, 128")
            e("s_cbranch_scc1 .Lnoreset2")
            e(f"s_add_u32 s60, s63, {WS_PART2 - 0x20000}")
            e("buffer_store_dwordx4 v[24:27], v18, s[36:39], s60 offen " + self.P("rsS"))
            self.label(".Lnoreset2")
        for i in range((npc + 255) // 256):
            if npc - 256 * i < 256:
                e(f"s_cmp_ge_u32 s2, {npc - 256 * i}")
                e("s_cbranch_scc1 .Lnoreset")
            e("buffer_store_dwordx4 v[24:27], v18, s[36:39], s63 offen " + self.P("rsS"))
            e("s_add_u32 s63, s63, 0x40000")
        self.label(".Lnoreset")

    def sgtest(self, skip):
        e = self.e
        e("s_cmp_lg_u32 s62, 1")
        e(f"s_cbranch_scc1 {skip}")
        e("s_cmp_ge_u32 s54, 28")
        e(f"s_cbranch_scc1 {skip}")
        e("s_lshr_b32 s69, s53, 2")
        e("s_mul_i32 s69, s69, 28")
        e("s_add_u32 s69, s69, s54")

    def sgload(self):
        e = self.e; o = self.o
        self.sgtest(".Lnosg")
        e("s_mov_b32 s46, 1605632")
        e("s_mov_b32 s47, 0x20000")
        e("s_mov_b64 s[44:45], s[20:21]")
        e("v_lshlrev_b32 v13, 4, v1")
        e("s_mul_i32 s99, s69, 28672")
        e("s_movk_i32 s98, 1024")
        e(f"s_mov_b32 s96, {L_D}")
        e("s_cmp_eq_u32 s52, 3")
        e("s_cbranch_scc1 .Lsg1")
        e("s_mov_b64 s[44:45], s[18:19]")
        e("v_lshrrev_b32 v13, 2, v1")
        e("v_mul_u32_u24 v13, 3584, v13")
        e("v_lshl_add_u32 v13, v31, 4, v13")
        e("s_lshl_b32 s99, s69, 6")
        e(f"s_mov_b32 s98, {16*3584}")
        e(f"s_mov_b32 s96, {L_U}")
        e("s_cmp_eq_u32 s52, 2")
        e("s_cbranch_scc1 .Lsg1")
        e("s_mov_b64 s[44:45], s[16:17]")
        e(f"s_mov_b32 s96, {L_W}")
        self.label(".Lsg1")
        e("s_add_u32 s97, s96, 28672")
        self.label(".Lsg2")
        e("s_mov_b32 m0, s96")
        e("s_add_u32 s96, s96, 1024")
        if o['sgp']: e(f"s_waitcnt vmcnt({o['sgp']})")
        e(f"buffer_load_dwordx4 v13, s[44:47], s99 offen {o['wpol']} lds")
        e("s_add_u32 s99, s99, s98")
        e("s_cmp_lt_u32 s96, s97")
        e("s_cbranch_scc1 .Lsg2")
        self.label(".Lnosg")

    def race(self):
        e = self.e
        X = "0x5bd1e995"
        e("s_cmp_lg_u32 s52, 1")
        e("s_cbranch_scc1 .Lnorace")
        e("s_lshr_b32 s60, s2, 6")
        e("s_lshl_b32 s60, s60, 14")
        e("s_and_b32 s63, s2, 63")
        e("s_lshl_b32 s63, s63, 7")
        e("s_add_u32 s60, s60, s63")
        e("s_bfe_u32 s41, s2, 0x10003")
        e("s_lshl_b32 s63, s41, 13")
        e("s_add_u32 s60, s60, s63")
        e(f"s_add_u32 s60, s60, {WS_RACE}")
        e("s_xor_b32 s63, s60, 0x2000")
        e("s_getreg_b32 s40, hwreg(HW_REG_XCC_ID, 2, 1)")
        e("s_xor_b32 s41, s41, s40")
        e(f"s_mov_b32 s42, {X}")
        e(f"s_mov_b32 s43, {X}")
        e("s_waitcnt lgkmcnt(0)")
        e("s_load_dword s42, s[26:27], s60")
        e("s_load_dword s43, s[26:27], s63")
        e("s_waitcnt lgkmcnt(1)")
        e("s_mov_b64 s[44:45], s[42:43]")
        e(f"s_cmp_eq_u32 s44, {X}")
        e("s_cselect_b32 s44, 1, 0")
        e(f"s_cmp_eq_u32 s45, {X}")
        e("s_cselect_b32 s45, 1, 0")
        e("s_xor_b32 s41, s41, s44")
        e("s_cselect_b32 s40, 20, 10")
        e("s_lshl_b32 s40, 1, s40")
        e("s_add_u32 s40, s40, 1")
        e("s_cmp_eq_u32 s44, s45")
        e("s_cselect_b32 s40, 1, s40")
        self.label(".Lnorace")

    def checkin(self, skip):
        e = self.e
        e("s_cmp_lg_u32 s52, 1")
        e(f"s_cbranch_scc1 {skip}")
        e("v_mov_b32 v22, s40" if self.o['iod'] else "v_mov_b32 v22, 1")
        e("s_getreg_b32 s60, hwreg(HW_REG_XCC_ID, 0, 3)")
        e("s_lshl_b32 s60, s60, 2")
        e("v_mov_b32 v13, s60")
        e("s_mov_b64 exec, 1")
        e(f"buffer_atomic_add v22, v13, s[48:51], 0 offen sc1 {self.o['cpol']}")
        e("s_mov_b64 exec, -1")

    def setup(self):
        e = self.e; o = self.o
        NSH = o['NSH']; XS = o['PV'] + o['XS']
        B1 = 32 * NSH + 24 * XS
        e(f"s_mov_b32 s59, {hex(f2u(math.log2(math.e) / 16.0))}")
        e("v_and_b32 v6, 1, v1")
        e("v_mov_b32 v10, 0xffff")
        e("v_lshlrev_b32 v6, 4, v6")
        e("v_lshlrev_b32 v10, v6, v10")
        e("v_bfe_u32 v11, v1, 1, 2")
        for r in range(4):
            e(f"v_cmp_eq_u32 vcc, {r}, v11")
            e("s_nop 1")
            e(f"v_cndmask_b32 v{6+r}, 0, v10, vcc")
        e("s_lshl_b32 s60, s54, 8")
        e(f"s_add_u32 s60, s60, {WS_CNT}")
        e("v_mov_b32 v21, s60")
        e("s_lshl_b32 s60, s52, 11")
        e(f"s_add_u32 s60, s60, {L_SC}")
        e("v_lshl_add_u32 v19, v20, 3, s60")
        e("v_lshl_add_u32 v27, v1, 4, s60")
        for i in range(4): e(f"v_mov_b32 v{32+i}, 0xff80ff80")
        e("ds_write_b128 v27, v[32:35]")
        e("ds_write_b128 v27, v[32:35] offset:1024")
        e(f"s_lshl_b32 s60, s54, {13 if o['p2s'] else 14}")
        e(f"s_add_u32 s60, s60, {self.o['scb']}")
        e("v_lshl_add_u32 v20, v20, 3, s60")
        e("v_lshrrev_b32 v11, 4, v1")
        e("v_bfe_u32 v29, v1, 2, 2")
        e("v_lshl_add_u32 v29, v11, 3, v29")
        e("v_and_b32 v31, 3, v1")
        e("v_and_b32 v10, 1, v1")
        e("v_mul_u32_u24 v30, 896, v10")
        e("v_lshl_add_u32 v30, v11, 4, v30")
        e("s_cmp_eq_u32 s52, 0")
        e(f"s_cselect_b32 s63, 0, {XS}")
        e("s_lshl_b32 s60, s63, 5")
        e(f"s_sub_u32 s60, {B1 - 32 * NSH}, s60")
        e("v_lshl_add_u32 v23, v1, 5, s58")
        e("v_add_u32 v10, s60, v23")
        e(f"v_cmp_le_u32 vcc, {NSH}, v1")
        e("s_nop 1")
        e("v_cndmask_b32 v23, v23, v10, vcc")
        if XS:
            e("s_mul_i32 s60, s53, 3")
            e("s_add_u32 s60, s60, s52")
            e(f"s_add_u32 s60, s60, {8 * NSH - 1}")
            e("v_mov_b32 v10, s60")
            e("v_mad_u32_u24 v10, v1, 24, v10")
            e(f"v_subrev_u32 v11, {NSH}, v1")
            e("v_cmp_gt_u32 vcc, s63, v11")
            e("s_nop 1")
            e("v_cndmask_b32 v23, v23, v10, vcc")

    def mpoll(self, n, regs, addr, full, lab, m0=72, pol=''):
        e = self.e
        self.poll_begin()
        e(f"s_branch {lab}chk")
        self.label(lab + "poll")
        for p in range(n):
            e(f"s_mov_b64 exec, s[{m0+2*p}:{m0+2*p+1}]")
            e(f"buffer_load_dwordx4 v[{regs+4*p}:{regs+4*p+3}], {addr(p)} " + self.P(pol))
        e(f"s_mov_b64 exec, {full}")
        self.label(lab + "chk")
        for p in range(n):
            e(f"s_waitcnt vmcnt({n-1-p})")
            e(f"v_cmp_u_f32 s[{m0+2*p}:{m0+2*p+1}], v{regs+4*p}, v{regs+4*p+2}")
            if p == 1: e(f"s_or_b64 vcc, s[{m0}:{m0+1}], s[{m0+2}:{m0+3}]")
            elif p > 1: e(f"s_or_b64 vcc, vcc, s[{m0+2*p}:{m0+2*p+1}]")
        e(f"s_cbranch_scc0 {lab}ok")
        self.poll_again(lab + "poll")
        self.label(lab + "ok")

    def pround(self, n, regs, addr, full, m0, pol, mk=False):
        e = self.e
        if mk: e("s_movk_i32 s63, 0x8000")
        for p in range(n):
            if mk:
                e(f"v_and_or_b32 v121, v{regs+4*p+1}, v{regs+4*p+3}, s63")
                e(f"v_cmp_ne_u32 s[{m0+2*p}:{m0+2*p+1}], -1, v121")
            else: e(f"v_cmp_u_f32 s[{m0+2*p}:{m0+2*p+1}], v{regs+4*p}, v{regs+4*p+2}")
        for p in range(n):
            e(f"s_mov_b64 exec, s[{m0+2*p}:{m0+2*p+1}]")
            e(f"buffer_load_dwordx4 v[{regs+4*p}:{regs+4*p+3}], {addr(p)} " + self.P(pol))
        e(f"s_mov_b64 exec, {full}")

    def spoll(self, n, regs, addr, full, lab, tree, c0, c1, m0=6, pol='', mk=False):
        e = self.e
        self.poll_begin()
        e(f"s_branch {lab}chk")
        self.label(lab + "poll")
        e("s_sub_u32 s62, s62, 1")
        e(f"s_cbranch_scc1 {lab}ok")
        self.pround(n, regs, addr, full, m0, pol, mk)
        self.label(lab + "chk")
        tree()
        e(f"v_cmp_u_f32 vcc, v{c0}, v{c1}" if not mk else "v_cmp_ne_u32 vcc, -1, v120")
        e(f"s_cbranch_vccnz {lab}poll")
        self.label(lab + "ok")

    def apoll(self, n, regs, addr, full, lab, win):
        e = self.e
        e(f"s_mov_b32 s62, {10 * self.o['spin']}")
        e(f"s_branch {lab}chk")
        for p in range(n):
            self.label(f"{lab}i{p}")
            e("s_mov_b64 exec, vcc")
            e(f"s_waitcnt vmcnt({win - 1})")
            e(f"buffer_load_dwordx4 v[{regs+4*p}:{regs+4*p+3}], {addr(p)} sc1")
            e(f"s_mov_b64 exec, {full}")
            if p < n - 1:
                e("s_mov_b32 s63, 1")
                e(f"s_branch {lab}b{p}")
        self.label(lab + "again")
        e("s_sub_u32 s62, s62, 1")
        e(f"s_cbranch_scc1 {lab}ok")
        self.label(lab + "chk")
        e("s_mov_b32 s63, 0")
        for p in range(n):
            e(f"v_cmp_u_f32 vcc, v{regs+4*p+1}, v{regs+4*p+3}")
            if p == n - 1: e("s_cmp_lg_u32 s63, 0")
            e(f"s_cbranch_vccnz {lab}i{p}")
            self.label(f"{lab}b{p}")
        e(f"s_cbranch_scc1 {lab}again")
        self.label(lab + "ok")

    def swap13(self):
        e = self.e
        e("s_lshr_b32 s63, s60, 2")
        e("s_xor_b32 s63, s63, s60")
        e("s_and_b32 s63, s63, 0x2000")
        e("s_mul_i32 s63, s63, 5")
        e("s_xor_b32 s60, s60, s63")
        e("s_xor_b32 s60, s60, s55")

    def tail(self):
        e = self.e; o = self.o
        assert o['RA'] == 0
        ET = o['ET']; B1W = o['B1W']; B1G = o['B1G']
        e("s_mov_b32 s54, 0")
        e("v_mov_b32 v16, 0")
        e("v_mov_b32 v17, 1")
        e("s_mov_b64 exec, 1")
        if o['elig']: e(f"ds_cmpst_rtn_b32 v18, v16, v23, v16 offset:{L_CNT + 8}")
        else: e(f"ds_add_rtn_u32 v18, v16, v17 offset:{L_CNT + 8}")
        e("s_mov_b64 exec, -1")
        e("v_lshrrev_b32 v13, 5, v1")
        e("v_lshlrev_b32 v13, 10, v13")
        e("v_and_b32 v14, 7, v1")
        e("v_lshl_add_u32 v13, v14, 5, v13")
        e("v_bfe_u32 v14, v1, 4, 1")
        e("v_lshl_add_u32 v13, v14, 4, v13")
        e("s_lshl_b32 s60, s52, 11")
        e("v_add_u32 v13, s60, v13")
        e("v_lshlrev_b32 v14, 4, v1")
        e("v_lshlrev_b32 v15, 3, v1")
        HP = o['hp']
        if HP:
            e("s_lshl_b32 s60, s42, 3")
            e("s_xor_b32 s60, s60, s2")
            e("s_lshl_b32 s60, s60, 9")
            self.swap13()
            e(f"s_add_u32 s66, s60, {WS_PART + WS_PART2}")
        e("s_lshl_b32 s60, s2, 9")
        if o['iod']: self.swap13()
        e(f"s_add_u32 s60, s60, {WS_PART}")
        e("s_waitcnt lgkmcnt(0)")
        if ET:
            e("s_cmp_lg_u32 s101, 0")
            e("s_cbranch_scc1 .Ldec")
        e("v_readfirstlane_b32 s97, v18")
        e("s_xor_b32 s97, s97, 4" if o['elig'] else "s_cmp_lg_u32 s97, 0")
        e("s_cbranch_scc1 .Lnr" if not HP else "s_cbranch_scc1 .Lnr0")
        e("s_mov_b64 exec, 1")
        e("buffer_atomic_add v26, v16, s[48:51], s100 offen offset:64 sc0 sc1")
        e("s_mov_b64 exec, -1")
        RD = "v14"; CA = "v16"
        if HP:
            self.label(".Lnr0")
            RD = "v178"; CA = "v179"
            e("s_cmp_eq_u32 s45, 0")
            e("s_cselect_b32 s67, s66, s60")
            e("s_cselect_b32 s60, s60, s66")
            e(f"s_cselect_b32 s64, {L_RED2}, 0")
            e(f"s_cselect_b32 s65, 0, {L_RED2}")
            e("s_cselect_b32 s63, 12, 0")
            e("v_add_u32 v176, s64, v13")
            e("v_add_u32 v177, s64, v14")
            e("v_add_u32 v13, s65, v13")
            e("v_add_u32 v178, s65, v14")
            e("v_mov_b32 v179, s63")
            e("s_mov_b32 exec_lo, 0x00ff00ff")
            e("s_mov_b32 exec_hi, 0xff00ff00")
            for j in range(4):
                e(f"ds_write_b128 v176, v[{160+4*j}:{163+4*j}] offset:{L_RED + j*256}")
            e("s_mov_b64 exec, 1")
            e(f"ds_add_rtn_u32 v18, v179, v17 offset:{L_CNT}")
            e("s_mov_b64 exec, -1")
            e("v_xor_b32 v179, 12, v179")
            e("s_waitcnt lgkmcnt(0)")
            e("v_readfirstlane_b32 s66, v18")
            e("s_cmp_lg_u32 s66, 3")
            e("s_cbranch_scc1 .Lnr1")
            for p in range(8):
                e(f"ds_read_b128 v[{180+4*p}:{183+4*p}], v177 offset:{L_RED + p*1024}")
            pk = lambda d, a, b: e(f"v_pk_add_f32 v[{d}:{d+1}], v[{a}:{a+1}], v[{b}:{b+1}]")
            for p in range(1, 8):
                e(f"s_waitcnt lgkmcnt({7-p})")
                for i in (0, 2): pk(180+i, 180+i, 180+4*p+i)
            e("v_cvt_pk_bf16_f32 v180, v180, v181")
            e("v_cvt_pk_bf16_f32 v181, v182, v183")
            e("v_min_u32 v180, -2, v180")
            e("v_min_u32 v181, -2, v181")
            self.label(".Lnr1")
            e("s_cmp_lg_u32 s97, 0")
            e("s_cbranch_scc1 .Lnr")
        def last(n):
            if o['EG']:
                assert not o['fp']
                l = self.newlab("la")
                e("s_cmp_eq_u32 s99, 0")
                e(f"s_cbranch_scc1 {l}")
                for g in range(4): self.vgrp(g, n - 4 * g, False, 128)
                e("s_branch .Lrt")
                self.label(l)
        if not o['fp']:
            last(13)
            for g in range(4): self.vgrp(g, 13 - 4 * g, False)
            e("s_branch .Lrt")
        else: assert not ET
        if ET:
            assert B1W == B1G
            self.label(".Lte2")
            e("s_mov_b32 s101, 2")
            for g in range(4): self.vgrp(g, B1W + 12 - 4 * g, False)
            e("s_branch .Lrt")
        self.label(".Lnr")
        last(12)
        if o['fp']:
            for i in range(3): e(f"v_xor_b32 v{176+i}, {2048*(i+1)}, v13")
            e("v_lshrrev_b32 v179, 5, v1")
            e("v_lshlrev_b32 v179, 7, v179")
            e("v_and_b32 v180, 7, v1")
            e("v_lshl_add_u32 v179, v180, 4, v179")
            e("v_bfe_u32 v180, v1, 4, 1")
            e("v_lshl_add_u32 v179, v180, 3, v179")
        FG = o['fpg'] if o['fp'] else 3
        for g in range(FG): self.vgrp(g, 12 - 4 * g, False)
        if o['fp']:
            e(f"ds_read_b32 v18, v16 offset:{L_CNT}")
            for i in range(3):
                for j in range(4):
                    e(f"ds_read_b128 v[{128+16*i+4*j}:{131+16*i+4*j}], v{176+i} offset:{L_RED + j*256}")
            e("s_waitcnt lgkmcnt(12)")
            e("v_readfirstlane_b32 s63, v18")
            e("s_cmp_lg_u32 s63, 3")
            e("s_cbranch_scc1 .Lslow")
            pk = lambda d, a, b: e(f"v_pk_add_f32 v[{d}:{d+1}], v[{a}:{a+1}], v[{b}:{b+1}]")
            for i in range(3):
                e(f"s_waitcnt lgkmcnt({8 - 4 * i})")
                for r in range(0, 16, 2): pk(48 + r, 48 + r, 128 + 16 * i + r)
            for g in range(FG, 4): self.vgrp(g, 12 - 4 * g, False)
            self.plog()
            self.ts(3)
            e("s_mov_b32 s64, 0x00ff00ff")
            e("s_mov_b32 s65, 0x00ff00ff")
            e("s_nop 3")
            for jj in (0, 8):
                for i in range(4): e(f"v_permlane32_swap_b32 v{48+jj+i}, v{52+jj+i}")
            for jj in (0, 8):
                for i in range(4): e(f"v_add_f32_dpp v{48+jj+i}, v{52+jj+i}, v{48+jj+i} row_ror:8 row_mask:0xf bank_mask:0xf")
            e("s_mov_b64 exec, s[64:65]")
            for jj in (0, 8):
                e(f"v_cvt_pk_bf16_f32 v{48+jj}, v{48+jj}, v{49+jj}")
                e(f"v_cvt_pk_bf16_f32 v{49+jj}, v{50+jj}, v{51+jj}")
                e(f"v_min_u32 v{48+jj}, -2, v{48+jj}")
                e(f"v_min_u32 v{49+jj}, -2, v{49+jj}")
                e(f"buffer_store_dwordx2 v[{48+jj}:{49+jj}], v179, s[36:39], s60 offen offset:{jj*32} " + self.P("paS"))
            e("s_mov_b64 exec, -1")
            self.ts(4)
            e("s_branch .Lnotlast")
            self.label(".Lslow")
        for g in range(FG, 4): self.vgrp(g, 12 - 4 * g, False)
        self.label(".Lrt")
        self.plog()
        self.ts(3)
        if HP:
            e("s_cmp_lg_u32 s66, 3")
            e("s_cbranch_scc1 .Lrt1")
            e("buffer_store_dwordx2 v[180:181], v15, s[36:39], s67 offen " + self.P("paS"))
            self.label(".Lrt1")
        e("s_mov_b32 exec_lo, 0x00ff00ff")
        e("s_mov_b32 exec_hi, 0xff00ff00")
        e("s_nop 3" if not HP else "s_nop 1")
        for j in range(4):
            e(f"ds_write_b128 v13, v[{48+4*j}:{51+4*j}] offset:{L_RED + j*256}")
        e("s_mov_b64 exec, 1")
        e(f"ds_add_rtn_u32 v18, {CA}, v17 offset:{L_CNT}")
        e("s_mov_b64 exec, -1")
        for p in range(8):
            e(f"ds_read_b128 v[{64+4*p}:{67+4*p}], {RD} offset:{L_RED + p*1024}")
        if o['ppk']:
            pk = lambda d, a, b: e(f"v_pk_add_f32 v[{d}:{d+1}], v[{a}:{a+1}], v[{b}:{b+1}]")
            e("s_waitcnt lgkmcnt(6)")
            e("v_readfirstlane_b32 s63, v18")
            for i in (0, 2): pk(64+i, 64+i, 68+i)
            e("s_cmp_lg_u32 s63, 3")
            e("s_cbranch_scc1 .Lnotlast")
            e("s_waitcnt lgkmcnt(4)")
            for i in (0, 2): pk(72+i, 72+i, 76+i)
            e("s_waitcnt lgkmcnt(2)")
            for i in (0, 2): pk(80+i, 80+i, 84+i)
            for i in (0, 2): pk(64+i, 64+i, 72+i)
            e("s_waitcnt lgkmcnt(0)")
            for i in (0, 2): pk(88+i, 88+i, 92+i)
            for i in (0, 2): pk(64+i, 64+i, 80+i)
            for i in (0, 2): pk(64+i, 64+i, 88+i)
        else:
            e("s_waitcnt lgkmcnt(8)" if not o['ts'] else "s_waitcnt lgkmcnt(0)")
            e("v_readfirstlane_b32 s63, v18")
            e("s_cmp_lg_u32 s63, 3")
            e("s_cbranch_scc1 .Lnotlast")
            for p in range(0, 8, 2):
                e(f"s_waitcnt lgkmcnt({6-p})")
                for i in range(4): e(f"v_add_f32 v{64+4*p+i}, v{64+4*p+i}, v{68+4*p+i}")
                if p == 2:
                    for i in range(4): e(f"v_add_f32 v{64+i}, v{64+i}, v{72+i}")
            for i in range(4): e(f"v_add_f32 v{80+i}, v{80+i}, v{88+i}")
            for i in range(4): e(f"v_add_f32 v{64+i}, v{64+i}, v{80+i}")
        e("v_cvt_pk_bf16_f32 v64, v64, v65")
        e("v_cvt_pk_bf16_f32 v65, v66, v67")
        e("v_min_u32 v64, -2, v64")
        e("v_min_u32 v65, -2, v65")
        e("buffer_store_dwordx2 v[64:65], v15, s[36:39], s60 offen " + self.P("paS"))
        self.ts(4)
        self.label(".Lnotlast")
        e("s_cmp_lg_u32 s97, 0")
        e("s_cbranch_scc1 .Lrolewait" if not o['dry'] else "s_cbranch_scc1 .Ldry")
        if ET:
            e("s_cmp_eq_u32 s101, 0")
            e("s_cbranch_scc1 .Llate")
            e("s_cmp_ge_u32 s69, 112")
            e("s_cbranch_scc1 .Lrdone")
            e(f"s_mov_b32 s98, {L_U}")
            e("s_cmp_lt_u32 s69, 56")
            e("s_cbranch_scc1 .Lldg0")
            e(f"s_mov_b32 s98, {L_W + 65536}")
            e("s_branch .Lldw0")
            self.label(".Llate")
        e("s_waitcnt vmcnt(0)")
        self.label(".Ldec")
        self.ts(10)
        e("v_readfirstlane_b32 s69, v26")
        if o['sg']:
            assert o['c2'] and o['elig'] and o['rord'] == 'GW'
            e("s_add_u32 s69, s69, 56")
        e("s_cmp_eq_u32 s100, 64")
        e("s_cbranch_scc1 .Lrgot")
        if o['sg']: e("s_sub_u32 s69, s69, 28")
        Q = 28 if o['c2'] else 7
        e("s_mul_i32 s56, s58, 7" if not o['c2'] else "s_mul_i32 s56, s100, 7")
        e(f"s_cmp_lt_u32 s69, {Q}")
        if o['rord'] == 'GW': e(f"s_cselect_b32 s57, 0, {56 - Q}")
        else:
            e(f"s_cselect_b32 s57, {56 + Q}, 0")
            e(f"s_sub_u32 s57, s57, {Q}")
        e("s_add_u32 s56, s56, s57")
        e(f"s_cmp_lt_u32 s69, {2 * Q}")
        e("s_cselect_b32 s56, s56, 255")
        e("s_add_u32 s69, s69, s56")
        self.label(".Lrgot")
        e("s_mov_b64 exec, 1")
        e("v_mov_b32 v18, s69")
        e(f"ds_write_b32 v16, v18 offset:{L_CNT + 4}")
        e("s_mov_b64 exec, -1")
        if o['coop']:
            assert not ET and not o['gch'] and not o['wch'] and not o['dq'] and not o['hp'] and not o['gfl'] and o['dry']
            self.coop()
        e(f"s_mov_b32 s96, {L_W}")
        e("s_cmp_ge_u32 s69, 112")
        e("s_cbranch_scc1 .Lrnone")
        e("s_cmp_lt_u32 s69, 56")
        e("s_cbranch_scc1 .Lldg")
        e("s_sub_u32 s56, s69, 56")
        e("s_mul_i32 s99, s56, 37")
        e("s_lshr_b32 s99, s99, 8")
        e("s_mul_i32 s57, s99, 7")
        e("s_sub_u32 s57, s56, s57")
        e(f"s_mul_i32 s99, s99, {512*896}")
        e("s_lshl_b32 s57, s57, 7")
        e("s_add_u32 s99, s99, s57")
        e("v_lshrrev_b32 v27, 3, v1")
        e("v_mul_u32_u24 v27, 896, v27")
        e("v_and_b32 v18, 7, v1")
        e("v_lshl_add_u32 v27, v18, 4, v27")
        if 'W' in o['fakew']:
            e("v_mov_b32 v27, v14")
            e("s_lshl_b32 s99, s56, 16")
        e(f"s_mov_b32 s98, {L_W + 1024 * o['cut'][0]}")
        e("s_cmp_eq_u32 s101, 1")
        e(f"s_cselect_b32 s98, {L_W + 1024 * B1W}, s98")
        self.label(".Lldw0")
        self.srd(40, 12, 3670016)
        self.label(".Lldw")
        if o['wch']:
            assert not ET and not o['fakew']
            for i in range(4):
                e("s_mov_b32 m0, s96")
                e(f"s_add_u32 s96, s96, {1024 * (1 if i < 3 else 13)}")
                e(f"buffer_load_dwordx4 v27, s[40:43], s99 offen {o['wpol']} lds")
                e(f"s_add_u32 s99, s99, {8 * 896 * (1 if i < 3 else 13)}")
            e("s_cmp_lt_u32 s96, s98")
            e("s_cbranch_scc1 .Lldw")
            e(f"s_sub_u32 s96, s96, {1024 * 60}")
            e(f"s_sub_u32 s99, s99, {8 * 896 * 60}")
            e(f"s_cmp_lt_u32 s96, {L_W + 16384}")
            e("s_cbranch_scc1 .Lldw")
        else:
            e("s_mov_b32 m0, s96")
            e("s_add_u32 s96, s96, 1024")
            e(f"buffer_load_dwordx4 v27, s[40:43], s99 offen {o['wpol']} lds")
            e(f"s_add_u32 s99, s99, {8*896 if 'W' not in o['fakew'] else 1024}")
            e("s_cmp_lt_u32 s96, s98")
            e("s_cbranch_scc1 .Lldw")
        if ET:
            e("s_cmp_eq_u32 s101, 1")
            e("s_cbranch_scc1 .Lte2")
        e("s_branch .Lrdone")
        self.label(".Lrnone")
        e("s_cmp_eq_u32 s101, 1")
        e("s_cbranch_scc1 .Lnr")
        e("s_branch .Lrdone")
        self.label(".Lldg")
        def dload():
            self.srd(40, 20, 1605632)
            e("s_mul_i32 s99, s69, 28672")
            e(f"s_mov_b32 s96, {L_D}")
            self.label(".Lldg2")
            e("s_mov_b32 m0, s96")
            e("s_add_u32 s96, s96, 1024")
            e(f"buffer_load_dwordx4 v14, s[40:43], s99 offen {o['dpol']} lds")
            e("s_add_u32 s99, s99, 1024")
            e(f"s_cmp_lt_u32 s96, {L_D + 1024 * o['cut'][1]}")
            e("s_cbranch_scc1 .Lldg2")
        if o['gch']:
            assert not ET and not o['dq'] and 'G' in o['fresh'] and not o['gfl']
            dload()
            e(f"s_mov_b32 s96, {L_W}")
        e("s_lshl_b32 s99, s69, 6")
        e("v_lshrrev_b32 v27, 2, v1")
        e("v_mul_u32_u24 v27, 3584, v27")
        e("v_lshl_add_u32 v27, v31, 4, v27")
        if 'G' in o['fakew']:
            e("v_mov_b32 v27, v14")
            e("s_mul_i32 s99, s69, 28672")
        e(f"s_mov_b32 s98, {L_U}")
        e("s_cmp_eq_u32 s101, 1")
        e(f"s_cselect_b32 s98, {L_W + 512 * B1G}, s98")
        self.label(".Lldg0")
        self.srd(40, 16, 1605632)
        self.srd(44, 18, 1605632)
        self.label(".Lldg1")
        e("s_mov_b32 m0, s96")
        e(f"s_add_u32 s57, s96, {L_U - L_W}")
        GP = o['wpol'] if o['gpol'] is None else o['gpol']
        e(f"buffer_load_dwordx4 v27, s[40:43], s99 offen {GP} lds")
        e("s_mov_b32 m0, s57")
        e("s_add_u32 s96, s96, 1024")
        e(f"buffer_load_dwordx4 v27, s[44:47], s99 offen {GP} lds")
        e(f"s_add_u32 s99, s99, {16*3584 if 'G' not in o['fakew'] else 1024}")
        e("s_cmp_lt_u32 s96, s98")
        e("s_cbranch_scc1 .Lldg1")
        if ET:
            e("s_cmp_eq_u32 s101, 1")
            e("s_cbranch_scc1 .Lte2")
        if not o['dq'] and not o['gch']: dload()
        self.label(".Lrdone")
        e("s_mov_b32 s54, 1")
        e("s_waitcnt lgkmcnt(0)")
        if o['dry']:
            e("s_branch .Lrolewait")
            self.label(".Ldry")
            e(f"s_cmp_gt_u32 s63, 1" if o['coop'] != 2 else "s_cmp_lg_u32 s63, 2")
            e("s_cbranch_scc1 .Lrolewait" if not o['coop'] else "s_cbranch_scc1 .Lcwait")
            for r in (0, 24, 26, 48, 50, 64): e(f"s_mov_b64 s[{r}:{r+1}], 0")
            for r in (56, 57, 59, 61, 63, 96, 97, 98, 99, 100, 101): e(f"s_mov_b32 s{r}, 0")
            e("s_waitcnt lgkmcnt(0)")
            e("s_mov_b64 exec, 0")
            e("s_branch .Lwok")
            self.label(".Ldryend")
            e("s_mov_b64 exec, -1")
            if o['ts']:
                e("s_waitcnt lgkmcnt(0)")
                for k in (5, 11, 12) if not o['hts'] else (): e(f"s_mov_b32 s{70+2*k}, 0")
            if o['coop']:
                self.label(".Lcwait")
                e(f"s_mov_b32 s62, {10 * o['spin']}")
                self.label(".Lcw1")
                e(f"ds_read_b32 v18, v16 offset:{L_CNT + 4}")
                e("s_sub_u32 s62, s62, 1")
                e("s_cbranch_scc1 .Lrolewait")
                e("s_waitcnt lgkmcnt(0)")
                e("v_readfirstlane_b32 s69, v18")
                e("s_cmp_eq_u32 s69, -1")
                e("s_cbranch_scc1 .Lcw1")
                e("s_branch .Lcoop")
        self.label(".Lrolewait")
        e("s_mov_b64 s[0:1], -1")
        e("s_barrier")
        e(f"ds_read_b32 v18, v16 offset:{L_CNT + 4}")
        e("s_waitcnt lgkmcnt(0)")
        e("v_readfirstlane_b32 s69, v18")
        e("s_mov_b32 s68, 3")
        e("s_cmp_ge_u32 s69, 112")
        e("s_cbranch_scc1 .Lfin")
        e("s_mov_b32 s68, 1")
        e("s_cmp_lt_u32 s69, 56")
        e("s_cbranch_scc1 .LstageG")
        e("s_mov_b32 s68, 0")
        e("s_sub_u32 s69, s69, 56")
        self.stageW()
        self.stageG()
        self.label(".Lfin")
        if o['ts']:
            self.ts(8)
            e("s_waitcnt lgkmcnt(0)")
            if o['dbgts']:
                e("s_cmp_eq_u32 s94, 0")
                e("s_cbranch_scc1 .Lnodbg")
                e("s_mov_b64 s[48:49], s[84:85]")
                e("s_mov_b32 s50, 256")
                e("s_mov_b32 s51, 0x20000")
                e("s_not_b32 s60, s70")
                e("v_mov_b32 v13, 0")
                e("s_mov_b64 exec, 1")
                for i, r in enumerate(("s60", "s82", "s76", "s88", "s80", "s92", "s94", "s86")):
                    e(f"v_mov_b32 v14, {r}")
                    e(f"buffer_atomic_umax v14, v13, s[48:51], 0 offen offset:{32+4*i} sc1")
                e("s_mov_b64 exec, -1")
                self.label(".Lnodbg")
            e("s_lshl_b32 s60, s2, 2")
            e("s_add_u32 s60, s60, s52")
            e("s_lshl_b32 s60, s60, 6")
            e(f"s_add_u32 s60, s60, {WS_TS}")
            e("v_mov_b32 v13, 0")
            e("s_getreg_b32 s63, hwreg(HW_REG_XCC_ID)")
            for i in range(13):
                e(f"v_mov_b32 v{64+i}, s{70+2*i}")
            e("v_mov_b32 v77, s63")
            e("v_mov_b32 v78, s3")
            e("v_mov_b32 v79, s68")
            e("s_mov_b64 exec, 1")
            for i in range(4):
                e(f"buffer_store_dwordx4 v[{64+4*i}:{67+4*i}], v13, s[36:39], s60 offen offset:{16*i}")
            if o['prof']:
                e("s_mov_b64 exec, -1")
                e("s_lshl_b32 s60, s2, 2")
                e("s_add_u32 s60, s60, s52")
                e("s_lshl_b32 s60, s60, 8")
                e(f"s_add_u32 s60, s60, {WS_PROF}")
                e("v_lshlrev_b32 v13, 2, v1")
                e("buffer_store_dword v0, v13, s[36:39], s60 offen")
        self.label(".Lend")
        e("s_endpgm")

    def coop(self):
        e = self.e; o = self.o
        def claim(n):
            e("s_mov_b64 exec, 1")
            e(f"ds_add_rtn_u32 v18, v16, v17 offset:{L_CNT + 12}")
            e("s_mov_b64 exec, -1")
            e("s_waitcnt lgkmcnt(0)")
            e("v_readfirstlane_b32 s56, v18")
            e(f"s_cmp_ge_u32 s56, {n}")
            e("s_cbranch_scc1 .Lrolewait")
        self.label(".Lcoop")
        e("s_cmp_ge_u32 s69, 112")
        e("s_cbranch_scc1 .Lrdone")
        e("s_cmp_lt_u32 s69, 56")
        e("s_cbranch_scc1 .Lcg")
        e("s_sub_u32 s56, s69, 56")
        e("s_mul_i32 s98, s56, 37")
        e("s_lshr_b32 s98, s98, 8")
        e("s_mul_i32 s57, s98, 7")
        e("s_sub_u32 s57, s56, s57")
        e(f"s_mul_i32 s98, s98, {512*896}")
        e("s_lshl_b32 s57, s57, 7")
        e("s_add_u32 s98, s98, s57")
        e("v_lshrrev_b32 v27, 3, v1")
        e("v_mul_u32_u24 v27, 896, v27")
        e("v_and_b32 v18, 7, v1")
        e("v_lshl_add_u32 v27, v18, 4, v27")
        self.srd(40, 12, 3670016)
        self.label(".Lcw")
        claim(8)
        e("s_lshl_b32 s96, s56, 13")
        e(f"s_add_u32 s96, s96, {L_W}")
        e(f"s_mul_i32 s99, s56, {64*896}")
        e("s_add_u32 s99, s99, s98")
        for i in range(8):
            e("s_mov_b32 m0, s96")
            e("s_add_u32 s96, s96, 1024")
            e(f"buffer_load_dwordx4 v27, s[40:43], s99 offen {o['wpol']} lds")
            e(f"s_add_u32 s99, s99, {8*896}")
        e("s_branch .Lcw")
        self.label(".Lcg")
        e("v_lshrrev_b32 v27, 2, v1")
        e("v_mul_u32_u24 v27, 3584, v27")
        e("v_lshl_add_u32 v27, v31, 4, v27")
        self.srd(40, 16, 1605632)
        self.srd(44, 18, 1605632)
        self.srd(28, 20, 1605632)
        self.label(".Lcg1")
        claim(7)
        e("s_lshl_b32 s96, s56, 12")
        e("s_mul_i32 s98, s69, 28672")
        e("s_add_u32 s98, s98, s96")
        e(f"s_add_u32 s96, s96, {L_W}")
        e(f"s_mul_i32 s99, s56, {64*3584}")
        e("s_lshl_b32 s57, s69, 6")
        e("s_add_u32 s99, s99, s57")
        for i in range(4):
            e("s_mov_b32 m0, s96")
            e(f"s_add_u32 s57, s96, {L_U - L_W}")
            e(f"buffer_load_dwordx4 v27, s[40:43], s99 offen {o['wpol']} lds")
            e("s_mov_b32 m0, s57")
            e(f"s_add_u32 s57, s96, {L_D - L_W}")
            e(f"buffer_load_dwordx4 v27, s[44:47], s99 offen {o['wpol']} lds")
            e("s_mov_b32 m0, s57")
            e("s_add_u32 s96, s96, 1024")
            e(f"buffer_load_dwordx4 v14, s[28:31], s98 offen {o['dpol']} lds")
            e(f"s_add_u32 s99, s99, {16*3584}")
            e("s_add_u32 s98, s98, 1024")
        e("s_branch .Lcg1")

    def bar(self):
        e = self.e
        if self.o['dry']:
            l = self.newlab("nb")
            e(f"s_cbranch_execz {l}")
            e("s_barrier")
            self.label(l)
        else: e("s_barrier")

    def stageW(self):
        e = self.e; o = self.o
        NC = o['NC']; dry = o['dry']
        e("s_mul_i32 s60, s69, 37")
        e("s_lshr_b32 s60, s60, 8")
        e("s_lshl_b32 s60, s60, 1")
        e("s_lshr_b32 s63, s52, 1")
        e("s_add_u32 s60, s60, s63")
        e("s_lshl_b32 s60, s60, 12")
        if o['iod']: self.swap13()
        e("s_and_b32 s63, s52, 1")
        e("s_lshl_b32 s63, s63, 8")
        e("s_add_u32 s60, s60, s63")
        e(f"s_add_u32 s60, s60, {WS_PART}")
        e("v_and_b32 v13, 1, v1")
        e("v_lshlrev_b32 v13, 16, v13")
        e("v_bfe_u32 v14, v1, 1, 3")
        e("v_lshl_add_u32 v13, v14, 9, v13")
        e("v_lshrrev_b32 v14, 4, v1")
        e("v_lshl_add_u32 v13, v14, 4, v13")
        HP = o['hp']
        if HP:
            assert 'W' not in o['fresh']
            e(f"s_add_u32 s61, s60, {WS_PART2}")
        def lds_():
            for t in range(4):
                e(f"buffer_load_dwordx4 v[{64+4*t}:{67+4*t}], v13, s[36:39], s60 offen offset:{t*64} " + self.P("paL"))
            for t in range(4 if HP else 0):
                e(f"buffer_load_dwordx4 v[{100+4*t}:{103+4*t}], v13, s[36:39], s61 offen offset:{t*64} " + self.P("paL"))
        lds_()
        e("v_lshlrev_b32 v14, 7, v29")
        e("v_lshl_add_u32 v14, v31, 3, v14")
        e("s_lshl_b32 s63, s52, 14")
        e("v_add_u32 v14, s63, v14")
        e("v_lshrrev_b32 v15, 5, v1")
        e("v_lshlrev_b32 v15, 8, v15")
        e("v_and_b32 v16, 31, v1")
        e("v_lshl_add_u32 v15, v16, 2, v15")
        e("s_lshl_b32 s63, s52, 9")
        e(f"s_add_u32 s63, s63, {L_R2}")
        e("v_add_u32 v15, s63, v15")
        e("v_lshlrev_b32 v16, 3, v1")
        e("s_lshl_b32 s63, s69, 9")
        e(f"s_add_u32 s63, s63, {WS_Y}")
        if o['iod']:
            e("s_mul_i32 s96, s69, 147")
            e("s_lshr_b32 s96, s96, 11")
            e(f"s_mul_i32 s96, s96, {16384 - 7168}")
            e("s_add_u32 s63, s63, s96")
            e("s_and_b32 s96, s52, 1")
            e("s_lshl_b32 s96, s96, 13")
        else: e("s_mul_i32 s96, s52, 28672")
        e("s_add_u32 s63, s63, s96")
        e(f"s_add_u32 s96, s63, {4*28672}")
        e(f"s_cmp_ge_u32 s52, {NC}")
        e("s_cselect_b32 s59, 1, 0")
        def wtr(t):
            for ct in range(4):
                r = 128 + 16 * t + 4 * ct
                e(f"ds_read_b64_tr_b16 v[{r}:{r+1}], v14 offset:{L_W + t*4096 + ct*32}")
                e(f"ds_read_b64_tr_b16 v[{r+2}:{r+3}], v14 offset:{L_W + t*4096 + ct*32 + 512}")
            e("s_waitcnt lgkmcnt(4)" if not o["ts"] else "s_waitcnt lgkmcnt(0)")
        t0 = 0
        for t1 in (o['wch'] or []):
            assert 'W' not in o['fresh']
            e(f"s_waitcnt vmcnt({(8 if HP else 4) + 16 * (4 - t1)})")
            e("s_barrier")
            for t in range(t0, t1): wtr(t)
            t0 = t1
        e(f"s_waitcnt vmcnt({8 if HP else 4})" if 'W' not in o['fresh'] else "s_waitcnt vmcnt(0)")
        if 'W' in o['fresh']:
            e("v_max3_u32 v98, v64, v66, v68")
            e("v_max3_u32 v99, v70, v72, v74")
            e("v_max3_u32 v98, v98, v76, v78")
            e("v_max_u32 v98, v98, v99")
            e("v_cmp_eq_u32 s[64:65], -1, v98")
            e("s_or_b32 s64, s64, 1")
        e("s_barrier")
        self.ts(9)
        if 'W' in o['fresh']:
            e("s_mov_b64 exec, s[64:65]")
            lds_()
            e("s_mov_b64 exec, -1")
        for t in range(t0, 4): wtr(t)
        self.poll_begin()
        e("s_waitcnt lgkmcnt(0)")
        if 'W' in o['fresh']: e("s_mov_b64 exec, s[64:65]")
        e("s_branch .Lwchk")
        self.label(".Lwpoll")
        lds_()
        self.label(".Lwchk")
        if HP:
            e("s_waitcnt vmcnt(4)")
            e("v_max3_u32 v98, v64, v66, v68")
            e("v_max3_u32 v99, v70, v72, v74")
            e("v_max3_u32 v98, v98, v76, v78")
            e("s_waitcnt vmcnt(2)")
            e("v_max3_u32 v99, v99, v100, v102")
            e("v_max3_u32 v98, v98, v104, v106")
            e("s_waitcnt vmcnt(0)")
            e("v_max3_u32 v99, v99, v108, v110")
            e("v_max3_u32 v98, v98, v112, v114")
        else:
            e("s_waitcnt vmcnt(2)")
            e("v_max3_u32 v98, v64, v66, v68")
            e("s_waitcnt vmcnt(0)")
            e("v_max3_u32 v99, v70, v72, v74")
            e("v_max3_u32 v98, v98, v76, v78")
        e("v_max_u32 v98, v98, v99")
        e("v_cmp_eq_u32 vcc, -1, v98")
        e("s_and_b64 exec, exec, vcc")
        e("s_cbranch_scc0 .Lwok")
        self.poll_again(".Lwpoll")
        self.label(".Lwok")
        e("s_mov_b64 exec, s[0:1]")
        self.ts(5)
        for t in range(4):
            for ct in range(4):
                cin = "0" if t == 0 else f"v[{80+4*ct}:{83+4*ct}]"
                r = 128 + 16 * t + 4 * ct
                e(f"v_mfma_f32_16x16x32_bf16 v[{80+4*ct}:{83+4*ct}], v[{64+4*t}:{67+4*t}], v[{r}:{r+3}], {cin}")
        for t in range(4 if HP else 0):
            for ct in range(4):
                r = 128 + 16 * t + 4 * ct
                e(f"v_mfma_f32_16x16x32_bf16 v[{80+4*ct}:{83+4*ct}], v[{100+4*t}:{103+4*t}], v[{r}:{r+3}], v[{80+4*ct}:{83+4*ct}]")
        e("s_cmp_lg_u32 s59, 0")
        e("s_nop 3")
        for ct in range(4):
            e(f"v_pk_add_f32 v[{80+4*ct}:{81+4*ct}], v[{80+4*ct}:{81+4*ct}], v[{82+4*ct}:{83+4*ct}]")
        for ct in range(4):
            e(f"v_permlane32_swap_b32 v{80+4*ct}, v{81+4*ct}")
        for ct in range(4):
            e(f"v_add_f32 v{80+4*ct}, v{80+4*ct}, v{81+4*ct}")
        e("v_permlane16_swap_b32 v80, v84")
        e("s_nop 0")
        e("v_permlane16_swap_b32 v88, v92")
        e("v_add_f32 v80, v80, v84")
        e("s_nop 0")
        e("v_add_f32 v88, v88, v92")
        e("ds_write2_b32 v15, v80, v88 offset0:0 offset1:32")
        e("s_waitcnt lgkmcnt(0)")
        self.bar()
        if NC < 4: e("s_cbranch_scc1 .Lfin")
        for w in range(4):
            e(f"ds_read_b64 v[{64+2*w}:{65+2*w}], v16 offset:{L_R2 + 512*w}")
        e("s_waitcnt lgkmcnt(2)")
        e("v_pk_add_f32 v[64:65], v[64:65], v[66:67]")
        e("s_waitcnt lgkmcnt(0)")
        e("v_pk_add_f32 v[68:69], v[68:69], v[70:71]")
        e("v_pk_add_f32 v[64:65], v[64:65], v[68:69]")
        e("buffer_store_dwordx2 v[64:65], v16, s[36:39], s63 offen " + self.P("yS"))
        if NC == 8:
            e("buffer_store_dwordx2 v[64:65], v16, s[36:39], s96 offen " + self.P("yS"))
        if dry: e("s_cbranch_execz .Lgok")
        e("s_branch .Lfin")

    def stageG(self):
        e = self.e; o = self.o; NC = o['NC']; dry = o['dry']; gts = o['gts']
        WS_P2 = WS_Y + NC * 28672
        P2S = o['p2s']
        WS_P2I = globals()['WS_P2I'] if not P2S else o['scb']
        iod = o['iod']
        self.cyc = gts
        if gts == 2: gts = False
        self.label(".LstageG")
        if o['dq']:
            self.srd(40, 20, 1605632)
            e("s_lshl_b32 s60, s69, 2")
            e("s_add_u32 s60, s60, s52")
            e("s_mul_i32 s99, s60, 7168")
            e("s_mul_i32 s96, s52, 7168")
            e(f"s_add_u32 s96, s96, {L_D}")
            for i in range(7):
                e("s_mov_b32 m0, s96")
                e("s_add_u32 s96, s96, 1024")
                e(f"buffer_load_dwordx4 v14, s[40:43], s99 offen {o['dpol']} lds")
                e("s_add_u32 s99, s99, 1024")
        e("s_and_b32 s60, s52, 1")
        e("s_mul_i32 s60, s60, 56")
        e("v_add_u32 v14, s60, v1")
        e("v_lshrrev_b32 v13, 4, v14")
        e("v_lshlrev_b32 v13, 9, v13")
        e("v_and_b32 v15, 15, v14")
        e("v_lshl_add_u32 v13, v15, 4, v13")
        e("s_lshr_b32 s63, s52, 1")
        e("s_lshl_b32 s60, s63, 8")
        e(f"s_add_u32 s60, s60, {WS_Y}")
        e("v_add_u32 v13, s60, v13")
        e("s_mul_i32 s63, s63, 896")
        e("v_lshl_add_u32 v16, v14, 3, s63")
        self.srd(40, 4, 1792)
        e("s_mov_b32 s64, -1")
        e("s_mov_b32 s65, 0x00ffffff")
        if NC == 8: e("s_mul_i32 s60, s58, 28672")
        if iod:
            e("s_lshr_b32 s60, s58, 2")
            e("s_lshl_b32 s60, s60, 13")
            e("s_xor_b32 s60, s60, s55")
        for p in range(8):
            if iod: e(f"s_add_u32 s{28+p}, s60, {3584*(p&1) + 16384*(p>>1)}")
            elif NC == 8: e(f"s_add_u32 s{28+p}, s60, {3584*p}")
            elif NC == 2:
                e(f"s_mov_b32 s{28+p}, {3584*p}")
                e(f"s_cmp_eq_u32 s58, {p}")
                e(f"s_cselect_b32 s{28+p}, {3584*p + 28672}, s{28+p}")
            else: e(f"s_mov_b32 s{28+p}, {3584*p}")
        ya = lambda p: f"v13, s[36:39], s{28+p} offen"
        e("v_mov_b32 v96, 0")
        e("v_mov_b32 v97, 0")
        for t in range(16): e(f"v_mov_b32 v{33+2*t}, -1")
        e("s_mov_b64 exec, s[64:65]")
        e("buffer_load_dwordx2 v[104:105], v16, s[40:43], 0 offen")
        def yl():
            for p in range(8):
                e(f"buffer_load_dwordx4 v[{32+4*p}:{35+4*p}], {ya(p)} " + self.P("yL"))
        if 'G' not in o['fresh']: yl()
        e("s_mov_b64 exec, -1")
        e("s_lshl_b32 s60, s52, 3")
        e("v_mov_b32 v17, s60")
        e("s_and_b32 s60, s60, 16")
        e("v_mov_b32 v18, s60")
        e("v_bfe_u32 v14, v1, 3, 1")
        e("v_lshlrev_b32 v14, 4, v14")
        e("v_and_b32 v15, 7, v1")
        e("v_lshl_add_u32 v28, v15, 1, v14")
        e("s_lshl_b32 s60, s52, 5")
        e("v_add_u32 v28, s60, v28")
        e("v_lshrrev_b32 v14, 4, v1")
        e("v_and_b32 v19, 1, v1")
        e("v_lshlrev_b32 v19, 4, v19")
        e("v_lshl_add_u32 v19, v14, 5, v19")
        e("v_and_b32 v20, 15, v1")
        e("v_lshlrev_b32 v20, 3, v20")
        if iod:
            e("s_and_b32 s60, s52, 1")
            e(f"s_mul_i32 s60, s60, {7*16384}")
            e("s_lshr_b32 s63, s52, 1")
            e("s_lshl_b32 s63, s63, 13")
            e("s_xor_b32 s63, s63, s55")
            e("s_add_u32 s60, s60, s63")
        else: e(f"s_mul_i32 s60, s52, {7*7168}")
        e("s_lshl_b32 s63, s69, 7")
        e("s_add_u32 s60, s60, s63")
        PS = [96, 97, 98, 99, 100, 101, 57]
        for j in range(7): e(f"s_add_u32 s{PS[j]}, s60, {WS_P2 + 7168*j if not iod else WS_P2I + 16384*j}")
        e("v_and_b32 v26, 1, v14")
        e("v_mul_u32_u24 v26, 896, v26")
        e("v_lshl_add_u32 v26, v15, 2, v26")
        e("v_and_b32 v14, 2, v14")
        e("v_add_u32 v26, v26, v14")
        e("s_min_u32 s60, s69, 27" if not iod else "s_lshr_b32 s60, s69, 1")
        e("s_lshl_b32 s60, s60, 5")
        e("v_add_u32 v26, s60, v26")
        e("v_lshlrev_b32 v27, 4, v1")
        if iod:
            e("s_lshl_b32 s56, s60, 9")
            e("s_cmp_ge_u32 s69, 28")
            e(f"s_cselect_b32 s61, {14*16384 - 0x2000}, 0")
            e("s_sub_u32 s56, s56, s61")
            e(f"s_add_u32 s56, s56, {WS_P2I}")
            e("s_xor_b32 s56, s56, s55")
            e("s_and_b32 s59, s69, 1")
            e("s_or_b32 s59, s59, s52")
        else:
            e("s_mul_i32 s56, s69, 7168")
            e(f"s_add_u32 s56, s56, {WS_P2}")
            e("s_cmp_ge_u32 s69, 28")
            e("s_cselect_b32 s59, 1, s52")
        e("s_add_u32 s61, s56, 4096")
        self.srd(44, 22, 1792)
        e("s_mov_b32 s53, 0x3f803f80")
        e("s_mov_b32 s24, 0")
        e("s_mov_b32 s25, 0x80000000")
        e("s_mov_b32 s26, -1")
        e("s_mov_b32 s27, 0xffff")
        e("s_mov_b64 s[48:49], 0xffff")
        e("s_mov_b32 s50, 0x00ff00ff")
        e("s_mov_b32 s51, 0x00ff00ff")
        k1 = -2.0 * math.sqrt(2.0 / math.pi) * math.log2(math.e)
        e(f"v_mov_b32 v21, {hex(f2u(k1))}")
        e("v_and_b32 v14, 8, v1")
        e("v_cmp_ne_u32 s[66:67], 0, v14")
        e("v_lshlrev_b32 v14, 6, v29")
        e("v_and_b32 v15, 1, v1")
        e("v_lshl_add_u32 v14, v15, 3, v14")
        e("v_bfe_u32 v15, v1, 1, 1")
        e(f"v_mul_u32_u24 v15, {L_U - L_W}, v15")
        e("v_add_u32 v14, v14, v15")
        e("s_lshl_b32 s60, s52, 4")
        e("v_add_u32 v14, s60, v14")
        e("v_mul_u32_u24 v15, 896, v29")
        e("v_lshl_add_u32 v15, v31, 3, v15")
        e("s_mul_i32 s60, s52, 224")
        e(f"s_add_u32 s60, s60, {L_D}")
        e("v_add_u32 v15, s60, v15")
        if o['dpk']:
            assert iod
            e("v_lshrrev_b32 v98, 4, v1")
            e("v_lshl_add_u32 v20, v98, 14, v20")
            e("v_bfe_u32 v98, v1, 2, 2")
            e("v_mov_b32 v99, 128")
            for G in range(4):
                e(f"v_cmp_eq_u32 vcc, {G}, v98")
                e(f"v_mov_b32 v{64+G}, 0")
                e("s_nop 0")
                e(f"v_cndmask_b32 v{244+G}, v99, v19, vcc")
            e(f"ds_write_b128 v99, v[64:67] offset:{L_ACT}")
            e("s_waitcnt lgkmcnt(0)")
        if o['fold']:
            e(f"v_mov_b32 v22, {hex(f2u(1.0/448))}")
            e(f"v_mov_b32 v23, {hex(f2u(1.0/448))}")
            e("v_and_b32 v18, 8, v1")
            e("v_lshlrev_b32 v18, 1, v18")
            e("v_min_u32 v30, 2, v31")
            e("v_mul_u32_u24 v30, 896, v30")
            e("v_lshrrev_b32 v98, 4, v1")
            e("v_lshl_add_u32 v30, v98, 4, v30")
            e("v_and_b32 v98, 2, v1")
            e("v_lshl_add_u32 v30, v98, 5, v30")
            for i in range(4): e(f"v_mov_b32 v{64+i}, s53")
            e("s_mov_b64 exec, s[64:65]")
            e(f"ds_write_b128 v27, v[64:67] offset:{L_XN + 1792 + 64}")
            e("s_mov_b64 exec, -1")
            e("s_waitcnt lgkmcnt(0)")
        k0 = 0
        def gtr(a, b):
            for ks in range(a, b):
                e(f"ds_read_b64_tr_b16 v[{160+4*ks}:{161+4*ks}], v14 offset:{L_W + ks*2048}")
                e(f"ds_read_b64_tr_b16 v[{162+4*ks}:{163+4*ks}], v14 offset:{L_W + ks*2048 + 256}")
                if ks - a in (6, 10):
                    e("s_waitcnt lgkmcnt(6)")
        def dtr():
            for j in range(7):
                e(f"ds_read_b64_tr_b16 v[{216+4*j}:{217+4*j}], v15 offset:{j*32}")
                e(f"ds_read_b64_tr_b16 v[{218+4*j}:{219+4*j}], v15 offset:{j*32 + 3584}")
        if o['gfl']:
            e("v_mov_b32 v98, 0")
            e("v_mov_b32 v99, 1")
            e("s_waitcnt vmcnt(0)")
            e("s_cmp_eq_u32 s54, 0")
            e("s_cbranch_scc1 .Lgnl")
            e(f"ds_write_b32 v98, v99 offset:{L_CNT + 12}")
            self.label(".Lgnl")
            e("s_mov_b64 exec, s[64:65]")
            yl()
            self.poll_begin()
            e("s_branch .Lgpc")
            self.label(".Lgpre")
            e("s_waitcnt vmcnt(0)")
            self.pround(8, 32, ya, "s[64:65]", 6, "yL")
            e("s_sub_u32 s62, s62, 1")
            e("s_cbranch_scc1 .Lgtr")
            self.label(".Lgpc")
            e(f"ds_read_b32 v99, v98 offset:{L_CNT + 12}")
            e("s_waitcnt lgkmcnt(0)")
            e("v_cmp_eq_u32 vcc, 0, v99")
            e("s_cbranch_vccnz .Lgpre")
            self.label(".Lgtr")
            e("s_mov_b64 exec, -1")
            self.ts(9)
        else:
            for n, kc in enumerate(o['gch'] or []):
                e(f"s_waitcnt vmcnt({1 + 4 * (14 - kc)})")
                e("s_barrier")
                if n == 0:
                    dtr()
                    e("s_waitcnt lgkmcnt(0)")
                gtr(k0, kc)
                e("s_waitcnt lgkmcnt(0)")
                k0 = kc
            e("s_waitcnt vmcnt(9)" if 'G' not in o['fresh'] else "s_waitcnt vmcnt(1)")
            e("s_barrier")
            self.ts(9)
            if 'G' in o['fresh']:
                e("s_mov_b64 exec, s[64:65]")
                yl()
                e("s_mov_b64 exec, -1")
        gtr(k0, 14)
        if not o['gch']:
            e("s_waitcnt lgkmcnt(0)")
            dtr()
        e("s_waitcnt vmcnt(8)")
        e("v_lshlrev_b32 v100, 16, v104")
        e("v_and_b32 v101, 0xffff0000, v104")
        e("v_lshlrev_b32 v102, 16, v105")
        e("v_and_b32 v103, 0xffff0000, v105")
        e("s_mov_b64 exec, s[64:65]")
        pk = lambda d, a, b: e(f"v_pk_add_f32 v[{d}:{d+1}], v[{a}:{a+1}], v[{b}:{b+1}]")
        if o['sp']:
            assert o['fold']
            def gtree():
                e("s_waitcnt vmcnt(7)")
                for i in (0, 2): pk(64+i, 32+i, 100+i)
                e("s_waitcnt vmcnt(5)")
                for i in (0, 2): pk(68+i, 36+i, 40+i)
                e("s_waitcnt vmcnt(3)")
                for i in (0, 2): pk(72+i, 44+i, 48+i)
                for i in (0, 2): pk(64+i, 64+i, 68+i)
                e("s_waitcnt vmcnt(1)")
                for i in (0, 2): pk(76+i, 52+i, 56+i)
                for i in (0, 2): pk(64+i, 64+i, 72+i)
                e("s_waitcnt vmcnt(0)")
                for i in (0, 2): pk(76+i, 76+i, 60+i)
                for i in (0, 2): pk(108+i, 64+i, 76+i)
            self.spoll(8, 32, ya, "s[64:65]", ".Lg", gtree, 108, 110, pol="yL")
            self.ts(5)
        else:
            if o['gw']: self.apoll(8, 32, ya, "s[64:65]", ".Lg", o['gw'])
            else: self.mpoll(8, 32, ya, "s[64:65]", ".Lg", m0=6, pol="yL")
            self.ts(5)
            for p in range(0, 8, 2):
                for i in (0, 2): pk(64+4*p+i, 32+4*p+i, 36+4*p+i)
            for i in (0, 2):
                pk(64+i, 64+i, 72+i); pk(80+i, 80+i, 88+i)
        if o['fold']:
            DP = ("quad_perm:[1,0,3,2] row_mask:0xf bank_mask:0xf", "quad_perm:[2,3,0,1] row_mask:0xf bank_mask:0xf",
                  "row_half_mirror row_mask:0xf bank_mask:0xf", "row_mirror row_mask:0xf bank_mask:0xf",
                  "row_bcast:15 row_mask:0xa bank_mask:0xf", "row_bcast:31 row_mask:0xc bank_mask:0xf")
            def dp(n, fill):
                e(f"v_add_f32_dpp v96, v96, v96 {DP[n]}")
                e(f"v_add_f32_dpp v97, v97, v97 {DP[n]}")
                e(fill)
            if not o['sp']:
                for i in (0, 2): pk(64+i, 64+i, 100+i)
                for i in (0, 2): pk(108+i, 64+i, 80+i)
            e("v_cvt_pk_bf16_f32 v112, v108, v109")
            e("v_cvt_pk_bf16_f32 v113, v110, v111")
            e(f"ds_write_b64 v16, v[112:113] offset:{L_XN}")
            e("v_dot2_f32_bf16 v96, v112, s53, 0")
            e("v_dot2_f32_bf16 v97, v112, v112, 0")
            e("v_dot2_f32_bf16 v96, v113, s53, v96")
            e("v_dot2_f32_bf16 v97, v113, v113, v97")
            e("s_mov_b64 exec, s[0:1]")
            e("s_nop 1")
            ND1 = o['nd1']
            for n in range(ND1): dp(n, "s_nop 0" if n < ND1 - 1 else "s_waitcnt lgkmcnt(0)")
            self.bar()
            if gts: self.ts(1)
            def ar(ks): e(f"ds_read_b128 v[{104+4*ks}:{107+4*ks}], v30 offset:{L_XN + ks*64}")
            def mf(ks):
                cin = "0" if ks == 0 else "v[64:67]"
                e(f"v_mfma_f32_16x16x32_bf16 v[64:67], v[{104+4*ks}:{107+4*ks}], v[{160+4*ks}:{163+4*ks}], {cin}")
            I1, I2 = o['il']
            KB = o['kb2']
            KS = o['ks2']
            q = []
            def rd(x):
                if x == 'h': e(f"ds_read_u16 v25, v26 offset:{L_XN}")
                elif x == 'st': e(f"ds_read_b128 v[76:79], v18 offset:{L_ST}")
                elif x == 'sw': e(f"ds_write_b64 v17, v[96:97] offset:{L_ST}")
                else: ar(x)
                q.append(x)
            def need(x):
                if x in q:
                    i = q.index(x)
                    e(f"s_waitcnt lgkmcnt({len(q) - 1 - i})")
                    del q[:i + 1]
            for ks in range(I1): rd(ks)
            if o['p2z']:
                e(f"buffer_store_dwordx2 v[22:23], v20, s[36:39], s{PS[0]} offen " + self.P("p2S"))
                e("s_mov_b64 exec, s[26:27]")
                e(f"buffer_store_dwordx2 v[22:23], v20, s[36:39], s{PS[4]} offen " + self.P("p2S"))
                e("s_mov_b64 exec, s[0:1]")
            for n in range(ND1, 6): dp(n, "s_nop 0" if n < 5 else "s_mov_b64 exec, s[24:25]")
            rd('sw')
            e("s_mov_b64 exec, s[0:1]")
            for ks in range(I1, I2): rd(ks)
            todo = list(range(I2, 14)) + ['h']
            for ks in range(KS):
                if ks == KB:
                    need('sw')
                    self.bar()
                    if gts: self.ts(2)
                    rd('st')
                need(ks); mf(ks)
                n = o['rpm']
                for x in todo[:n]: rd(x)
                del todo[:n]
            assert not todo
            need('st')
            if o['rsq']:
                st = ["v_pk_add_f32 v[76:77], v[76:77], v[78:79]",
                      "v_pk_mul_f32 v[76:77], v[76:77], v[22:23]",
                      "v_fma_f32 v77, -v76, v76, v77",
                      f"v_add_f32 v77, {hex(f2u(1e-5))}, v77",
                      "v_rsq_f32 v77, v77"]
            else:
                st = ["v_pk_add_f32 v[76:77], v[76:77], v[78:79]",
                  "v_pk_mul_f32 v[76:77], v[76:77], v[22:23]",
                  "v_fma_f32 v77, -v76, v76, v77",
                  "v_cvt_pk_bf16_f32 v78, v76, v77",
                  "v_and_b32 v77, 0xffff0000, v78",
                  f"v_add_f32 v77, {hex(f2u(1e-5))}, v77",
                  "v_cvt_pk_bf16_f32 v77, 0, v77",
                  "v_sqrt_f32 v77, v77",
                  "v_lshlrev_b32 v76, 16, v78",
                  "v_cvt_pk_bf16_f32 v77, 0, v77",
                  "v_rcp_f32 v77, v77"]
            for ks in range(KS, 14):
                for x in st[:2]: e(x)
                del st[:2]
                need(ks); mf(ks)
            for x in st: e(x)
            pad = 8 - len(st) - (1 if KS == 14 else 0)
            assert not o['rw']
            if pad > 0: e(f"s_nop {pad - 1}")
            if gts: self.ts(3)
            e("v_mov_b32_dpp v69, v65 row_ror:8 row_mask:0xf bank_mask:0xf")
            e("v_mov_b32_dpp v72, v66 row_ror:8 row_mask:0xf bank_mask:0xf")
            e("v_cndmask_b32 v70, v64, v69, s[66:67]")
            e("v_cndmask_b32 v74, v66, v72, s[66:67]")
            e("v_fma_f32 v70, -v76, v74, v70")
            e("v_mul_f32 v70, v70, v77")
            e("v_cvt_pk_bf16_f32 v70, 0, v70")
            e("v_mul_f32 v73, v70, v70")
            e(f"v_fmamk_f32 v73, v73, {hex(f2u(k1 * 0.044715))}, v21")
            e("v_mul_f32 v73, v73, v70")
            e("v_exp_f32 v73, v73")
            e("v_mov_b32_dpp v68, v64 row_ror:8 row_mask:0xf bank_mask:0xf")
            e("v_cndmask_b32 v74, v72, v66, s[66:67]")
            e("v_add_f32 v73, 1.0, v73")
            e("v_rcp_f32 v73, v73")
            e("v_cndmask_b32 v71, v68, v65, s[66:67]")
            e("v_fma_f32 v71, -v76, v74, v71")
            e("v_mul_f32 v73, v73, v70")
            e("v_mul_f32 v71, v71, v77")
            e("v_cvt_pk_bf16_f32 v73, 0, v73")
            e("v_cvt_pk_bf16_f32 v71, 0, v71")
            e("v_mul_f32 v73, v73, v71")
        else:
            for i in (0, 2): pk(108+i, 64+i, 80+i)
            def cvt():
                e("v_cvt_pk_bf16_f32 v112, v108, v109")
                e("v_cvt_pk_bf16_f32 v113, v110, v111")
            UP = ["v_lshlrev_b32 v108, 16, v112", "v_and_b32 v109, 0xffff0000, v112", "v_lshlrev_b32 v110, 16, v113", "v_and_b32 v111, 0xffff0000, v113"]
            cvt()
            for u in UP: e(u)
            pk(108, 108, 100); pk(110, 110, 102)
            cvt()
            e("v_dot2_f32_bf16 v96, v112, s53, 0")
            e("v_dot2_f32_bf16 v97, v112, v112, 0")
            e("v_dot2_f32_bf16 v96, v113, s53, v96")
            e("v_dot2_f32_bf16 v97, v113, v113, v97")
            e(f"ds_write_b64 v16, v[112:113] offset:{L_H}")
            e("s_mov_b64 exec, s[0:1]")
            e(UP[0])
            fill = UP[1:] + ["s_nop 0", "s_nop 0", "s_mov_b64 exec, s[24:25]"]
            for n, st in enumerate(("quad_perm:[1,0,3,2] row_mask:0xf bank_mask:0xf", "quad_perm:[2,3,0,1] row_mask:0xf bank_mask:0xf",
                       "row_half_mirror row_mask:0xf bank_mask:0xf", "row_mirror row_mask:0xf bank_mask:0xf",
                       "row_bcast:15 row_mask:0xa bank_mask:0xf", "row_bcast:31 row_mask:0xc bank_mask:0xf")):
                e(f"v_add_f32_dpp v96, v96, v96 {st}")
                e(f"v_add_f32_dpp v97, v97, v97 {st}")
                e(fill[n])
            e(f"ds_write_b64 v17, v[96:97] offset:{L_ST}")
            e("s_mov_b64 exec, s[0:1]")
            e("s_waitcnt lgkmcnt(0)")
            self.bar()
            if gts: self.ts(1)
            e(f"ds_read_b128 v[64:67], v18 offset:{L_ST}")
            e("s_waitcnt lgkmcnt(0)")
            pk(64, 64, 66)
            e(f"v_mul_f32 v64, {hex(f2u(1.0/448))}, v64")
            e(f"v_mul_f32 v65, {hex(f2u(1.0/448))}, v65")
            e("v_fma_f32 v65, -v64, v64, v65")
            e("v_cvt_pk_bf16_f32 v66, v64, v65")
            e("v_and_b32 v65, 0xffff0000, v66")
            e("v_lshlrev_b32 v64, 16, v66")
            e(f"v_add_f32 v65, {hex(f2u(1e-5))}, v65")
            e("v_cvt_pk_bf16_f32 v65, 0, v65")
            e("v_sqrt_f32 v65, v65")
            for i in (108, 110): e(f"v_pk_add_f32 v[{i}:{i+1}], v[{i}:{i+1}], v[64:65] op_sel_hi:[1,0] neg_lo:[0,1] neg_hi:[0,1]")
            e("v_cvt_pk_bf16_f32 v65, 0, v65")
            e("v_rcp_f32 v65, v65")
            cvt()
            for u in UP: e(u)
            for i in (108, 110): e(f"v_pk_mul_f32 v[{i}:{i+1}], v[{i}:{i+1}], v[64:65] op_sel:[0,1] op_sel_hi:[1,1]")
            e("s_mov_b64 exec, s[64:65]")
            cvt()
            e(f"ds_write_b64 v16, v[112:113] offset:{L_XN}")
            e("s_mov_b64 exec, s[0:1]")
            e("s_waitcnt lgkmcnt(0)")
            self.bar()
            if gts: self.ts(2)
            for ks in range(14):
                e(f"ds_read_b128 v[{104+4*ks}:{107+4*ks}], v30 offset:{L_XN + ks*64}")
            for ks in range(14):
                e(f"s_waitcnt lgkmcnt({13-ks if not gts else 0})")
                cin = "0" if ks == 0 else "v[64:67]"
                e(f"v_mfma_f32_16x16x32_bf16 v[64:67], v[{104+4*ks}:{107+4*ks}], v[{160+4*ks}:{163+4*ks}], {cin}")
            e(f"ds_read_u16 v25, v26 offset:{L_H}")
            if o['rw']:
                for t in range(7): e(f"v_mov_b32 v{161+2*t}, -1")
            else: e("s_nop 6")
            e("v_mov_b32_dpp v68, v64 row_ror:8 row_mask:0xf bank_mask:0xf")
            e("v_mov_b32_dpp v69, v65 row_ror:8 row_mask:0xf bank_mask:0xf")
            e("v_cndmask_b32 v70, v64, v69, s[66:67]")
            e("v_cndmask_b32 v71, v68, v65, s[66:67]")
            e("v_cvt_pk_bf16_f32 v70, 0, v70")
            e("v_mul_f32 v73, v70, v70")
            e(f"v_fmamk_f32 v73, v73, {hex(f2u(k1 * 0.044715))}, v21")
            e("v_mul_f32 v73, v73, v70")
            e("v_exp_f32 v73, v73")
            e("v_cvt_pk_bf16_f32 v71, 0, v71")
            e("v_add_f32 v73, 1.0, v73")
            e("v_rcp_f32 v73, v73")
            e("s_nop 0")
            e("v_mul_f32 v73, v73, v70")
            e("v_cvt_pk_bf16_f32 v73, 0, v73")
            e("v_mul_f32 v73, v73, v71")
        if gts: self.ts(6)
        e("s_mov_b64 exec, s[48:49]")
        e("v_cvt_pk_bf16_f32 v75, v73, v73")
        e(f"ds_write_b16 v28, v75 offset:{L_ACT}")
        e("s_mov_b64 exec, s[0:1]")
        if o['rw']:
            for t in range(7, 14): e(f"v_mov_b32 v{161+2*t}, -1")
        e("s_waitcnt lgkmcnt(0)")
        self.bar()
        if gts: self.ts(7)
        if o['dpk']:
            for G in range(4): e(f"ds_read_b128 v[{104+4*G}:{107+4*G}], v{244+G} offset:{L_ACT}")
            e("v_lshlrev_b32 v25, 16, v25")
            e("s_cmp_lg_u32 s59, 0")
            for j in range(7):
                if j < 4: e(f"s_waitcnt lgkmcnt({3-j})")
                d = 64 + 4 * (j >> 2)
                e(f"v_mfma_f32_16x16x32_bf16 v[{d}:{d+3}], v[{104+4*(j&3)}:{107+4*(j&3)}], v[{216+4*j}:{219+4*j}], {'0' if j & 3 == 0 else f'v[{d}:{d+3}]'}")
            e("s_nop 4")
            CM = hex(f2u(1.0 - 0.7213 / 512))
            if P2S:
                e(f"v_mul_f32 v65, {CM}, v65")
                e("v_or_b32 v65, 0x7fff, v65")
            e(f"buffer_store_dwordx2 v[64:65], v20, s[36:39], s{PS[0]} offen " + self.P("p2S"))
            if P2S:
                e(f"v_mul_f32 v69, {CM}, v69")
                e("s_mov_b64 exec, s[26:27]")
                e("v_or_b32 v69, 0x7fff, v69")
            else:
                e("s_mov_b64 exec, s[26:27]")
                e("s_nop 0")
            e(f"buffer_store_dwordx2 v[68:69], v20, s[36:39], s{PS[4]} offen " + self.P("p2S"))
        else:
            e(f"ds_read_b128 v[104:107], v19 offset:{L_ACT}")
            e("v_lshlrev_b32 v25, 16, v25")
            e("s_cmp_lg_u32 s59, 0")
            e("s_waitcnt lgkmcnt(0)")
            for j in range(7):
                e(f"v_mfma_f32_16x16x32_bf16 v[{64+4*j}:{67+4*j}], v[104:107], v[{216+4*j}:{219+4*j}], 0")
            e("s_mov_b64 exec, s[48:49]")
            e("s_nop 0")
            for j in range(7):
                e(f"buffer_store_dwordx2 v[{64+4*j}:{65+4*j}], v20, s[36:39], s{PS[j]} offen " + self.P("p2S"))
        e("s_mov_b64 exec, s[0:1]")
        self.ts(11)
        e("s_cbranch_scc1 .Lfin")
        for i in range(o['rdel']): e("s_nop 15")
        ra = lambda p: f"v27, s[36:39], {'s56' if p < 4 else 's61'} offen offset:{(p&3)*1024}"
        for p in range(7):
            e(f"buffer_load_dwordx4 v[{160+4*p}:{163+4*p}], {ra(p)} " + self.P("p2L"))
        if o['sp']:
            def an(d, a, p):
                if P2S: e(f"v_bitop3_b32 v{d}, v{a}, v{161+4*p}, v{163+4*p} bitop3:0x80")
            def rtree():
                e("s_waitcnt vmcnt(5)")
                for i in (0, 2): pk(108+i, 160+i, 164+i)
                an(120, 161, 0); an(120, 120, 1)
                e("s_waitcnt vmcnt(3)")
                for i in (0, 2): pk(112+i, 168+i, 172+i)
                an(120, 120, 2); an(120, 120, 3)
                e("s_waitcnt vmcnt(1)")
                for i in (0, 2): pk(116+i, 176+i, 180+i)
                for i in (0, 2): pk(108+i, 108+i, 112+i)
                an(120, 120, 4); an(120, 120, 5)
                e("s_waitcnt vmcnt(0)")
                an(120, 120, 6)
                for i in (0, 2): pk(116+i, 116+i, 184+i)
                if P2S: e("v_or_b32 v120, 0xffff8000, v120")
                for i in (0, 2): pk(108+i, 108+i, 116+i)
            self.spoll(7, 160, ra, "-1", ".Lr", rtree, 108, 110, pol="p2L", mk=P2S)
            if not o['prof']: self.ts(12)
        else:
            if o['rw']: self.apoll(7, 160, ra, "-1", ".Lr", o['rw'])
            else: self.mpoll(7, 160, ra, "-1", ".Lr", m0=6, pol="p2L")
            if not o['prof']: self.ts(12)
            for p in range(0, 6, 2):
                for i in (0, 2): pk(108+4*p+i, 160+4*p+i, 164+4*p+i)
            for i in (0, 2):
                pk(108+i, 108+i, 116+i); pk(124+i, 124+i, 184+i)
            for i in (0, 2): pk(108+i, 108+i, 124+i)
        e("s_nop 0")
        e("v_permlane16_swap_b32 v108, v109")
        e("v_permlane16_swap_b32 v110, v111")
        e("s_nop 0")
        e("v_add_f32 v108, v108, v109")
        e("v_add_f32 v110, v110, v111")
        e("s_nop 1")
        e("v_permlane32_swap_b32 v108, v110")
        e("s_nop 1")
        e("v_add_f32 v108, v108, v110")
        e("s_nop 1")
        e("v_add_f32_dpp v108, v108, v108 row_ror:8 row_mask:0xf bank_mask:0xf")
        e("s_mov_b64 exec, s[50:51]")
        e("v_cvt_pk_bf16_f32 v108, 0, v108")
        e("v_add_f32 v108, v108, v25")
        e("v_cvt_pk_bf16_f32 v108, v108, v108")
        if dry: e("s_cbranch_execz .Ldryend")
        e(f"buffer_store_short v108, v26, s[44:47], 0 offen {o['opol']}")
        e("s_mov_b64 exec, -1")

if __name__ == "__main__":
    out = sys.argv[1]
    kw = json.loads(sys.argv[2]) if len(sys.argv) > 2 else {}
    open(out, "w").write(Gen(**kw).build())
```

```python
import sys, json, struct, math
from gen2 import *
import gen2

WS_PART = 0x100000
WS_Y    = 0x120000
WS_P2I  = 0x130000
WS_RACE = 0x170000
L_D     = L_W + 57344
L_H     = 2816
L_ACT   = 640
LDS_BYTES = L_D + 28672
L_RED2  = 24576 - L_RED
WS_PART2 = 0x80000

class Gen(gen2.Gen):
    def __init__(self, **kw):
        d = dict(NSH=3, PV=4, NO=2, c0=2, cmax=3, csh=6, pace=14, late='', early=False, quit=(0,0,0), dyn='', order='DGW', gs=0, nodot=False, NB=0, dum='', dsp=256, tpol='', remap=None, PA=0, XS=0, epol='sc1', NP=4, cpol='', NC=8, RA=0, cls=True, dry=False, rst='late', rord='GW', gts=False, opol='', pol={}, iod=True, cfix=None, race='join', fakew='', c2=True, elig=True, fold=True, nd1=3, kb2=5, ks2=11, rsq=False, rpm=1, fp=False, fpg=3, dpk=True, sp=True, EG=0, gfl=False, dq=False, ppk=True, il=(4,4), rdel=0, rw=0, gw=0, fresh='G', sg=False, sgp=14, ET=0, B1W=44, B1G=44, aw=0, awpol='', tlbw=0, wp=False, hp=None, hx=1, cut=(64,28), hts=False, pa1=None, ep=None, qdry=False, xq='', p2s=False, trim=False, scb=0x80000, p2z=0, gch=None, wch=None)
        d.update(dict(p2s=True, trim=True, pa1=2, ep=[4,5,6,7], p2z=1, gch=[10], gpol=None, coop=False, lim=None, limP=None, fine=False, pb=0, w0=1))
        d.update(dict(NSH=4, PV=0, NO=6, NB=48, NH=0, dyn='WGD', order='GWD', wpol='nt', dpol='nt', tpol='nt', gs=1))
        d.update(kw)
        super().__init__(**d)
        if self.o['dyn']: self.o['late'] = self.o['dyn']
        if self.o['iod']: self.o['NC'] = 2
        self.cyc = False
        self.wide = False
        self.ph = 1

    def P(self, t):
        return self.o['pol'].get(t, self.o['pol'].get(t[-1], 'sc1'))

    def kts(self, slot, once=False):
        if self.o['hts'] == 2:
            if once:
                l = self.newlab("kt")
                self.e(f"s_cmp_lg_u32 s{70 + 2 * slot}, 0")
                self.e(f"s_cbranch_scc1 {l}")
            self.e(f"s_memrealtime s[{70 + 2 * slot}:{71 + 2 * slot}]")
            if once:
                self.e("s_waitcnt lgkmcnt(0)")
                self.label(l)

    def hts(self, slot):
        if self.o['hts'] == 1: self.e(f"s_memrealtime s[{70 + 2 * slot}:{71 + 2 * slot}]")

    def ts(self, slot):
        if self.o['hts'] and slot in (2, 4, 5, 7, 9, 10, 11, 12): return
        if self.o['ts']:
            self.e(f"{'s_memtime' if self.cyc else 's_memrealtime'} s[{70 + 2 * slot}:{71 + 2 * slot}]")

    def tick(self, k):
        if self.o['wp'] and k is not None:
            e = self.e
            e("s_memtime s[94:95]")
            e("s_waitcnt lgkmcnt(0)")
            e("s_sub_u32 s93, s94, s92")
            e("s_mov_b32 s92, s94")
            e(f"v_add_u32 v{224+k}, s93, v{224+k}")
            e(f"v_add_u32 v{240+k}, 1, v{240+k}")

    def awld(self, n0, cnt, tag=None):
        for n in range(n0, min(n0 + cnt, 56)):
            g, j = divmod(n, 7)
            t = f"buffer_load_dwordx4 a[{4*n}:{4*n+3}], v28, s[44:47], s{41 + (g >> 2)} offen offset:{(g & 3) * 896 + j * 128} {self.o['awpol']}"
            if tag is not None: self.vm(t, tag)
            else: self.e(t)

    def ld(self, base, g, tag=None, lim=None, js=range(4)):
        for j in js:
            r = base + g * 16 + j * 4
            if lim: self.e(f"s_waitcnt vmcnt({(lim if isinstance(lim, int) else lim[(4 * g + j) % len(lim)]) - 1})")
            s = f"buffer_load_dwordx4 v[{r}:{r+3}], v{2+g}, s[28:31], s57 offen offset:{j*128} {self.o['kvpol']}"
            if tag is not None: self.vm(s, tag)
            else: self.e(s)

    def ktile(self, kb, wait, reissue, rtag=None, extra=None, li=3):
        e = self.e
        lim = self.o['lim'] and self.o['lim'][li]
        for i in range(8):
            e(f"v_mov_b32 v{11+i}, 0")
        for g in range(4):
            wait(g)
            for i in range(16 if not self.o['nodot'] else 2):
                e(f"v_dot2c_f32_bf16 v{11+2*g+(i&1)}, v{kb+g*16+i}, v{32+i}")
                if reissue and self.o['fine'] and i & 3 == 3:
                    self.ld(kb, g, rtag and (rtag, g), lim, [i >> 2])
            if reissue and not self.o['fine']:
                self.ld(kb, g, rtag and (rtag, g), lim)
            if extra: extra(g)
        if reissue or self.o['prof'] != 2: self.plog()
        if not reissue: e("s_nop 2")
        for g in range(4):
            e(f"v_add_f32 v{11+2*g}, v{11+2*g}, v{12+2*g}")
        for st in ("quad_perm:[1,0,3,2]", "quad_perm:[2,3,0,1]", "row_half_mirror"):
            for g in range(4):
                e(f"v_add_f32_dpp v{11+2*g}, v{11+2*g}, v{11+2*g} {st} row_mask:0xf bank_mask:0xf")
        e("v_cvt_pk_bf16_f32 v24, v11, v13")
        e("v_cvt_pk_bf16_f32 v25, v15, v17")
        e("ds_write_b64 v19, v[24:25]")
        e("v_add_u32 v19, 64, v19")

    def vgrp(self, g, n, reissue, base=64, tk=None):
        e = self.e
        e(f"s_waitcnt vmcnt({n})")
        self.tick(tk)
        for j in range(4):
            r = base + g * 16 + j * 4
            e(f"v_mfma_f32_16x16x32_bf16 v[{48+4*j}:{51+4*j}], v[{32+4*g}:{35+4*g}], v[{r}:{r+3}], v[{48+4*j}:{51+4*j}]")
        if reissue:
            self.ld(64, g, None, self.o['lim'] and self.o['lim'][self.ph])

    def pcalc(self, groups):
        e = self.e
        for g in groups:
            src = 24 if g < 2 else 25
            if g & 1: e(f"v_and_b32 v{11+g}, 0xffff0000, v{src}")
            else: e(f"v_lshlrev_b32 v{11+g}, 16, v{src}")
        for g in groups: e(f"v_fma_f32 v{11+g}, v{11+g}, s59, v10")
        for g in groups: e(f"v_exp_f32 v{11+g}, v{11+g}")
        for g in groups: e(f"v_cvt_pk_bf16_f32 v{15+g}, v{11+g}, v{11+g}")
        for g in groups:
            for r in range(4):
                e(f"v_and_b32 v{32+4*g+r}, v{6+r}, v{15+g}")

    def ticket(self, off=0, amount="1"):
        e = self.e
        if self.o['hp'] and off == 0:
            e("s_xor_b32 s60, s44, 1")
            e("v_xor_b32 v22, s60, v1")
            e("s_mov_b64 exec, 3")
            e(f"buffer_atomic_add v22, v21, s[36:39], 0 offen sc0 sc1 {self.o['tpol']}")
            e("s_mov_b64 exec, -1")
            return
        e(f"v_mov_b32 v22, {amount}")
        e("s_mov_b64 exec, 1")
        e(f"buffer_atomic_add v22, v21, s[36:39], 0 offen offset:{off} sc0 sc1 {self.o['tpol']}")
        e("s_mov_b64 exec, -1")

    def tile_addr(self, src="s56"):
        k = self.o['gs']; e = self.e
        if k == 0: return super().tile_addr(src)
        e(f"s_lshr_b32 s57, {src}, {k}")
        e(f"s_lshl_b32 s57, s57, {14 + k}")
        e("s_add_u32 s57, s57, s61")
        e(f"s_and_b32 s63, {src}, {(1 << k) - 1}")
        e("s_lshl_b32 s63, s63, 12")
        e("s_add_u32 s57, s57, s63")
        e("s_and_b32 s57, s57, 0x7fffff")
        if self.wide: e("s_add_u32 s57, s57, s41")

    def sc_addr(self, t):
        e = self.e
        e(f"s_and_b32 s98, {t}, 31")
        e(f"s_lshl_b32 s98, s98, {8 if self.o['p2s'] else 9}")
        e(f"s_lshr_b32 s63, {t}, 5")
        e("s_lshl_b32 s63, s63, 6")
        e("s_add_u32 s98, s98, s63")

    def build(self):
        o = self.o; e = self.e
        PD = o['PD']; NSH = o['NSH']; NH = o['NH']; PV = o['PV']; NO = o['NO']
        ND = 32 * NSH
        NF = ND - NH
        NTK = NF + 2 * NH
        PA = o['PA']; XS = o['XS'] + PV
        B1 = ND + 24 * XS
        B2 = B1 + 32 * NO
        NPUB = 4 if o['p2s'] else NSH
        LIM_ = o['lim']
        E1 = PD + PA + 1
        assert 1 <= PD <= 2 and o['dyn'] == 'WGD' and (PD + 1 <= NSH or o['p2s']) and NSH <= 8 and NO >= 2 and PV + PA <= 4 and B2 <= 512
        assert 2 * o['NB'] <= NF
        assert max(NSH, E1) + 2 <= NSH + XS + NO
        def pace():
            if o['pace']: e(f"s_waitcnt vmcnt({o['pace']})")
        self.L.append(f"; @launch grid=(256,1,1) block=(256,1,1) lds={LDS_BYTES}")
        self.L.append('.amdgcn_target "amdgcn-amd-amdhsa--gfx950"')
        self.L.append(".text")
        self.L.append(f".globl {NAME}")
        self.L.append(".p2align 8")
        self.L.append(f".type {NAME},@function")
        self.label(NAME)
        e("s_cmp_ge_u32 s2, 256")
        e("s_cbranch_scc1 .Lend")
        e("s_load_dwordx16 s[4:19], s[0:1], 0")
        e("s_load_dwordx8 s[20:27], s[0:1], 64")
        if o['ts']:
            self.ts(0)
            for i in range(72, 96): e(f"s_mov_b32 s{i}, 0")
        e("v_and_b32 v1, 63, v0")
        e("v_lshrrev_b32 v2, 6, v0")
        e("s_and_b32 s53, s2, 7")
        if o['prof']:
            e("s_mov_b32 s3, 0")
            e("v_mov_b32 v0, 0")
        e("v_readfirstlane_b32 s52, v2")
        e("s_lshr_b32 s54, s2, 3")
        e(f"s_mul_i32 s61, s54, {o['rot']}")
        e("v_lshrrev_b32 v20, 3, v1")
        e("v_lshlrev_b32 v2, 9, v20")
        e("v_and_b32 v3, 7, v1")
        e("v_lshlrev_b32 v13, 13, v20")
        e("v_lshl_or_b32 v2, v3, 4, v2")
        e("v_lshl_or_b32 v13, v3, 4, v13")
        S = 4096 << o['gs']
        e(f"v_add_u32 v3, {S}, v2")
        e(f"v_add_u32 v4, {2*S}, v2")
        e(f"v_add_u32 v5, {3*S}, v2")
        e("s_lshl_b32 s58, s53, 2")
        e("s_add_u32 s58, s58, s52")
        e("s_mov_b32 s56, s58")
        self.tile_addr()
        e("s_mov_b32 s30, 0x800000")
        e("s_mov_b32 s31, 0x20000")
        e("s_lshr_b32 s96, s53, 2")
        e("s_lshl_b32 s60, s54, 1")
        e("s_add_u32 s96, s96, s60")
        e(f"s_mul_i32 s60, s52, {112 * 8192}")
        e("s_lshl_b32 s63, s96, 7")
        e("s_add_u32 s60, s60, s63")
        e("v_add_u32 v13, s60, v13")
        e("v_and_b32 v16, 31, v1")
        e("v_cmp_gt_u32 s[64:65], 28, v16")
        e("v_lshrrev_b32 v14, 5, v1")
        e("v_mul_u32_u24 v14, 896, v14")
        e("v_lshl_add_u32 v28, v16, 5, v14")
        e("v_mov_b32 v16, 0x10000")
        e("v_cndmask_b32 v16, v16, v28, s[64:65]")
        e("v_mov_b32 v15, 0")
        e("s_mov_b32 s38, {0}".format(WS_SIZE))
        e("s_mov_b32 s39, 0x20000")
        e("s_mov_b32 s42, 1792")
        e("s_mov_b32 s43, 0x20000")
        e("s_mov_b32 s46, 3670016")
        e("s_mov_b32 s47, 0x20000")
        e(f"s_mul_i32 s97, s52, {14 * 1024}")
        e(f"s_add_u32 s97, s97, {L_W}")
        e("s_lshl_b32 s60, s54, 23")
        e("s_xor_b32 s62, s53, s54")
        e("s_and_b32 s62, s62, 3")
        e("s_waitcnt lgkmcnt(0)")
        if o['dbgts']: e("s_mov_b64 s[84:85], s[24:25]")
        self.hts(2)
        e("s_cbranch_scc1 .Lnoprod1")
        e("s_setprio 3")
        e("s_mov_b64 s[40:41], s[4:5]")
        e("s_mov_b64 s[44:45], s[10:11]")
        e("s_and_b32 s63, s96, 3")
        e("s_or_b32 s63, s63, s52")
        e("s_cbranch_scc1 .Lnocinit")
        e("s_mov_b64 s[36:37], s[26:27]")
        e("s_lshl_b32 s63, s96, 6")
        e("v_and_b32 v14, 1, v1")
        e("v_lshlrev_b32 v14, 12, v14")
        e("v_lshrrev_b32 v17, 1, v1")
        e("v_lshl_add_u32 v14, v17, 7, v14")
        e(f"v_add_u32 v14, {WS_CNT}, v14")
        e("s_mov_b64 exec, 15")
        e("buffer_store_dword v15, v14, s[36:39], s63 offen " + self.P("ciS"))
        e("s_mov_b64 exec, -1")
        self.label(".Lnocinit")
        if 'p' in o['xq']:
            e("s_setprio 0")
            e("s_mov_b32 s62, 1")
            e("s_branch .Lnoprod1")
        e("buffer_load_dwordx4 v[240:243], v16, s[40:43], 0 offen")
        e("buffer_load_dwordx4 v[244:247], v16, s[40:43], 0 offen offset:16")
        for ks in range(14):
            e("s_mov_b32 m0, s97")
            e(f"s_mov_b32 s63, {ks * 65536}")
            e(f"buffer_load_dwordx4 v13, s[44:47], s63 offen {o['wqpol']} lds")
            if ks < 13: e("s_add_u32 s97, s97, 1024")
        PA1 = o['pa1']
        if PA1 is not None:
            assert o['rst'] != 'first'
            e("s_add_u32 s28, s6, s60")
            e("s_addc_u32 s29, s7, 0")
            e("s_branch .Lprod2")
        self.label(".Lnoprod1")
        if o['rst'] == 'first': self.resets()
        e("s_add_u32 s28, s6, s60")
        e("s_addc_u32 s29, s7, 0")
        self.q = []
        for g in range(4): self.ld(64, g, ('A', g))
        self.label(".Lprod2")
        self.hts(4)
        e(f"s_load_dword s68, s[26:27], {WS_EPOCH}")
        def tag():
            e("s_mul_i32 s55, s68, 0x9e3779b1")
            e("s_add_u32 s55, s55, 0x7f4a7c15")
        if o['prof'] == 2: self.plog()
        e("s_add_u32 s32, s8, s60")
        e("s_addc_u32 s33, s9, 0")
        e("s_mov_b32 s34, 0x800000")
        e("s_mov_b32 s35, 0x20000")
        e("s_mov_b64 s[36:37], s[26:27]")
        self.srd(48, 24, 256)
        self.setup()
        e("s_cmp_lg_u32 s62, 0")
        e("s_cbranch_scc1 .Ljoin")
        e("v_lshlrev_b32 v17, 7, v29")
        e("v_lshl_add_u32 v17, v31, 3, v17")
        e("s_lshl_b32 s60, s52, 5")
        e(f"s_add_u32 s60, s60, {L_W}")
        e("v_add_u32 v17, s60, v17")
        e(f"s_waitcnt vmcnt({30 if PA1 is None else 14})")
        self.hts(5)
        for i in range(8):
            e(f"v_and_b32 v{184+2*i+1}, 0xffff0000, v{240+i}")
            e(f"v_lshlrev_b32 v{184+2*i}, 16, v{240+i}")
        self.layernorm16(184, 200, "s[64:65]")
        e("s_mov_b64 exec, s[64:65]")
        e(f"ds_write_b128 v28, v[184:187] offset:{L_XN}")
        e(f"ds_write_b128 v28, v[188:191] offset:{L_XN+16}")
        e("s_mov_b64 exec, -1")
        e("s_waitcnt lgkmcnt(0)")
        for ks in range(14):
            e(f"ds_read_b128 v[{128+4*ks}:{131+4*ks}], v30 offset:{L_XN + ks*64}")
        tag()
        e("v_mov_b32 v249, s55")
        e("v_and_b32 v13, 1, v1")
        e("v_lshlrev_b32 v14, 14, v13")
        e("v_cmp_eq_u32 vcc, 1, v13")
        e("v_lshrrev_b32 v13, 1, v1")
        e("v_lshl_add_u32 v14, v13, 3, v14")
        e("s_lshl_b32 s60, s96, 2")
        e("s_add_u32 s60, s60, s52")
        e("s_lshl_b32 s60, s60, 6")
        e(f"s_add_u32 s60, s60, {WS_Q}")
        if o['qdry']:
            e("s_mov_b64 exec, 0")
            e("s_branch .Lqgo")
            self.label(".Lqdry")
            e("s_mov_b64 exec, -1")
        self.hts(7)
        for g in range(PA1 or 0): self.ld(64, g)
        e(f"s_waitcnt vmcnt({16 if PA1 is None else 4 * PA1})")
        self.hts(9)
        e("s_barrier")
        self.hts(10)
        self.label(".Lqgo")
        for ks in range(14):
            e(f"ds_read_b64_tr_b16 v[{184+4*ks}:{185+4*ks}], v17 offset:{ks*4096}")
            e(f"ds_read_b64_tr_b16 v[{186+4*ks}:{187+4*ks}], v17 offset:{ks*4096 + 512}")
            if ks == 6:
                e("s_waitcnt lgkmcnt(6)")
        e("s_waitcnt lgkmcnt(0)")
        for ks in range(14):
            cin = "0" if ks == 0 else "v[240:243]"
            e(f"v_mfma_f32_16x16x32_bf16 v[240:243], v[{128+4*ks}:{131+4*ks}], v[{184+4*ks}:{187+4*ks}], {cin}")
        e("s_nop 7")
        e("v_mov_b32_dpp v244, v240 quad_perm:[1,0,3,2] row_mask:0xf bank_mask:0xf")
        e("v_mov_b32_dpp v245, v241 quad_perm:[1,0,3,2] row_mask:0xf bank_mask:0xf")
        e("v_cndmask_b32 v246, v240, v245, vcc")
        e("v_cndmask_b32 v247, v244, v241, vcc")
        e("v_cvt_pk_bf16_f32 v248, v246, v247")
        if o['qdry']: e("s_cbranch_execz .Lqdry")
        e("s_mov_b64 exec, 0xffff")
        e("buffer_store_dwordx2 v[248:249], v14, s[36:39], s60 offen " + self.P("qS"))
        e("s_mov_b64 exec, -1")
        e("s_setprio 0")
        self.hts(11)
        for g in range(4 if PA1 is None else PA1, 4): self.ld(64, g)
        self.label(".Ljoin")
        if o['rst'] == 'join': self.resets()
        if o['iod'] and o['race'] == 'join': self.race()
        EP = o['ep']
        NP = o['NP']
        def poll(k): e(f"buffer_load_dwordx4 v[{48+4*k}:{51+4*k}], v13, s[36:39], s60 offen " + self.P("qL"))
        if EP:
            assert len(EP) == NP
            e("s_lshl_b32 s60, s54, 10")
            e(f"s_add_u32 s60, s60, {WS_Q}")
            e("v_lshlrev_b32 v13, 4, v1")
        pq = []
        for p in range(PD):
            e("s_add_u32 s56, s56, 32")
            self.tile_addr()
            for g in range(4):
                pace()
                self.ld(128 + 64 * p, g, (f'E{p}', g), o['limP'])
                pq += ['x'] * 4
                if EP and 4 * p + g in EP:
                    k = EP.index(4 * p + g)
                    e("s_cmp_lg_u32 s52, 0")
                    e(f"s_cbranch_scc1 .Lnp{k}")
                    poll(k)
                    self.label(f".Lnp{k}")
                    pq.append(k)
            if o['prof'] == 2: self.plog()
        self.hts(12)
        e("s_cmp_eq_u32 s52, 0")
        e("s_cbranch_scc1 .Lw0")
        for p in range(PA):
            e(f"v_readlane_b32 s56, v23, {PD + 1 + p}")
            self.tile_addr()
            for g in range(4):
                pace()
                for j in range(4):
                    r = 64 * (PV + p) + g * 16 + j * 4
                    self.vm(f"buffer_load_dwordx4 a[{r}:{r+3}], v{2+g}, s[28:31], s57 offen offset:{j*128} {o['kvpol']}", (f'F{p}', g))
            if o['prof'] == 2: self.plog()
        for p in range(PV):
            e(f"v_readlane_b32 s56, v23, {NSH + p}")
            self.tile_addr()
            for g in range(4):
                pace()
                for j in range(4):
                    r = 64 * p + g * 16 + j * 4
                    self.vm(f"buffer_load_dwordx4 a[{r}:{r+3}], v{2+g}, s[32:35], s57 offen offset:{j*128} {o['kvpol']}", 'X')
            if o['prof'] == 2: self.plog()
        for p in range(PV if o['prof'] == 1 else 0): self.plog()
        if o['sg']: self.sgload()
        if o['iod'] and o['race'] == 'bar': self.race()
        e(f"s_mov_b32 s99, {E1}")
        e(f"s_mov_b32 s97, {NSH + PV}")
        e(f"s_mov_b32 s101, {NSH + XS + NO}")
        e(f"s_mov_b32 s62, {max(NPUB, E1)}")
        e("s_branch .Lbar")
        self.label(".Lw0")
        e("s_lshl_b32 s60, s54, 10")
        e(f"s_add_u32 s60, s60, {WS_Q}")
        e("v_lshlrev_b32 v13, 4, v1")
        e("v_lshlrev_b32 v14, 3, v1")
        e(f"ds_write_b32 v15, v15 offset:{L_CNT}")
        e(f"ds_write_b32 v15, v15 offset:{L_CNT + 8}")
        e(f"ds_write_b32 v15, v15 offset:{L_CNT + 12}")
        if o['coop']:
            e("v_mov_b32 v16, -1")
            e(f"ds_write_b32 v15, v16 offset:{L_CNT + 4}")
        if o['sg']:
            self.sgtest(".Lnosg0")
            e("v_mov_b32 v16, s69")
            e("v_mov_b32 v17, 0x1000")
            e(f"ds_write2_b32 v15, v16, v17 offset0:{L_CNT//4 + 1} offset1:{L_CNT//4 + 2}")
            self.label(".Lnosg0")
        if 'q' in o['xq']: e("s_branch .Lqok")
        for k in range(NP if not EP else 0):
            if k: e(f"s_waitcnt vmcnt({16 - 3 * k})")
            poll(k)
        e("s_waitcnt lgkmcnt(0)")
        tag()
        for k in range(NP if EP else 0):
            e(f"s_waitcnt vmcnt({len(pq) - 1 - pq.index(k)})")
            e(f"v_cmp_ne_u32 vcc, s55, v{49+4*k}")
            e(f"v_cmp_ne_u32 s[66:67], s55, v{51+4*k}")
            e("s_or_b64 vcc, vcc, s[66:67]")
            e(f"s_cbranch_vccz .Lqok{k}")
            poll(k)
            pq.append('y')
        self.poll_begin()
        self.label(".Lqpoll")
        for k in range(NP):
            e(f"s_waitcnt vmcnt({NP - 1})")
            e(f"v_cmp_ne_u32 vcc, s55, v{49+4*k}")
            e(f"v_cmp_ne_u32 s[66:67], s55, v{51+4*k}")
            e("s_or_b64 vcc, vcc, s[66:67]")
            e(f"s_cbranch_vccz .Lqok{k}")
            poll(k)
        self.poll_again(".Lqpoll")
        for k in range(NP):
            self.label(f".Lqok{k}")
            e(f"ds_write2_b32 v14, v{48+4*k}, v{50+4*k} offset0:{L_Q//4} offset1:{L_Q//4+1}")
            if k < NP - 1: e("s_branch .Lqok")
        self.label(".Lqok")
        e(f"s_mov_b32 s99, {PD + 1}")
        e(f"s_mov_b32 s97, {NSH}")
        e(f"s_mov_b32 s101, {NSH + NO}")
        e(f"s_mov_b32 s62, {NPUB}")
        e("s_waitcnt lgkmcnt(0)")
        self.label(".Lbar")
        self.ts(1)
        e("s_barrier")
        self.ts(2)
        e("v_and_b32 v13, 7, v1")
        e("v_lshlrev_b32 v13, 4, v13")
        for j in range(4):
            e(f"ds_read_b128 v[{32+4*j}:{35+4*j}], v13 offset:{L_Q + j*128}")
        e("v_readlane_b32 s56, v23, s99")
        self.tile_addr()
        e("s_waitcnt lgkmcnt(0)")
        tag()
        self.L.append(';@S7A'); self.q7 = list(self.q)
        AW = o['aw']
        if AW:
            self.srd(44, 12, 3670016)
            e("s_and_b32 s41, s54, 15")
            e("s_lshl_b32 s41, s41, 2")
            e("s_add_u32 s41, s41, s52")
            e(f"s_mul_i32 s41, s41, {64 * 896}")
            e(f"s_add_u32 s42, s41, {4 * 896}")
            e("v_lshrrev_b32 v28, 3, v1")
            e(f"v_mul_u32_u24 v28, {8 * 896}, v28")
            e("v_add_u32 v28, v28, v13")
        self.ktile(64, lambda g: self.vwait(('A', g)), True, rtag='A2', extra=(lambda g: self.awld(2 * g, 2, 'aw')) if AW else None)
        for p in range(PD):
            self.ktile(128 + 64 * p, lambda g: self.vwait((f'E{p}', g)), False)
        if PA:
            e("s_cmp_eq_u32 s52, 0")
            e("s_cbranch_scc1 .Lkloop")
        for p in range(PA):
            def wa(g):
                self.vwait((f'F{p}', g))
                for i in range(16): e(f"v_accvgpr_read_b32 v{128 + 16 * g + i}, a{64 * (PV + p) + 16 * g + i}")
            self.ktile(128, wa, False)
        if o['rst'] == 'late': self.resets()
        else: self.checkin(".Lkloop")
        if o['tlbw']:
            n, sh = o['tlbw']
            e(f"v_lshlrev_b32 v251, {sh}, v1")
            e("s_lshl_b32 s60, s2, 2")
            e("s_add_u32 s60, s60, s52")
            e("s_and_b32 s60, s60, 31")
            e("s_lshl_b32 s60, s60, 7")
            e(f"s_mov_b64 exec, {hex((1 << n) - 1)}")
            e("buffer_load_dword v250, v251, s[32:35], s60 offen nt")
            e("buffer_load_dword v252, v251, s[28:31], s60 offen nt")
            e("s_mov_b64 exec, -1")

        if LIM_:
            e("s_xor_b32 s69, s53, s54")
            e("s_and_b32 s69, s69, 3")
            e(f"s_cselect_b32 s69, {o['w0']}, {max(2, o['w0']) + o['pb']}")
        def kiter(sx, wait, extra):
            self.label(".Lkloop" + sx)
            e("s_cmp_lg_u32 s99, s62")
            e("s_cbranch_scc1 .Lk0" + sx)
            e("s_lshl_b32 s60, s52, 11")
            e(f"s_add_u32 s60, s60, {L_SC}")
            e("v_lshl_add_u32 v14, v1, 4, s60")
            e("ds_read_b128 v[24:27], v14")
            e("s_lshl_b32 s60, s2, 2")
            e("s_add_u32 s60, s60, s52")
            e(f"s_lshl_b32 s60, s60, {8 if o['p2s'] else 9}")
            e(f"s_add_u32 s60, s60, {self.o['scb']}")
            e("v_lshlrev_b32 v13, 4, v1")
            e(f"s_mov_b32 exec_lo, {hex((1 << (4 * NPUB)) - 1)}")
            e("s_mov_b32 exec_hi, 0")
            e("s_waitcnt lgkmcnt(0)")
            if 's' not in o['xq']: e("buffer_store_dwordx4 v[24:27], v13, s[36:39], s60 offen " + self.P("scS"))
            e("s_mov_b64 exec, -1")
            e(f"s_mov_b32 s100, {B2}")
            e(f"s_mov_b32 s96, {o['c0']}")
            if LIM_: e("s_max_u32 s69, s69, 1")
            self.label(".Lk0" + sx)
            e("s_add_u32 s99, s99, 1")
            e("s_mov_b32 s58, s99")
            e("s_cmp_lt_u32 s99, s101")
            e("s_cbranch_scc1 .Lk2" + sx)
            e(f"s_waitcnt vmcnt({24 if sx else 16})")
            self.tick(0)
            e("v_readfirstlane_b32 s56, v22")
            e(f"s_add_u32 s56, s56, {B2}")
            e("s_cmp_lt_u32 s56, 512")
            e("s_cbranch_scc1 .Lk1" + sx)
            e("s_mov_b64 s[28:29], s[32:33]")
            self.kts(7)
            e("s_mov_b32 s58, s97")
            e("s_mov_b32 s101, 0")
            if LIM_: e("s_max_u32 s69, s69, 1")
            e("s_branch .Lk2" + sx)
            self.label(".Lk1" + sx)
            e("s_add_u32 s100, s56, s96")
            e("s_min_u32 s100, s100, 512")
            e("s_sub_u32 s60, s56, s99")
            e("v_add_u32 v13, s60, v1")
            e("v_cmp_le_u32 vcc, s99, v1")
            e("s_sub_u32 s101, s100, s60")
            e("s_sub_u32 s96, 512, s100")
            e("v_cndmask_b32 v23, v23, v13, vcc")
            e(f"s_lshr_b32 s96, s96, {o['csh']}")
            e("s_max_u32 s96, s96, 1")
            e(f"s_min_u32 s96, s96, {o['cmax']}")
            self.label(".Lk2" + sx)
            e("v_readlane_b32 s56, v23, s58")
            e("s_add_u32 s60, s99, 1")
            e("s_cmp_lg_u32 s60, s101")
            e("s_cbranch_scc1 .Lk3" + sx)
            e("v_mov_b32 v22, 0x10000")
            if B2 < 512:
                e(f"s_cmp_gt_u32 s101, {32 - o['cmax']}")
                e("s_cbranch_scc1 .Lk3" + sx)
                self.ticket(128, "s96")
                if LIM_: e("s_max_u32 s69, s69, 1")
            self.label(".Lk3" + sx)
            self.tile_addr()
            if LIM_:
                assert not sx
                e("s_cmp_lg_u32 s69, 0")
                e("s_cbranch_scc1 .Lkw")
                self.kts(10, True)
                self.ktile(64, wait, True, li=0)
                e("s_branch .Lkloop")
                self.label(".Lkw")
                e("s_sub_u32 s69, s69, 1")
            self.ktile(64, wait, True, extra=extra)
            if not sx:
                e("s_cmp_lg_u32 s101, 0")
                e("s_cbranch_scc1 .Lkloop")
        if AW:
            assert NSH + NO >= 10 and PD == 2 and not PA and not XS
            for it in range(1, 7):
                kiter(f"_u{it}", lambda g: e("s_waitcnt vmcnt(18)"), lambda g: self.awld(8 * it + 2 * g, 2))
            kiter("_u7", lambda g: e(f"s_waitcnt vmcnt({18 - 2 * g})"), None)
            e("s_cmp_eq_u32 s101, 0")
            e("s_cbranch_scc1 .Lkend")
        if o['wp']:
            for i in range(32): e(f"v_mov_b32 v{224+i}, 0")
            self.tick(15)
        kiter("", lambda g: (e("s_waitcnt vmcnt(12)"), self.tick(1 + g)), None)
        self.label(".Lkend")
        self.ts(6)
        e("s_lshl_b32 s60, s52, 11")
        e(f"s_add_u32 s60, s60, {L_SC}")
        e("v_lshl_add_u32 v13, v1, 4, s60")
        e("ds_read_b128 v[128:131], v13")
        e("ds_read_b128 v[144:147], v13 offset:1024")
        for i in range(16): e(f"v_mov_b32 v{48+i}, 0")
        e("v_lshrrev_b32 v19, 3, v1")
        e(f"s_add_u32 s60, s60, {NSH * 64}")
        e("v_lshl_add_u32 v19, v19, 3, s60")
        e("s_waitcnt lgkmcnt(0)")
        for i in range(4):
            e(f"v_and_b32 v{149+2*i}, 0xffff0000, v{144+i}")
            e(f"v_lshlrev_b32 v{148+2*i}, 16, v{144+i}")
        for i in range(4):
            e(f"v_and_b32 v{133+2*i}, 0xffff0000, v{128+i}")
            e(f"v_lshlrev_b32 v{132+2*i}, 16, v{128+i}")
        e("v_max3_f32 v140, v132, v133, v134")
        e("v_max3_f32 v141, v135, v136, v137")
        e("v_max3_f32 v140, v140, v138, v139")
        e("v_max3_f32 v141, v141, v148, v149")
        e("v_max3_f32 v140, v140, v150, v151")
        e("v_max3_f32 v141, v141, v152, v153")
        e("v_max3_f32 v140, v140, v154, v155")
        e("v_max_f32 v140, v140, v141")
        self.full_reduce("v_max_f32", "v140", "v141")
        e("v_mul_f32 v10, s59, v140")
        e("v_sub_f32 v10, 0, v10")
        for i in range(8): e(f"v_fma_f32 v{132+i}, v{132+i}, s59, v10")
        for i in range(8): e(f"v_fma_f32 v{148+i}, v{148+i}, s59, v10")
        for i in range(8): e(f"v_exp_f32 v{132+i}, v{132+i}")
        for i in range(8): e(f"v_exp_f32 v{148+i}, v{148+i}")
        e("s_nop 0")
        for i in range(8): e(f"v_add_f32 v{132+i}, v{132+i}, v{148+i}")
        for i in range(4): e(f"v_add_f32 v{132+i}, v{132+i}, v{136+i}")
        e("v_add_f32 v132, v132, v133")
        e("v_add_f32 v134, v134, v135")
        e("v_add_f32 v142, v132, v134")
        self.full_reduce("v_add_f32", "v142", "v141")
        e("v_mov_b32 v141, s55")
        e("v_mov_b32 v143, s55")
        e("s_lshl_b32 s60, s2, 2")
        e("s_add_u32 s60, s60, s52")
        e("s_lshl_b32 s60, s60, 4")
        e(f"s_add_u32 s60, s60, {WS_ML}")
        e("v_mov_b32 v13, 0")
        e("s_mov_b64 exec, 1")
        e("buffer_store_dwordx4 v[140:143], v13, s[36:39], s60 offen " + self.P("mlS"))
        e("s_mov_b64 exec, -1")
        if o['rst'] == 'late':
            self.checkin(".Lnoci")
            self.label(".Lnoci")
        e("s_lshl_b32 s98, s54, 9")
        e(f"s_add_u32 s98, s98, {WS_ML}")
        e("v_and_b32 v28, 31, v1")
        e("v_lshlrev_b32 v28, 4, v28")
        HP = o['hp']
        if HP:
            assert o['rot'] == 262144 and o['gs'] and not o['EG'] and not o['fp'] and not o['gfl'] and o['iod']
            e("s_lshl_b32 s42, s53, 2")
            e(f"s_or_b32 s42, s42, {o['hx']}")
            e("s_xor_b32 s60, s54, s42")
            e("s_lshl_b32 s63, s60, 9")
            e("s_lshl_b32 s98, s54, 9")
            e("v_cmp_gt_u32 vcc, 32, v1")
            e("v_mov_b32 v13, s63")
            e("v_mov_b32 v14, s98")
            e("v_cndmask_b32 v13, v13, v14, vcc")
            e("v_add_u32 v28, v28, v13")
            e(f"s_mov_b32 s98, {WS_ML}")
            e("s_lshl_b32 s60, s60, 8")
            e(f"s_add_u32 s60, s60, {WS_CNT}")
            e("v_writelane_b32 v21, s60, 1")
            e("s_lshl_b32 s41, s54, 23")
            e("s_mov_b32 s43, 0")
            e("s_mov_b32 s44, 0")
            e("s_mov_b32 s45, 0")
            for i in range(16): e(f"v_mov_b32 v{160+i}, 0")
        e("s_add_u32 s58, s97, 1")
        e("s_sub_u32 s99, s99, 1")
        if PV:
            e("s_cmp_eq_u32 s52, 0")
            e("s_cbranch_scc1 .Lvloop")
            for p in range(PV):
                e("ds_read_b64 v[24:25], v19")
                e("v_add_u32 v19, 64, v19")
                e("s_waitcnt lgkmcnt(0)")
                self.pcalc(range(4))
                for g in range(4):
                    for j in range(4):
                        r = 64 * p + g * 16 + j * 4
                        e(f"v_mfma_f32_16x16x32_bf16 v[{48+4*j}:{51+4*j}], v[{32+4*g}:{35+4*g}], a[{r}:{r+3}], v[{48+4*j}:{51+4*j}]")
        self.tick(15)
        if LIM_: e("s_mov_b32 s69, 1")
        self.kts(2)
        self.label(".Lvloop")
        e("ds_read_b64 v[24:25], v19")
        e("v_add_u32 v19, 64, v19")
        e("v_readlane_b32 s56, v23, s58")
        e("s_cmp_lt_u32 s58, s99")
        e("s_cbranch_scc1 .Lv1")
        self.ticket()
        e("buffer_load_dwordx4 v[128:131], v28, s[36:39], s98 offen " + self.P("mlL"))
        e("v_and_b32 v13, 7, v1")
        e("v_lshlrev_b32 v13, 2, v13")
        e("buffer_load_dword v23, v13, s[48:51], 0 offen sc1")
        if LIM_: e("s_mov_b32 s69, 1")
        self.label(".Lv1")
        self.tile_addr()
        e("s_add_u32 s58, s58, 1")
        e("s_waitcnt lgkmcnt(0)")
        self.pcalc(range(4))
        dum = o['dum']
        if dum:
            e("s_lshl_b32 s60, s2, 2")
            e("s_add_u32 s60, s60, s52")
            e("s_lshl_b32 s60, s60, 8")
            e(f"s_mul_i32 s63, s54, {o['dsp']}")
            e(f"s_add_u32 s60, {'s60' if dum[0] == 'p' else 's63'}, 0x200000")
            e("v_mov_b32 v26, 1")
            e("v_mov_b32 v27, 0")
            e("s_mov_b64 exec, 1")
            if dum[1] in 'SWXY':
                e("s_mov_b64 exec, 0xffffffff")
                e("v_lshlrev_b32 v27, 2, v1")
            op = {'X': "buffer_atomic_swap v26, v27, s[36:39], s60 offen sc1 nt", 'Y': "buffer_atomic_swap v26, v27, s[36:39], s60 offen nt", 'z': "buffer_atomic_add v26, v27, s[36:39], s60 offen sc0 nt", 'S': "buffer_store_dword v26, v27, s[36:39], s60 offen sc1", 'w': "buffer_store_dword v26, v27, s[36:39], s60 offen",
                  'u': "buffer_store_dword v26, v27, s[36:39], s60 offen sc1 nt", 'W': "buffer_store_dword v26, v27, s[36:39], s60 offen sc0 sc1", 'a': "buffer_atomic_add v26, v27, s[36:39], s60 offen sc0 sc1", 'l': "buffer_load_dword v26, v27, s[36:39], s60 offen sc1",
                  'n': "buffer_atomic_add v26, v27, s[36:39], s60 offen sc1", 'x': "buffer_atomic_add v26, v27, s[36:39], s60 offen sc0",
                  's': "buffer_store_dword v26, v27, s[36:39], s60 offen sc1", 't': "buffer_atomic_add v26, v27, s[36:39], s60 offen sc0 sc1 nt"}[dum[1]]
            e(op)
            e("s_mov_b64 exec, -1")
        if LIM_:
            e("s_cmp_lg_u32 s69, 0")
            e("s_cbranch_scc1 .Lvw")
            for g in range(4): self.vgrp(g, 12, True)
            self.plog()
            self.kts(9)
            self.kts(5, True)
            e("s_branch .Lvloop")
            self.label(".Lvw")
            e("s_mov_b32 s69, 0")
            self.ph = 3
        for g in range(4): self.vgrp(g, 13 if dum else 12, True, tk=5 + g)
        self.plog()
        self.kts(4, True)
        e("s_cmp_le_u32 s58, s99")
        e("s_cbranch_scc1 .Lvloop")
        if not o['dbgts']: self.ts(7)
        e("ds_read_b64 v[24:25], v19")
        e("s_waitcnt vmcnt(16)")
        self.poll_begin()
        self.label(".Lmlchk")
        e("v_cmp_ne_u32 vcc, s55, v129")
        e("v_cmp_ne_u32 s[66:67], s55, v131")
        e("s_or_b64 vcc, vcc, s[66:67]")
        e("s_cbranch_vccz .Lmlok")
        e("buffer_load_dwordx4 v[128:131], v28, s[36:39], s98 offen " + self.P("mlL"))
        e("s_waitcnt vmcnt(0)")
        self.poll_again(".Lmlchk")
        self.label(".Lmlok")
        e("v_mov_b32 v132, v128")
        self.half_reduce("v_max_f32", "v132", "v133")
        e("v_sub_f32 v128, v128, v132")
        e("v_mul_f32 v128, s59, v128")
        e("v_exp_f32 v128, v128")
        e("s_nop 0")
        e("v_mul_f32 v130, v130, v128")
        self.half_reduce("v_add_f32", "v130", "v133")
        e("v_log_f32 v130, v130")
        e("s_nop 0")
        e("v_fma_f32 v130, v132, s59, v130")
        if HP:
            e("s_nop 0")
            e("v_readlane_b32 s60, v130, 0")
            e("v_readlane_b32 s63, v130, 32")
            e("s_mov_b64 s[28:29], s[8:9]")
            e("s_mov_b32 s30, 0x10000000")
            e("v_mov_b32 v130, s60")
            e("v_sub_f32 v159, 0, s63")
            self.wide = True
        e("v_add_f32 v131, v10, v130")
        e("v_sub_f32 v10, 0, v130")
        e("v_exp_f32 v131, -v131")
        e("s_waitcnt lgkmcnt(0)")
        for i in range(16):
            e(f"v_mul_f32 v{48+i}, v{48+i}, v131")
        assert NH == 0
        e("v_and_b32 v13, 7, v1")
        e("v_lshlrev_b32 v13, 2, v13")
        self.poll_begin()
        self.label(".Lrd")
        e("v_mov_b32 v128, v23")
        e("v_and_b32 v129, 0x3ff, v23")
        for st in ("quad_perm:[1,0,3,2]", "quad_perm:[2,3,0,1]", "row_half_mirror"):
            e("s_nop 0")
            e(f"v_add_u32_dpp v128, v128, v128 {st} row_mask:0xf bank_mask:0xf")
            e(f"{'v_add_u32_dpp' if o['c2'] and st[0] == 'q' else 'v_min_u32_dpp'} v129, v129, v129 {st} row_mask:0xf bank_mask:0xf")
        e("s_nop 0")
        e("v_readfirstlane_b32 s60, v128")
        e("v_readfirstlane_b32 s63, v129")
        e("s_and_b32 s100, s60, 0x3ff")
        e("s_cmp_ge_u32 s100, 256")
        e("s_cbranch_scc1 .Lrdok")
        e("buffer_load_dword v23, v13, s[48:51], 0 offen sc1")
        e("s_waitcnt vmcnt(0)")
        self.poll_again(".Lrd")
        self.label(".Lrdok")
        e("s_getreg_b32 s58, hwreg(HW_REG_XCC_ID, 0, 3)")
        e("s_lshl_b32 s100, s58, 2" if not o['c2'] else "s_and_b32 s100, s58, 4")
        e(f"s_cmp_lt_u32 s63, {(84 if o['sg'] else 56 if o['c2'] else 14) if o['cls'] else 1000}")
        e("s_cselect_b32 s100, 64, s100")
        e("v_mov_b32 v128, s55")
        e("v_mov_b32 v26, 1")
        e("v_mov_b32 v27, 0")
        e("s_mov_b32 s99, 0")
        if o['ts'] and not o['prof']: e("s_mov_b32 s3, 999")
        if o['elig']:
            e("v_mov_b32 v21, 4" if 0 else "v_mov_b32 v23, 4")
            e("s_mov_b64 exec, 1")
            e(f"ds_add_u32 v27, v26 offset:{L_CNT + 8}")
            e("s_mov_b64 exec, -1")
        e("s_bfe_u32 s63, s60, 0xa000a")
        e("s_lshr_b32 s60, s60, 20")
        e("s_cmp_gt_u32 s60, s63")
        e("s_cselect_b32 s55, 0x2000, 0")
        if o['cfix'] is not None: e(f"s_mov_b32 s55, {o['cfix'] << 13}")
        e("s_or_b32 s60, s2, s52")
        e("s_cbranch_scc1 .Ldloop")
        e("v_mov_b32 v13, 0")
        e("s_mov_b64 exec, 1")
        e(f"buffer_store_dword v128, v13, s[36:39], 0 offen offset:{WS_EPOCH} sc1")
        e("s_mov_b64 exec, -1")
        self.ph = 2
        self.label(".Ldloop")
        e("s_waitcnt vmcnt(16)")
        self.tick(9)
        NB = o['NB']
        LIM = NF - NB
        def swp(l):
            e("s_cmp_lg_u32 s43, 0")
            e(f"s_cbranch_scc1 .Lswp{l}")
            self.label(f".Lswb{l}")
        def swo(l):
            self.label(f".Lswp{l}")
            for i in range(16): e(f"v_swap_b32 v{48+i}, v{160+i}")
            e("v_swap_b32 v10, v159")
            e("s_mov_b32 s43, 0")
            e(f"s_branch .Lswb{l}")
        def rdtk():
            e("v_readlane_b32 s46, v22, 0")
            e("v_readlane_b32 s47, v22, 1")
            e("s_cmp_eq_u32 s44, 0")
            e("s_cselect_b32 s56, s46, s47")
        def ctx():
            e("s_xor_b32 s43, s44, s45")
            e("s_mul_i32 s60, s43, s42")
            e("s_mov_b32 s45, s44")
            e("s_lshl_b32 s60, s60, 14")
            e("v_xor_b32 v20, s60, v20")
            e("s_lshl_b32 s60, s60, 4")
            e("s_xor_b32 s61, s61, s60")
            e("s_lshl_b32 s41, s61, 5")
            e(f"s_add_u32 s60, s47, {HP[0]}")
            e(f"s_min_u32 s63, s46, {LIM - HP[1] + HP[0]}")
            e("s_cmp_lt_u32 s60, s63")
            e("s_cselect_b32 s44, 1, 0")
        if HP:
            assert not o['ET']
            swp(0)
            rdtk()
        else: e("v_readfirstlane_b32 s56, v22")
        self.pcalc(range(4))
        if HP:
            e(f"s_cmp_ge_u32 s56, {LIM}")
            e("s_cbranch_scc1 .Lhx")
            ctx()
        if NB:
            e(f"s_cmp_lt_u32 s56, {NB}")
            e("s_cbranch_scc1 .Ldbl")
            e(f"s_add_u32 s56, s56, {NB}")
        e(f"s_cmp_ge_u32 s56, {NF}")
        e("s_cbranch_scc1 .Lfx")
        self.label(".Ld1")
        if o['ts'] and not o['prof']:
            e("s_mov_b32 s3, s56")
            self.ts(2)
        self.tile_addr()
        self.sc_addr("s56")
        e("buffer_load_dwordx2 v[24:25], v20, s[36:39], s98 offen " + self.P("scL"))
        if o['ET']:
            e(f"s_cmp_ge_u32 s56, {NF - o['ET']}")
            e("s_cbranch_scc1 .Lde")
            self.label(".Ldt")
        self.ticket()
        self.label(".Ldg")
        EG = o['EG']
        if EG:
            assert EG <= NF - 2 * NB
            e(f"s_cmp_ge_u32 s56, {NF - EG}")
            e("s_cbranch_scc1 .Leg")
        for g in range(4): self.vgrp(g, 14, True, tk=10 + g)
        self.plog()
        e("s_branch .Ldloop")
        if EG:
            self.label(".Leg")
            for g in range(4): self.ld(128, g)
            for g in range(4): self.vgrp(g, 30 - 4 * g, False)
            self.plog()
            e("s_waitcnt vmcnt(16)")
            e("v_readfirstlane_b32 s56, v22")
            self.pcalc(range(4))
            e(f"s_add_u32 s56, s56, {NB}")
            e("s_mov_b32 s99, 1")
            e(f"s_cmp_ge_u32 s56, {NF}")
            e("s_cbranch_scc1 .Lfx")
            e("s_mov_b32 s99, 0")
            self.tile_addr()
            self.sc_addr("s56")
            e("buffer_load_dwordx2 v[24:25], v20, s[36:39], s98 offen " + self.P("scL"))
            self.ticket()
            for g in range(4): self.ld(64, g)
            for g in range(4): self.vgrp(g, 30 - 4 * g, False, 128)
            self.plog()
            e("s_branch .Ldloop")
        if o['ET']:
            self.label(".Lde")
            e("s_mov_b64 exec, 1")
            if o['elig']: e(f"ds_cmpst_rtn_b32 v28, v27, v23, v27 offset:{L_CNT + 8}")
            else: e(f"ds_add_rtn_u32 v28, v27, v26 offset:{L_CNT + 8}")
            e("s_waitcnt lgkmcnt(0)")
            e("v_readfirstlane_b32 s97, v28")
            e("s_mov_b64 exec, -1")
            if o['elig']: e("s_xor_b32 s97, s97, 4")
            else: e("s_cmp_lg_u32 s97, 0")
            e("s_cbranch_scc1 .Ldt")
            e("s_mov_b64 exec, 1")
            e("buffer_atomic_add v26, v27, s[48:51], s100 offen offset:64 sc0 sc1")
            e("s_mov_b64 exec, -1")
            e("v_mov_b32 v22, 0x10000")
            e("s_mov_b32 s101, 1")
            e("s_branch .Ldg")
        if NB:
            self.label(".Ldbl")
            e("s_lshl_b32 s56, s56, 1")
            self.tile_addr()
            self.sc_addr("s56")
            e("buffer_load_dwordx2 v[24:25], v20, s[36:39], s98 offen " + self.P("scL"))
            for g in range(4): self.vgrp(g, 13, True, tk=10 + g)
            self.plog()
            e("s_add_u32 s56, s56, 1")
            self.label(".Ldbl2")
            e("s_waitcnt vmcnt(16)")
            self.tick(14)
            if HP: swp(1)
            self.pcalc(range(4))
            e("s_branch .Ld1")
        if HP:
            swo(0); swo(1)
            self.label(".Lhx")
            e(f"s_cmp_ge_u32 s46, {LIM}")
            e("s_cbranch_scc1 .Lfx")
            e("s_mov_b32 s44, 0")
            self.ticket()
            for g in range(4): self.vgrp(g, 13 - 4 * g, False)
            self.plog()
            e("s_waitcnt vmcnt(0)")
            rdtk()
            e(f"s_cmp_ge_u32 s56, {LIM}")
            e("s_cbranch_scc1 .Lhz")
            ctx()
            e("s_lshl_b32 s60, s56, 1")
            e(f"s_add_u32 s56, s56, {NB}")
            e("s_min_u32 s56, s56, s60")
            self.tile_addr()
            self.sc_addr("s56")
            e("buffer_load_dwordx2 v[24:25], v20, s[36:39], s98 offen " + self.P("scL"))
            e(f"s_cmp_lt_u32 s56, {2 * NB}")
            e("s_cbranch_scc1 .Lhd")
            self.ticket()
            for g in range(4): self.ld(64, g)
            e("s_branch .Ldloop")
            self.label(".Lhd")
            for g in range(4): self.ld(64, g)
            e("s_add_u32 s56, s56, 1")
            e("s_branch .Ldbl2")
            self.label(".Lhz")
            for i in range(16): e(f"v_mov_b32 v{32+i}, 0")
        self.label(".Lfx")
        if o['wp']:
            e("s_lshl_b32 s60, s2, 2")
            e("s_add_u32 s60, s60, s52")
            e("s_lshl_b32 s60, s60, 8")
            e(f"s_add_u32 s60, s60, {WS_PROF}")
            e("v_mov_b32 v13, 0")
            e("s_mov_b64 exec, 1")
            for i in range(8): e(f"buffer_store_dwordx4 v[{224+4*i}:{227+4*i}], v13, s[36:39], s60 offen offset:{16*i}")
            e("s_mov_b64 exec, -1")
            e("s_waitcnt vmcnt(0)")
        self.tail()
        nacc = 64 * (PV + PA) if not o['aw'] else 224
        self.L.append('.section .rodata,"a"')
        self.L.append(".p2align 6")
        self.L.append(f".amdhsa_kernel {NAME}")
        self.L.append(f"  .amdhsa_next_free_vgpr {256 + nacc}")
        self.L.append("  .amdhsa_next_free_sgpr 102")
        self.L.append(f"  .amdhsa_accum_offset 256")
        self.L.append("  .amdhsa_group_segment_fixed_size 0")
        self.L.append("  .amdhsa_kernarg_size 96")
        self.L.append("  .amdhsa_user_sgpr_count 2")
        self.L.append("  .amdhsa_user_sgpr_kernarg_segment_ptr 1")
        self.L.append("  .amdhsa_system_sgpr_workgroup_id_x 1")
        self.L.append("  .amdhsa_float_denorm_mode_32 3")
        self.L.append(".end_amdhsa_kernel")
        return "\n".join(x for x in self.L if x != ";@S7A" or self.o.get("g7")) + "\n"

    def resets(self):
        e = self.e; o = self.o
        if 'r' in o['xq']: return
        e("s_cmp_lg_u32 s52, 1")
        e("s_cbranch_scc1 .Lnoreset")
        for i in range(4): e(f"v_mov_b32 v{24+i}, -1")
        e("v_lshlrev_b32 v18, 4, v1")
        npc = (131072 + 28672 * o['NC'] + 200704) // 1024 if not o['iod'] else 416
        if o['p2s']:
            assert o['NSH'] <= 4 and o['iod'] and o['dpk'] and o['sp'] and not o['hp']
            npc = 192
            if o['trim']:
                e("s_and_b32 s63, s2, 0x87")
                e("s_cmp_eq_u32 s63, 0x87")
                e("s_cbranch_scc1 .Lnoreset")
        e("s_mov_b64 s[36:37], s[26:27]")
        e("s_lshl_b32 s63, s2, 10")
        e(f"s_add_u32 s63, s63, {WS_PART}")
        if o['hp']:
            e("s_cmp_lt_u32 s2, 128")
            e("s_cbranch_scc1 .Lnoreset2")
            e(f"s_add_u32 s60, s63, {WS_PART2 - 0x20000}")
            e("buffer_store_dwordx4 v[24:27], v18, s[36:39], s60 offen " + self.P("rsS"))
            self.label(".Lnoreset2")
        for i in range((npc + 255) // 256):
            if npc - 256 * i < 256:
                e(f"s_cmp_ge_u32 s2, {npc - 256 * i}")
                e("s_cbranch_scc1 .Lnoreset")
            e("buffer_store_dwordx4 v[24:27], v18, s[36:39], s63 offen " + self.P("rsS"))
            e("s_add_u32 s63, s63, 0x40000")
        self.label(".Lnoreset")

    def sgtest(self, skip):
        e = self.e
        e("s_cmp_lg_u32 s62, 1")
        e(f"s_cbranch_scc1 {skip}")
        e("s_cmp_ge_u32 s54, 28")
        e(f"s_cbranch_scc1 {skip}")
        e("s_lshr_b32 s69, s53, 2")
        e("s_mul_i32 s69, s69, 28")
        e("s_add_u32 s69, s69, s54")

    def sgload(self):
        e = self.e; o = self.o
        self.sgtest(".Lnosg")
        e("s_mov_b32 s46, 1605632")
        e("s_mov_b32 s47, 0x20000")
        e("s_mov_b64 s[44:45], s[20:21]")
        e("v_lshlrev_b32 v13, 4, v1")
        e("s_mul_i32 s99, s69, 28672")
        e("s_movk_i32 s98, 1024")
        e(f"s_mov_b32 s96, {L_D}")
        e("s_cmp_eq_u32 s52, 3")
        e("s_cbranch_scc1 .Lsg1")
        e("s_mov_b64 s[44:45], s[18:19]")
        e("v_lshrrev_b32 v13, 2, v1")
        e("v_mul_u32_u24 v13, 3584, v13")
        e("v_lshl_add_u32 v13, v31, 4, v13")
        e("s_lshl_b32 s99, s69, 6")
        e(f"s_mov_b32 s98, {16*3584}")
        e(f"s_mov_b32 s96, {L_U}")
        e("s_cmp_eq_u32 s52, 2")
        e("s_cbranch_scc1 .Lsg1")
        e("s_mov_b64 s[44:45], s[16:17]")
        e(f"s_mov_b32 s96, {L_W}")
        self.label(".Lsg1")
        e("s_add_u32 s97, s96, 28672")
        self.label(".Lsg2")
        e("s_mov_b32 m0, s96")
        e("s_add_u32 s96, s96, 1024")
        if o['sgp']: e(f"s_waitcnt vmcnt({o['sgp']})")
        e(f"buffer_load_dwordx4 v13, s[44:47], s99 offen {o['wpol']} lds")
        e("s_add_u32 s99, s99, s98")
        e("s_cmp_lt_u32 s96, s97")
        e("s_cbranch_scc1 .Lsg2")
        self.label(".Lnosg")

    def race(self):
        e = self.e
        X = "0x5bd1e995"
        e("s_cmp_lg_u32 s52, 1")
        e("s_cbranch_scc1 .Lnorace")
        e("s_lshr_b32 s60, s2, 6")
        e("s_lshl_b32 s60, s60, 14")
        e("s_and_b32 s63, s2, 63")
        e("s_lshl_b32 s63, s63, 7")
        e("s_add_u32 s60, s60, s63")
        e("s_bfe_u32 s41, s2, 0x10003")
        e("s_lshl_b32 s63, s41, 13")
        e("s_add_u32 s60, s60, s63")
        e(f"s_add_u32 s60, s60, {WS_RACE}")
        e("s_xor_b32 s63, s60, 0x2000")
        e("s_getreg_b32 s40, hwreg(HW_REG_XCC_ID, 2, 1)")
        e("s_xor_b32 s41, s41, s40")
        e(f"s_mov_b32 s42, {X}")
        e(f"s_mov_b32 s43, {X}")
        e("s_waitcnt lgkmcnt(0)")
        e("s_load_dword s42, s[26:27], s60")
        e("s_load_dword s43, s[26:27], s63")
        e("s_waitcnt lgkmcnt(1)")
        e("s_mov_b64 s[44:45], s[42:43]")
        e(f"s_cmp_eq_u32 s44, {X}")
        e("s_cselect_b32 s44, 1, 0")
        e(f"s_cmp_eq_u32 s45, {X}")
        e("s_cselect_b32 s45, 1, 0")
        e("s_xor_b32 s41, s41, s44")
        e("s_cselect_b32 s40, 20, 10")
        e("s_lshl_b32 s40, 1, s40")
        e("s_add_u32 s40, s40, 1")
        e("s_cmp_eq_u32 s44, s45")
        e("s_cselect_b32 s40, 1, s40")
        self.label(".Lnorace")

    def checkin(self, skip, t=13):
        e = self.e
        e("s_cmp_lg_u32 s52, 1")
        e(f"s_cbranch_scc1 {skip}")
        e("v_mov_b32 v22, s40" if self.o['iod'] else "v_mov_b32 v22, 1")
        e("s_getreg_b32 s60, hwreg(HW_REG_XCC_ID, 0, 3)")
        e("s_lshl_b32 s60, s60, 2")
        e(f"v_mov_b32 v{t}, s60")
        e("s_mov_b64 exec, 1")
        e(f"buffer_atomic_add v22, v{t}, s[48:51], 0 offen sc1 {self.o['cpol']}")
        e("s_mov_b64 exec, -1")

    def setup(self):
        e = self.e; o = self.o
        NSH = o['NSH']; XS = o['PV'] + o['XS']
        B1 = 32 * NSH + 24 * XS
        e(f"s_mov_b32 s59, {hex(f2u(math.log2(math.e) / 16.0))}")
        e("v_and_b32 v6, 1, v1")
        e("v_mov_b32 v10, 0xffff")
        e("v_lshlrev_b32 v6, 4, v6")
        e("v_lshlrev_b32 v10, v6, v10")
        e("v_bfe_u32 v11, v1, 1, 2")
        for r in range(4):
            e(f"v_cmp_eq_u32 vcc, {r}, v11")
            e("s_nop 1")
            e(f"v_cndmask_b32 v{6+r}, 0, v10, vcc")
        e("s_lshl_b32 s60, s54, 8")
        e(f"s_add_u32 s60, s60, {WS_CNT}")
        e("v_mov_b32 v21, s60")
        e("s_lshl_b32 s60, s52, 11")
        e(f"s_add_u32 s60, s60, {L_SC}")
        e("v_lshl_add_u32 v19, v20, 3, s60")
        e("v_lshl_add_u32 v27, v1, 4, s60")
        for i in range(4): e(f"v_mov_b32 v{32+i}, 0xff80ff80")
        e("ds_write_b128 v27, v[32:35]")
        e("ds_write_b128 v27, v[32:35] offset:1024")
        e(f"s_lshl_b32 s60, s54, {13 if o['p2s'] else 14}")
        e(f"s_add_u32 s60, s60, {self.o['scb']}")
        e("v_lshl_add_u32 v20, v20, 3, s60")
        e("v_lshrrev_b32 v11, 4, v1")
        e("v_bfe_u32 v29, v1, 2, 2")
        e("v_lshl_add_u32 v29, v11, 3, v29")
        e("v_and_b32 v31, 3, v1")
        e("v_and_b32 v10, 1, v1")
        e("v_mul_u32_u24 v30, 896, v10")
        e("v_lshl_add_u32 v30, v11, 4, v30")
        e("s_cmp_eq_u32 s52, 0")
        e(f"s_cselect_b32 s63, 0, {XS}")
        e("s_lshl_b32 s60, s63, 5")
        e(f"s_sub_u32 s60, {B1 - 32 * NSH}, s60")
        e("v_lshl_add_u32 v23, v1, 5, s58")
        e("v_add_u32 v10, s60, v23")
        e(f"v_cmp_le_u32 vcc, {NSH}, v1")
        e("s_nop 1")
        e("v_cndmask_b32 v23, v23, v10, vcc")
        if XS:
            e("s_mul_i32 s60, s53, 3")
            e("s_add_u32 s60, s60, s52")
            e(f"s_add_u32 s60, s60, {8 * NSH - 1}")
            e("v_mov_b32 v10, s60")
            e("v_mad_u32_u24 v10, v1, 24, v10")
            e(f"v_subrev_u32 v11, {NSH}, v1")
            e("v_cmp_gt_u32 vcc, s63, v11")
            e("s_nop 1")
            e("v_cndmask_b32 v23, v23, v10, vcc")

    def mpoll(self, n, regs, addr, full, lab, m0=72, pol=''):
        e = self.e
        self.poll_begin()
        e(f"s_branch {lab}chk")
        self.label(lab + "poll")
        for p in range(n):
            e(f"s_mov_b64 exec, s[{m0+2*p}:{m0+2*p+1}]")
            e(f"buffer_load_dwordx4 v[{regs+4*p}:{regs+4*p+3}], {addr(p)} " + self.P(pol))
        e(f"s_mov_b64 exec, {full}")
        self.label(lab + "chk")
        for p in range(n):
            e(f"s_waitcnt vmcnt({n-1-p})")
            e(f"v_cmp_u_f32 s[{m0+2*p}:{m0+2*p+1}], v{regs+4*p}, v{regs+4*p+2}")
            if p == 1: e(f"s_or_b64 vcc, s[{m0}:{m0+1}], s[{m0+2}:{m0+3}]")
            elif p > 1: e(f"s_or_b64 vcc, vcc, s[{m0+2*p}:{m0+2*p+1}]")
        e(f"s_cbranch_scc0 {lab}ok")
        self.poll_again(lab + "poll")
        self.label(lab + "ok")

    def pround(self, n, regs, addr, full, m0, pol, mk=False):
        e = self.e
        if mk: e("s_movk_i32 s63, 0x8000")
        for p in range(n):
            if mk:
                e(f"v_and_or_b32 v121, v{regs+4*p+1}, v{regs+4*p+3}, s63")
                e(f"v_cmp_ne_u32 s[{m0+2*p}:{m0+2*p+1}], -1, v121")
            else: e(f"v_cmp_u_f32 s[{m0+2*p}:{m0+2*p+1}], v{regs+4*p}, v{regs+4*p+2}")
        for p in range(n):
            e(f"s_mov_b64 exec, s[{m0+2*p}:{m0+2*p+1}]")
            e(f"buffer_load_dwordx4 v[{regs+4*p}:{regs+4*p+3}], {addr(p)} " + self.P(pol))
        e(f"s_mov_b64 exec, {full}")

    def spoll(self, n, regs, addr, full, lab, tree, c0, c1, m0=6, pol='', mk=False):
        e = self.e
        self.poll_begin()
        e(f"s_branch {lab}chk")
        self.label(lab + "poll")
        e("s_sub_u32 s62, s62, 1")
        e(f"s_cbranch_scc1 {lab}ok")
        self.pround(n, regs, addr, full, m0, pol, mk)
        self.label(lab + "chk")
        tree()
        e(f"v_cmp_u_f32 vcc, v{c0}, v{c1}" if not mk else "v_cmp_ne_u32 vcc, -1, v120")
        e(f"s_cbranch_vccnz {lab}poll")
        self.label(lab + "ok")

    def apoll(self, n, regs, addr, full, lab, win):
        e = self.e
        e(f"s_mov_b32 s62, {10 * self.o['spin']}")
        e(f"s_branch {lab}chk")
        for p in range(n):
            self.label(f"{lab}i{p}")
            e("s_mov_b64 exec, vcc")
            e(f"s_waitcnt vmcnt({win - 1})")
            e(f"buffer_load_dwordx4 v[{regs+4*p}:{regs+4*p+3}], {addr(p)} sc1")
            e(f"s_mov_b64 exec, {full}")
            if p < n - 1:
                e("s_mov_b32 s63, 1")
                e(f"s_branch {lab}b{p}")
        self.label(lab + "again")
        e("s_sub_u32 s62, s62, 1")
        e(f"s_cbranch_scc1 {lab}ok")
        self.label(lab + "chk")
        e("s_mov_b32 s63, 0")
        for p in range(n):
            e(f"v_cmp_u_f32 vcc, v{regs+4*p+1}, v{regs+4*p+3}")
            if p == n - 1: e("s_cmp_lg_u32 s63, 0")
            e(f"s_cbranch_vccnz {lab}i{p}")
            self.label(f"{lab}b{p}")
        e(f"s_cbranch_scc1 {lab}again")
        self.label(lab + "ok")

    def swap13(self):
        e = self.e
        e("s_lshr_b32 s63, s60, 2")
        e("s_xor_b32 s63, s63, s60")
        e("s_and_b32 s63, s63, 0x2000")
        e("s_mul_i32 s63, s63, 5")
        e("s_xor_b32 s60, s60, s63")
        e("s_xor_b32 s60, s60, s55")

    def tail(self):
        e = self.e; o = self.o
        assert o['RA'] == 0
        ET = o['ET']; B1W = o['B1W']; B1G = o['B1G']
        e("s_mov_b32 s54, 0")
        e("v_mov_b32 v16, 0")
        e("v_mov_b32 v17, 1")
        e("s_mov_b64 exec, 1")
        if o['elig']: e(f"ds_cmpst_rtn_b32 v18, v16, v23, v16 offset:{L_CNT + 8}")
        else: e(f"ds_add_rtn_u32 v18, v16, v17 offset:{L_CNT + 8}")
        e("s_mov_b64 exec, -1")
        e("v_lshrrev_b32 v13, 5, v1")
        e("v_lshlrev_b32 v13, 10, v13")
        e("v_and_b32 v14, 7, v1")
        e("v_lshl_add_u32 v13, v14, 5, v13")
        e("v_bfe_u32 v14, v1, 4, 1")
        e("v_lshl_add_u32 v13, v14, 4, v13")
        e("s_lshl_b32 s60, s52, 11")
        e("v_add_u32 v13, s60, v13")
        e("v_lshlrev_b32 v14, 4, v1")
        e("v_lshlrev_b32 v15, 3, v1")
        HP = o['hp']
        if HP:
            e("s_lshl_b32 s60, s42, 3")
            e("s_xor_b32 s60, s60, s2")
            e("s_lshl_b32 s60, s60, 9")
            self.swap13()
            e(f"s_add_u32 s66, s60, {WS_PART + WS_PART2}")
        e("s_lshl_b32 s60, s2, 9")
        if o['iod']: self.swap13()
        e(f"s_add_u32 s60, s60, {WS_PART}")
        e("s_waitcnt lgkmcnt(0)")
        if ET:
            e("s_cmp_lg_u32 s101, 0")
            e("s_cbranch_scc1 .Ldec")
        e("v_readfirstlane_b32 s97, v18")
        e("s_xor_b32 s97, s97, 4" if o['elig'] else "s_cmp_lg_u32 s97, 0")
        e("s_cbranch_scc1 .Lnr" if not HP else "s_cbranch_scc1 .Lnr0")
        e("s_mov_b64 exec, 1")
        e("buffer_atomic_add v26, v16, s[48:51], s100 offen offset:64 sc0 sc1")
        e("s_mov_b64 exec, -1")
        RD = "v14"; CA = "v16"
        if HP:
            self.label(".Lnr0")
            RD = "v178"; CA = "v179"
            e("s_cmp_eq_u32 s45, 0")
            e("s_cselect_b32 s67, s66, s60")
            e("s_cselect_b32 s60, s60, s66")
            e(f"s_cselect_b32 s64, {L_RED2}, 0")
            e(f"s_cselect_b32 s65, 0, {L_RED2}")
            e("s_cselect_b32 s63, 12, 0")
            e("v_add_u32 v176, s64, v13")
            e("v_add_u32 v177, s64, v14")
            e("v_add_u32 v13, s65, v13")
            e("v_add_u32 v178, s65, v14")
            e("v_mov_b32 v179, s63")
            e("s_mov_b32 exec_lo, 0x00ff00ff")
            e("s_mov_b32 exec_hi, 0xff00ff00")
            for j in range(4):
                e(f"ds_write_b128 v176, v[{160+4*j}:{163+4*j}] offset:{L_RED + j*256}")
            e("s_mov_b64 exec, 1")
            e(f"ds_add_rtn_u32 v18, v179, v17 offset:{L_CNT}")
            e("s_mov_b64 exec, -1")
            e("v_xor_b32 v179, 12, v179")
            e("s_waitcnt lgkmcnt(0)")
            e("v_readfirstlane_b32 s66, v18")
            e("s_cmp_lg_u32 s66, 3")
            e("s_cbranch_scc1 .Lnr1")
            for p in range(8):
                e(f"ds_read_b128 v[{180+4*p}:{183+4*p}], v177 offset:{L_RED + p*1024}")
            pk = lambda d, a, b: e(f"v_pk_add_f32 v[{d}:{d+1}], v[{a}:{a+1}], v[{b}:{b+1}]")
            for p in range(1, 8):
                e(f"s_waitcnt lgkmcnt({7-p})")
                for i in (0, 2): pk(180+i, 180+i, 180+4*p+i)
            e("v_cvt_pk_bf16_f32 v180, v180, v181")
            e("v_cvt_pk_bf16_f32 v181, v182, v183")
            e("v_min_u32 v180, -2, v180")
            e("v_min_u32 v181, -2, v181")
            self.label(".Lnr1")
            e("s_cmp_lg_u32 s97, 0")
            e("s_cbranch_scc1 .Lnr")
        def last(n):
            if o['EG']:
                assert not o['fp']
                l = self.newlab("la")
                e("s_cmp_eq_u32 s99, 0")
                e(f"s_cbranch_scc1 {l}")
                for g in range(4): self.vgrp(g, n - 4 * g, False, 128)
                e("s_branch .Lrt")
                self.label(l)
        if not o['fp']:
            last(13)
            for g in range(4): self.vgrp(g, 13 - 4 * g, False)
            e("s_branch .Lrt")
        else: assert not ET
        if ET:
            assert B1W == B1G
            self.label(".Lte2")
            e("s_mov_b32 s101, 2")
            for g in range(4): self.vgrp(g, B1W + 12 - 4 * g, False)
            e("s_branch .Lrt")
        self.label(".Lnr")
        last(12)
        if o['fp']:
            for i in range(3): e(f"v_xor_b32 v{176+i}, {2048*(i+1)}, v13")
            e("v_lshrrev_b32 v179, 5, v1")
            e("v_lshlrev_b32 v179, 7, v179")
            e("v_and_b32 v180, 7, v1")
            e("v_lshl_add_u32 v179, v180, 4, v179")
            e("v_bfe_u32 v180, v1, 4, 1")
            e("v_lshl_add_u32 v179, v180, 3, v179")
        FG = o['fpg'] if o['fp'] else 3
        for g in range(FG): self.vgrp(g, 12 - 4 * g, False)
        if o['fp']:
            e(f"ds_read_b32 v18, v16 offset:{L_CNT}")
            for i in range(3):
                for j in range(4):
                    e(f"ds_read_b128 v[{128+16*i+4*j}:{131+16*i+4*j}], v{176+i} offset:{L_RED + j*256}")
            e("s_waitcnt lgkmcnt(12)")
            e("v_readfirstlane_b32 s63, v18")
            e("s_cmp_lg_u32 s63, 3")
            e("s_cbranch_scc1 .Lslow")
            pk = lambda d, a, b: e(f"v_pk_add_f32 v[{d}:{d+1}], v[{a}:{a+1}], v[{b}:{b+1}]")
            for i in range(3):
                e(f"s_waitcnt lgkmcnt({8 - 4 * i})")
                for r in range(0, 16, 2): pk(48 + r, 48 + r, 128 + 16 * i + r)
            for g in range(FG, 4): self.vgrp(g, 12 - 4 * g, False)
            self.plog()
            self.ts(3)
            e("s_mov_b32 s64, 0x00ff00ff")
            e("s_mov_b32 s65, 0x00ff00ff")
            e("s_nop 3")
            for jj in (0, 8):
                for i in range(4): e(f"v_permlane32_swap_b32 v{48+jj+i}, v{52+jj+i}")
            for jj in (0, 8):
                for i in range(4): e(f"v_add_f32_dpp v{48+jj+i}, v{52+jj+i}, v{48+jj+i} row_ror:8 row_mask:0xf bank_mask:0xf")
            e("s_mov_b64 exec, s[64:65]")
            for jj in (0, 8):
                e(f"v_cvt_pk_bf16_f32 v{48+jj}, v{48+jj}, v{49+jj}")
                e(f"v_cvt_pk_bf16_f32 v{49+jj}, v{50+jj}, v{51+jj}")
                e(f"v_min_u32 v{48+jj}, -2, v{48+jj}")
                e(f"v_min_u32 v{49+jj}, -2, v{49+jj}")
                e(f"buffer_store_dwordx2 v[{48+jj}:{49+jj}], v179, s[36:39], s60 offen offset:{jj*32} " + self.P("paS"))
            e("s_mov_b64 exec, -1")
            self.ts(4)
            e("s_branch .Lnotlast")
            self.label(".Lslow")
        for g in range(FG, 4): self.vgrp(g, 12 - 4 * g, False)
        self.label(".Lrt")
        self.plog()
        self.ts(3)
        if HP:
            e("s_cmp_lg_u32 s66, 3")
            e("s_cbranch_scc1 .Lrt1")
            e("buffer_store_dwordx2 v[180:181], v15, s[36:39], s67 offen " + self.P("paS"))
            self.label(".Lrt1")
        e("s_mov_b32 exec_lo, 0x00ff00ff")
        e("s_mov_b32 exec_hi, 0xff00ff00")
        e("s_nop 3" if not HP else "s_nop 1")
        for j in range(4):
            e(f"ds_write_b128 v13, v[{48+4*j}:{51+4*j}] offset:{L_RED + j*256}")
        e("s_mov_b64 exec, 1")
        e(f"ds_add_rtn_u32 v18, {CA}, v17 offset:{L_CNT}")
        e("s_mov_b64 exec, -1")
        for p in range(8):
            e(f"ds_read_b128 v[{64+4*p}:{67+4*p}], {RD} offset:{L_RED + p*1024}")
        if o['ppk']:
            pk = lambda d, a, b: e(f"v_pk_add_f32 v[{d}:{d+1}], v[{a}:{a+1}], v[{b}:{b+1}]")
            e("s_waitcnt lgkmcnt(6)")
            e("v_readfirstlane_b32 s63, v18")
            for i in (0, 2): pk(64+i, 64+i, 68+i)
            e("s_cmp_lg_u32 s63, 3")
            e("s_cbranch_scc1 .Lnotlast")
            e("s_waitcnt lgkmcnt(4)")
            for i in (0, 2): pk(72+i, 72+i, 76+i)
            e("s_waitcnt lgkmcnt(2)")
            for i in (0, 2): pk(80+i, 80+i, 84+i)
            for i in (0, 2): pk(64+i, 64+i, 72+i)
            e("s_waitcnt lgkmcnt(0)")
            for i in (0, 2): pk(88+i, 88+i, 92+i)
            for i in (0, 2): pk(64+i, 64+i, 80+i)
            for i in (0, 2): pk(64+i, 64+i, 88+i)
        else:
            e("s_waitcnt lgkmcnt(8)" if not o['ts'] else "s_waitcnt lgkmcnt(0)")
            e("v_readfirstlane_b32 s63, v18")
            e("s_cmp_lg_u32 s63, 3")
            e("s_cbranch_scc1 .Lnotlast")
            for p in range(0, 8, 2):
                e(f"s_waitcnt lgkmcnt({6-p})")
                for i in range(4): e(f"v_add_f32 v{64+4*p+i}, v{64+4*p+i}, v{68+4*p+i}")
                if p == 2:
                    for i in range(4): e(f"v_add_f32 v{64+i}, v{64+i}, v{72+i}")
            for i in range(4): e(f"v_add_f32 v{80+i}, v{80+i}, v{88+i}")
            for i in range(4): e(f"v_add_f32 v{64+i}, v{64+i}, v{80+i}")
        e("v_cvt_pk_bf16_f32 v64, v64, v65")
        e("v_cvt_pk_bf16_f32 v65, v66, v67")
        e("v_min_u32 v64, -2, v64")
        e("v_min_u32 v65, -2, v65")
        e("buffer_store_dwordx2 v[64:65], v15, s[36:39], s60 offen " + self.P("paS"))
        self.ts(4)
        self.label(".Lnotlast")
        e("s_cmp_lg_u32 s97, 0")
        e("s_cbranch_scc1 .Lrolewait" if not o['dry'] else "s_cbranch_scc1 .Ldry")
        if ET:
            e("s_cmp_eq_u32 s101, 0")
            e("s_cbranch_scc1 .Llate")
            e("s_cmp_ge_u32 s69, 112")
            e("s_cbranch_scc1 .Lrdone")
            e(f"s_mov_b32 s98, {L_U}")
            e("s_cmp_lt_u32 s69, 56")
            e("s_cbranch_scc1 .Lldg0")
            e(f"s_mov_b32 s98, {L_W + 65536}")
            e("s_branch .Lldw0")
            self.label(".Llate")
        e("s_waitcnt vmcnt(0)")
        self.label(".Ldec")
        self.ts(10)
        e("v_readfirstlane_b32 s69, v26")
        if o['sg']:
            assert o['c2'] and o['elig'] and o['rord'] == 'GW'
            e("s_add_u32 s69, s69, 56")
        e("s_cmp_eq_u32 s100, 64")
        e("s_cbranch_scc1 .Lrgot")
        if o['sg']: e("s_sub_u32 s69, s69, 28")
        Q = 28 if o['c2'] else 7
        e("s_mul_i32 s56, s58, 7" if not o['c2'] else "s_mul_i32 s56, s100, 7")
        e(f"s_cmp_lt_u32 s69, {Q}")
        if o['rord'] == 'GW': e(f"s_cselect_b32 s57, 0, {56 - Q}")
        else:
            e(f"s_cselect_b32 s57, {56 + Q}, 0")
            e(f"s_sub_u32 s57, s57, {Q}")
        e("s_add_u32 s56, s56, s57")
        e(f"s_cmp_lt_u32 s69, {2 * Q}")
        e("s_cselect_b32 s56, s56, 255")
        e("s_add_u32 s69, s69, s56")
        self.label(".Lrgot")
        e("s_mov_b64 exec, 1")
        e("v_mov_b32 v18, s69")
        e(f"ds_write_b32 v16, v18 offset:{L_CNT + 4}")
        e("s_mov_b64 exec, -1")
        if o['coop']:
            assert not ET and not o['gch'] and not o['wch'] and not o['dq'] and not o['hp'] and not o['gfl'] and o['dry']
            self.coop()
        e(f"s_mov_b32 s96, {L_W}")
        e("s_cmp_ge_u32 s69, 112")
        e("s_cbranch_scc1 .Lrnone")
        e("s_cmp_lt_u32 s69, 56")
        e("s_cbranch_scc1 .Lldg")
        e("s_sub_u32 s56, s69, 56")
        e("s_mul_i32 s99, s56, 37")
        e("s_lshr_b32 s99, s99, 8")
        e("s_mul_i32 s57, s99, 7")
        e("s_sub_u32 s57, s56, s57")
        e(f"s_mul_i32 s99, s99, {512*896}")
        e("s_lshl_b32 s57, s57, 7")
        e("s_add_u32 s99, s99, s57")
        e("v_lshrrev_b32 v27, 3, v1")
        e("v_mul_u32_u24 v27, 896, v27")
        e("v_and_b32 v18, 7, v1")
        e("v_lshl_add_u32 v27, v18, 4, v27")
        if 'W' in o['fakew']:
            e("v_mov_b32 v27, v14")
            e("s_lshl_b32 s99, s56, 16")
        e(f"s_mov_b32 s98, {L_W + 1024 * o['cut'][0]}")
        e("s_cmp_eq_u32 s101, 1")
        e(f"s_cselect_b32 s98, {L_W + 1024 * B1W}, s98")
        self.label(".Lldw0")
        self.srd(40, 12, 3670016)
        self.label(".Lldw")
        if o['wch']:
            assert not ET and not o['fakew']
            for i in range(4):
                e("s_mov_b32 m0, s96")
                e(f"s_add_u32 s96, s96, {1024 * (1 if i < 3 else 13)}")
                e(f"buffer_load_dwordx4 v27, s[40:43], s99 offen {o['wpol']} lds")
                e(f"s_add_u32 s99, s99, {8 * 896 * (1 if i < 3 else 13)}")
            e("s_cmp_lt_u32 s96, s98")
            e("s_cbranch_scc1 .Lldw")
            e(f"s_sub_u32 s96, s96, {1024 * 60}")
            e(f"s_sub_u32 s99, s99, {8 * 896 * 60}")
            e(f"s_cmp_lt_u32 s96, {L_W + 16384}")
            e("s_cbranch_scc1 .Lldw")
        else:
            e("s_mov_b32 m0, s96")
            e("s_add_u32 s96, s96, 1024")
            e(f"buffer_load_dwordx4 v27, s[40:43], s99 offen {o['wpol']} lds")
            e(f"s_add_u32 s99, s99, {8*896 if 'W' not in o['fakew'] else 1024}")
            e("s_cmp_lt_u32 s96, s98")
            e("s_cbranch_scc1 .Lldw")
        if ET:
            e("s_cmp_eq_u32 s101, 1")
            e("s_cbranch_scc1 .Lte2")
        e("s_branch .Lrdone")
        self.label(".Lrnone")
        e("s_cmp_eq_u32 s101, 1")
        e("s_cbranch_scc1 .Lnr")
        e("s_branch .Lrdone")
        self.label(".Lldg")
        def dload():
            self.srd(40, 20, 1605632)
            e("s_mul_i32 s99, s69, 28672")
            e(f"s_mov_b32 s96, {L_D}")
            self.label(".Lldg2")
            e("s_mov_b32 m0, s96")
            e("s_add_u32 s96, s96, 1024")
            e(f"buffer_load_dwordx4 v14, s[40:43], s99 offen {o['dpol']} lds")
            e("s_add_u32 s99, s99, 1024")
            e(f"s_cmp_lt_u32 s96, {L_D + 1024 * o['cut'][1]}")
            e("s_cbranch_scc1 .Lldg2")
        if o['gch']:
            assert not ET and not o['dq'] and 'G' in o['fresh'] and not o['gfl']
            dload()
            e(f"s_mov_b32 s96, {L_W}")
        e("s_lshl_b32 s99, s69, 6")
        e("v_lshrrev_b32 v27, 2, v1")
        e("v_mul_u32_u24 v27, 3584, v27")
        e("v_lshl_add_u32 v27, v31, 4, v27")
        if 'G' in o['fakew']:
            e("v_mov_b32 v27, v14")
            e("s_mul_i32 s99, s69, 28672")
        e(f"s_mov_b32 s98, {L_U}")
        e("s_cmp_eq_u32 s101, 1")
        e(f"s_cselect_b32 s98, {L_W + 512 * B1G}, s98")
        self.label(".Lldg0")
        self.srd(40, 16, 1605632)
        self.srd(44, 18, 1605632)
        self.label(".Lldg1")
        e("s_mov_b32 m0, s96")
        e(f"s_add_u32 s57, s96, {L_U - L_W}")
        GP = o['wpol'] if o['gpol'] is None else o['gpol']
        e(f"buffer_load_dwordx4 v27, s[40:43], s99 offen {GP} lds")
        e("s_mov_b32 m0, s57")
        e("s_add_u32 s96, s96, 1024")
        e(f"buffer_load_dwordx4 v27, s[44:47], s99 offen {GP} lds")
        e(f"s_add_u32 s99, s99, {16*3584 if 'G' not in o['fakew'] else 1024}")
        e("s_cmp_lt_u32 s96, s98")
        e("s_cbranch_scc1 .Lldg1")
        if ET:
            e("s_cmp_eq_u32 s101, 1")
            e("s_cbranch_scc1 .Lte2")
        if not o['dq'] and not o['gch']: dload()
        self.label(".Lrdone")
        e("s_mov_b32 s54, 1")
        e("s_waitcnt lgkmcnt(0)")
        if o['dry']:
            e("s_branch .Lrolewait")
            self.label(".Ldry")
            e(f"s_cmp_gt_u32 s63, 1" if o['coop'] != 2 else "s_cmp_lg_u32 s63, 2")
            e("s_cbranch_scc1 .Lrolewait" if not o['coop'] else "s_cbranch_scc1 .Lcwait")
            for r in (0, 24, 26, 48, 50, 64): e(f"s_mov_b64 s[{r}:{r+1}], 0")
            for r in (56, 57, 59, 61, 63, 96, 97, 98, 99, 100, 101): e(f"s_mov_b32 s{r}, 0")
            e("s_waitcnt lgkmcnt(0)")
            e("s_mov_b64 exec, 0")
            e("s_branch .Lwok")
            self.label(".Ldryend")
            e("s_mov_b64 exec, -1")
            if o['ts']:
                e("s_waitcnt lgkmcnt(0)")
                for k in (5, 11, 12) if not o['hts'] else (): e(f"s_mov_b32 s{70+2*k}, 0")
            if o['coop']:
                self.label(".Lcwait")
                e(f"s_mov_b32 s62, {10 * o['spin']}")
                self.label(".Lcw1")
                e(f"ds_read_b32 v18, v16 offset:{L_CNT + 4}")
                e("s_sub_u32 s62, s62, 1")
                e("s_cbranch_scc1 .Lrolewait")
                e("s_waitcnt lgkmcnt(0)")
                e("v_readfirstlane_b32 s69, v18")
                e("s_cmp_eq_u32 s69, -1")
                e("s_cbranch_scc1 .Lcw1")
                e("s_branch .Lcoop")
        self.label(".Lrolewait")
        e("s_mov_b64 s[0:1], -1")
        e("s_barrier")
        e(f"ds_read_b32 v18, v16 offset:{L_CNT + 4}")
        e("s_waitcnt lgkmcnt(0)")
        e("v_readfirstlane_b32 s69, v18")
        e("s_mov_b32 s68, 3")
        e("s_cmp_ge_u32 s69, 112")
        e("s_cbranch_scc1 .Lfin")
        e("s_mov_b32 s68, 1")
        e("s_cmp_lt_u32 s69, 56")
        e("s_cbranch_scc1 .LstageG")
        e("s_mov_b32 s68, 0")
        e("s_sub_u32 s69, s69, 56")
        self.stageW()
        self.stageG()
        self.label(".Lfin")
        if o['ts']:
            self.ts(8)
            e("s_waitcnt lgkmcnt(0)")
            if o['dbgts']:
                e("s_cmp_eq_u32 s94, 0")
                e("s_cbranch_scc1 .Lnodbg")
                e("s_mov_b64 s[48:49], s[84:85]")
                e("s_mov_b32 s50, 256")
                e("s_mov_b32 s51, 0x20000")
                e("s_not_b32 s60, s70")
                e("v_mov_b32 v13, 0")
                e("s_mov_b64 exec, 1")
                for i, r in enumerate(("s60", "s82", "s76", "s88", "s80", "s92", "s94", "s86")):
                    e(f"v_mov_b32 v14, {r}")
                    e(f"buffer_atomic_umax v14, v13, s[48:51], 0 offen offset:{32+4*i} sc1")
                e("s_mov_b64 exec, -1")
                self.label(".Lnodbg")
            e("s_lshl_b32 s60, s2, 2")
            e("s_add_u32 s60, s60, s52")
            e("s_lshl_b32 s60, s60, 6")
            e(f"s_add_u32 s60, s60, {WS_TS}")
            e("v_mov_b32 v13, 0")
            e("s_getreg_b32 s63, hwreg(HW_REG_XCC_ID)")
            for i in range(13):
                e(f"v_mov_b32 v{64+i}, s{70+2*i}")
            e("v_mov_b32 v77, s63")
            e("v_mov_b32 v78, s3")
            e("v_mov_b32 v79, s68")
            e("s_mov_b64 exec, 1")
            for i in range(4):
                e(f"buffer_store_dwordx4 v[{64+4*i}:{67+4*i}], v13, s[36:39], s60 offen offset:{16*i}")
            if o['prof']:
                e("s_mov_b64 exec, -1")
                e("s_lshl_b32 s60, s2, 2")
                e("s_add_u32 s60, s60, s52")
                e("s_lshl_b32 s60, s60, 8")
                e(f"s_add_u32 s60, s60, {WS_PROF}")
                e("v_lshlrev_b32 v13, 2, v1")
                e("buffer_store_dword v0, v13, s[36:39], s60 offen")
        self.label(".Lend")
        e("s_endpgm")

    def coop(self):
        e = self.e; o = self.o
        def claim(n):
            e("s_mov_b64 exec, 1")
            e(f"ds_add_rtn_u32 v18, v16, v17 offset:{L_CNT + 12}")
            e("s_mov_b64 exec, -1")
            e("s_waitcnt lgkmcnt(0)")
            e("v_readfirstlane_b32 s56, v18")
            e(f"s_cmp_ge_u32 s56, {n}")
            e("s_cbranch_scc1 .Lrolewait")
        self.label(".Lcoop")
        e("s_cmp_ge_u32 s69, 112")
        e("s_cbranch_scc1 .Lrdone")
        e("s_cmp_lt_u32 s69, 56")
        e("s_cbranch_scc1 .Lcg")
        e("s_sub_u32 s56, s69, 56")
        e("s_mul_i32 s98, s56, 37")
        e("s_lshr_b32 s98, s98, 8")
        e("s_mul_i32 s57, s98, 7")
        e("s_sub_u32 s57, s56, s57")
        e(f"s_mul_i32 s98, s98, {512*896}")
        e("s_lshl_b32 s57, s57, 7")
        e("s_add_u32 s98, s98, s57")
        e("v_lshrrev_b32 v27, 3, v1")
        e("v_mul_u32_u24 v27, 896, v27")
        e("v_and_b32 v18, 7, v1")
        e("v_lshl_add_u32 v27, v18, 4, v27")
        self.srd(40, 12, 3670016)
        self.label(".Lcw")
        claim(8)
        e("s_lshl_b32 s96, s56, 13")
        e(f"s_add_u32 s96, s96, {L_W}")
        e(f"s_mul_i32 s99, s56, {64*896}")
        e("s_add_u32 s99, s99, s98")
        for i in range(8):
            e("s_mov_b32 m0, s96")
            e("s_add_u32 s96, s96, 1024")
            e(f"buffer_load_dwordx4 v27, s[40:43], s99 offen {o['wpol']} lds")
            e(f"s_add_u32 s99, s99, {8*896}")
        e("s_branch .Lcw")
        self.label(".Lcg")
        e("v_lshrrev_b32 v27, 2, v1")
        e("v_mul_u32_u24 v27, 3584, v27")
        e("v_lshl_add_u32 v27, v31, 4, v27")
        self.srd(40, 16, 1605632)
        self.srd(44, 18, 1605632)
        self.srd(28, 20, 1605632)
        self.label(".Lcg1")
        claim(7)
        e("s_lshl_b32 s96, s56, 12")
        e("s_mul_i32 s98, s69, 28672")
        e("s_add_u32 s98, s98, s96")
        e(f"s_add_u32 s96, s96, {L_W}")
        e(f"s_mul_i32 s99, s56, {64*3584}")
        e("s_lshl_b32 s57, s69, 6")
        e("s_add_u32 s99, s99, s57")
        for i in range(4):
            e("s_mov_b32 m0, s96")
            e(f"s_add_u32 s57, s96, {L_U - L_W}")
            e(f"buffer_load_dwordx4 v27, s[40:43], s99 offen {o['wpol']} lds")
            e("s_mov_b32 m0, s57")
            e(f"s_add_u32 s57, s96, {L_D - L_W}")
            e(f"buffer_load_dwordx4 v27, s[44:47], s99 offen {o['wpol']} lds")
            e("s_mov_b32 m0, s57")
            e("s_add_u32 s96, s96, 1024")
            e(f"buffer_load_dwordx4 v14, s[28:31], s98 offen {o['dpol']} lds")
            e(f"s_add_u32 s99, s99, {16*3584}")
            e("s_add_u32 s98, s98, 1024")
        e("s_branch .Lcg1")

    def bar(self):
        e = self.e
        if self.o['dry']:
            l = self.newlab("nb")
            e(f"s_cbranch_execz {l}")
            e("s_barrier")
            self.label(l)
        else: e("s_barrier")

    def stageW(self):
        e = self.e; o = self.o
        NC = o['NC']; dry = o['dry']
        e("s_mul_i32 s60, s69, 37")
        e("s_lshr_b32 s60, s60, 8")
        e("s_lshl_b32 s60, s60, 1")
        e("s_lshr_b32 s63, s52, 1")
        e("s_add_u32 s60, s60, s63")
        e("s_lshl_b32 s60, s60, 12")
        if o['iod']: self.swap13()
        e("s_and_b32 s63, s52, 1")
        e("s_lshl_b32 s63, s63, 8")
        e("s_add_u32 s60, s60, s63")
        e(f"s_add_u32 s60, s60, {WS_PART}")
        e("v_and_b32 v13, 1, v1")
        e("v_lshlrev_b32 v13, 16, v13")
        e("v_bfe_u32 v14, v1, 1, 3")
        e("v_lshl_add_u32 v13, v14, 9, v13")
        e("v_lshrrev_b32 v14, 4, v1")
        e("v_lshl_add_u32 v13, v14, 4, v13")
        HP = o['hp']
        if HP:
            assert 'W' not in o['fresh']
            e(f"s_add_u32 s61, s60, {WS_PART2}")
        def lds_():
            for t in range(4):
                e(f"buffer_load_dwordx4 v[{64+4*t}:{67+4*t}], v13, s[36:39], s60 offen offset:{t*64} " + self.P("paL"))
            for t in range(4 if HP else 0):
                e(f"buffer_load_dwordx4 v[{100+4*t}:{103+4*t}], v13, s[36:39], s61 offen offset:{t*64} " + self.P("paL"))
        lds_()
        e("v_lshlrev_b32 v14, 7, v29")
        e("v_lshl_add_u32 v14, v31, 3, v14")
        e("s_lshl_b32 s63, s52, 14")
        e("v_add_u32 v14, s63, v14")
        e("v_lshrrev_b32 v15, 5, v1")
        e("v_lshlrev_b32 v15, 8, v15")
        e("v_and_b32 v16, 31, v1")
        e("v_lshl_add_u32 v15, v16, 2, v15")
        e("s_lshl_b32 s63, s52, 9")
        e(f"s_add_u32 s63, s63, {L_R2}")
        e("v_add_u32 v15, s63, v15")
        e("v_lshlrev_b32 v16, 3, v1")
        e("s_lshl_b32 s63, s69, 9")
        e(f"s_add_u32 s63, s63, {WS_Y}")
        if o['iod']:
            e("s_mul_i32 s96, s69, 147")
            e("s_lshr_b32 s96, s96, 11")
            e(f"s_mul_i32 s96, s96, {16384 - 7168}")
            e("s_add_u32 s63, s63, s96")
            e("s_and_b32 s96, s52, 1")
            e("s_lshl_b32 s96, s96, 13")
        else: e("s_mul_i32 s96, s52, 28672")
        e("s_add_u32 s63, s63, s96")
        e(f"s_add_u32 s96, s63, {4*28672}")
        e(f"s_cmp_ge_u32 s52, {NC}")
        e("s_cselect_b32 s59, 1, 0")
        def wtr(t):
            for ct in range(4):
                r = 128 + 16 * t + 4 * ct
                e(f"ds_read_b64_tr_b16 v[{r}:{r+1}], v14 offset:{L_W + t*4096 + ct*32}")
                e(f"ds_read_b64_tr_b16 v[{r+2}:{r+3}], v14 offset:{L_W + t*4096 + ct*32 + 512}")
            e("s_waitcnt lgkmcnt(4)" if not o["ts"] else "s_waitcnt lgkmcnt(0)")
        t0 = 0
        for t1 in (o['wch'] or []):
            assert 'W' not in o['fresh']
            e(f"s_waitcnt vmcnt({(8 if HP else 4) + 16 * (4 - t1)})")
            e("s_barrier")
            for t in range(t0, t1): wtr(t)
            t0 = t1
        e(f"s_waitcnt vmcnt({8 if HP else 4})" if 'W' not in o['fresh'] else "s_waitcnt vmcnt(0)")
        if 'W' in o['fresh']:
            e("v_max3_u32 v98, v64, v66, v68")
            e("v_max3_u32 v99, v70, v72, v74")
            e("v_max3_u32 v98, v98, v76, v78")
            e("v_max_u32 v98, v98, v99")
            e("v_cmp_eq_u32 s[64:65], -1, v98")
            e("s_or_b32 s64, s64, 1")
        e("s_barrier")
        self.ts(9)
        if 'W' in o['fresh']:
            e("s_mov_b64 exec, s[64:65]")
            lds_()
            e("s_mov_b64 exec, -1")
        for t in range(t0, 4): wtr(t)
        self.poll_begin()
        e("s_waitcnt lgkmcnt(0)")
        if 'W' in o['fresh']: e("s_mov_b64 exec, s[64:65]")
        e("s_branch .Lwchk")
        self.label(".Lwpoll")
        lds_()
        self.label(".Lwchk")
        if HP:
            e("s_waitcnt vmcnt(4)")
            e("v_max3_u32 v98, v64, v66, v68")
            e("v_max3_u32 v99, v70, v72, v74")
            e("v_max3_u32 v98, v98, v76, v78")
            e("s_waitcnt vmcnt(2)")
            e("v_max3_u32 v99, v99, v100, v102")
            e("v_max3_u32 v98, v98, v104, v106")
            e("s_waitcnt vmcnt(0)")
            e("v_max3_u32 v99, v99, v108, v110")
            e("v_max3_u32 v98, v98, v112, v114")
        else:
            e("s_waitcnt vmcnt(2)")
            e("v_max3_u32 v98, v64, v66, v68")
            e("s_waitcnt vmcnt(0)")
            e("v_max3_u32 v99, v70, v72, v74")
            e("v_max3_u32 v98, v98, v76, v78")
        e("v_max_u32 v98, v98, v99")
        e("v_cmp_eq_u32 vcc, -1, v98")
        e("s_and_b64 exec, exec, vcc")
        e("s_cbranch_scc0 .Lwok")
        self.poll_again(".Lwpoll")
        self.label(".Lwok")
        e("s_mov_b64 exec, s[0:1]")
        self.ts(5)
        for t in range(4):
            for ct in range(4):
                cin = "0" if t == 0 else f"v[{80+4*ct}:{83+4*ct}]"
                r = 128 + 16 * t + 4 * ct
                e(f"v_mfma_f32_16x16x32_bf16 v[{80+4*ct}:{83+4*ct}], v[{64+4*t}:{67+4*t}], v[{r}:{r+3}], {cin}")
        for t in range(4 if HP else 0):
            for ct in range(4):
                r = 128 + 16 * t + 4 * ct
                e(f"v_mfma_f32_16x16x32_bf16 v[{80+4*ct}:{83+4*ct}], v[{100+4*t}:{103+4*t}], v[{r}:{r+3}], v[{80+4*ct}:{83+4*ct}]")
        e("s_cmp_lg_u32 s59, 0")
        e("s_nop 3")
        for ct in range(4):
            e(f"v_pk_add_f32 v[{80+4*ct}:{81+4*ct}], v[{80+4*ct}:{81+4*ct}], v[{82+4*ct}:{83+4*ct}]")
        for ct in range(4):
            e(f"v_permlane32_swap_b32 v{80+4*ct}, v{81+4*ct}")
        for ct in range(4):
            e(f"v_add_f32 v{80+4*ct}, v{80+4*ct}, v{81+4*ct}")
        e("v_permlane16_swap_b32 v80, v84")
        e("s_nop 0")
        e("v_permlane16_swap_b32 v88, v92")
        e("v_add_f32 v80, v80, v84")
        e("s_nop 0")
        e("v_add_f32 v88, v88, v92")
        e("ds_write2_b32 v15, v80, v88 offset0:0 offset1:32")
        e("s_waitcnt lgkmcnt(0)")
        self.bar()
        if NC < 4: e("s_cbranch_scc1 .Lfin")
        for w in range(4):
            e(f"ds_read_b64 v[{64+2*w}:{65+2*w}], v16 offset:{L_R2 + 512*w}")
        e("s_waitcnt lgkmcnt(2)")
        e("v_pk_add_f32 v[64:65], v[64:65], v[66:67]")
        e("s_waitcnt lgkmcnt(0)")
        e("v_pk_add_f32 v[68:69], v[68:69], v[70:71]")
        e("v_pk_add_f32 v[64:65], v[64:65], v[68:69]")
        e("buffer_store_dwordx2 v[64:65], v16, s[36:39], s63 offen " + self.P("yS"))
        if NC == 8:
            e("buffer_store_dwordx2 v[64:65], v16, s[36:39], s96 offen " + self.P("yS"))
        if dry: e("s_cbranch_execz .Lgok")
        e("s_branch .Lfin")

    def stageG(self):
        e = self.e; o = self.o; NC = o['NC']; dry = o['dry']; gts = o['gts']
        WS_P2 = WS_Y + NC * 28672
        P2S = o['p2s']
        WS_P2I = globals()['WS_P2I'] if not P2S else o['scb']
        iod = o['iod']
        self.cyc = gts
        if gts == 2: gts = False
        self.label(".LstageG")
        if o['dq']:
            self.srd(40, 20, 1605632)
            e("s_lshl_b32 s60, s69, 2")
            e("s_add_u32 s60, s60, s52")
            e("s_mul_i32 s99, s60, 7168")
            e("s_mul_i32 s96, s52, 7168")
            e(f"s_add_u32 s96, s96, {L_D}")
            for i in range(7):
                e("s_mov_b32 m0, s96")
                e("s_add_u32 s96, s96, 1024")
                e(f"buffer_load_dwordx4 v14, s[40:43], s99 offen {o['dpol']} lds")
                e("s_add_u32 s99, s99, 1024")
        e("s_and_b32 s60, s52, 1")
        e("s_mul_i32 s60, s60, 56")
        e("v_add_u32 v14, s60, v1")
        e("v_lshrrev_b32 v13, 4, v14")
        e("v_lshlrev_b32 v13, 9, v13")
        e("v_and_b32 v15, 15, v14")
        e("v_lshl_add_u32 v13, v15, 4, v13")
        e("s_lshr_b32 s63, s52, 1")
        e("s_lshl_b32 s60, s63, 8")
        e(f"s_add_u32 s60, s60, {WS_Y}")
        e("v_add_u32 v13, s60, v13")
        e("s_mul_i32 s63, s63, 896")
        e("v_lshl_add_u32 v16, v14, 3, s63")
        self.srd(40, 4, 1792)
        e("s_mov_b32 s64, -1")
        e("s_mov_b32 s65, 0x00ffffff")
        if NC == 8: e("s_mul_i32 s60, s58, 28672")
        if iod:
            e("s_lshr_b32 s60, s58, 2")
            e("s_lshl_b32 s60, s60, 13")
            e("s_xor_b32 s60, s60, s55")
        for p in range(8):
            if iod: e(f"s_add_u32 s{28+p}, s60, {3584*(p&1) + 16384*(p>>1)}")
            elif NC == 8: e(f"s_add_u32 s{28+p}, s60, {3584*p}")
            elif NC == 2:
                e(f"s_mov_b32 s{28+p}, {3584*p}")
                e(f"s_cmp_eq_u32 s58, {p}")
                e(f"s_cselect_b32 s{28+p}, {3584*p + 28672}, s{28+p}")
            else: e(f"s_mov_b32 s{28+p}, {3584*p}")
        ya = lambda p: f"v13, s[36:39], s{28+p} offen"
        e("v_mov_b32 v96, 0")
        e("v_mov_b32 v97, 0")
        for t in range(16): e(f"v_mov_b32 v{33+2*t}, -1")
        e("s_mov_b64 exec, s[64:65]")
        e("buffer_load_dwordx2 v[104:105], v16, s[40:43], 0 offen")
        def yl():
            for p in range(8):
                e(f"buffer_load_dwordx4 v[{32+4*p}:{35+4*p}], {ya(p)} " + self.P("yL"))
        if 'G' not in o['fresh']: yl()
        e("s_mov_b64 exec, -1")
        e("s_lshl_b32 s60, s52, 3")
        e("v_mov_b32 v17, s60")
        e("s_and_b32 s60, s60, 16")
        e("v_mov_b32 v18, s60")
        e("v_bfe_u32 v14, v1, 3, 1")
        e("v_lshlrev_b32 v14, 4, v14")
        e("v_and_b32 v15, 7, v1")
        e("v_lshl_add_u32 v28, v15, 1, v14")
        e("s_lshl_b32 s60, s52, 5")
        e("v_add_u32 v28, s60, v28")
        e("v_lshrrev_b32 v14, 4, v1")
        e("v_and_b32 v19, 1, v1")
        e("v_lshlrev_b32 v19, 4, v19")
        e("v_lshl_add_u32 v19, v14, 5, v19")
        e("v_and_b32 v20, 15, v1")
        e("v_lshlrev_b32 v20, 3, v20")
        if iod:
            e("s_and_b32 s60, s52, 1")
            e(f"s_mul_i32 s60, s60, {7*16384}")
            e("s_lshr_b32 s63, s52, 1")
            e("s_lshl_b32 s63, s63, 13")
            e("s_xor_b32 s63, s63, s55")
            e("s_add_u32 s60, s60, s63")
        else: e(f"s_mul_i32 s60, s52, {7*7168}")
        e("s_lshl_b32 s63, s69, 7")
        e("s_add_u32 s60, s60, s63")
        PS = [96, 97, 98, 99, 100, 101, 57]
        for j in range(7): e(f"s_add_u32 s{PS[j]}, s60, {WS_P2 + 7168*j if not iod else WS_P2I + 16384*j}")
        e("v_and_b32 v26, 1, v14")
        e("v_mul_u32_u24 v26, 896, v26")
        e("v_lshl_add_u32 v26, v15, 2, v26")
        e("v_and_b32 v14, 2, v14")
        e("v_add_u32 v26, v26, v14")
        e("s_min_u32 s60, s69, 27" if not iod else "s_lshr_b32 s60, s69, 1")
        e("s_lshl_b32 s60, s60, 5")
        e("v_add_u32 v26, s60, v26")
        e("v_lshlrev_b32 v27, 4, v1")
        if iod:
            e("s_lshl_b32 s56, s60, 9")
            e("s_cmp_ge_u32 s69, 28")
            e(f"s_cselect_b32 s61, {14*16384 - 0x2000}, 0")
            e("s_sub_u32 s56, s56, s61")
            e(f"s_add_u32 s56, s56, {WS_P2I}")
            e("s_xor_b32 s56, s56, s55")
            e("s_and_b32 s59, s69, 1")
            e("s_or_b32 s59, s59, s52")
        else:
            e("s_mul_i32 s56, s69, 7168")
            e(f"s_add_u32 s56, s56, {WS_P2}")
            e("s_cmp_ge_u32 s69, 28")
            e("s_cselect_b32 s59, 1, s52")
        e("s_add_u32 s61, s56, 4096")
        self.srd(44, 22, 1792)
        e("s_mov_b32 s53, 0x3f803f80")
        e("s_mov_b32 s24, 0")
        e("s_mov_b32 s25, 0x80000000")
        e("s_mov_b32 s26, -1")
        e("s_mov_b32 s27, 0xffff")
        e("s_mov_b64 s[48:49], 0xffff")
        e("s_mov_b32 s50, 0x00ff00ff")
        e("s_mov_b32 s51, 0x00ff00ff")
        k1 = -2.0 * math.sqrt(2.0 / math.pi) * math.log2(math.e)
        e(f"v_mov_b32 v21, {hex(f2u(k1))}")
        e("v_and_b32 v14, 8, v1")
        e("v_cmp_ne_u32 s[66:67], 0, v14")
        e("v_lshlrev_b32 v14, 6, v29")
        e("v_and_b32 v15, 1, v1")
        e("v_lshl_add_u32 v14, v15, 3, v14")
        e("v_bfe_u32 v15, v1, 1, 1")
        e(f"v_mul_u32_u24 v15, {L_U - L_W}, v15")
        e("v_add_u32 v14, v14, v15")
        e("s_lshl_b32 s60, s52, 4")
        e("v_add_u32 v14, s60, v14")
        e("v_mul_u32_u24 v15, 896, v29")
        e("v_lshl_add_u32 v15, v31, 3, v15")
        e("s_mul_i32 s60, s52, 224")
        e(f"s_add_u32 s60, s60, {L_D}")
        e("v_add_u32 v15, s60, v15")
        if o['dpk']:
            assert iod
            e("v_lshrrev_b32 v98, 4, v1")
            e("v_lshl_add_u32 v20, v98, 14, v20")
            e("v_bfe_u32 v98, v1, 2, 2")
            e("v_mov_b32 v99, 128")
            for G in range(4):
                e(f"v_cmp_eq_u32 vcc, {G}, v98")
                e(f"v_mov_b32 v{64+G}, 0")
                e("s_nop 0")
                e(f"v_cndmask_b32 v{244+G}, v99, v19, vcc")
            e(f"ds_write_b128 v99, v[64:67] offset:{L_ACT}")
            e("s_waitcnt lgkmcnt(0)")
        if o['fold']:
            e(f"v_mov_b32 v22, {hex(f2u(1.0/448))}")
            e(f"v_mov_b32 v23, {hex(f2u(1.0/448))}")
            e("v_and_b32 v18, 8, v1")
            e("v_lshlrev_b32 v18, 1, v18")
            e("v_min_u32 v30, 2, v31")
            e("v_mul_u32_u24 v30, 896, v30")
            e("v_lshrrev_b32 v98, 4, v1")
            e("v_lshl_add_u32 v30, v98, 4, v30")
            e("v_and_b32 v98, 2, v1")
            e("v_lshl_add_u32 v30, v98, 5, v30")
            for i in range(4): e(f"v_mov_b32 v{64+i}, s53")
            e("s_mov_b64 exec, s[64:65]")
            e(f"ds_write_b128 v27, v[64:67] offset:{L_XN + 1792 + 64}")
            e("s_mov_b64 exec, -1")
            e("s_waitcnt lgkmcnt(0)")
        k0 = 0
        def gtr(a, b):
            for ks in range(a, b):
                e(f"ds_read_b64_tr_b16 v[{160+4*ks}:{161+4*ks}], v14 offset:{L_W + ks*2048}")
                e(f"ds_read_b64_tr_b16 v[{162+4*ks}:{163+4*ks}], v14 offset:{L_W + ks*2048 + 256}")
                if ks - a in (6, 10):
                    e("s_waitcnt lgkmcnt(6)")
        def dtr():
            for j in range(7):
                e(f"ds_read_b64_tr_b16 v[{216+4*j}:{217+4*j}], v15 offset:{j*32}")
                e(f"ds_read_b64_tr_b16 v[{218+4*j}:{219+4*j}], v15 offset:{j*32 + 3584}")
        if o['gfl']:
            e("v_mov_b32 v98, 0")
            e("v_mov_b32 v99, 1")
            e("s_waitcnt vmcnt(0)")
            e("s_cmp_eq_u32 s54, 0")
            e("s_cbranch_scc1 .Lgnl")
            e(f"ds_write_b32 v98, v99 offset:{L_CNT + 12}")
            self.label(".Lgnl")
            e("s_mov_b64 exec, s[64:65]")
            yl()
            self.poll_begin()
            e("s_branch .Lgpc")
            self.label(".Lgpre")
            e("s_waitcnt vmcnt(0)")
            self.pround(8, 32, ya, "s[64:65]", 6, "yL")
            e("s_sub_u32 s62, s62, 1")
            e("s_cbranch_scc1 .Lgtr")
            self.label(".Lgpc")
            e(f"ds_read_b32 v99, v98 offset:{L_CNT + 12}")
            e("s_waitcnt lgkmcnt(0)")
            e("v_cmp_eq_u32 vcc, 0, v99")
            e("s_cbranch_vccnz .Lgpre")
            self.label(".Lgtr")
            e("s_mov_b64 exec, -1")
            self.ts(9)
        else:
            for n, kc in enumerate(o['gch'] or []):
                e(f"s_waitcnt vmcnt({1 + 4 * (14 - kc)})")
                e("s_barrier")
                if n == 0:
                    dtr()
                    e("s_waitcnt lgkmcnt(0)")
                gtr(k0, kc)
                e("s_waitcnt lgkmcnt(0)")
                k0 = kc
            e("s_waitcnt vmcnt(9)" if 'G' not in o['fresh'] else "s_waitcnt vmcnt(1)")
            e("s_barrier")
            self.ts(9)
            if 'G' in o['fresh']:
                e("s_mov_b64 exec, s[64:65]")
                yl()
                e("s_mov_b64 exec, -1")
        gtr(k0, 14)
        if not o['gch']:
            e("s_waitcnt lgkmcnt(0)")
            dtr()
        e("s_waitcnt vmcnt(8)")
        e("v_lshlrev_b32 v100, 16, v104")
        e("v_and_b32 v101, 0xffff0000, v104")
        e("v_lshlrev_b32 v102, 16, v105")
        e("v_and_b32 v103, 0xffff0000, v105")
        e("s_mov_b64 exec, s[64:65]")
        pk = lambda d, a, b: e(f"v_pk_add_f32 v[{d}:{d+1}], v[{a}:{a+1}], v[{b}:{b+1}]")
        if o['sp']:
            assert o['fold']
            def gtree():
                e("s_waitcnt vmcnt(7)")
                for i in (0, 2): pk(64+i, 32+i, 100+i)
                e("s_waitcnt vmcnt(5)")
                for i in (0, 2): pk(68+i, 36+i, 40+i)
                e("s_waitcnt vmcnt(3)")
                for i in (0, 2): pk(72+i, 44+i, 48+i)
                for i in (0, 2): pk(64+i, 64+i, 68+i)
                e("s_waitcnt vmcnt(1)")
                for i in (0, 2): pk(76+i, 52+i, 56+i)
                for i in (0, 2): pk(64+i, 64+i, 72+i)
                e("s_waitcnt vmcnt(0)")
                for i in (0, 2): pk(76+i, 76+i, 60+i)
                for i in (0, 2): pk(108+i, 64+i, 76+i)
            self.spoll(8, 32, ya, "s[64:65]", ".Lg", gtree, 108, 110, pol="yL")
            self.ts(5)
        else:
            if o['gw']: self.apoll(8, 32, ya, "s[64:65]", ".Lg", o['gw'])
            else: self.mpoll(8, 32, ya, "s[64:65]", ".Lg", m0=6, pol="yL")
            self.ts(5)
            for p in range(0, 8, 2):
                for i in (0, 2): pk(64+4*p+i, 32+4*p+i, 36+4*p+i)
            for i in (0, 2):
                pk(64+i, 64+i, 72+i); pk(80+i, 80+i, 88+i)
        if o['fold']:
            DP = ("quad_perm:[1,0,3,2] row_mask:0xf bank_mask:0xf", "quad_perm:[2,3,0,1] row_mask:0xf bank_mask:0xf",
                  "row_half_mirror row_mask:0xf bank_mask:0xf", "row_mirror row_mask:0xf bank_mask:0xf",
                  "row_bcast:15 row_mask:0xa bank_mask:0xf", "row_bcast:31 row_mask:0xc bank_mask:0xf")
            def dp(n, fill):
                e(f"v_add_f32_dpp v96, v96, v96 {DP[n]}")
                e(f"v_add_f32_dpp v97, v97, v97 {DP[n]}")
                e(fill)
            if not o['sp']:
                for i in (0, 2): pk(64+i, 64+i, 100+i)
                for i in (0, 2): pk(108+i, 64+i, 80+i)
            e("v_cvt_pk_bf16_f32 v112, v108, v109")
            e("v_cvt_pk_bf16_f32 v113, v110, v111")
            e(f"ds_write_b64 v16, v[112:113] offset:{L_XN}")
            e("v_dot2_f32_bf16 v96, v112, s53, 0")
            e("v_dot2_f32_bf16 v97, v112, v112, 0")
            e("v_dot2_f32_bf16 v96, v113, s53, v96")
            e("v_dot2_f32_bf16 v97, v113, v113, v97")
            e("s_mov_b64 exec, s[0:1]")
            e("s_nop 1")
            ND1 = o['nd1']
            for n in range(ND1): dp(n, "s_nop 0" if n < ND1 - 1 else "s_waitcnt lgkmcnt(0)")
            self.bar()
            if gts: self.ts(1)
            def ar(ks): e(f"ds_read_b128 v[{104+4*ks}:{107+4*ks}], v30 offset:{L_XN + ks*64}")
            def mf(ks):
                cin = "0" if ks == 0 else "v[64:67]"
                e(f"v_mfma_f32_16x16x32_bf16 v[64:67], v[{104+4*ks}:{107+4*ks}], v[{160+4*ks}:{163+4*ks}], {cin}")
            I1, I2 = o['il']
            KB = o['kb2']
            KS = o['ks2']
            q = []
            def rd(x):
                if x == 'h': e(f"ds_read_u16 v25, v26 offset:{L_XN}")
                elif x == 'st': e(f"ds_read_b128 v[76:79], v18 offset:{L_ST}")
                elif x == 'sw': e(f"ds_write_b64 v17, v[96:97] offset:{L_ST}")
                else: ar(x)
                q.append(x)
            def need(x):
                if x in q:
                    i = q.index(x)
                    e(f"s_waitcnt lgkmcnt({len(q) - 1 - i})")
                    del q[:i + 1]
            for ks in range(I1): rd(ks)
            if o['p2z']:
                e(f"buffer_store_dwordx2 v[22:23], v20, s[36:39], s{PS[0]} offen " + self.P("p2S"))
                e("s_mov_b64 exec, s[26:27]")
                e(f"buffer_store_dwordx2 v[22:23], v20, s[36:39], s{PS[4]} offen " + self.P("p2S"))
                e("s_mov_b64 exec, s[0:1]")
            for n in range(ND1, 6): dp(n, "s_nop 0" if n < 5 else "s_mov_b64 exec, s[24:25]")
            rd('sw')
            e("s_mov_b64 exec, s[0:1]")
            for ks in range(I1, I2): rd(ks)
            todo = list(range(I2, 14)) + ['h']
            for ks in range(KS):
                if ks == KB:
                    need('sw')
                    self.bar()
                    if gts: self.ts(2)
                    rd('st')
                need(ks); mf(ks)
                n = o['rpm']
                for x in todo[:n]: rd(x)
                del todo[:n]
            assert not todo
            need('st')
            if o['rsq']:
                st = ["v_pk_add_f32 v[76:77], v[76:77], v[78:79]",
                      "v_pk_mul_f32 v[76:77], v[76:77], v[22:23]",
                      "v_fma_f32 v77, -v76, v76, v77",
                      f"v_add_f32 v77, {hex(f2u(1e-5))}, v77",
                      "v_rsq_f32 v77, v77"]
            else:
                st = ["v_pk_add_f32 v[76:77], v[76:77], v[78:79]",
                  "v_pk_mul_f32 v[76:77], v[76:77], v[22:23]",
                  "v_fma_f32 v77, -v76, v76, v77",
                  "v_cvt_pk_bf16_f32 v78, v76, v77",
                  "v_and_b32 v77, 0xffff0000, v78",
                  f"v_add_f32 v77, {hex(f2u(1e-5))}, v77",
                  "v_cvt_pk_bf16_f32 v77, 0, v77",
                  "v_sqrt_f32 v77, v77",
                  "v_lshlrev_b32 v76, 16, v78",
                  "v_cvt_pk_bf16_f32 v77, 0, v77",
                  "v_rcp_f32 v77, v77"]
            for ks in range(KS, 14):
                for x in st[:2]: e(x)
                del st[:2]
                need(ks); mf(ks)
            for x in st: e(x)
            pad = 8 - len(st) - (1 if KS == 14 else 0)
            assert not o['rw']
            if pad > 0: e(f"s_nop {pad - 1}")
            if gts: self.ts(3)
            e("v_mov_b32_dpp v69, v65 row_ror:8 row_mask:0xf bank_mask:0xf")
            e("v_mov_b32_dpp v72, v66 row_ror:8 row_mask:0xf bank_mask:0xf")
            e("v_cndmask_b32 v70, v64, v69, s[66:67]")
            e("v_cndmask_b32 v74, v66, v72, s[66:67]")
            e("v_fma_f32 v70, -v76, v74, v70")
            e("v_mul_f32 v70, v70, v77")
            e("v_cvt_pk_bf16_f32 v70, 0, v70")
            e("v_mul_f32 v73, v70, v70")
            e(f"v_fmamk_f32 v73, v73, {hex(f2u(k1 * 0.044715))}, v21")
            e("v_mul_f32 v73, v73, v70")
            e("v_exp_f32 v73, v73")
            e("v_mov_b32_dpp v68, v64 row_ror:8 row_mask:0xf bank_mask:0xf")
            e("v_cndmask_b32 v74, v72, v66, s[66:67]")
            e("v_add_f32 v73, 1.0, v73")
            e("v_rcp_f32 v73, v73")
            e("v_cndmask_b32 v71, v68, v65, s[66:67]")
            e("v_fma_f32 v71, -v76, v74, v71")
            e("v_mul_f32 v73, v73, v70")
            e("v_mul_f32 v71, v71, v77")
            e("v_cvt_pk_bf16_f32 v73, 0, v73")
            e("v_cvt_pk_bf16_f32 v71, 0, v71")
            e("v_mul_f32 v73, v73, v71")
        else:
            for i in (0, 2): pk(108+i, 64+i, 80+i)
            def cvt():
                e("v_cvt_pk_bf16_f32 v112, v108, v109")
                e("v_cvt_pk_bf16_f32 v113, v110, v111")
            UP = ["v_lshlrev_b32 v108, 16, v112", "v_and_b32 v109, 0xffff0000, v112", "v_lshlrev_b32 v110, 16, v113", "v_and_b32 v111, 0xffff0000, v113"]
            cvt()
            for u in UP: e(u)
            pk(108, 108, 100); pk(110, 110, 102)
            cvt()
            e("v_dot2_f32_bf16 v96, v112, s53, 0")
            e("v_dot2_f32_bf16 v97, v112, v112, 0")
            e("v_dot2_f32_bf16 v96, v113, s53, v96")
            e("v_dot2_f32_bf16 v97, v113, v113, v97")
            e(f"ds_write_b64 v16, v[112:113] offset:{L_H}")
            e("s_mov_b64 exec, s[0:1]")
            e(UP[0])
            fill = UP[1:] + ["s_nop 0", "s_nop 0", "s_mov_b64 exec, s[24:25]"]
            for n, st in enumerate(("quad_perm:[1,0,3,2] row_mask:0xf bank_mask:0xf", "quad_perm:[2,3,0,1] row_mask:0xf bank_mask:0xf",
                       "row_half_mirror row_mask:0xf bank_mask:0xf", "row_mirror row_mask:0xf bank_mask:0xf",
                       "row_bcast:15 row_mask:0xa bank_mask:0xf", "row_bcast:31 row_mask:0xc bank_mask:0xf")):
                e(f"v_add_f32_dpp v96, v96, v96 {st}")
                e(f"v_add_f32_dpp v97, v97, v97 {st}")
                e(fill[n])
            e(f"ds_write_b64 v17, v[96:97] offset:{L_ST}")
            e("s_mov_b64 exec, s[0:1]")
            e("s_waitcnt lgkmcnt(0)")
            self.bar()
            if gts: self.ts(1)
            e(f"ds_read_b128 v[64:67], v18 offset:{L_ST}")
            e("s_waitcnt lgkmcnt(0)")
            pk(64, 64, 66)
            e(f"v_mul_f32 v64, {hex(f2u(1.0/448))}, v64")
            e(f"v_mul_f32 v65, {hex(f2u(1.0/448))}, v65")
            e("v_fma_f32 v65, -v64, v64, v65")
            e("v_cvt_pk_bf16_f32 v66, v64, v65")
            e("v_and_b32 v65, 0xffff0000, v66")
            e("v_lshlrev_b32 v64, 16, v66")
            e(f"v_add_f32 v65, {hex(f2u(1e-5))}, v65")
            e("v_cvt_pk_bf16_f32 v65, 0, v65")
            e("v_sqrt_f32 v65, v65")
            for i in (108, 110): e(f"v_pk_add_f32 v[{i}:{i+1}], v[{i}:{i+1}], v[64:65] op_sel_hi:[1,0] neg_lo:[0,1] neg_hi:[0,1]")
            e("v_cvt_pk_bf16_f32 v65, 0, v65")
            e("v_rcp_f32 v65, v65")
            cvt()
            for u in UP: e(u)
            for i in (108, 110): e(f"v_pk_mul_f32 v[{i}:{i+1}], v[{i}:{i+1}], v[64:65] op_sel:[0,1] op_sel_hi:[1,1]")
            e("s_mov_b64 exec, s[64:65]")
            cvt()
            e(f"ds_write_b64 v16, v[112:113] offset:{L_XN}")
            e("s_mov_b64 exec, s[0:1]")
            e("s_waitcnt lgkmcnt(0)")
            self.bar()
            if gts: self.ts(2)
            for ks in range(14):
                e(f"ds_read_b128 v[{104+4*ks}:{107+4*ks}], v30 offset:{L_XN + ks*64}")
            for ks in range(14):
                e(f"s_waitcnt lgkmcnt({13-ks if not gts else 0})")
                cin = "0" if ks == 0 else "v[64:67]"
                e(f"v_mfma_f32_16x16x32_bf16 v[64:67], v[{104+4*ks}:{107+4*ks}], v[{160+4*ks}:{163+4*ks}], {cin}")
            e(f"ds_read_u16 v25, v26 offset:{L_H}")
            if o['rw']:
                for t in range(7): e(f"v_mov_b32 v{161+2*t}, -1")
            else: e("s_nop 6")
            e("v_mov_b32_dpp v68, v64 row_ror:8 row_mask:0xf bank_mask:0xf")
            e("v_mov_b32_dpp v69, v65 row_ror:8 row_mask:0xf bank_mask:0xf")
            e("v_cndmask_b32 v70, v64, v69, s[66:67]")
            e("v_cndmask_b32 v71, v68, v65, s[66:67]")
            e("v_cvt_pk_bf16_f32 v70, 0, v70")
            e("v_mul_f32 v73, v70, v70")
            e(f"v_fmamk_f32 v73, v73, {hex(f2u(k1 * 0.044715))}, v21")
            e("v_mul_f32 v73, v73, v70")
            e("v_exp_f32 v73, v73")
            e("v_cvt_pk_bf16_f32 v71, 0, v71")
            e("v_add_f32 v73, 1.0, v73")
            e("v_rcp_f32 v73, v73")
            e("s_nop 0")
            e("v_mul_f32 v73, v73, v70")
            e("v_cvt_pk_bf16_f32 v73, 0, v73")
            e("v_mul_f32 v73, v73, v71")
        if gts: self.ts(6)
        e("s_mov_b64 exec, s[48:49]")
        e("v_cvt_pk_bf16_f32 v75, v73, v73")
        e(f"ds_write_b16 v28, v75 offset:{L_ACT}")
        e("s_mov_b64 exec, s[0:1]")
        if o['rw']:
            for t in range(7, 14): e(f"v_mov_b32 v{161+2*t}, -1")
        e("s_waitcnt lgkmcnt(0)")
        self.bar()
        if gts: self.ts(7)
        if o['dpk']:
            for G in range(4): e(f"ds_read_b128 v[{104+4*G}:{107+4*G}], v{244+G} offset:{L_ACT}")
            e("v_lshlrev_b32 v25, 16, v25")
            e("s_cmp_lg_u32 s59, 0")
            for j in range(7):
                if j < 4: e(f"s_waitcnt lgkmcnt({3-j})")
                d = 64 + 4 * (j >> 2)
                e(f"v_mfma_f32_16x16x32_bf16 v[{d}:{d+3}], v[{104+4*(j&3)}:{107+4*(j&3)}], v[{216+4*j}:{219+4*j}], {'0' if j & 3 == 0 else f'v[{d}:{d+3}]'}")
            e("s_nop 4")
            CM = hex(f2u(1.0 - 0.7213 / 512))
            if P2S:
                e(f"v_mul_f32 v65, {CM}, v65")
                e("v_or_b32 v65, 0x7fff, v65")
            e(f"buffer_store_dwordx2 v[64:65], v20, s[36:39], s{PS[0]} offen " + self.P("p2S"))
            if P2S:
                e(f"v_mul_f32 v69, {CM}, v69")
                e("s_mov_b64 exec, s[26:27]")
                e("v_or_b32 v69, 0x7fff, v69")
            else:
                e("s_mov_b64 exec, s[26:27]")
                e("s_nop 0")
            e(f"buffer_store_dwordx2 v[68:69], v20, s[36:39], s{PS[4]} offen " + self.P("p2S"))
        else:
            e(f"ds_read_b128 v[104:107], v19 offset:{L_ACT}")
            e("v_lshlrev_b32 v25, 16, v25")
            e("s_cmp_lg_u32 s59, 0")
            e("s_waitcnt lgkmcnt(0)")
            for j in range(7):
                e(f"v_mfma_f32_16x16x32_bf16 v[{64+4*j}:{67+4*j}], v[104:107], v[{216+4*j}:{219+4*j}], 0")
            e("s_mov_b64 exec, s[48:49]")
            e("s_nop 0")
            for j in range(7):
                e(f"buffer_store_dwordx2 v[{64+4*j}:{65+4*j}], v20, s[36:39], s{PS[j]} offen " + self.P("p2S"))
        e("s_mov_b64 exec, s[0:1]")
        self.ts(11)
        e("s_cbranch_scc1 .Lfin")
        for i in range(o['rdel']): e("s_nop 15")
        ra = lambda p: f"v27, s[36:39], {'s56' if p < 4 else 's61'} offen offset:{(p&3)*1024}"
        for p in range(7):
            e(f"buffer_load_dwordx4 v[{160+4*p}:{163+4*p}], {ra(p)} " + self.P("p2L"))
        if o['sp']:
            def an(d, a, p):
                if P2S: e(f"v_bitop3_b32 v{d}, v{a}, v{161+4*p}, v{163+4*p} bitop3:0x80")
            def rtree():
                e("s_waitcnt vmcnt(5)")
                for i in (0, 2): pk(108+i, 160+i, 164+i)
                an(120, 161, 0); an(120, 120, 1)
                e("s_waitcnt vmcnt(3)")
                for i in (0, 2): pk(112+i, 168+i, 172+i)
                an(120, 120, 2); an(120, 120, 3)
                e("s_waitcnt vmcnt(1)")
                for i in (0, 2): pk(116+i, 176+i, 180+i)
                for i in (0, 2): pk(108+i, 108+i, 112+i)
                an(120, 120, 4); an(120, 120, 5)
                e("s_waitcnt vmcnt(0)")
                an(120, 120, 6)
                for i in (0, 2): pk(116+i, 116+i, 184+i)
                if P2S: e("v_or_b32 v120, 0xffff8000, v120")
                for i in (0, 2): pk(108+i, 108+i, 116+i)
            self.spoll(7, 160, ra, "-1", ".Lr", rtree, 108, 110, pol="p2L", mk=P2S)
            if not o['prof']: self.ts(12)
        else:
            if o['rw']: self.apoll(7, 160, ra, "-1", ".Lr", o['rw'])
            else: self.mpoll(7, 160, ra, "-1", ".Lr", m0=6, pol="p2L")
            if not o['prof']: self.ts(12)
            for p in range(0, 6, 2):
                for i in (0, 2): pk(108+4*p+i, 160+4*p+i, 164+4*p+i)
            for i in (0, 2):
                pk(108+i, 108+i, 116+i); pk(124+i, 124+i, 184+i)
            for i in (0, 2): pk(108+i, 108+i, 124+i)
        e("s_nop 0")
        e("v_permlane16_swap_b32 v108, v109")
        e("v_permlane16_swap_b32 v110, v111")
        e("s_nop 0")
        e("v_add_f32 v108, v108, v109")
        e("v_add_f32 v110, v110, v111")
        e("s_nop 1")
        e("v_permlane32_swap_b32 v108, v110")
        e("s_nop 1")
        e("v_add_f32 v108, v108, v110")
        e("s_nop 1")
        e("v_add_f32_dpp v108, v108, v108 row_ror:8 row_mask:0xf bank_mask:0xf")
        e("s_mov_b64 exec, s[50:51]")
        e("v_cvt_pk_bf16_f32 v108, 0, v108")
        e("v_add_f32 v108, v108, v25")
        e("v_cvt_pk_bf16_f32 v108, v108, v108")
        if dry: e("s_cbranch_execz .Ldryend")
        e(f"buffer_store_short v108, v26, s[44:47], 0 offen {o['opol']}")
        e("s_mov_b64 exec, -1")

if __name__ == "__main__":
    out = sys.argv[1]
    kw = json.loads(sys.argv[2]) if len(sys.argv) > 2 else {}
    open(out, "w").write(Gen(**kw).build())
```

```python
from gen6 import *
import gen6

L_QQ = L_SC + 1024
L_DUM = L_SC + 2048 + 1024
L_QH = L_CNT + 12
L_QF = L_CNT + 16
EMPTY = 0xff80ff80
DP = ("quad_perm:[1,0,3,2]", "quad_perm:[2,3,0,1]", "row_half_mirror", "row_mirror")
def dpp(op, v, k): return f"{op}_dpp v{v}, v{v}, v{v} {DP[k]} row_mask:0xf bank_mask:0xf"

class Gen(gen6.Gen):
    def __init__(self, **kw):
        d = dict(g7=True, dry=True, NO=14, NSH=2, NB=16, fine=True, pb=2, lim=[5, 5, 10, 8], LA=3, E7=80, E8=50, E9=50, wd2=14, wx=8, wxn=9, wvp=8, dry7=0, od=True, tk=0, tk0=0, wdl=None, lw=2, cik=False, ci2=False)
        d.update(kw)
        super().__init__(**d)

    def load(self, i, W, voff=None):
        g, j = divmod(i, 4)
        self.e(f"s_waitcnt vmcnt({W - 1})")
        self.e(f"buffer_load_dwordx4 v[{64+4*i}:{67+4*i}], v{2+g if voff is None else voff}, s[28:31], s57 offen offset:{j*128} {self.o['kvpol']}")

    def step(self):
        self.e("s_add_u32 s57, s57, 0x80000")
        self.e("s_and_b32 s57, s57, 0x7fffff")

    def kfill(self):
        F = {i: [] for i in range(16)}
        for gp in range(4):
            a = 11 + 2 * ((gp - 1) & 3)
            F[4*gp].append(f"v_add_f32 v{a}, v{a}, v{a+1}")
            F[4*gp+1] += [dpp("v_add_f32", a, 0), f"v_mov_b32 v{a+1}, 0"]
            F[4*gp+2].append(dpp("v_add_f32", a, 1))
            F[4*gp+3].append(dpp("v_add_f32", a, 2))
        F[4] += ["v_cvt_pk_bf16_f32 v25, v15, v17", "v_max3_f32 v23, v23, v15, v17"]
        F[5] += ["ds_write_b64 v19, v[24:25]", "v_add_u32 v19, 64, v19", "v_mov_b32 v15, 0", "v_mov_b32 v17, 0"]
        F[12] += ["v_cvt_pk_bf16_f32 v24, v11, v13", "v_max3_f32 v23, v23, v11, v13"]
        F[13] += ["v_mov_b32 v11, 0", "v_mov_b32 v13, 0"]
        return F

    def kit(self, W, X={}):
        F = self.kfill()
        for i in range(16):
            g, j = divmod(i, 4)
            for c in range(4):
                self.e(f"v_dot2c_f32_bf16 v{11+2*g+(c&1)}, v{64+4*i+c}, v{32+4*j+c}")
            for s in F[i] + X.get(i, []): self.e(s)
            self.load(i, W[i])
        self.plog()

    def unp(self, d, g, src=152):
        return f"v_and_b32 v{d}, 0xffff0000, v{src + (g >> 1)}" if g & 1 else f"v_lshlrev_b32 v{d}, 16, v{src + (g >> 1)}"

    def ands(self, g, p): return [f"v_and_b32 v{128+4*g+r}, v{6+r}, v{p}" for r in range(4)]

    def vfill(self, n=16):
        F = {i: [] for i in range(16)}
        for gp in range(n // 4):
            g = (gp - 1) & 3
            if gp == 1: F[4].append("s_waitcnt lgkmcnt(0)")
            F[4*gp] += [self.unp(144, g), "v_fma_f32 v144, v144, s59, v10"]
            F[4*gp+1].append("v_exp_f32 v144, v144")
            F[4*gp+2].append("v_cvt_pk_bf16_f32 v144, v144, v144")
            F[4*gp+3] += self.ands(g, 144)
        if not getattr(self, 'nods', False): F[1] += ["ds_read_b64 v[152:153], v206", "v_add_u32 v206, 64, v206"]
        return F

    def mfma(self, i, zero=False):
        g, j = divmod(i, 4)
        c = f"v[{48+4*j}:{51+4*j}]"
        self.e(f"v_mfma_f32_16x16x32_bf16 {c}, v[{128+4*g}:{131+4*g}], v[{64+4*i}:{67+4*i}], {'0' if zero else c}")

    def vit(self, W, X={}, first=False, n=16):
        F = self.vfill(n)
        for i in range(16):
            self.mfma(i, first and i < 4)
            for s in F[i] + X.get(i, []):
                if s.endswith(":"): self.label(s[:-1])
                else: self.e(s)
            self.load(i, W[i])
        self.plog()

    def maxred(self, v, t, i0):
        return {i0: [dpp("v_max_f32", v, 3)], i0+1: [f"v_mov_b32 v{t}, v{v}"], i0+2: [f"v_permlane16_swap_b32 v{v}, v{t}"],
                i0+3: [f"v_max_f32 v{v}, v{v}, v{t}", f"v_mov_b32 v{t}, v{v}"], i0+4: [f"v_permlane32_swap_b32 v{v}, v{t}"],
                i0+5: [f"v_max_f32 v{v}, v{v}, v{t}"]}

    def take(self, r):
        LA = self.o['LA']; n = (r + 1) & 3
        return [["s_mov_b64 exec, s[46:47]", f"ds_add_rtn_u32 v204, v16, v17 offset:{L_QH}", "s_mov_b64 exec, -1", f"v_fma_f32 v144, v{192+n}, s59, v10"],
                ["v_exp_f32 v144, v144", "s_waitcnt lgkmcnt(0)", "v_readfirstlane_b32 s58, v204", "s_andn2_b32 s64, s58, 3", "v_add_u32 v205, s64, v208", f"ds_read_b32 v205, v205 offset:{L_QQ}"],
                ["v_cvt_pk_bf16_f32 v144, v144, v144"] + self.masks() + ["s_waitcnt lgkmcnt(0)", "v_readfirstlane_b32 s56, v205"],
                self.ands(n, 144) + self.addr() + [f"s_mov_b32 s99, {n}"]]

    def masks(self):
        return [f"s_add_u32 s42, s64, {L_QQ + 4 * self.o['LA']}", "s_and_b32 s58, s58, 3", f"s_cselect_b32 s42, {L_DUM}, s42", "s_cselect_b32 s44, 0, 1"]

    def addr(self):
        return ["s_lshr_b32 s96, s56, 1", "s_lshl_b32 s96, s96, 2", "s_add_u32 s96, s96, s58", "s_lshl_b32 s96, s96, 1", "s_and_b32 s63, s56, 1", "s_add_u32 s96, s96, s63",
                "s_lshl_b32 s96, s96, 12", "s_add_u32 s96, s96, s43", "s_and_b32 s96, s96, 0x7fffff",
                "s_and_b32 s98, s56, 31", "s_lshl_b32 s98, s98, 7", "s_andn2_b32 s63, s56, 31", "s_add_u32 s98, s98, s63", "s_add_u32 s98, s98, s58", "s_lshl_b32 s98, s98, 1",
                "s_cmp_lt_u32 s56, s67", "s_cselect_b32 s44, s44, 0", f"s_cselect_b32 s65, 1, {32 * self.o['NSH']}"]

    def rare(self):
        e = self.e
        self.label(".Lmlchk")
        self.poll_begin()
        self.label(".Lmlchk1")
        e("buffer_load_dwordx4 v[184:187], v28, s[36:39], s98 offen " + self.P("mlL"))
        e("s_waitcnt vmcnt(0)")
        e("v_cmp_ne_u32 vcc, s55, v185")
        e("v_cmp_ne_u32 s[66:67], s55, v187")
        e("s_or_b64 vcc, vcc, s[66:67]")
        e("s_cbranch_vccz .Lmlok")
        self.poll_again(".Lmlchk1")
        e("s_branch .Lmlok")
        self.label(".Lrd")
        self.poll_begin()
        self.label(".Lrd1")
        e("buffer_load_dword v190, v27, s[48:51], 0 offen sc1")
        e("s_waitcnt vmcnt(0)")
        e("v_and_b32 v191, 0x3ff, v190")
        for k in range(3):
            e("s_nop 1")
            e(dpp("v_add_u32", 190, k))
            e(dpp("v_add_u32" if k < 2 else "v_min_u32", 191, k))
        e("s_nop 0")
        e("v_readfirstlane_b32 s60, v190")
        e("v_readfirstlane_b32 s63, v191")
        e("s_and_b32 s100, s60, 0x3ff")
        e("s_cmp_ge_u32 s100, 256")
        e("s_cbranch_scc1 .Lrdok")
        self.poll_again(".Lrd1")
        e("s_branch .Lrdok")

    def stream(self):
        o = self.o; e = self.e
        NSH = o['NSH']; NO = o['NO']; ND = 32 * NSH; LA = o['LA']
        WK, WV, WD, WW = o['lim']; WX = o['wx']
        assert NSH + NO == 16 and o['PD'] == 2 and 1 <= NSH <= 4 and o['p2s'] and o['elig'] and o['c2'] and max(WK, WV, WW, WX, o['wvp']) <= 11 and WD <= 14
        self.q = list(self.q7)
        e("v_mov_b32 v23, 0xff800000")
        mx = lambda: (e("v_max3_f32 v23, v23, v11, v13"), e("v_max3_f32 v23, v23, v15, v17"))
        self.ktile(64, lambda g: self.vwait(('A', g)), True, rtag='A2'); mx()
        self.ktile(128, lambda g: self.vwait(('E0', g)), False); mx()
        self.resets()
        for i in range(8): e(f"v_mov_b32 v{11+i}, 0")
        for g in range(4):
            self.vwait(('E1', g))
            for i in range(16): e(f"v_dot2c_f32_bf16 v{11+2*g+(i&1)}, v{192+g*16+i}, v{32+i}")
        self.plog()
        for g in range(3): e(f"v_add_f32 v{11+2*g}, v{11+2*g}, v{12+2*g}")
        for k in range(3):
            for g in range(3): e(dpp("v_add_f32", 11 + 2 * g, k))
        e("v_subrev_u32 v206, 128, v19")
        e("v_cvt_pk_bf16_f32 v24, v11, v13")
        e("v_max3_f32 v23, v23, v11, v13")
        for r in (11, 12, 13, 14, 16): e(f"v_mov_b32 v{r}, 0")
        e("s_xor_b32 s69, s53, s54")
        e("s_and_b32 s69, s69, 3")
        e(f"s_cselect_b32 s69, {o['w0']}, {max(2, o['w0']) + o['pb']}")
        e("s_sub_u32 s99, 12, s69")
        e("s_waitcnt vmcnt(15)")
        self.label(".Lkw")
        self.step()
        self.kit([WW] * 16)
        e("s_sub_u32 s69, s69, 1")
        e("s_cmp_lg_u32 s69, 0")
        e("s_cbranch_scc1 .Lkw")
        if o['cik']:
            self.checkin(".Lkn", 164)
        self.label(".Lkn")
        self.step()
        self.kit([WK] * 16)
        e("s_sub_u32 s99, s99, 1")
        e("s_cmp_lg_u32 s99, 0")
        e("s_cbranch_scc1 .Lkn")
        self.step()
        e("s_mov_b64 s[28:29], s[32:33]")
        X = self.maxred(176, 177, 6)
        X[0] = ["ds_read_b64 v[152:153], v206", "v_add_u32 v206, 64, v206"]
        X[5] = ["v_mov_b32 v176, v23"]
        X[11] += ["v_mul_f32_e64 v10, -s59, v176"]
        X[12] = ["s_waitcnt lgkmcnt(0)"] + [self.unp(144 + g, g) for g in range(3)] + [f"v_fma_f32 v{144+g}, v{144+g}, s59, v10" for g in range(3)]
        X[13] = [f"v_exp_f32 v{144+g}, v{144+g}" for g in range(3)]
        X[14] = [f"v_cvt_pk_bf16_f32 v{144+g}, v{144+g}, v{144+g}" for g in range(3)]
        X[15] = sum((self.ands(g, 144 + g) for g in range(3)), [])
        self.kit([WK] * 16, X)
        self.ts(6)
        self.step()
        K = self.kfill()
        X = self.maxred(23, 177, 6)
        for i in range(4): X[i] = K[i][:1]
        X[3] += ["s_lshl_b32 s60, s52, 11", f"s_add_u32 s60, s60, {L_SC}", "v_lshl_add_u32 v207, v1, 4, s60"]
        X[4] = K[4][1:] + ["s_lshl_b32 s60, s2, 2", "s_add_u32 s63, s60, s52", "s_lshl_b32 s60, s63, 8", f"s_add_u32 s60, s60, {o['scb'] - 768}", "v_lshlrev_b32 v13, 4, v1"]
        X[5] = ["ds_write_b64 v19, v[24:25]", "ds_read_b128 v[148:151], v207"]
        X[7] += ["s_waitcnt lgkmcnt(0)", "s_mov_b32 exec_lo, 0", "s_mov_b32 exec_hi, 0xffff0000", "buffer_store_dwordx4 v[148:151], v13, s[36:39], s60 offen " + self.P("scS"), "s_mov_b64 exec, -1"]
        X[8] += [self.unp(156 + i, i, 148) for i in range(8)]
        X[11] += ["v_mul_f32_e64 v179, -s59, v23"]
        X[12] = [f"v_fma_f32 v{156+i}, v{156+i}, s59, v179" for i in range(8)]
        X[13] = [f"v_exp_f32 v{156+i}, v{156+i}" for i in range(8)]
        X[14] = [f"v_add_f32 v{156+i}, v{156+i}, v{160+i}" for i in range(4)]
        X[15] = ["v_add_f32 v156, v156, v157", "v_add_f32 v158, v158, v159", "v_add_f32 v182, v156, v158"]
        if o['lw'] & 1:
            X[2] += ["v_lshrrev_b32 v164, 4, v1", "v_lshlrev_b32 v164, 11, v164", "v_and_b32 v165, 15, v1", "v_lshl_add_u32 v164, v165, 4, v164", "v_mov_b32 v165, 0", "v_mov_b32 v166, 1"]
            X[4] = X[4][:4] + ["s_lshl_b32 s60, s2, 10", f"s_add_u32 s60, s60, {o['scb']}", "v_lshlrev_b32 v13, 4, v1"]
            X[5] += ["s_mov_b64 exec, 1", f"ds_add_rtn_u32 v167, v165, v166 offset:{L_QH}", "s_mov_b64 exec, -1", f"ds_read_b128 v[168:171], v164 offset:{L_SC + 768}"]
            X[7] = X[7][:2] + ["v_readfirstlane_b32 s64, v167", "s_cmp_eq_u32 s64, 3", "s_cselect_b64 exec, -1, 0", "buffer_store_dwordx4 v[168:171], v13, s[36:39], s60 offen " + self.P("scS"), "s_mov_b64 exec, -1"]
        self.vit([WV] * 7 + [WX] * 9, X, first=True)
        self.step()
        X = {0: [dpp("v_add_f32", 182, 0), "s_nop 1", dpp("v_add_f32", 182, 1)],
             1: [dpp("v_add_f32", 182, 2), "s_nop 1", dpp("v_add_f32", 182, 3)],
             2: ["v_mov_b32 v177, v182", "s_nop 1", "v_permlane16_swap_b32 v182, v177"],
             3: ["v_add_f32 v182, v182, v177", "v_mov_b32 v177, v182", "s_nop 1", "v_permlane32_swap_b32 v182, v177"],
             4: ["v_add_f32 v182, v182, v177", "v_mov_b32 v180, v23", "v_mov_b32 v181, s55", "v_mov_b32 v183, s55", "s_lshl_b32 s60, s63, 4", f"s_add_u32 s60, s60, {WS_ML}", "v_mov_b32 v16, 0",
                 "v_mov_b32 v22, s40", "s_getreg_b32 s63, hwreg(HW_REG_XCC_ID, 0, 3)", "s_lshl_b32 s63, s63, 2", "s_cmp_eq_u32 s52, 1", "s_cselect_b64 s[44:45], 1, 0"],
             5: ["s_mov_b64 exec, 1", "buffer_store_dwordx4 v[180:183], v16, s[36:39], s60 offen " + self.P("mlS"), "s_mov_b64 exec, s[44:45]",
                 f"buffer_atomic_add v22, v16, s[48:51], s63 offen sc1 {o['cpol']}", "s_mov_b64 exec, -1"],
             6: ["s_lshl_b32 s98, s54, 9", f"s_add_u32 s98, s98, {WS_ML}", "v_and_b32 v28, 31, v1", "v_lshlrev_b32 v28, 4, v28", "v_and_b32 v27, 7, v1", "v_lshlrev_b32 v27, 2, v27"],
             7: ["v_lshrrev_b32 v13, 5, v1", "v_lshlrev_b32 v13, 10, v13", "v_and_b32 v14, 7, v1", "v_lshl_add_u32 v13, v14, 5, v13", "v_bfe_u32 v14, v1, 4, 1", "v_lshl_add_u32 v13, v14, 4, v13"],
             8: ["s_lshl_b32 s60, s52, 11", "v_add_u32 v13, s60, v13", "v_lshlrev_b32 v14, 4, v1", "v_lshlrev_b32 v15, 3, v1", "v_mov_b32 v17, 1", "v_lshlrev_b32 v208, 2, v1"],
             9: [f"v_mov_b32 v{200+r}, {L_DUM}" for r in range(4)] + ["v_mov_b32 v26, 1", f"v_mov_b32 v199, {LA}"],
             10: [f"s_add_u32 s43, s61, {(512 - ND) << 14}", f"v_add_u32 v20, {(4 - NSH) * 64}, v20", "s_mov_b64 s[46:47], 1", "s_mov_b32 s45, 0", "v_mov_b32 v211, 0x100",
                  "s_mov_b32 s97, 1", "s_mov_b32 s101, 0", f"s_mov_b32 s99, {NO - 4}"]}
        n0 = 5
        if o['ci2']:
            X[4] += ["s_and_b32 s64, s63, 16", "s_lshl_b32 s64, s64, 3", "s_add_u32 s63, s63, s64"]
            X[6] += ["v_and_b32 v14, 4, v1", "v_lshl_add_u32 v27, v14, 5, v27"]
        if o['cik']: X[5] = X[5][:2] + X[5][4:]
        if o['lw'] & 2:
            X[4] = [x.replace("s_lshl_b32 s60, s63, 4", "s_lshl_b32 s60, s2, 6") for x in X[4]] + ["s_lshl_b32 s64, s52, 4", "v_mov_b32 v164, s64", "v_mov_b32 v166, 1", "v_lshlrev_b32 v165, 4, v1", "s_mov_b32 s65, s60"]
            X[5] = ["s_mov_b64 exec, 1", f"ds_write_b128 v164, v[180:183] offset:{L_DUM}", f"ds_add_rtn_u32 v167, v16, v166 offset:{L_QF}"] + X[5][2:] + [f"ds_read_b128 v[168:171], v165 offset:{L_DUM}"]
            X[7] = ["s_waitcnt lgkmcnt(0)", "v_readfirstlane_b32 s64, v167", "s_cmp_eq_u32 s64, 3", "s_cselect_b64 exec, 15, 0", "buffer_store_dwordx4 v[168:171], v165, s[36:39], s65 offen " + self.P("mlS"), "s_mov_b64 exec, -1"] + X[7]
        self.vit([WV] * n0 + [WX + 1] * o['wxn'] + [WV] * (16 - n0 - o['wxn']), X)
        self.label(".Lvn")
        self.step()
        e("s_sub_u32 s99, s99, 1")
        e("s_cmp_lg_u32 s99, 0")
        e("s_cbranch_scc1 .Lv1")
        e("buffer_load_dwordx4 v[184:187], v28, s[36:39], s98 offen " + self.P("mlL"))
        e("buffer_load_dword v23, v27, s[48:51], 0 offen sc1")
        self.label(".Lv1")
        self.vit([WV] * 16)
        e("s_cmp_lg_u32 s99, 0")
        e("s_cbranch_scc1 .Lvn")
        self.ts(7)
        self.step()
        u = lambda op, v, k: dpp(op, v, k)
        T = self.take(3)
        X = {0: ["s_mov_b64 exec, 1", f"ds_add_rtn_u32 v204, v16, v17 offset:{L_QF}", "s_mov_b64 exec, -1",
                 "v_cmp_ne_u32 vcc, s55, v185", "v_cmp_ne_u32 s[66:67], s55, v187", "s_or_b64 vcc, vcc, s[66:67]", "s_cbranch_vccnz .Lmlchk", ".Lmlok:",
                 "v_mov_b32 v188, v184", "v_mov_b32 v190, v23", "v_and_b32 v191, 0x3ff, v23"],
             1: [u("v_max_f32", 188, 0), u("v_add_u32", 190, 0), u("v_add_u32", 191, 0), u("v_max_f32", 188, 1),
                 "s_waitcnt lgkmcnt(1)", "v_readfirstlane_b32 s60, v204", "s_cmp_eq_u32 s60, 0", f"s_cselect_b64 s[64:65], {(1 << LA) - 1}, 0", "s_cselect_b64 exec, 1, 0",
                 f"buffer_atomic_add v199, v21, s[36:39], 0 offen sc0 sc1 {o['tpol']}", "s_mov_b64 exec, -1"],
             2: [u("v_max_f32", 188, 2), u("v_add_u32", 190, 1), u("v_add_u32", 191, 1), u("v_max_f32", 188, 3)],
             3: ["v_mov_b32 v189, v188", u("v_add_u32", 190, 2), u("v_min_u32", 191, 2), "v_permlane16_swap_b32 v188, v189"],
             4: ["s_waitcnt lgkmcnt(0)"] + [self.unp(192 + g, g) for g in range(4)] + ["v_max_f32 v188, v188, v189", "v_sub_f32 v184, v184, v188", "v_mul_f32 v184, s59, v184", "v_exp_f32 v184, v184",
                 "v_readfirstlane_b32 s60, v190", "v_readfirstlane_b32 s63, v191", "v_mul_f32 v186, v186, v184", "s_and_b32 s100, s60, 0x3ff", "s_cmp_lt_u32 s100, 256", "s_cbranch_scc1 .Lrd", ".Lrdok:"],
             5: [u("v_add_f32", 186, 0), "s_getreg_b32 s58, hwreg(HW_REG_XCC_ID, 0, 3)", "s_and_b32 s100, s58, 4", u("v_add_f32", 186, 1),
                 f"s_cmp_lt_u32 s63, {56 if o['cls'] else 1000}", "s_cselect_b32 s100, 64, s100", "v_mov_b32 v190, s55", "v_mov_b32 v23, 4"],
             6: [u("v_add_f32", 186, 2), "s_bfe_u32 s63, s60, 0xa000a", "s_lshr_b32 s60, s60, 20", u("v_add_f32", 186, 3), "s_cmp_gt_u32 s60, s63", "s_cselect_b32 s55, 0x2000, 0",
                 "s_or_b32 s60, s2, s52", "s_mov_b64 exec, 1", f"ds_add_u32 v16, v17 offset:{L_CNT + 8}", "s_cbranch_scc1 .Lnoep", f"buffer_store_dword v190, v16, s[36:39], 0 offen offset:{WS_EPOCH} sc1", ".Lnoep:", "s_mov_b64 exec, -1"],
             7: ["v_mov_b32 v189, v186", "s_lshl_b32 s60, s2, 9", "s_lshr_b32 s63, s60, 2", "v_permlane16_swap_b32 v186, v189", "s_xor_b32 s63, s63, s60", "s_and_b32 s63, s63, 0x2000", "s_mul_i32 s63, s63, 5",
                 "s_xor_b32 s60, s60, s63", "s_xor_b32 s60, s60, s55", f"s_add_u32 s68, s60, {WS_PART}", "s_mov_b32 s54, 0"],
             8: ["v_add_f32 v186, v186, v189", "v_log_f32 v186, v186", "s_lshr_b32 s60, s2, 3", "s_xor_b32 s60, s60, s2", "s_and_b32 s60, s60, 1",
                 f"s_cselect_b32 s41, {ND - o['E9']}, {ND - o['E7']}", "s_cselect_b32 s69, 4, 0", f"s_cselect_b32 s67, {ND}, {ND - o['E8']}", "s_mov_b32 s66, 0"],
             9: ["v_fma_f32 v186, v188, s59, v186", "v_add_f32 v187, v10, v186", "v_sub_f32 v10, 0, v186", "v_exp_f32 v187, -v187"],
             11: ["s_waitcnt vmcnt(10)", "v_readfirstlane_b32 s60, v199", "s_mov_b64 exec, s[64:65]", "s_nop 0", "v_add_u32 v205, s60, v1", f"ds_write_b32 v208, v205 offset:{L_QQ}", "s_mov_b64 exec, -1"],
             12: T[0], 13: T[1], 14: T[2] + [f"v_mul_f32 v{48+i}, v{48+i}, v187" for i in range(4)], 15: T[3] + [f"v_mul_f32 v{52+i}, v{52+i}, v187" for i in range(4)]}
        if o['ts'] and not o['prof']: X[8].append("s_mov_b32 s3, 999")
        def late(src):
            return {12: [self.unp(144 + g, g, src) for g in range(3)] + [f"v_fma_f32 v{144+g}, v{144+g}, s59, v10" for g in range(3)],
                    13: [f"v_exp_f32 v{144+g}, v{144+g}" for g in range(3)], 14: [f"v_cvt_pk_bf16_f32 v{144+g}, v{144+g}, v{144+g}" for g in range(3)],
                    15: sum((self.ands(g, 144 + g) for g in range(3)), [])}
        tick = lambda m: ["v_mov_b32 v22, 1", f"s_mov_b64 exec, {m}", f"buffer_atomic_add v22, v21, s[36:39], 0 offen sc0 sc1 {o['tpol']}", "s_mov_b64 exec, -1"]
        if o['od']:
            X[0] = X[0][3:]
            X[1] = X[1][:4]
            X[4] = X[4][:1] + X[4][5:]
            X[8] = X[8][:2] + X[8][9:] + ["s_mov_b32 s46, -1"]
            del X[11]
            X.update(late(152))
            X[14] += [f"v_mul_f32 v{48+i}, v{48+i}, v187" for i in range(4)]
            X[15] += [f"v_mul_f32 v{52+i}, v{52+i}, v187" for i in range(4)]
            X[o['tk0']] = tick(1) + X.get(o['tk0'], [])
        self.vit([o['wvp']] * 16, X, n=4)
        for i in range(8): e(f"v_mul_f32 v{56+i}, v{56+i}, v187")
        if o['od']:
            NB = o['NB']; TK = o['tk']
            e(f"s_waitcnt vmcnt({16 - o['tk0']})")
            self.label(".Ldloop")
            e("v_readfirstlane_b32 s56, v22")
            e("s_cmp_lt_i32 s46, 0")
            e("s_cbranch_scc1 .Ld0")
            e("s_mov_b32 s56, s46")
            e("s_mov_b32 s46, -1")
            e("s_mov_b32 s44, 1")
            e("s_branch .Ld1")
            self.label(".Ld0")
            e("s_lshl_b32 s60, s56, 1")
            e("s_add_u32 s63, s60, 1")
            e(f"s_cmp_lt_u32 s56, {NB}")
            e("s_cselect_b32 s46, s63, -1")
            e("s_cselect_b32 s44, 0, 1")
            e(f"s_add_u32 s56, s56, {NB}")
            e("s_min_u32 s56, s56, s60")
            e(f"s_cmp_ge_u32 s56, {ND}")
            e("s_cbranch_scc1 .Lfx")
            self.label(".Ld1")
            for s_ in ["s_lshr_b32 s57, s56, 1", "s_lshl_b32 s57, s57, 3", "s_and_b32 s63, s56, 1", "s_add_u32 s57, s57, s63", "s_lshl_b32 s57, s57, 12", "s_add_u32 s57, s57, s43", "s_and_b32 s57, s57, 0x7fffff"]: e(s_)
            X = late(154)
            X[12] = [f"s_waitcnt vmcnt({12 if TK > 0 else 13})"] + X[12]
            X[15] += ["v_mov_b32 v153, v155"]
            X[0] = ["s_and_b32 s98, s56, 31", "s_lshl_b32 s98, s98, 7", "s_andn2_b32 s63, s56, 31", "s_add_u32 s98, s98, s63", "s_lshl_b32 s98, s98, 1",
                    "buffer_load_dwordx2 v[154:155], v20, s[36:39], s98 offen " + self.P("scL")]
            X[TK] = X.get(TK, []) + tick("s[44:45]")
            self.nods = True
            self.vit(o['wdl'] or [WD] * 16, X, n=4)
            e(f"s_waitcnt vmcnt({16 - TK})")
            e("s_branch .Ldloop")
            self.rare()
            self.label(".Lfx")
            e("s_mov_b64 exec, 1")
            e(f"ds_cmpst_rtn_b32 v18, v16, v23, v16 offset:{L_CNT + 8}")
            e("s_mov_b64 exec, -1")
            e(self.unp(144, 3))
            e("v_fma_f32 v144, v144, s59, v10")
            e("v_exp_f32 v144, v144")
            e("s_mov_b32 s60, s68")
            e("v_cvt_pk_bf16_f32 v144, v144, v144")
            for s_ in self.ands(3, 144): e(s_)
            e("s_waitcnt lgkmcnt(0)")
            e("v_readfirstlane_b32 s97, v18")
            e("s_xor_b32 s97, s97, 4")
            e("s_cselect_b64 exec, 0, 1")
            e("buffer_atomic_add v26, v16, s[48:51], s100 offen offset:64 sc0 sc1")
            e("s_mov_b64 exec, -1")
            for g in range(3):
                e(f"s_waitcnt vmcnt({13 - 4 * g})")
                for j in range(4): self.mfma(4 * g + j)
            for j in range(4):
                e(f"s_waitcnt vmcnt({4 - j})")
                self.mfma(12 + j)
            self.label(".Lnr")
            return
        e("s_mov_b32 s57, s96")
        e("s_cmp_ge_u32 s56, s41")
        e("s_cbranch_scc1 .Lhd")
        for sx, W in (("", WD), ("w", o['wd2'])):
          for r in range(4):
            p = (r + 2) & 3
            self.label(f".Ldu{r}{sx}")
            e(f"v_mov_b32 v{196+r}, s65")
            e(f"v_mov_b32 v{200+r}, s42")
            e("s_mov_b64 exec, s[44:45]")
            e(f"buffer_atomic_add v{196+r}, v21, s[36:39], 0 offen sc0 sc1 {o['tpol']}")
            e("s_mov_b64 exec, -1")
            e(f"buffer_load_short_d16_hi v{192+r}, v20, s[36:39], s98 offen " + self.P("scL"))
            T = self.take(r)
            T[0] = ["s_waitcnt vmcnt(13)", "s_mov_b64 exec, 1", f"ds_write_b32 v{200+p}, v{196+p}"] + T[0]
            for j in range(4):
                self.mfma(4 * r + j)
                for s in T[j]: e(s)
                self.load(4 * r + j, W, 2)
            if r == 3: self.plog()
            e("s_mov_b32 s57, s96")
            e("s_cmp_ge_u32 s56, s41")
            e("s_cbranch_scc1 .Lhd")
          e(f"s_branch .Ldu0{sx}")
        self.rare()
        self.label(".Lhd")
        e("s_cmp_eq_u32 s69, 3")
        e("s_cbranch_scc1 .Lsl")
        e(f"s_cmp_ge_u32 s56, {ND}")
        e("s_cbranch_scc1 .Lsl")
        e("s_cmp_eq_u32 s69, 4")
        e("s_cbranch_scc1 .Lh4")
        e("s_cmp_eq_u32 s69, 0")
        e("s_cbranch_scc1 .Lh0")
        e("s_add_u32 s69, s69, 1")
        e("s_cmp_eq_u32 s69, 2")
        e("s_cbranch_scc1 .Lback")
        e("s_waitcnt vmcnt(12)")
        e("v_readfirstlane_b32 s60, v26")
        e("s_cmp_eq_u32 s100, 64")
        e("s_cselect_b32 s63, 112, 56")
        e("s_cmp_lt_u32 s60, s63")
        e("s_cselect_b64 s[46:47], 0, 1")
        e("s_cselect_b32 s69, 3, 4")
        e("s_branch .Lback")
        self.label(".Lh0")
        e("s_mov_b64 exec, 1")
        e(f"ds_or_rtn_b32 v18, v16, v211 offset:{L_CNT + 8}")
        e("s_mov_b32 s69, 4")
        e("s_waitcnt lgkmcnt(0)")
        e("v_readfirstlane_b32 s60, v18")
        e("s_bitcmp1_b32 s60, 8")
        e("s_cbranch_scc1 .Lh1")
        e("buffer_atomic_add v26, v16, s[48:51], s100 offen offset:64 sc0 sc1")
        e("s_mov_b64 exec, -1")
        e("s_mov_b32 s97, 0")
        e("s_mov_b32 s69, 1")
        e("s_mov_b32 s41, 0")
        e("s_branch .Lback")
        self.label(".Lh1")
        e("s_mov_b64 exec, -1")
        self.label(".Lh4")
        e(f"s_cmp_ge_u32 s56, {ND - o['E9']}")
        e(f"s_cselect_b32 s41, {ND}, {ND - o['E9']}")
        e("s_cselect_b32 s66, 1, 0")
        self.label(".Lback")
        e("s_cmp_lg_u32 s66, 0")
        e("s_cbranch_scc1 .Lbackw")
        for sx in ("", "w"):
            if sx: self.label(".Lbackw")
            for r in range(3):
                e(f"s_cmp_eq_u32 s99, {r}")
                e(f"s_cbranch_scc1 .Ldu{r}{sx}")
            e(f"s_branch .Ldu3{sx}")
        self.label(".Lsl")
        e("s_waitcnt vmcnt(5)")
        e("s_mov_b64 exec, 1")
        for r in range(4): e(f"ds_write_b32 v{200+r}, v{196+r}")
        e("s_mov_b64 exec, -1")
        e("s_cmp_eq_u32 s69, 3")
        e("s_cbranch_scc1 .Lex")
        e(f"v_mov_b32 v209, {ND}")
        self.poll_begin()
        self.label(".Lsl1")
        e("v_add_u32 v205, s64, v208")
        e(f"ds_read_b32 v205, v205 offset:{L_QQ}")
        e("v_mov_b32 v210, s42")
        e("s_waitcnt lgkmcnt(0)")
        e("v_readfirstlane_b32 s56, v205")
        e(f"v_cmp_eq_u32 vcc, {hex(EMPTY)}, v205")
        e(f"s_cmp_lt_u32 s56, {ND}")
        e("s_cbranch_scc1 .Lsl3")
        e("s_andn2_b64 exec, 1, vcc")
        e("ds_write_b32 v210, v209")
        e("s_mov_b64 exec, -1")
        e(f"s_and_b32 s60, vcc_lo, {(1 << LA) - 1}")
        e("s_cbranch_scc0 .Lsl2")
        self.poll_again(".Lsl1")
        e("s_branch .Lex")
        self.label(".Lsl2")
        e("v_cmp_gt_u32 vcc, v209, v205")
        e(f"s_and_b32 s60, vcc_lo, {(1 << LA) - 1}")
        e("s_cbranch_scc0 .Lex")
        e("s_mov_b64 exec, 1")
        e(f"ds_add_rtn_u32 v204, v16, v17 offset:{L_QH}")
        e("s_mov_b64 exec, -1")
        e("s_waitcnt lgkmcnt(0)")
        e("v_readfirstlane_b32 s58, v204")
        e("s_andn2_b32 s64, s58, 3")
        for s in self.masks(): e(s)
        e("s_branch .Lsl1")
        self.label(".Lsl3")
        for s in self.addr(): e(s)
        e("s_mov_b32 s57, s96")
        e("s_branch .Lback")
        self.label(".Lex")
        e("s_mov_b64 exec, 1")
        e(f"ds_cmpst_rtn_b32 v18, v16, v23, v211 offset:{L_CNT + 8}")
        e("s_mov_b64 exec, -1")
        for r in range(3):
            e(f"s_cmp_eq_u32 s99, {r}")
            e(f"s_cbranch_scc1 .Ldx{r}")
        for n in (3, 0, 1, 2):
            self.label(f".Ldx{n}")
            q = [(n + k) & 3 for k in range(4)]
            for k in (1, 2): e(f"v_fma_f32 v{144+k}, v{192+q[k]}, s59, v10")
            for k in (1, 2): e(f"v_exp_f32 v{144+k}, v{144+k}")
            for j in range(4): self.mfma(4 * q[0] + j)
            for k in (1, 2): e(f"v_cvt_pk_bf16_f32 v{144+k}, v{144+k}, v{144+k}")
            for k in (1, 2):
                for s in self.ands(q[k], 144 + k): e(s)
            e("s_waitcnt lgkmcnt(0)")
            e("v_readfirstlane_b32 s60, v18")
            e("s_cmp_eq_u32 s60, 4")
            e("s_cselect_b32 s97, 0, s97")
            e("s_cselect_b64 exec, 1, 0")
            e("buffer_atomic_add v26, v16, s[48:51], s100 offen offset:64 sc0 sc1")
            e("s_mov_b64 exec, -1")
            for j in range(4): self.mfma(4 * q[1] + j)
            e("s_waitcnt vmcnt(5)")
            e(f"v_fma_f32 v144, v{192+q[3]}, s59, v10")
            e("v_exp_f32 v144, v144")
            for j in range(4): self.mfma(4 * q[2] + j)
            e("v_cvt_pk_bf16_f32 v144, v144, v144")
            for s in self.ands(q[3], 144): e(s)
            e("s_mov_b32 s60, s68")
            e("s_mov_b32 s99, 0")
            for j in range(4):
                e(f"s_waitcnt vmcnt({4 - j})")
                self.mfma(4 * q[3] + j)
            if n != 2: e("s_branch .Lrt")
        self.label(".Lnr")

    def build(self):
        T = super().build().split("\n")
        a = T.index(";@S7A"); b = T.index(".Lrt:")
        self.L = []
        self.stream()
        T = T[:a] + self.L + T[b:]
        k = T.index(f"    ds_write_b32 v15, v15 offset:{L_QH}")
        T.insert(k + 1, f"    ds_write_b32 v15, v15 offset:{L_QF}")
        if self.o['dry7']:
            k = T.index(".Lrdone:")
            assert T[k+3] == "    s_branch .Lrolewait" and T[k+4] == ".Ldry:" and T[k+6] == "    s_cbranch_scc1 .Lrolewait"
            T[k+3] = "    s_branch .Ldry1"
            T.insert(k + 7, ".Ldry1:")
            if self.o['dry7'] == 1: T[k+5:k+7] = ["    s_branch .Lrolewait"]
        return "\n".join(T)
```

```python
import sys, json
sys.path.insert(0,'dev')
from util import *
import gen7
a=sys.argv[1:]
for n,j in zip(a[::2],a[1::2]):
    open('dev/'+n,'w').write(gen7.Gen(**json.loads(j)).build())
    co,l=build('dev/'+n)
    p=cl.address_register_problem(co, l[0].kernel)
    print(n, "OK" if p is None else p[:900])
```

```python
import sys, json, struct, math
from gen2 import *
import gen2

WS_PART = 0x100000
WS_Y    = 0x120000
WS_P2I  = 0x130000
WS_RACE = 0x170000
L_D     = L_W + 57344
L_H     = 2816
L_ACT   = 640
LDS_BYTES = L_D + 28672
L_RED2  = 24576 - L_RED
WS_PART2 = 0x80000

class Gen(gen2.Gen):
    def __init__(self, **kw):
        d = dict(NSH=3, PV=4, NO=2, c0=2, cmax=3, csh=6, pace=14, late='', early=False, quit=(0,0,0), dyn='', order='DGW', gs=0, nodot=False, NB=0, dum='', dsp=256, tpol='', remap=None, PA=0, XS=0, epol='sc1', NP=4, cpol='', NC=8, RA=0, cls=True, dry=False, rst='late', rord='GW', gts=False, opol='', pol={}, iod=True, cfix=None, race='join', fakew='', c2=True, elig=True, fold=True, nd1=3, kb2=5, ks2=11, rsq=False, rpm=1, fp=False, fpg=3, dpk=True, sp=True, EG=0, gfl=False, dq=False, ppk=True, il=(4,4), rdel=0, rw=0, gw=0, fresh='G', sg=False, sgp=14, ET=0, B1W=44, B1G=44, aw=0, awpol='', tlbw=0, wp=False, hp=None, hx=1, cut=(64,28), hts=False, pa1=None, ep=None, qdry=False, xq='', p2s=False, trim=False, scb=0x80000, p2z=0, gch=None, wch=None)
        d.update(dict(p2s=True, trim=True, pa1=2, ep=[4,5,6,7], p2z=1, gch=[10], gpol=None, coop=False, lim=None, limP=None, fine=False, pb=0, w0=1))
        d.update(dict(NSH=4, PV=0, NO=6, NB=48, NH=0, dyn='WGD', order='GWD', wpol='nt', dpol='nt', tpol='nt', gs=1))
        d.update(kw)
        super().__init__(**d)
        if self.o['dyn']: self.o['late'] = self.o['dyn']
        if self.o['iod']: self.o['NC'] = 2
        self.cyc = False
        self.wide = False
        self.ph = 1

    def P(self, t):
        return self.o['pol'].get(t, self.o['pol'].get(t[-1], 'sc1'))

    def kts(self, slot, once=False):
        if self.o['hts'] == 2:
            if once:
                l = self.newlab("kt")
                self.e(f"s_cmp_lg_u32 s{70 + 2 * slot}, 0")
                self.e(f"s_cbranch_scc1 {l}")
            self.e(f"s_memrealtime s[{70 + 2 * slot}:{71 + 2 * slot}]")
            if once:
                self.e("s_waitcnt lgkmcnt(0)")
                self.label(l)

    def hts(self, slot):
        if self.o['hts'] == 1: self.e(f"s_memrealtime s[{70 + 2 * slot}:{71 + 2 * slot}]")

    def ts(self, slot):
        if self.o['hts'] and slot in (2, 4, 5, 7, 9, 10, 11, 12): return
        if self.o['ts']:
            self.e(f"{'s_memtime' if self.cyc else 's_memrealtime'} s[{70 + 2 * slot}:{71 + 2 * slot}]")

    def tick(self, k):
        if self.o['wp'] and k is not None:
            e = self.e
            e("s_memtime s[94:95]")
            e("s_waitcnt lgkmcnt(0)")
            e("s_sub_u32 s93, s94, s92")
            e("s_mov_b32 s92, s94")
            e(f"v_add_u32 v{224+k}, s93, v{224+k}")
            e(f"v_add_u32 v{240+k}, 1, v{240+k}")

    def awld(self, n0, cnt, tag=None):
        for n in range(n0, min(n0 + cnt, 56)):
            g, j = divmod(n, 7)
            t = f"buffer_load_dwordx4 a[{4*n}:{4*n+3}], v28, s[44:47], s{41 + (g >> 2)} offen offset:{(g & 3) * 896 + j * 128} {self.o['awpol']}"
            if tag is not None: self.vm(t, tag)
            else: self.e(t)

    def ld(self, base, g, tag=None, lim=None, js=range(4)):
        for j in js:
            r = base + g * 16 + j * 4
            if lim: self.e(f"s_waitcnt vmcnt({(lim if isinstance(lim, int) else lim[(4 * g + j) % len(lim)]) - 1})")
            s = f"buffer_load_dwordx4 v[{r}:{r+3}], v{2+g}, s[28:31], s57 offen offset:{j*128} {self.o['kvpol']}"
            if tag is not None: self.vm(s, tag)
            else: self.e(s)

    def ktile(self, kb, wait, reissue, rtag=None, extra=None, li=3):
        e = self.e
        lim = self.o['lim'] and self.o['lim'][li]
        for i in range(8):
            e(f"v_mov_b32 v{11+i}, 0")
        for g in range(4):
            wait(g)
            for i in range(16 if not self.o['nodot'] else 2):
                e(f"v_dot2c_f32_bf16 v{11+2*g+(i&1)}, v{kb+g*16+i}, v{32+i}")
                if reissue and self.o['fine'] and i & 3 == 3:
                    self.ld(kb, g, rtag and (rtag, g), lim, [i >> 2])
            if reissue and not self.o['fine']:
                self.ld(kb, g, rtag and (rtag, g), lim)
            if extra: extra(g)
        if reissue or self.o['prof'] != 2: self.plog()
        if not reissue: e("s_nop 2")
        for g in range(4):
            e(f"v_add_f32 v{11+2*g}, v{11+2*g}, v{12+2*g}")
        for st in ("quad_perm:[1,0,3,2]", "quad_perm:[2,3,0,1]", "row_half_mirror"):
            for g in range(4):
                e(f"v_add_f32_dpp v{11+2*g}, v{11+2*g}, v{11+2*g} {st} row_mask:0xf bank_mask:0xf")
        e("v_cvt_pk_bf16_f32 v24, v11, v13")
        e("v_cvt_pk_bf16_f32 v25, v15, v17")
        e("ds_write_b64 v19, v[24:25]")
        e("v_add_u32 v19, 64, v19")

    def vgrp(self, g, n, reissue, base=64, tk=None):
        e = self.e
        e(f"s_waitcnt vmcnt({n})")
        self.tick(tk)
        for j in range(4):
            r = base + g * 16 + j * 4
            e(f"v_mfma_f32_16x16x32_bf16 v[{48+4*j}:{51+4*j}], v[{32+4*g}:{35+4*g}], v[{r}:{r+3}], v[{48+4*j}:{51+4*j}]")
        if reissue:
            self.ld(64, g, None, self.o['lim'] and self.o['lim'][self.ph])

    def pcalc(self, groups):
        e = self.e
        for g in groups:
            src = 24 if g < 2 else 25
            if g & 1: e(f"v_and_b32 v{11+g}, 0xffff0000, v{src}")
            else: e(f"v_lshlrev_b32 v{11+g}, 16, v{src}")
        for g in groups: e(f"v_fma_f32 v{11+g}, v{11+g}, s59, v10")
        for g in groups: e(f"v_exp_f32 v{11+g}, v{11+g}")
        for g in groups: e(f"v_cvt_pk_bf16_f32 v{15+g}, v{11+g}, v{11+g}")
        for g in groups:
            for r in range(4):
                e(f"v_and_b32 v{32+4*g+r}, v{6+r}, v{15+g}")

    def ticket(self, off=0, amount="1"):
        e = self.e
        if self.o['hp'] and off == 0:
            e("s_xor_b32 s60, s44, 1")
            e("v_xor_b32 v22, s60, v1")
            e("s_mov_b64 exec, 3")
            e(f"buffer_atomic_add v22, v21, s[36:39], 0 offen sc0 sc1 {self.o['tpol']}")
            e("s_mov_b64 exec, -1")
            return
        e(f"v_mov_b32 v22, {amount}")
        e("s_mov_b64 exec, 1")
        e(f"buffer_atomic_add v22, v21, s[36:39], 0 offen offset:{off} sc0 sc1 {self.o['tpol']}")
        e("s_mov_b64 exec, -1")

    def tile_addr(self, src="s56"):
        k = self.o['gs']; e = self.e
        if k == 0: return super().tile_addr(src)
        e(f"s_lshr_b32 s57, {src}, {k}")
        e(f"s_lshl_b32 s57, s57, {14 + k}")
        e("s_add_u32 s57, s57, s61")
        e(f"s_and_b32 s63, {src}, {(1 << k) - 1}")
        e("s_lshl_b32 s63, s63, 12")
        e("s_add_u32 s57, s57, s63")
        e("s_and_b32 s57, s57, 0x7fffff")
        if self.wide: e("s_add_u32 s57, s57, s41")

    def sc_addr(self, t):
        e = self.e
        e(f"s_and_b32 s98, {t}, 31")
        e(f"s_lshl_b32 s98, s98, {8 if self.o['p2s'] else 9}")
        e(f"s_lshr_b32 s63, {t}, 5")
        e("s_lshl_b32 s63, s63, 6")
        e("s_add_u32 s98, s98, s63")

    def build(self):
        o = self.o; e = self.e
        PD = o['PD']; NSH = o['NSH']; NH = o['NH']; PV = o['PV']; NO = o['NO']
        ND = 32 * NSH
        NF = ND - NH
        NTK = NF + 2 * NH
        PA = o['PA']; XS = o['XS'] + PV
        B1 = ND + 24 * XS
        B2 = B1 + 32 * NO
        NPUB = 4 if o['p2s'] else NSH
        LIM_ = o['lim']
        E1 = PD + PA + 1
        assert 1 <= PD <= 2 and o['dyn'] == 'WGD' and (PD + 1 <= NSH or o['p2s']) and NSH <= 8 and NO >= 2 and PV + PA <= 4 and B2 <= 512
        assert 2 * o['NB'] <= NF
        assert max(NSH, E1) + 2 <= NSH + XS + NO
        def pace():
            if o['pace']: e(f"s_waitcnt vmcnt({o['pace']})")
        self.L.append(f"; @launch grid=(256,1,1) block=(256,1,1) lds={LDS_BYTES}")
        self.L.append('.amdgcn_target "amdgcn-amd-amdhsa--gfx950"')
        self.L.append(".text")
        self.L.append(f".globl {NAME}")
        self.L.append(".p2align 8")
        self.L.append(f".type {NAME},@function")
        self.label(NAME)
        e("s_cmp_ge_u32 s2, 256")
        e("s_cbranch_scc1 .Lend")
        e("s_load_dwordx16 s[4:19], s[0:1], 0")
        e("s_load_dwordx8 s[20:27], s[0:1], 64")
        if o['ts']:
            self.ts(0)
            for i in range(72, 96): e(f"s_mov_b32 s{i}, 0")
        e("v_and_b32 v1, 63, v0")
        e("v_lshrrev_b32 v2, 6, v0")
        e("s_and_b32 s53, s2, 7")
        if o['prof']:
            e("s_mov_b32 s3, 0")
            e("v_mov_b32 v0, 0")
        e("v_readfirstlane_b32 s52, v2")
        e("s_lshr_b32 s54, s2, 3")
        e(f"s_mul_i32 s61, s54, {o['rot']}")
        e("v_lshrrev_b32 v20, 3, v1")
        e("v_lshlrev_b32 v2, 9, v20")
        e("v_and_b32 v3, 7, v1")
        e("v_lshlrev_b32 v13, 13, v20")
        e("v_lshl_or_b32 v2, v3, 4, v2")
        e("v_lshl_or_b32 v13, v3, 4, v13")
        S = 4096 << o['gs']
        e(f"v_add_u32 v3, {S}, v2")
        e(f"v_add_u32 v4, {2*S}, v2")
        e(f"v_add_u32 v5, {3*S}, v2")
        e("s_lshl_b32 s58, s53, 2")
        e("s_add_u32 s58, s58, s52")
        e("s_mov_b32 s56, s58")
        self.tile_addr()
        e("s_mov_b32 s30, 0x800000")
        e("s_mov_b32 s31, 0x20000")
        e("s_lshr_b32 s96, s53, 2")
        e("s_lshl_b32 s60, s54, 1")
        e("s_add_u32 s96, s96, s60")
        e(f"s_mul_i32 s60, s52, {112 * 8192}")
        e("s_lshl_b32 s63, s96, 7")
        e("s_add_u32 s60, s60, s63")
        e("v_add_u32 v13, s60, v13")
        e("v_and_b32 v16, 31, v1")
        e("v_cmp_gt_u32 s[64:65], 28, v16")
        e("v_lshrrev_b32 v14, 5, v1")
        e("v_mul_u32_u24 v14, 896, v14")
        e("v_lshl_add_u32 v28, v16, 5, v14")
        e("v_mov_b32 v16, 0x10000")
        e("v_cndmask_b32 v16, v16, v28, s[64:65]")
        e("v_mov_b32 v15, 0")
        e("s_mov_b32 s38, {0}".format(WS_SIZE))
        e("s_mov_b32 s39, 0x20000")
        e("s_mov_b32 s42, 1792")
        e("s_mov_b32 s43, 0x20000")
        e("s_mov_b32 s46, 3670016")
        e("s_mov_b32 s47, 0x20000")
        e(f"s_mul_i32 s97, s52, {14 * 1024}")
        e(f"s_add_u32 s97, s97, {L_W}")
        e("s_lshl_b32 s60, s54, 23")
        e("s_xor_b32 s62, s53, s54")
        e("s_and_b32 s62, s62, 3")
        e("s_waitcnt lgkmcnt(0)")
        if o['dbgts']: e("s_mov_b64 s[84:85], s[24:25]")
        self.hts(2)
        e("s_cbranch_scc1 .Lnoprod1")
        e("s_setprio 3")
        e("s_mov_b64 s[40:41], s[4:5]")
        e("s_mov_b64 s[44:45], s[10:11]")
        e("s_and_b32 s63, s96, 3")
        e("s_or_b32 s63, s63, s52")
        e("s_cbranch_scc1 .Lnocinit")
        e("s_mov_b64 s[36:37], s[26:27]")
        e("s_lshl_b32 s63, s96, 6")
        e("v_and_b32 v14, 1, v1")
        e("v_lshlrev_b32 v14, 12, v14")
        e("v_lshrrev_b32 v17, 1, v1")
        e("v_lshl_add_u32 v14, v17, 7, v14")
        e(f"v_add_u32 v14, {WS_CNT}, v14")
        e("s_mov_b64 exec, 15")
        e("buffer_store_dword v15, v14, s[36:39], s63 offen " + self.P("ciS"))
        e("s_mov_b64 exec, -1")
        self.label(".Lnocinit")
        if 'p' in o['xq']:
            e("s_setprio 0")
            e("s_mov_b32 s62, 1")
            e("s_branch .Lnoprod1")
        e("buffer_load_dwordx4 v[240:243], v16, s[40:43], 0 offen")
        e("buffer_load_dwordx4 v[244:247], v16, s[40:43], 0 offen offset:16")
        for ks in range(14):
            e("s_mov_b32 m0, s97")
            e(f"s_mov_b32 s63, {ks * 65536}")
            e(f"buffer_load_dwordx4 v13, s[44:47], s63 offen {o['wqpol']} lds")
            if ks < 13: e("s_add_u32 s97, s97, 1024")
        PA1 = o['pa1']
        if PA1 is not None:
            assert o['rst'] != 'first'
            e("s_add_u32 s28, s6, s60")
            e("s_addc_u32 s29, s7, 0")
            e("s_branch .Lprod2")
        self.label(".Lnoprod1")
        if o['rst'] == 'first': self.resets()
        e("s_add_u32 s28, s6, s60")
        e("s_addc_u32 s29, s7, 0")
        self.q = []
        for g in range(4): self.ld(64, g, ('A', g))
        self.label(".Lprod2")
        self.hts(4)
        e(f"s_load_dword s68, s[26:27], {WS_EPOCH}")
        def tag():
            e("s_mul_i32 s55, s68, 0x9e3779b1")
            e("s_add_u32 s55, s55, 0x7f4a7c15")
        if o['prof'] == 2: self.plog()
        e("s_add_u32 s32, s8, s60")
        e("s_addc_u32 s33, s9, 0")
        e("s_mov_b32 s34, 0x800000")
        e("s_mov_b32 s35, 0x20000")
        e("s_mov_b64 s[36:37], s[26:27]")
        self.srd(48, 24, 256)
        self.setup()
        e("s_cmp_lg_u32 s62, 0")
        e("s_cbranch_scc1 .Ljoin")
        e("v_lshlrev_b32 v17, 7, v29")
        e("v_lshl_add_u32 v17, v31, 3, v17")
        e("s_lshl_b32 s60, s52, 5")
        e(f"s_add_u32 s60, s60, {L_W}")
        e("v_add_u32 v17, s60, v17")
        e(f"s_waitcnt vmcnt({30 if PA1 is None else 14})")
        self.hts(5)
        for i in range(8):
            e(f"v_and_b32 v{184+2*i+1}, 0xffff0000, v{240+i}")
            e(f"v_lshlrev_b32 v{184+2*i}, 16, v{240+i}")
        self.layernorm16(184, 200, "s[64:65]")
        e("s_mov_b64 exec, s[64:65]")
        e(f"ds_write_b128 v28, v[184:187] offset:{L_XN}")
        e(f"ds_write_b128 v28, v[188:191] offset:{L_XN+16}")
        e("s_mov_b64 exec, -1")
        e("s_waitcnt lgkmcnt(0)")
        for ks in range(14):
            e(f"ds_read_b128 v[{128+4*ks}:{131+4*ks}], v30 offset:{L_XN + ks*64}")
        tag()
        e("v_mov_b32 v249, s55")
        e("v_and_b32 v13, 1, v1")
        e("v_lshlrev_b32 v14, 14, v13")
        e("v_cmp_eq_u32 vcc, 1, v13")
        e("v_lshrrev_b32 v13, 1, v1")
        e("v_lshl_add_u32 v14, v13, 3, v14")
        e("s_lshl_b32 s60, s96, 2")
        e("s_add_u32 s60, s60, s52")
        e("s_lshl_b32 s60, s60, 6")
        e(f"s_add_u32 s60, s60, {WS_Q}")
        if o['qdry']:
            e("s_mov_b64 exec, 0")
            e("s_branch .Lqgo")
            self.label(".Lqdry")
            e("s_mov_b64 exec, -1")
        self.hts(7)
        for g in range(PA1 or 0): self.ld(64, g)
        e(f"s_waitcnt vmcnt({16 if PA1 is None else 4 * PA1})")
        self.hts(9)
        e("s_barrier")
        self.hts(10)
        self.label(".Lqgo")
        for ks in range(14):
            e(f"ds_read_b64_tr_b16 v[{184+4*ks}:{185+4*ks}], v17 offset:{ks*4096}")
            e(f"ds_read_b64_tr_b16 v[{186+4*ks}:{187+4*ks}], v17 offset:{ks*4096 + 512}")
            if ks == 6:
                e("s_waitcnt lgkmcnt(6)")
        e("s_waitcnt lgkmcnt(0)")
        for ks in range(14):
            cin = "0" if ks == 0 else "v[240:243]"
            e(f"v_mfma_f32_16x16x32_bf16 v[240:243], v[{128+4*ks}:{131+4*ks}], v[{184+4*ks}:{187+4*ks}], {cin}")
        e("s_nop 7")
        e("v_mov_b32_dpp v244, v240 quad_perm:[1,0,3,2] row_mask:0xf bank_mask:0xf")
        e("v_mov_b32_dpp v245, v241 quad_perm:[1,0,3,2] row_mask:0xf bank_mask:0xf")
        e("v_cndmask_b32 v246, v240, v245, vcc")
        e("v_cndmask_b32 v247, v244, v241, vcc")
        e("v_cvt_pk_bf16_f32 v248, v246, v247")
        if o['qdry']: e("s_cbranch_execz .Lqdry")
        e("s_mov_b64 exec, 0xffff")
        e("buffer_store_dwordx2 v[248:249], v14, s[36:39], s60 offen " + self.P("qS"))
        e("s_mov_b64 exec, -1")
        e("s_setprio 0")
        self.hts(11)
        for g in range(4 if PA1 is None else PA1, 4): self.ld(64, g)
        self.label(".Ljoin")
        if o['rst'] == 'join': self.resets()
        if o['iod'] and o['race'] == 'join': self.race()
        EP = o['ep']
        NP = o['NP']
        def poll(k): e(f"buffer_load_dwordx4 v[{48+4*k}:{51+4*k}], v13, s[36:39], s60 offen " + self.P("qL"))
        if EP:
            assert len(EP) == NP
            e("s_lshl_b32 s60, s54, 10")
            e(f"s_add_u32 s60, s60, {WS_Q}")
            e("v_lshlrev_b32 v13, 4, v1")
        pq = []
        for p in range(PD):
            e("s_add_u32 s56, s56, 32")
            self.tile_addr()
            for g in range(4):
                pace()
                self.ld(128 + 64 * p, g, (f'E{p}', g), o['limP'])
                pq += ['x'] * 4
                if EP and 4 * p + g in EP:
                    k = EP.index(4 * p + g)
                    e("s_cmp_lg_u32 s52, 0")
                    e(f"s_cbranch_scc1 .Lnp{k}")
                    poll(k)
                    self.label(f".Lnp{k}")
                    pq.append(k)
            if o['prof'] == 2: self.plog()
        self.hts(12)
        e("s_cmp_eq_u32 s52, 0")
        e("s_cbranch_scc1 .Lw0")
        for p in range(PA):
            e(f"v_readlane_b32 s56, v23, {PD + 1 + p}")
            self.tile_addr()
            for g in range(4):
                pace()
                for j in range(4):
                    r = 64 * (PV + p) + g * 16 + j * 4
                    self.vm(f"buffer_load_dwordx4 a[{r}:{r+3}], v{2+g}, s[28:31], s57 offen offset:{j*128} {o['kvpol']}", (f'F{p}', g))
            if o['prof'] == 2: self.plog()
        for p in range(PV):
            e(f"v_readlane_b32 s56, v23, {NSH + p}")
            self.tile_addr()
            for g in range(4):
                pace()
                for j in range(4):
                    r = 64 * p + g * 16 + j * 4
                    self.vm(f"buffer_load_dwordx4 a[{r}:{r+3}], v{2+g}, s[32:35], s57 offen offset:{j*128} {o['kvpol']}", 'X')
            if o['prof'] == 2: self.plog()
        for p in range(PV if o['prof'] == 1 else 0): self.plog()
        if o['sg']: self.sgload()
        if o['iod'] and o['race'] == 'bar': self.race()
        e(f"s_mov_b32 s99, {E1}")
        e(f"s_mov_b32 s97, {NSH + PV}")
        e(f"s_mov_b32 s101, {NSH + XS + NO}")
        e(f"s_mov_b32 s62, {max(NPUB, E1)}")
        e("s_branch .Lbar")
        self.label(".Lw0")
        e("s_lshl_b32 s60, s54, 10")
        e(f"s_add_u32 s60, s60, {WS_Q}")
        e("v_lshlrev_b32 v13, 4, v1")
        e("v_lshlrev_b32 v14, 3, v1")
        e(f"ds_write_b32 v15, v15 offset:{L_CNT}")
        e(f"ds_write_b32 v15, v15 offset:{L_CNT + 8}")
        e(f"ds_write_b32 v15, v15 offset:{L_CNT + 12}")
        if o['coop']:
            e("v_mov_b32 v16, -1")
            e(f"ds_write_b32 v15, v16 offset:{L_CNT + 4}")
        if o['sg']:
            self.sgtest(".Lnosg0")
            e("v_mov_b32 v16, s69")
            e("v_mov_b32 v17, 0x1000")
            e(f"ds_write2_b32 v15, v16, v17 offset0:{L_CNT//4 + 1} offset1:{L_CNT//4 + 2}")
            self.label(".Lnosg0")
        if 'q' in o['xq']: e("s_branch .Lqok")
        for k in range(NP if not EP else 0):
            if k: e(f"s_waitcnt vmcnt({16 - 3 * k})")
            poll(k)
        e("s_waitcnt lgkmcnt(0)")
        tag()
        for k in range(NP if EP else 0):
            e(f"s_waitcnt vmcnt({len(pq) - 1 - pq.index(k)})")
            e(f"v_cmp_ne_u32 vcc, s55, v{49+4*k}")
            e(f"v_cmp_ne_u32 s[66:67], s55, v{51+4*k}")
            e("s_or_b64 vcc, vcc, s[66:67]")
            e(f"s_cbranch_vccz .Lqok{k}")
            poll(k)
            pq.append('y')
        self.poll_begin()
        self.label(".Lqpoll")
        for k in range(NP):
            e(f"s_waitcnt vmcnt({NP - 1})")
            e(f"v_cmp_ne_u32 vcc, s55, v{49+4*k}")
            e(f"v_cmp_ne_u32 s[66:67], s55, v{51+4*k}")
            e("s_or_b64 vcc, vcc, s[66:67]")
            e(f"s_cbranch_vccz .Lqok{k}")
            poll(k)
        self.poll_again(".Lqpoll")
        for k in range(NP):
            self.label(f".Lqok{k}")
            e(f"ds_write2_b32 v14, v{48+4*k}, v{50+4*k} offset0:{L_Q//4} offset1:{L_Q//4+1}")
            if k < NP - 1: e("s_branch .Lqok")
        self.label(".Lqok")
        e(f"s_mov_b32 s99, {PD + 1}")
        e(f"s_mov_b32 s97, {NSH}")
        e(f"s_mov_b32 s101, {NSH + NO}")
        e(f"s_mov_b32 s62, {NPUB}")
        e("s_waitcnt lgkmcnt(0)")
        self.label(".Lbar")
        self.ts(1)
        e("s_barrier")
        self.ts(2)
        e("v_and_b32 v13, 7, v1")
        e("v_lshlrev_b32 v13, 4, v13")
        for j in range(4):
            e(f"ds_read_b128 v[{32+4*j}:{35+4*j}], v13 offset:{L_Q + j*128}")
        e("v_readlane_b32 s56, v23, s99")
        self.tile_addr()
        e("s_waitcnt lgkmcnt(0)")
        tag()
        self.L.append(';@S7A'); self.q7 = list(self.q)
        AW = o['aw']
        if AW:
            self.srd(44, 12, 3670016)
            e("s_and_b32 s41, s54, 15")
            e("s_lshl_b32 s41, s41, 2")
            e("s_add_u32 s41, s41, s52")
            e(f"s_mul_i32 s41, s41, {64 * 896}")
            e(f"s_add_u32 s42, s41, {4 * 896}")
            e("v_lshrrev_b32 v28, 3, v1")
            e(f"v_mul_u32_u24 v28, {8 * 896}, v28")
            e("v_add_u32 v28, v28, v13")
        self.ktile(64, lambda g: self.vwait(('A', g)), True, rtag='A2', extra=(lambda g: self.awld(2 * g, 2, 'aw')) if AW else None)
        for p in range(PD):
            self.ktile(128 + 64 * p, lambda g: self.vwait((f'E{p}', g)), False)
        if PA:
            e("s_cmp_eq_u32 s52, 0")
            e("s_cbranch_scc1 .Lkloop")
        for p in range(PA):
            def wa(g):
                self.vwait((f'F{p}', g))
                for i in range(16): e(f"v_accvgpr_read_b32 v{128 + 16 * g + i}, a{64 * (PV + p) + 16 * g + i}")
            self.ktile(128, wa, False)
        if o['rst'] == 'late': self.resets()
        else: self.checkin(".Lkloop")
        if o['tlbw']:
            n, sh = o['tlbw']
            e(f"v_lshlrev_b32 v251, {sh}, v1")
            e("s_lshl_b32 s60, s2, 2")
            e("s_add_u32 s60, s60, s52")
            e("s_and_b32 s60, s60, 31")
            e("s_lshl_b32 s60, s60, 7")
            e(f"s_mov_b64 exec, {hex((1 << n) - 1)}")
            e("buffer_load_dword v250, v251, s[32:35], s60 offen nt")
            e("buffer_load_dword v252, v251, s[28:31], s60 offen nt")
            e("s_mov_b64 exec, -1")

        if LIM_:
            e("s_xor_b32 s69, s53, s54")
            e("s_and_b32 s69, s69, 3")
            e(f"s_cselect_b32 s69, {o['w0']}, {max(2, o['w0']) + o['pb']}")
        def kiter(sx, wait, extra):
            self.label(".Lkloop" + sx)
            e("s_cmp_lg_u32 s99, s62")
            e("s_cbranch_scc1 .Lk0" + sx)
            e("s_lshl_b32 s60, s52, 11")
            e(f"s_add_u32 s60, s60, {L_SC}")
            e("v_lshl_add_u32 v14, v1, 4, s60")
            e("ds_read_b128 v[24:27], v14")
            e("s_lshl_b32 s60, s2, 2")
            e("s_add_u32 s60, s60, s52")
            e(f"s_lshl_b32 s60, s60, {8 if o['p2s'] else 9}")
            e(f"s_add_u32 s60, s60, {self.o['scb']}")
            e("v_lshlrev_b32 v13, 4, v1")
            e(f"s_mov_b32 exec_lo, {hex((1 << (4 * NPUB)) - 1)}")
            e("s_mov_b32 exec_hi, 0")
            e("s_waitcnt lgkmcnt(0)")
            if 's' not in o['xq']: e("buffer_store_dwordx4 v[24:27], v13, s[36:39], s60 offen " + self.P("scS"))
            e("s_mov_b64 exec, -1")
            e(f"s_mov_b32 s100, {B2}")
            e(f"s_mov_b32 s96, {o['c0']}")
            if LIM_: e("s_max_u32 s69, s69, 1")
            self.label(".Lk0" + sx)
            e("s_add_u32 s99, s99, 1")
            e("s_mov_b32 s58, s99")
            e("s_cmp_lt_u32 s99, s101")
            e("s_cbranch_scc1 .Lk2" + sx)
            e(f"s_waitcnt vmcnt({24 if sx else 16})")
            self.tick(0)
            e("v_readfirstlane_b32 s56, v22")
            e(f"s_add_u32 s56, s56, {B2}")
            e("s_cmp_lt_u32 s56, 512")
            e("s_cbranch_scc1 .Lk1" + sx)
            e("s_mov_b64 s[28:29], s[32:33]")
            self.kts(7)
            e("s_mov_b32 s58, s97")
            e("s_mov_b32 s101, 0")
            if LIM_: e("s_max_u32 s69, s69, 1")
            e("s_branch .Lk2" + sx)
            self.label(".Lk1" + sx)
            e("s_add_u32 s100, s56, s96")
            e("s_min_u32 s100, s100, 512")
            e("s_sub_u32 s60, s56, s99")
            e("v_add_u32 v13, s60, v1")
            e("v_cmp_le_u32 vcc, s99, v1")
            e("s_sub_u32 s101, s100, s60")
            e("s_sub_u32 s96, 512, s100")
            e("v_cndmask_b32 v23, v23, v13, vcc")
            e(f"s_lshr_b32 s96, s96, {o['csh']}")
            e("s_max_u32 s96, s96, 1")
            e(f"s_min_u32 s96, s96, {o['cmax']}")
            self.label(".Lk2" + sx)
            e("v_readlane_b32 s56, v23, s58")
            e("s_add_u32 s60, s99, 1")
            e("s_cmp_lg_u32 s60, s101")
            e("s_cbranch_scc1 .Lk3" + sx)
            e("v_mov_b32 v22, 0x10000")
            if B2 < 512:
                e(f"s_cmp_gt_u32 s101, {32 - o['cmax']}")
                e("s_cbranch_scc1 .Lk3" + sx)
                self.ticket(128, "s96")
                if LIM_: e("s_max_u32 s69, s69, 1")
            self.label(".Lk3" + sx)
            self.tile_addr()
            if LIM_:
                assert not sx
                e("s_cmp_lg_u32 s69, 0")
                e("s_cbranch_scc1 .Lkw")
                self.kts(10, True)
                self.ktile(64, wait, True, li=0)
                e("s_branch .Lkloop")
                self.label(".Lkw")
                e("s_sub_u32 s69, s69, 1")
            self.ktile(64, wait, True, extra=extra)
            if not sx:
                e("s_cmp_lg_u32 s101, 0")
                e("s_cbranch_scc1 .Lkloop")
        if AW:
            assert NSH + NO >= 10 and PD == 2 and not PA and not XS
            for it in range(1, 7):
                kiter(f"_u{it}", lambda g: e("s_waitcnt vmcnt(18)"), lambda g: self.awld(8 * it + 2 * g, 2))
            kiter("_u7", lambda g: e(f"s_waitcnt vmcnt({18 - 2 * g})"), None)
            e("s_cmp_eq_u32 s101, 0")
            e("s_cbranch_scc1 .Lkend")
        if o['wp']:
            for i in range(32): e(f"v_mov_b32 v{224+i}, 0")
            self.tick(15)
        kiter("", lambda g: (e("s_waitcnt vmcnt(12)"), self.tick(1 + g)), None)
        self.label(".Lkend")
        self.ts(6)
        e("s_lshl_b32 s60, s52, 11")
        e(f"s_add_u32 s60, s60, {L_SC}")
        e("v_lshl_add_u32 v13, v1, 4, s60")
        e("ds_read_b128 v[128:131], v13")
        e("ds_read_b128 v[144:147], v13 offset:1024")
        for i in range(16): e(f"v_mov_b32 v{48+i}, 0")
        e("v_lshrrev_b32 v19, 3, v1")
        e(f"s_add_u32 s60, s60, {NSH * 64}")
        e("v_lshl_add_u32 v19, v19, 3, s60")
        e("s_waitcnt lgkmcnt(0)")
        for i in range(4):
            e(f"v_and_b32 v{149+2*i}, 0xffff0000, v{144+i}")
            e(f"v_lshlrev_b32 v{148+2*i}, 16, v{144+i}")
        for i in range(4):
            e(f"v_and_b32 v{133+2*i}, 0xffff0000, v{128+i}")
            e(f"v_lshlrev_b32 v{132+2*i}, 16, v{128+i}")
        e("v_max3_f32 v140, v132, v133, v134")
        e("v_max3_f32 v141, v135, v136, v137")
        e("v_max3_f32 v140, v140, v138, v139")
        e("v_max3_f32 v141, v141, v148, v149")
        e("v_max3_f32 v140, v140, v150, v151")
        e("v_max3_f32 v141, v141, v152, v153")
        e("v_max3_f32 v140, v140, v154, v155")
        e("v_max_f32 v140, v140, v141")
        self.full_reduce("v_max_f32", "v140", "v141")
        e("v_mul_f32 v10, s59, v140")
        e("v_sub_f32 v10, 0, v10")
        for i in range(8): e(f"v_fma_f32 v{132+i}, v{132+i}, s59, v10")
        for i in range(8): e(f"v_fma_f32 v{148+i}, v{148+i}, s59, v10")
        for i in range(8): e(f"v_exp_f32 v{132+i}, v{132+i}")
        for i in range(8): e(f"v_exp_f32 v{148+i}, v{148+i}")
        e("s_nop 0")
        for i in range(8): e(f"v_add_f32 v{132+i}, v{132+i}, v{148+i}")
        for i in range(4): e(f"v_add_f32 v{132+i}, v{132+i}, v{136+i}")
        e("v_add_f32 v132, v132, v133")
        e("v_add_f32 v134, v134, v135")
        e("v_add_f32 v142, v132, v134")
        self.full_reduce("v_add_f32", "v142", "v141")
        e("v_mov_b32 v141, s55")
        e("v_mov_b32 v143, s55")
        e("s_lshl_b32 s60, s2, 2")
        e("s_add_u32 s60, s60, s52")
        e("s_lshl_b32 s60, s60, 4")
        e(f"s_add_u32 s60, s60, {WS_ML}")
        e("v_mov_b32 v13, 0")
        e("s_mov_b64 exec, 1")
        e("buffer_store_dwordx4 v[140:143], v13, s[36:39], s60 offen " + self.P("mlS"))
        e("s_mov_b64 exec, -1")
        if o['rst'] == 'late':
            self.checkin(".Lnoci")
            self.label(".Lnoci")
        e("s_lshl_b32 s98, s54, 9")
        e(f"s_add_u32 s98, s98, {WS_ML}")
        e("v_and_b32 v28, 31, v1")
        e("v_lshlrev_b32 v28, 4, v28")
        HP = o['hp']
        if HP:
            assert o['rot'] == 262144 and o['gs'] and not o['EG'] and not o['fp'] and not o['gfl'] and o['iod']
            e("s_lshl_b32 s42, s53, 2")
            e(f"s_or_b32 s42, s42, {o['hx']}")
            e("s_xor_b32 s60, s54, s42")
            e("s_lshl_b32 s63, s60, 9")
            e("s_lshl_b32 s98, s54, 9")
            e("v_cmp_gt_u32 vcc, 32, v1")
            e("v_mov_b32 v13, s63")
            e("v_mov_b32 v14, s98")
            e("v_cndmask_b32 v13, v13, v14, vcc")
            e("v_add_u32 v28, v28, v13")
            e(f"s_mov_b32 s98, {WS_ML}")
            e("s_lshl_b32 s60, s60, 8")
            e(f"s_add_u32 s60, s60, {WS_CNT}")
            e("v_writelane_b32 v21, s60, 1")
            e("s_lshl_b32 s41, s54, 23")
            e("s_mov_b32 s43, 0")
            e("s_mov_b32 s44, 0")
            e("s_mov_b32 s45, 0")
            for i in range(16): e(f"v_mov_b32 v{160+i}, 0")
        e("s_add_u32 s58, s97, 1")
        e("s_sub_u32 s99, s99, 1")
        if PV:
            e("s_cmp_eq_u32 s52, 0")
            e("s_cbranch_scc1 .Lvloop")
            for p in range(PV):
                e("ds_read_b64 v[24:25], v19")
                e("v_add_u32 v19, 64, v19")
                e("s_waitcnt lgkmcnt(0)")
                self.pcalc(range(4))
                for g in range(4):
                    for j in range(4):
                        r = 64 * p + g * 16 + j * 4
                        e(f"v_mfma_f32_16x16x32_bf16 v[{48+4*j}:{51+4*j}], v[{32+4*g}:{35+4*g}], a[{r}:{r+3}], v[{48+4*j}:{51+4*j}]")
        self.tick(15)
        if LIM_: e("s_mov_b32 s69, 1")
        self.kts(2)
        self.label(".Lvloop")
        e("ds_read_b64 v[24:25], v19")
        e("v_add_u32 v19, 64, v19")
        e("v_readlane_b32 s56, v23, s58")
        e("s_cmp_lt_u32 s58, s99")
        e("s_cbranch_scc1 .Lv1")
        self.ticket()
        e("buffer_load_dwordx4 v[128:131], v28, s[36:39], s98 offen " + self.P("mlL"))
        e("v_and_b32 v13, 7, v1")
        e("v_lshlrev_b32 v13, 2, v13")
        e("buffer_load_dword v23, v13, s[48:51], 0 offen sc1")
        if LIM_: e("s_mov_b32 s69, 1")
        self.label(".Lv1")
        self.tile_addr()
        e("s_add_u32 s58, s58, 1")
        e("s_waitcnt lgkmcnt(0)")
        self.pcalc(range(4))
        dum = o['dum']
        if dum:
            e("s_lshl_b32 s60, s2, 2")
            e("s_add_u32 s60, s60, s52")
            e("s_lshl_b32 s60, s60, 8")
            e(f"s_mul_i32 s63, s54, {o['dsp']}")
            e(f"s_add_u32 s60, {'s60' if dum[0] == 'p' else 's63'}, 0x200000")
            e("v_mov_b32 v26, 1")
            e("v_mov_b32 v27, 0")
            e("s_mov_b64 exec, 1")
            if dum[1] in 'SWXY':
                e("s_mov_b64 exec, 0xffffffff")
                e("v_lshlrev_b32 v27, 2, v1")
            op = {'X': "buffer_atomic_swap v26, v27, s[36:39], s60 offen sc1 nt", 'Y': "buffer_atomic_swap v26, v27, s[36:39], s60 offen nt", 'z': "buffer_atomic_add v26, v27, s[36:39], s60 offen sc0 nt", 'S': "buffer_store_dword v26, v27, s[36:39], s60 offen sc1", 'w': "buffer_store_dword v26, v27, s[36:39], s60 offen",
                  'u': "buffer_store_dword v26, v27, s[36:39], s60 offen sc1 nt", 'W': "buffer_store_dword v26, v27, s[36:39], s60 offen sc0 sc1", 'a': "buffer_atomic_add v26, v27, s[36:39], s60 offen sc0 sc1", 'l': "buffer_load_dword v26, v27, s[36:39], s60 offen sc1",
                  'n': "buffer_atomic_add v26, v27, s[36:39], s60 offen sc1", 'x': "buffer_atomic_add v26, v27, s[36:39], s60 offen sc0",
                  's': "buffer_store_dword v26, v27, s[36:39], s60 offen sc1", 't': "buffer_atomic_add v26, v27, s[36:39], s60 offen sc0 sc1 nt"}[dum[1]]
            e(op)
            e("s_mov_b64 exec, -1")
        if LIM_:
            e("s_cmp_lg_u32 s69, 0")
            e("s_cbranch_scc1 .Lvw")
            for g in range(4): self.vgrp(g, 12, True)
            self.plog()
            self.kts(9)
            self.kts(5, True)
            e("s_branch .Lvloop")
            self.label(".Lvw")
            e("s_mov_b32 s69, 0")
            self.ph = 3
        for g in range(4): self.vgrp(g, 13 if dum else 12, True, tk=5 + g)
        self.plog()
        self.kts(4, True)
        e("s_cmp_le_u32 s58, s99")
        e("s_cbranch_scc1 .Lvloop")
        if not o['dbgts']: self.ts(7)
        e("ds_read_b64 v[24:25], v19")
        e("s_waitcnt vmcnt(16)")
        self.poll_begin()
        self.label(".Lmlchk")
        e("v_cmp_ne_u32 vcc, s55, v129")
        e("v_cmp_ne_u32 s[66:67], s55, v131")
        e("s_or_b64 vcc, vcc, s[66:67]")
        e("s_cbranch_vccz .Lmlok")
        e("buffer_load_dwordx4 v[128:131], v28, s[36:39], s98 offen " + self.P("mlL"))
        e("s_waitcnt vmcnt(0)")
        self.poll_again(".Lmlchk")
        self.label(".Lmlok")
        e("v_mov_b32 v132, v128")
        self.half_reduce("v_max_f32", "v132", "v133")
        e("v_sub_f32 v128, v128, v132")
        e("v_mul_f32 v128, s59, v128")
        e("v_exp_f32 v128, v128")
        e("s_nop 0")
        e("v_mul_f32 v130, v130, v128")
        self.half_reduce("v_add_f32", "v130", "v133")
        e("v_log_f32 v130, v130")
        e("s_nop 0")
        e("v_fma_f32 v130, v132, s59, v130")
        if HP:
            e("s_nop 0")
            e("v_readlane_b32 s60, v130, 0")
            e("v_readlane_b32 s63, v130, 32")
            e("s_mov_b64 s[28:29], s[8:9]")
            e("s_mov_b32 s30, 0x10000000")
            e("v_mov_b32 v130, s60")
            e("v_sub_f32 v159, 0, s63")
            self.wide = True
        e("v_add_f32 v131, v10, v130")
        e("v_sub_f32 v10, 0, v130")
        e("v_exp_f32 v131, -v131")
        e("s_waitcnt lgkmcnt(0)")
        for i in range(16):
            e(f"v_mul_f32 v{48+i}, v{48+i}, v131")
        assert NH == 0
        e("v_and_b32 v13, 7, v1")
        e("v_lshlrev_b32 v13, 2, v13")
        self.poll_begin()
        self.label(".Lrd")
        e("v_mov_b32 v128, v23")
        e("v_and_b32 v129, 0x3ff, v23")
        for st in ("quad_perm:[1,0,3,2]", "quad_perm:[2,3,0,1]", "row_half_mirror"):
            e("s_nop 0")
            e(f"v_add_u32_dpp v128, v128, v128 {st} row_mask:0xf bank_mask:0xf")
            e(f"{'v_add_u32_dpp' if o['c2'] and st[0] == 'q' else 'v_min_u32_dpp'} v129, v129, v129 {st} row_mask:0xf bank_mask:0xf")
        e("s_nop 0")
        e("v_readfirstlane_b32 s60, v128")
        e("v_readfirstlane_b32 s63, v129")
        e("s_and_b32 s100, s60, 0x3ff")
        e("s_cmp_ge_u32 s100, 256")
        e("s_cbranch_scc1 .Lrdok")
        e("buffer_load_dword v23, v13, s[48:51], 0 offen sc1")
        e("s_waitcnt vmcnt(0)")
        self.poll_again(".Lrd")
        self.label(".Lrdok")
        e("s_getreg_b32 s58, hwreg(HW_REG_XCC_ID, 0, 3)")
        e("s_lshl_b32 s100, s58, 2" if not o['c2'] else "s_and_b32 s100, s58, 4")
        e(f"s_cmp_lt_u32 s63, {(84 if o['sg'] else 56 if o['c2'] else 14) if o['cls'] else 1000}")
        e("s_cselect_b32 s100, 64, s100")
        e("v_mov_b32 v128, s55")
        e("v_mov_b32 v26, 1")
        e("v_mov_b32 v27, 0")
        e("s_mov_b32 s99, 0")
        if o['ts'] and not o['prof']: e("s_mov_b32 s3, 999")
        if o['elig']:
            e("v_mov_b32 v21, 4" if 0 else "v_mov_b32 v23, 4")
            e("s_mov_b64 exec, 1")
            e(f"ds_add_u32 v27, v26 offset:{L_CNT + 8}")
            e("s_mov_b64 exec, -1")
        e("s_bfe_u32 s63, s60, 0xa000a")
        e("s_lshr_b32 s60, s60, 20")
        e("s_cmp_gt_u32 s60, s63")
        e("s_cselect_b32 s55, 0x2000, 0")
        if o['cfix'] is not None: e(f"s_mov_b32 s55, {o['cfix'] << 13}")
        e("s_or_b32 s60, s2, s52")
        e("s_cbranch_scc1 .Ldloop")
        e("v_mov_b32 v13, 0")
        e("s_mov_b64 exec, 1")
        e(f"buffer_store_dword v128, v13, s[36:39], 0 offen offset:{WS_EPOCH} sc1")
        e("s_mov_b64 exec, -1")
        self.ph = 2
        self.label(".Ldloop")
        e("s_waitcnt vmcnt(16)")
        self.tick(9)
        NB = o['NB']
        LIM = NF - NB
        def swp(l):
            e("s_cmp_lg_u32 s43, 0")
            e(f"s_cbranch_scc1 .Lswp{l}")
            self.label(f".Lswb{l}")
        def swo(l):
            self.label(f".Lswp{l}")
            for i in range(16): e(f"v_swap_b32 v{48+i}, v{160+i}")
            e("v_swap_b32 v10, v159")
            e("s_mov_b32 s43, 0")
            e(f"s_branch .Lswb{l}")
        def rdtk():
            e("v_readlane_b32 s46, v22, 0")
            e("v_readlane_b32 s47, v22, 1")
            e("s_cmp_eq_u32 s44, 0")
            e("s_cselect_b32 s56, s46, s47")
        def ctx():
            e("s_xor_b32 s43, s44, s45")
            e("s_mul_i32 s60, s43, s42")
            e("s_mov_b32 s45, s44")
            e("s_lshl_b32 s60, s60, 14")
            e("v_xor_b32 v20, s60, v20")
            e("s_lshl_b32 s60, s60, 4")
            e("s_xor_b32 s61, s61, s60")
            e("s_lshl_b32 s41, s61, 5")
            e(f"s_add_u32 s60, s47, {HP[0]}")
            e(f"s_min_u32 s63, s46, {LIM - HP[1] + HP[0]}")
            e("s_cmp_lt_u32 s60, s63")
            e("s_cselect_b32 s44, 1, 0")
        if HP:
            assert not o['ET']
            swp(0)
            rdtk()
        else: e("v_readfirstlane_b32 s56, v22")
        self.pcalc(range(4))
        if HP:
            e(f"s_cmp_ge_u32 s56, {LIM}")
            e("s_cbranch_scc1 .Lhx")
            ctx()
        if NB:
            e(f"s_cmp_lt_u32 s56, {NB}")
            e("s_cbranch_scc1 .Ldbl")
            e(f"s_add_u32 s56, s56, {NB}")
        e(f"s_cmp_ge_u32 s56, {NF}")
        e("s_cbranch_scc1 .Lfx")
        self.label(".Ld1")
        if o['ts'] and not o['prof']:
            e("s_mov_b32 s3, s56")
            self.ts(2)
        self.tile_addr()
        self.sc_addr("s56")
        e("buffer_load_dwordx2 v[24:25], v20, s[36:39], s98 offen " + self.P("scL"))
        if o['ET']:
            e(f"s_cmp_ge_u32 s56, {NF - o['ET']}")
            e("s_cbranch_scc1 .Lde")
            self.label(".Ldt")
        self.ticket()
        self.label(".Ldg")
        EG = o['EG']
        if EG:
            assert EG <= NF - 2 * NB
            e(f"s_cmp_ge_u32 s56, {NF - EG}")
            e("s_cbranch_scc1 .Leg")
        for g in range(4): self.vgrp(g, 14, True, tk=10 + g)
        self.plog()
        e("s_branch .Ldloop")
        if EG:
            self.label(".Leg")
            for g in range(4): self.ld(128, g)
            for g in range(4): self.vgrp(g, 30 - 4 * g, False)
            self.plog()
            e("s_waitcnt vmcnt(16)")
            e("v_readfirstlane_b32 s56, v22")
            self.pcalc(range(4))
            e(f"s_add_u32 s56, s56, {NB}")
            e("s_mov_b32 s99, 1")
            e(f"s_cmp_ge_u32 s56, {NF}")
            e("s_cbranch_scc1 .Lfx")
            e("s_mov_b32 s99, 0")
            self.tile_addr()
            self.sc_addr("s56")
            e("buffer_load_dwordx2 v[24:25], v20, s[36:39], s98 offen " + self.P("scL"))
            self.ticket()
            for g in range(4): self.ld(64, g)
            for g in range(4): self.vgrp(g, 30 - 4 * g, False, 128)
            self.plog()
            e("s_branch .Ldloop")
        if o['ET']:
            self.label(".Lde")
            e("s_mov_b64 exec, 1")
            if o['elig']: e(f"ds_cmpst_rtn_b32 v28, v27, v23, v27 offset:{L_CNT + 8}")
            else: e(f"ds_add_rtn_u32 v28, v27, v26 offset:{L_CNT + 8}")
            e("s_waitcnt lgkmcnt(0)")
            e("v_readfirstlane_b32 s97, v28")
            e("s_mov_b64 exec, -1")
            if o['elig']: e("s_xor_b32 s97, s97, 4")
            else: e("s_cmp_lg_u32 s97, 0")
            e("s_cbranch_scc1 .Ldt")
            e("s_mov_b64 exec, 1")
            e("buffer_atomic_add v26, v27, s[48:51], s100 offen offset:64 sc0 sc1")
            e("s_mov_b64 exec, -1")
            e("v_mov_b32 v22, 0x10000")
            e("s_mov_b32 s101, 1")
            e("s_branch .Ldg")
        if NB:
            self.label(".Ldbl")
            e("s_lshl_b32 s56, s56, 1")
            self.tile_addr()
            self.sc_addr("s56")
            e("buffer_load_dwordx2 v[24:25], v20, s[36:39], s98 offen " + self.P("scL"))
            for g in range(4): self.vgrp(g, 13, True, tk=10 + g)
            self.plog()
            e("s_add_u32 s56, s56, 1")
            self.label(".Ldbl2")
            e("s_waitcnt vmcnt(16)")
            self.tick(14)
            if HP: swp(1)
            self.pcalc(range(4))
            e("s_branch .Ld1")
        if HP:
            swo(0); swo(1)
            self.label(".Lhx")
            e(f"s_cmp_ge_u32 s46, {LIM}")
            e("s_cbranch_scc1 .Lfx")
            e("s_mov_b32 s44, 0")
            self.ticket()
            for g in range(4): self.vgrp(g, 13 - 4 * g, False)
            self.plog()
            e("s_waitcnt vmcnt(0)")
            rdtk()
            e(f"s_cmp_ge_u32 s56, {LIM}")
            e("s_cbranch_scc1 .Lhz")
            ctx()
            e("s_lshl_b32 s60, s56, 1")
            e(f"s_add_u32 s56, s56, {NB}")
            e("s_min_u32 s56, s56, s60")
            self.tile_addr()
            self.sc_addr("s56")
            e("buffer_load_dwordx2 v[24:25], v20, s[36:39], s98 offen " + self.P("scL"))
            e(f"s_cmp_lt_u32 s56, {2 * NB}")
            e("s_cbranch_scc1 .Lhd")
            self.ticket()
            for g in range(4): self.ld(64, g)
            e("s_branch .Ldloop")
            self.label(".Lhd")
            for g in range(4): self.ld(64, g)
            e("s_add_u32 s56, s56, 1")
            e("s_branch .Ldbl2")
            self.label(".Lhz")
            for i in range(16): e(f"v_mov_b32 v{32+i}, 0")
        self.label(".Lfx")
        if o['wp']:
            e("s_lshl_b32 s60, s2, 2")
            e("s_add_u32 s60, s60, s52")
            e("s_lshl_b32 s60, s60, 8")
            e(f"s_add_u32 s60, s60, {WS_PROF}")
            e("v_mov_b32 v13, 0")
            e("s_mov_b64 exec, 1")
            for i in range(8): e(f"buffer_store_dwordx4 v[{224+4*i}:{227+4*i}], v13, s[36:39], s60 offen offset:{16*i}")
            e("s_mov_b64 exec, -1")
            e("s_waitcnt vmcnt(0)")
        self.tail()
        nacc = 64 * (PV + PA) if not o['aw'] else 224
        self.L.append('.section .rodata,"a"')
        self.L.append(".p2align 6")
        self.L.append(f".amdhsa_kernel {NAME}")
        self.L.append(f"  .amdhsa_next_free_vgpr {256 + nacc}")
        self.L.append("  .amdhsa_next_free_sgpr 102")
        self.L.append(f"  .amdhsa_accum_offset 256")
        self.L.append("  .amdhsa_group_segment_fixed_size 0")
        self.L.append("  .amdhsa_kernarg_size 96")
        self.L.append("  .amdhsa_user_sgpr_count 2")
        self.L.append("  .amdhsa_user_sgpr_kernarg_segment_ptr 1")
        self.L.append("  .amdhsa_system_sgpr_workgroup_id_x 1")
        self.L.append("  .amdhsa_float_denorm_mode_32 3")
        self.L.append(".end_amdhsa_kernel")
        return "\n".join(x for x in self.L if x != ";@S7A" or self.o.get("g7")) + "\n"

    def resets(self):
        e = self.e; o = self.o
        if 'r' in o['xq']: return
        e("s_cmp_lg_u32 s52, 1")
        e("s_cbranch_scc1 .Lnoreset")
        for i in range(4): e(f"v_mov_b32 v{24+i}, -1")
        e("v_lshlrev_b32 v18, 4, v1")
        npc = (131072 + 28672 * o['NC'] + 200704) // 1024 if not o['iod'] else 416
        if o['p2s']:
            assert o['NSH'] <= 4 and o['iod'] and o['dpk'] and o['sp'] and not o['hp']
            npc = 192
            if o['trim']:
                e("s_and_b32 s63, s2, 0x87")
                e("s_cmp_eq_u32 s63, 0x87")
                e("s_cbranch_scc1 .Lnoreset")
        e("s_mov_b64 s[36:37], s[26:27]")
        e("s_lshl_b32 s63, s2, 10")
        e(f"s_add_u32 s63, s63, {WS_PART}")
        if o['hp']:
            e("s_cmp_lt_u32 s2, 128")
            e("s_cbranch_scc1 .Lnoreset2")
            e(f"s_add_u32 s60, s63, {WS_PART2 - 0x20000}")
            e("buffer_store_dwordx4 v[24:27], v18, s[36:39], s60 offen " + self.P("rsS"))
            self.label(".Lnoreset2")
        for i in range((npc + 255) // 256):
            if npc - 256 * i < 256:
                e(f"s_cmp_ge_u32 s2, {npc - 256 * i}")
                e("s_cbranch_scc1 .Lnoreset")
            e("buffer_store_dwordx4 v[24:27], v18, s[36:39], s63 offen " + self.P("rsS"))
            e("s_add_u32 s63, s63, 0x40000")
        self.label(".Lnoreset")

    def sgtest(self, skip):
        e = self.e
        e("s_cmp_lg_u32 s62, 1")
        e(f"s_cbranch_scc1 {skip}")
        e("s_cmp_ge_u32 s54, 28")
        e(f"s_cbranch_scc1 {skip}")
        e("s_lshr_b32 s69, s53, 2")
        e("s_mul_i32 s69, s69, 28")
        e("s_add_u32 s69, s69, s54")

    def sgload(self):
        e = self.e; o = self.o
        self.sgtest(".Lnosg")
        e("s_mov_b32 s46, 1605632")
        e("s_mov_b32 s47, 0x20000")
        e("s_mov_b64 s[44:45], s[20:21]")
        e("v_lshlrev_b32 v13, 4, v1")
        e("s_mul_i32 s99, s69, 28672")
        e("s_movk_i32 s98, 1024")
        e(f"s_mov_b32 s96, {L_D}")
        e("s_cmp_eq_u32 s52, 3")
        e("s_cbranch_scc1 .Lsg1")
        e("s_mov_b64 s[44:45], s[18:19]")
        e("v_lshrrev_b32 v13, 2, v1")
        e("v_mul_u32_u24 v13, 3584, v13")
        e("v_lshl_add_u32 v13, v31, 4, v13")
        e("s_lshl_b32 s99, s69, 6")
        e(f"s_mov_b32 s98, {16*3584}")
        e(f"s_mov_b32 s96, {L_U}")
        e("s_cmp_eq_u32 s52, 2")
        e("s_cbranch_scc1 .Lsg1")
        e("s_mov_b64 s[44:45], s[16:17]")
        e(f"s_mov_b32 s96, {L_W}")
        self.label(".Lsg1")
        e("s_add_u32 s97, s96, 28672")
        self.label(".Lsg2")
        e("s_mov_b32 m0, s96")
        e("s_add_u32 s96, s96, 1024")
        if o['sgp']: e(f"s_waitcnt vmcnt({o['sgp']})")
        e(f"buffer_load_dwordx4 v13, s[44:47], s99 offen {o['wpol']} lds")
        e("s_add_u32 s99, s99, s98")
        e("s_cmp_lt_u32 s96, s97")
        e("s_cbranch_scc1 .Lsg2")
        self.label(".Lnosg")

    def race(self):
        e = self.e
        X = "0x5bd1e995"
        e("s_cmp_lg_u32 s52, 1")
        e("s_cbranch_scc1 .Lnorace")
        e("s_lshr_b32 s60, s2, 6")
        e("s_lshl_b32 s60, s60, 14")
        e("s_and_b32 s63, s2, 63")
        e("s_lshl_b32 s63, s63, 7")
        e("s_add_u32 s60, s60, s63")
        e("s_bfe_u32 s41, s2, 0x10003")
        e("s_lshl_b32 s63, s41, 13")
        e("s_add_u32 s60, s60, s63")
        e(f"s_add_u32 s60, s60, {WS_RACE}")
        e("s_xor_b32 s63, s60, 0x2000")
        e("s_getreg_b32 s40, hwreg(HW_REG_XCC_ID, 2, 1)")
        e("s_xor_b32 s41, s41, s40")
        e(f"s_mov_b32 s42, {X}")
        e(f"s_mov_b32 s43, {X}")
        e("s_waitcnt lgkmcnt(0)")
        e("s_load_dword s42, s[26:27], s60")
        e("s_load_dword s43, s[26:27], s63")
        e("s_waitcnt lgkmcnt(1)")
        e("s_mov_b64 s[44:45], s[42:43]")
        e(f"s_cmp_eq_u32 s44, {X}")
        e("s_cselect_b32 s44, 1, 0")
        e(f"s_cmp_eq_u32 s45, {X}")
        e("s_cselect_b32 s45, 1, 0")
        e("s_xor_b32 s41, s41, s44")
        e("s_cselect_b32 s40, 20, 10")
        e("s_lshl_b32 s40, 1, s40")
        e("s_add_u32 s40, s40, 1")
        e("s_cmp_eq_u32 s44, s45")
        e("s_cselect_b32 s40, 1, s40")
        self.label(".Lnorace")

    def checkin(self, skip, t=13):
        e = self.e
        e("s_cmp_lg_u32 s52, 1")
        e(f"s_cbranch_scc1 {skip}")
        e("v_mov_b32 v22, s40" if self.o['iod'] else "v_mov_b32 v22, 1")
        e("s_getreg_b32 s60, hwreg(HW_REG_XCC_ID, 0, 3)")
        e("s_lshl_b32 s60, s60, 2")
        e(f"v_mov_b32 v{t}, s60")
        e("s_mov_b64 exec, 1")
        e(f"buffer_atomic_add v22, v{t}, s[48:51], 0 offen sc1 {self.o['cpol']}")
        e("s_mov_b64 exec, -1")

    def setup(self):
        e = self.e; o = self.o
        NSH = o['NSH']; XS = o['PV'] + o['XS']
        B1 = 32 * NSH + 24 * XS
        e(f"s_mov_b32 s59, {hex(f2u(math.log2(math.e) / 16.0))}")
        e("v_and_b32 v6, 1, v1")
        e("v_mov_b32 v10, 0xffff")
        e("v_lshlrev_b32 v6, 4, v6")
        e("v_lshlrev_b32 v10, v6, v10")
        e("v_bfe_u32 v11, v1, 1, 2")
        for r in range(4):
            e(f"v_cmp_eq_u32 vcc, {r}, v11")
            e("s_nop 1")
            e(f"v_cndmask_b32 v{6+r}, 0, v10, vcc")
        e("s_lshl_b32 s60, s54, 8")
        e(f"s_add_u32 s60, s60, {WS_CNT}")
        e("v_mov_b32 v21, s60")
        e("s_lshl_b32 s60, s52, 11")
        e(f"s_add_u32 s60, s60, {L_SC}")
        e("v_lshl_add_u32 v19, v20, 3, s60")
        e("v_lshl_add_u32 v27, v1, 4, s60")
        for i in range(4): e(f"v_mov_b32 v{32+i}, 0xff80ff80")
        e("ds_write_b128 v27, v[32:35]")
        e("ds_write_b128 v27, v[32:35] offset:1024")
        e(f"s_lshl_b32 s60, s54, {13 if o['p2s'] else 14}")
        e(f"s_add_u32 s60, s60, {self.o['scb']}")
        e("v_lshl_add_u32 v20, v20, 3, s60")
        e("v_lshrrev_b32 v11, 4, v1")
        e("v_bfe_u32 v29, v1, 2, 2")
        e("v_lshl_add_u32 v29, v11, 3, v29")
        e("v_and_b32 v31, 3, v1")
        e("v_and_b32 v10, 1, v1")
        e("v_mul_u32_u24 v30, 896, v10")
        e("v_lshl_add_u32 v30, v11, 4, v30")
        e("s_cmp_eq_u32 s52, 0")
        e(f"s_cselect_b32 s63, 0, {XS}")
        e("s_lshl_b32 s60, s63, 5")
        e(f"s_sub_u32 s60, {B1 - 32 * NSH}, s60")
        e("v_lshl_add_u32 v23, v1, 5, s58")
        e("v_add_u32 v10, s60, v23")
        e(f"v_cmp_le_u32 vcc, {NSH}, v1")
        e("s_nop 1")
        e("v_cndmask_b32 v23, v23, v10, vcc")
        if XS:
            e("s_mul_i32 s60, s53, 3")
            e("s_add_u32 s60, s60, s52")
            e(f"s_add_u32 s60, s60, {8 * NSH - 1}")
            e("v_mov_b32 v10, s60")
            e("v_mad_u32_u24 v10, v1, 24, v10")
            e(f"v_subrev_u32 v11, {NSH}, v1")
            e("v_cmp_gt_u32 vcc, s63, v11")
            e("s_nop 1")
            e("v_cndmask_b32 v23, v23, v10, vcc")

    def mpoll(self, n, regs, addr, full, lab, m0=72, pol=''):
        e = self.e
        self.poll_begin()
        e(f"s_branch {lab}chk")
        self.label(lab + "poll")
        for p in range(n):
            e(f"s_mov_b64 exec, s[{m0+2*p}:{m0+2*p+1}]")
            e(f"buffer_load_dwordx4 v[{regs+4*p}:{regs+4*p+3}], {addr(p)} " + self.P(pol))
        e(f"s_mov_b64 exec, {full}")
        self.label(lab + "chk")
        for p in range(n):
            e(f"s_waitcnt vmcnt({n-1-p})")
            e(f"v_cmp_u_f32 s[{m0+2*p}:{m0+2*p+1}], v{regs+4*p}, v{regs+4*p+2}")
            if p == 1: e(f"s_or_b64 vcc, s[{m0}:{m0+1}], s[{m0+2}:{m0+3}]")
            elif p > 1: e(f"s_or_b64 vcc, vcc, s[{m0+2*p}:{m0+2*p+1}]")
        e(f"s_cbranch_scc0 {lab}ok")
        self.poll_again(lab + "poll")
        self.label(lab + "ok")

    def pround(self, n, regs, addr, full, m0, pol, mk=False):
        e = self.e
        if mk: e("s_movk_i32 s63, 0x8000")
        for p in range(n):
            if mk:
                e(f"v_and_or_b32 v121, v{regs+4*p+1}, v{regs+4*p+3}, s63")
                e(f"v_cmp_ne_u32 s[{m0+2*p}:{m0+2*p+1}], -1, v121")
            else: e(f"v_cmp_u_f32 s[{m0+2*p}:{m0+2*p+1}], v{regs+4*p}, v{regs+4*p+2}")
        for p in range(n):
            e(f"s_mov_b64 exec, s[{m0+2*p}:{m0+2*p+1}]")
            e(f"buffer_load_dwordx4 v[{regs+4*p}:{regs+4*p+3}], {addr(p)} " + self.P(pol))
        e(f"s_mov_b64 exec, {full}")

    def spoll(self, n, regs, addr, full, lab, tree, c0, c1, m0=6, pol='', mk=False):
        e = self.e
        self.poll_begin()
        e(f"s_branch {lab}chk")
        self.label(lab + "poll")
        e("s_sub_u32 s62, s62, 1")
        e(f"s_cbranch_scc1 {lab}ok")
        self.pround(n, regs, addr, full, m0, pol, mk)
        self.label(lab + "chk")
        tree()
        e(f"v_cmp_u_f32 vcc, v{c0}, v{c1}" if not mk else "v_cmp_ne_u32 vcc, -1, v120")
        e(f"s_cbranch_vccnz {lab}poll")
        self.label(lab + "ok")

    def apoll(self, n, regs, addr, full, lab, win):
        e = self.e
        e(f"s_mov_b32 s62, {10 * self.o['spin']}")
        e(f"s_branch {lab}chk")
        for p in range(n):
            self.label(f"{lab}i{p}")
            e("s_mov_b64 exec, vcc")
            e(f"s_waitcnt vmcnt({win - 1})")
            e(f"buffer_load_dwordx4 v[{regs+4*p}:{regs+4*p+3}], {addr(p)} sc1")
            e(f"s_mov_b64 exec, {full}")
            if p < n - 1:
                e("s_mov_b32 s63, 1")
                e(f"s_branch {lab}b{p}")
        self.label(lab + "again")
        e("s_sub_u32 s62, s62, 1")
        e(f"s_cbranch_scc1 {lab}ok")
        self.label(lab + "chk")
        e("s_mov_b32 s63, 0")
        for p in range(n):
            e(f"v_cmp_u_f32 vcc, v{regs+4*p+1}, v{regs+4*p+3}")
            if p == n - 1: e("s_cmp_lg_u32 s63, 0")
            e(f"s_cbranch_vccnz {lab}i{p}")
            self.label(f"{lab}b{p}")
        e(f"s_cbranch_scc1 {lab}again")
        self.label(lab + "ok")

    def swap13(self):
        e = self.e
        e("s_lshr_b32 s63, s60, 2")
        e("s_xor_b32 s63, s63, s60")
        e("s_and_b32 s63, s63, 0x2000")
        e("s_mul_i32 s63, s63, 5")
        e("s_xor_b32 s60, s60, s63")
        e("s_xor_b32 s60, s60, s55")

    def tail(self):
        e = self.e; o = self.o
        assert o['RA'] == 0
        ET = o['ET']; B1W = o['B1W']; B1G = o['B1G']
        e("s_mov_b32 s54, 0")
        e("v_mov_b32 v16, 0")
        e("v_mov_b32 v17, 1")
        e("s_mov_b64 exec, 1")
        if o['elig']: e(f"ds_cmpst_rtn_b32 v18, v16, v23, v16 offset:{L_CNT + 8}")
        else: e(f"ds_add_rtn_u32 v18, v16, v17 offset:{L_CNT + 8}")
        e("s_mov_b64 exec, -1")
        e("v_lshrrev_b32 v13, 5, v1")
        e("v_lshlrev_b32 v13, 10, v13")
        e("v_and_b32 v14, 7, v1")
        e("v_lshl_add_u32 v13, v14, 5, v13")
        e("v_bfe_u32 v14, v1, 4, 1")
        e("v_lshl_add_u32 v13, v14, 4, v13")
        e("s_lshl_b32 s60, s52, 11")
        e("v_add_u32 v13, s60, v13")
        e("v_lshlrev_b32 v14, 4, v1")
        e("v_lshlrev_b32 v15, 3, v1")
        HP = o['hp']
        if HP:
            e("s_lshl_b32 s60, s42, 3")
            e("s_xor_b32 s60, s60, s2")
            e("s_lshl_b32 s60, s60, 9")
            self.swap13()
            e(f"s_add_u32 s66, s60, {WS_PART + WS_PART2}")
        e("s_lshl_b32 s60, s2, 9")
        if o['iod']: self.swap13()
        e(f"s_add_u32 s60, s60, {WS_PART}")
        e("s_waitcnt lgkmcnt(0)")
        if ET:
            e("s_cmp_lg_u32 s101, 0")
            e("s_cbranch_scc1 .Ldec")
        e("v_readfirstlane_b32 s97, v18")
        e("s_xor_b32 s97, s97, 4" if o['elig'] else "s_cmp_lg_u32 s97, 0")
        e("s_cbranch_scc1 .Lnr" if not HP else "s_cbranch_scc1 .Lnr0")
        e("s_mov_b64 exec, 1")
        e("buffer_atomic_add v26, v16, s[48:51], s100 offen offset:64 sc0 sc1")
        e("s_mov_b64 exec, -1")
        RD = "v14"; CA = "v16"
        if HP:
            self.label(".Lnr0")
            RD = "v178"; CA = "v179"
            e("s_cmp_eq_u32 s45, 0")
            e("s_cselect_b32 s67, s66, s60")
            e("s_cselect_b32 s60, s60, s66")
            e(f"s_cselect_b32 s64, {L_RED2}, 0")
            e(f"s_cselect_b32 s65, 0, {L_RED2}")
            e("s_cselect_b32 s63, 12, 0")
            e("v_add_u32 v176, s64, v13")
            e("v_add_u32 v177, s64, v14")
            e("v_add_u32 v13, s65, v13")
            e("v_add_u32 v178, s65, v14")
            e("v_mov_b32 v179, s63")
            e("s_mov_b32 exec_lo, 0x00ff00ff")
            e("s_mov_b32 exec_hi, 0xff00ff00")
            for j in range(4):
                e(f"ds_write_b128 v176, v[{160+4*j}:{163+4*j}] offset:{L_RED + j*256}")
            e("s_mov_b64 exec, 1")
            e(f"ds_add_rtn_u32 v18, v179, v17 offset:{L_CNT}")
            e("s_mov_b64 exec, -1")
            e("v_xor_b32 v179, 12, v179")
            e("s_waitcnt lgkmcnt(0)")
            e("v_readfirstlane_b32 s66, v18")
            e("s_cmp_lg_u32 s66, 3")
            e("s_cbranch_scc1 .Lnr1")
            for p in range(8):
                e(f"ds_read_b128 v[{180+4*p}:{183+4*p}], v177 offset:{L_RED + p*1024}")
            pk = lambda d, a, b: e(f"v_pk_add_f32 v[{d}:{d+1}], v[{a}:{a+1}], v[{b}:{b+1}]")
            for p in range(1, 8):
                e(f"s_waitcnt lgkmcnt({7-p})")
                for i in (0, 2): pk(180+i, 180+i, 180+4*p+i)
            e("v_cvt_pk_bf16_f32 v180, v180, v181")
            e("v_cvt_pk_bf16_f32 v181, v182, v183")
            e("v_min_u32 v180, -2, v180")
            e("v_min_u32 v181, -2, v181")
            self.label(".Lnr1")
            e("s_cmp_lg_u32 s97, 0")
            e("s_cbranch_scc1 .Lnr")
        def last(n):
            if o['EG']:
                assert not o['fp']
                l = self.newlab("la")
                e("s_cmp_eq_u32 s99, 0")
                e(f"s_cbranch_scc1 {l}")
                for g in range(4): self.vgrp(g, n - 4 * g, False, 128)
                e("s_branch .Lrt")
                self.label(l)
        if not o['fp']:
            last(13)
            for g in range(4): self.vgrp(g, 13 - 4 * g, False)
            e("s_branch .Lrt")
        else: assert not ET
        if ET:
            assert B1W == B1G
            self.label(".Lte2")
            e("s_mov_b32 s101, 2")
            for g in range(4): self.vgrp(g, B1W + 12 - 4 * g, False)
            e("s_branch .Lrt")
        self.label(".Lnr")
        last(12)
        if o['fp']:
            for i in range(3): e(f"v_xor_b32 v{176+i}, {2048*(i+1)}, v13")
            e("v_lshrrev_b32 v179, 5, v1")
            e("v_lshlrev_b32 v179, 7, v179")
            e("v_and_b32 v180, 7, v1")
            e("v_lshl_add_u32 v179, v180, 4, v179")
            e("v_bfe_u32 v180, v1, 4, 1")
            e("v_lshl_add_u32 v179, v180, 3, v179")
        FG = o['fpg'] if o['fp'] else 3
        for g in range(FG): self.vgrp(g, 12 - 4 * g, False)
        if o['fp']:
            e(f"ds_read_b32 v18, v16 offset:{L_CNT}")
            for i in range(3):
                for j in range(4):
                    e(f"ds_read_b128 v[{128+16*i+4*j}:{131+16*i+4*j}], v{176+i} offset:{L_RED + j*256}")
            e("s_waitcnt lgkmcnt(12)")
            e("v_readfirstlane_b32 s63, v18")
            e("s_cmp_lg_u32 s63, 3")
            e("s_cbranch_scc1 .Lslow")
            pk = lambda d, a, b: e(f"v_pk_add_f32 v[{d}:{d+1}], v[{a}:{a+1}], v[{b}:{b+1}]")
            for i in range(3):
                e(f"s_waitcnt lgkmcnt({8 - 4 * i})")
                for r in range(0, 16, 2): pk(48 + r, 48 + r, 128 + 16 * i + r)
            for g in range(FG, 4): self.vgrp(g, 12 - 4 * g, False)
            self.plog()
            self.ts(3)
            e("s_mov_b32 s64, 0x00ff00ff")
            e("s_mov_b32 s65, 0x00ff00ff")
            e("s_nop 3")
            for jj in (0, 8):
                for i in range(4): e(f"v_permlane32_swap_b32 v{48+jj+i}, v{52+jj+i}")
            for jj in (0, 8):
                for i in range(4): e(f"v_add_f32_dpp v{48+jj+i}, v{52+jj+i}, v{48+jj+i} row_ror:8 row_mask:0xf bank_mask:0xf")
            e("s_mov_b64 exec, s[64:65]")
            for jj in (0, 8):
                e(f"v_cvt_pk_bf16_f32 v{48+jj}, v{48+jj}, v{49+jj}")
                e(f"v_cvt_pk_bf16_f32 v{49+jj}, v{50+jj}, v{51+jj}")
                e(f"v_min_u32 v{48+jj}, -2, v{48+jj}")
                e(f"v_min_u32 v{49+jj}, -2, v{49+jj}")
                e(f"buffer_store_dwordx2 v[{48+jj}:{49+jj}], v179, s[36:39], s60 offen offset:{jj*32} " + self.P("paS"))
            e("s_mov_b64 exec, -1")
            self.ts(4)
            e("s_branch .Lnotlast")
            self.label(".Lslow")
        for g in range(FG, 4): self.vgrp(g, 12 - 4 * g, False)
        self.label(".Lrt")
        self.plog()
        self.ts(3)
        if HP:
            e("s_cmp_lg_u32 s66, 3")
            e("s_cbranch_scc1 .Lrt1")
            e("buffer_store_dwordx2 v[180:181], v15, s[36:39], s67 offen " + self.P("paS"))
            self.label(".Lrt1")
        e("s_mov_b32 exec_lo, 0x00ff00ff")
        e("s_mov_b32 exec_hi, 0xff00ff00")
        e("s_nop 3" if not HP else "s_nop 1")
        for j in range(4):
            e(f"ds_write_b128 v13, v[{48+4*j}:{51+4*j}] offset:{L_RED + j*256}")
        e("s_mov_b64 exec, 1")
        e(f"ds_add_rtn_u32 v18, {CA}, v17 offset:{L_CNT}")
        e("s_mov_b64 exec, -1")
        for p in range(8):
            e(f"ds_read_b128 v[{64+4*p}:{67+4*p}], {RD} offset:{L_RED + p*1024}")
        if o['ppk']:
            pk = lambda d, a, b: e(f"v_pk_add_f32 v[{d}:{d+1}], v[{a}:{a+1}], v[{b}:{b+1}]")
            e("s_waitcnt lgkmcnt(6)")
            e("v_readfirstlane_b32 s63, v18")
            for i in (0, 2): pk(64+i, 64+i, 68+i)
            e("s_cmp_lg_u32 s63, 3")
            e("s_cbranch_scc1 .Lnotlast")
            e("s_waitcnt lgkmcnt(4)")
            for i in (0, 2): pk(72+i, 72+i, 76+i)
            e("s_waitcnt lgkmcnt(2)")
            for i in (0, 2): pk(80+i, 80+i, 84+i)
            for i in (0, 2): pk(64+i, 64+i, 72+i)
            e("s_waitcnt lgkmcnt(0)")
            for i in (0, 2): pk(88+i, 88+i, 92+i)
            for i in (0, 2): pk(64+i, 64+i, 80+i)
            for i in (0, 2): pk(64+i, 64+i, 88+i)
        else:
            e("s_waitcnt lgkmcnt(8)" if not o['ts'] else "s_waitcnt lgkmcnt(0)")
            e("v_readfirstlane_b32 s63, v18")
            e("s_cmp_lg_u32 s63, 3")
            e("s_cbranch_scc1 .Lnotlast")
            for p in range(0, 8, 2):
                e(f"s_waitcnt lgkmcnt({6-p})")
                for i in range(4): e(f"v_add_f32 v{64+4*p+i}, v{64+4*p+i}, v{68+4*p+i}")
                if p == 2:
                    for i in range(4): e(f"v_add_f32 v{64+i}, v{64+i}, v{72+i}")
            for i in range(4): e(f"v_add_f32 v{80+i}, v{80+i}, v{88+i}")
            for i in range(4): e(f"v_add_f32 v{64+i}, v{64+i}, v{80+i}")
        e("v_cvt_pk_bf16_f32 v64, v64, v65")
        e("v_cvt_pk_bf16_f32 v65, v66, v67")
        e("v_min_u32 v64, -2, v64")
        e("v_min_u32 v65, -2, v65")
        e("buffer_store_dwordx2 v[64:65], v15, s[36:39], s60 offen " + self.P("paS"))
        self.ts(4)
        self.label(".Lnotlast")
        e("s_cmp_lg_u32 s97, 0")
        e("s_cbranch_scc1 .Lrolewait" if not o['dry'] else "s_cbranch_scc1 .Ldry")
        if ET:
            e("s_cmp_eq_u32 s101, 0")
            e("s_cbranch_scc1 .Llate")
            e("s_cmp_ge_u32 s69, 112")
            e("s_cbranch_scc1 .Lrdone")
            e(f"s_mov_b32 s98, {L_U}")
            e("s_cmp_lt_u32 s69, 56")
            e("s_cbranch_scc1 .Lldg0")
            e(f"s_mov_b32 s98, {L_W + 65536}")
            e("s_branch .Lldw0")
            self.label(".Llate")
        e("s_waitcnt vmcnt(0)")
        self.label(".Ldec")
        self.ts(10)
        e("v_readfirstlane_b32 s69, v26")
        if o['sg']:
            assert o['c2'] and o['elig'] and o['rord'] == 'GW'
            e("s_add_u32 s69, s69, 56")
        e("s_cmp_eq_u32 s100, 64")
        e("s_cbranch_scc1 .Lrgot")
        if o['sg']: e("s_sub_u32 s69, s69, 28")
        Q = 28 if o['c2'] else 7
        e("s_mul_i32 s56, s58, 7" if not o['c2'] else "s_mul_i32 s56, s100, 7")
        e(f"s_cmp_lt_u32 s69, {Q}")
        if o['rord'] == 'GW': e(f"s_cselect_b32 s57, 0, {56 - Q}")
        else:
            e(f"s_cselect_b32 s57, {56 + Q}, 0")
            e(f"s_sub_u32 s57, s57, {Q}")
        e("s_add_u32 s56, s56, s57")
        e(f"s_cmp_lt_u32 s69, {2 * Q}")
        e("s_cselect_b32 s56, s56, 255")
        e("s_add_u32 s69, s69, s56")
        self.label(".Lrgot")
        e("s_mov_b64 exec, 1")
        e("v_mov_b32 v18, s69")
        e(f"ds_write_b32 v16, v18 offset:{L_CNT + 4}")
        e("s_mov_b64 exec, -1")
        if o['coop']:
            assert not ET and not o['gch'] and not o['wch'] and not o['dq'] and not o['hp'] and not o['gfl'] and o['dry']
            self.coop()
        e(f"s_mov_b32 s96, {L_W}")
        e("s_cmp_ge_u32 s69, 112")
        e("s_cbranch_scc1 .Lrnone")
        e("s_cmp_lt_u32 s69, 56")
        e("s_cbranch_scc1 .Lldg")
        e("s_sub_u32 s56, s69, 56")
        e("s_mul_i32 s99, s56, 37")
        e("s_lshr_b32 s99, s99, 8")
        e("s_mul_i32 s57, s99, 7")
        e("s_sub_u32 s57, s56, s57")
        e(f"s_mul_i32 s99, s99, {512*896}")
        e("s_lshl_b32 s57, s57, 7")
        e("s_add_u32 s99, s99, s57")
        e("v_lshrrev_b32 v27, 3, v1")
        e("v_mul_u32_u24 v27, 896, v27")
        e("v_and_b32 v18, 7, v1")
        e("v_lshl_add_u32 v27, v18, 4, v27")
        if 'W' in o['fakew']:
            e("v_mov_b32 v27, v14")
            e("s_lshl_b32 s99, s56, 16")
        e(f"s_mov_b32 s98, {L_W + 1024 * o['cut'][0]}")
        e("s_cmp_eq_u32 s101, 1")
        e(f"s_cselect_b32 s98, {L_W + 1024 * B1W}, s98")
        self.label(".Lldw0")
        self.srd(40, 12, 3670016)
        self.label(".Lldw")
        if o['wch']:
            assert not ET and not o['fakew']
            for i in range(4):
                e("s_mov_b32 m0, s96")
                e(f"s_add_u32 s96, s96, {1024 * (1 if i < 3 else 13)}")
                e(f"buffer_load_dwordx4 v27, s[40:43], s99 offen {o['wpol']} lds")
                e(f"s_add_u32 s99, s99, {8 * 896 * (1 if i < 3 else 13)}")
            e("s_cmp_lt_u32 s96, s98")
            e("s_cbranch_scc1 .Lldw")
            e(f"s_sub_u32 s96, s96, {1024 * 60}")
            e(f"s_sub_u32 s99, s99, {8 * 896 * 60}")
            e(f"s_cmp_lt_u32 s96, {L_W + 16384}")
            e("s_cbranch_scc1 .Lldw")
        else:
            e("s_mov_b32 m0, s96")
            e("s_add_u32 s96, s96, 1024")
            e(f"buffer_load_dwordx4 v27, s[40:43], s99 offen {o['wpol']} lds")
            e(f"s_add_u32 s99, s99, {8*896 if 'W' not in o['fakew'] else 1024}")
            e("s_cmp_lt_u32 s96, s98")
            e("s_cbranch_scc1 .Lldw")
        if ET:
            e("s_cmp_eq_u32 s101, 1")
            e("s_cbranch_scc1 .Lte2")
        e("s_branch .Lrdone")
        self.label(".Lrnone")
        e("s_cmp_eq_u32 s101, 1")
        e("s_cbranch_scc1 .Lnr")
        e("s_branch .Lrdone")
        self.label(".Lldg")
        def dload():
            self.srd(40, 20, 1605632)
            e("s_mul_i32 s99, s69, 28672")
            e(f"s_mov_b32 s96, {L_D}")
            self.label(".Lldg2")
            e("s_mov_b32 m0, s96")
            e("s_add_u32 s96, s96, 1024")
            e(f"buffer_load_dwordx4 v14, s[40:43], s99 offen {o['dpol']} lds")
            e("s_add_u32 s99, s99, 1024")
            e(f"s_cmp_lt_u32 s96, {L_D + 1024 * o['cut'][1]}")
            e("s_cbranch_scc1 .Lldg2")
        if o['gch']:
            assert not ET and not o['dq'] and 'G' in o['fresh'] and not o['gfl']
            dload()
            e(f"s_mov_b32 s96, {L_W}")
        e("s_lshl_b32 s99, s69, 6")
        e("v_lshrrev_b32 v27, 2, v1")
        e("v_mul_u32_u24 v27, 3584, v27")
        e("v_lshl_add_u32 v27, v31, 4, v27")
        if 'G' in o['fakew']:
            e("v_mov_b32 v27, v14")
            e("s_mul_i32 s99, s69, 28672")
        e(f"s_mov_b32 s98, {L_U}")
        e("s_cmp_eq_u32 s101, 1")
        e(f"s_cselect_b32 s98, {L_W + 512 * B1G}, s98")
        self.label(".Lldg0")
        self.srd(40, 16, 1605632)
        self.srd(44, 18, 1605632)
        self.label(".Lldg1")
        e("s_mov_b32 m0, s96")
        e(f"s_add_u32 s57, s96, {L_U - L_W}")
        GP = o['wpol'] if o['gpol'] is None else o['gpol']
        e(f"buffer_load_dwordx4 v27, s[40:43], s99 offen {GP} lds")
        e("s_mov_b32 m0, s57")
        e("s_add_u32 s96, s96, 1024")
        e(f"buffer_load_dwordx4 v27, s[44:47], s99 offen {GP} lds")
        e(f"s_add_u32 s99, s99, {16*3584 if 'G' not in o['fakew'] else 1024}")
        e("s_cmp_lt_u32 s96, s98")
        e("s_cbranch_scc1 .Lldg1")
        if ET:
            e("s_cmp_eq_u32 s101, 1")
            e("s_cbranch_scc1 .Lte2")
        if not o['dq'] and not o['gch']: dload()
        self.label(".Lrdone")
        e("s_mov_b32 s54, 1")
        e("s_waitcnt lgkmcnt(0)")
        if o['dry']:
            e("s_branch .Lrolewait")
            self.label(".Ldry")
            e(f"s_cmp_gt_u32 s63, 1" if o['coop'] != 2 else "s_cmp_lg_u32 s63, 2")
            e("s_cbranch_scc1 .Lrolewait" if not o['coop'] else "s_cbranch_scc1 .Lcwait")
            for r in (0, 24, 26, 48, 50, 64): e(f"s_mov_b64 s[{r}:{r+1}], 0")
            for r in (56, 57, 59, 61, 63, 96, 97, 98, 99, 100, 101): e(f"s_mov_b32 s{r}, 0")
            e("s_waitcnt lgkmcnt(0)")
            e("s_mov_b64 exec, 0")
            e("s_branch .Lwok")
            self.label(".Ldryend")
            e("s_mov_b64 exec, -1")
            if o['ts']:
                e("s_waitcnt lgkmcnt(0)")
                for k in (5, 11, 12) if not o['hts'] else (): e(f"s_mov_b32 s{70+2*k}, 0")
            if o['coop']:
                self.label(".Lcwait")
                e(f"s_mov_b32 s62, {10 * o['spin']}")
                self.label(".Lcw1")
                e(f"ds_read_b32 v18, v16 offset:{L_CNT + 4}")
                e("s_sub_u32 s62, s62, 1")
                e("s_cbranch_scc1 .Lrolewait")
                e("s_waitcnt lgkmcnt(0)")
                e("v_readfirstlane_b32 s69, v18")
                e("s_cmp_eq_u32 s69, -1")
                e("s_cbranch_scc1 .Lcw1")
                e("s_branch .Lcoop")
        self.label(".Lrolewait")
        e("s_mov_b64 s[0:1], -1")
        e("s_barrier")
        e(f"ds_read_b32 v18, v16 offset:{L_CNT + 4}")
        e("s_waitcnt lgkmcnt(0)")
        e("v_readfirstlane_b32 s69, v18")
        e("s_mov_b32 s68, 3")
        e("s_cmp_ge_u32 s69, 112")
        e("s_cbranch_scc1 .Lfin")
        e("s_mov_b32 s68, 1")
        e("s_cmp_lt_u32 s69, 56")
        e("s_cbranch_scc1 .LstageG")
        e("s_mov_b32 s68, 0")
        e("s_sub_u32 s69, s69, 56")
        self.stageW()
        self.stageG()
        self.label(".Lfin")
        if o['ts']:
            self.ts(8)
            e("s_waitcnt lgkmcnt(0)")
            if o['dbgts']:
                e("s_cmp_eq_u32 s94, 0")
                e("s_cbranch_scc1 .Lnodbg")
                e("s_mov_b64 s[48:49], s[84:85]")
                e("s_mov_b32 s50, 256")
                e("s_mov_b32 s51, 0x20000")
                e("s_not_b32 s60, s70")
                e("v_mov_b32 v13, 0")
                e("s_mov_b64 exec, 1")
                for i, r in enumerate(("s60", "s82", "s76", "s88", "s80", "s92", "s94", "s86")):
                    e(f"v_mov_b32 v14, {r}")
                    e(f"buffer_atomic_umax v14, v13, s[48:51], 0 offen offset:{32+4*i} sc1")
                e("s_mov_b64 exec, -1")
                self.label(".Lnodbg")
            e("s_lshl_b32 s60, s2, 2")
            e("s_add_u32 s60, s60, s52")
            e("s_lshl_b32 s60, s60, 6")
            e(f"s_add_u32 s60, s60, {WS_TS}")
            e("v_mov_b32 v13, 0")
            e("s_getreg_b32 s63, hwreg(HW_REG_XCC_ID)")
            for i in range(13):
                e(f"v_mov_b32 v{64+i}, s{70+2*i}")
            e("v_mov_b32 v77, s63")
            e("v_mov_b32 v78, s3")
            e("v_mov_b32 v79, s68")
            e("s_mov_b64 exec, 1")
            for i in range(4):
                e(f"buffer_store_dwordx4 v[{64+4*i}:{67+4*i}], v13, s[36:39], s60 offen offset:{16*i}")
            if o['prof']:
                e("s_mov_b64 exec, -1")
                e("s_lshl_b32 s60, s2, 2")
                e("s_add_u32 s60, s60, s52")
                e("s_lshl_b32 s60, s60, 8")
                e(f"s_add_u32 s60, s60, {WS_PROF}")
                e("v_lshlrev_b32 v13, 2, v1")
                e("buffer_store_dword v0, v13, s[36:39], s60 offen")
        self.label(".Lend")
        e("s_endpgm")

    def coop(self):
        e = self.e; o = self.o
        def claim(n):
            e("s_mov_b64 exec, 1")
            e(f"ds_add_rtn_u32 v18, v16, v17 offset:{L_CNT + 12}")
            e("s_mov_b64 exec, -1")
            e("s_waitcnt lgkmcnt(0)")
            e("v_readfirstlane_b32 s56, v18")
            e(f"s_cmp_ge_u32 s56, {n}")
            e("s_cbranch_scc1 .Lrolewait")
        self.label(".Lcoop")
        e("s_cmp_ge_u32 s69, 112")
        e("s_cbranch_scc1 .Lrdone")
        e("s_cmp_lt_u32 s69, 56")
        e("s_cbranch_scc1 .Lcg")
        e("s_sub_u32 s56, s69, 56")
        e("s_mul_i32 s98, s56, 37")
        e("s_lshr_b32 s98, s98, 8")
        e("s_mul_i32 s57, s98, 7")
        e("s_sub_u32 s57, s56, s57")
        e(f"s_mul_i32 s98, s98, {512*896}")
        e("s_lshl_b32 s57, s57, 7")
        e("s_add_u32 s98, s98, s57")
        e("v_lshrrev_b32 v27, 3, v1")
        e("v_mul_u32_u24 v27, 896, v27")
        e("v_and_b32 v18, 7, v1")
        e("v_lshl_add_u32 v27, v18, 4, v27")
        self.srd(40, 12, 3670016)
        self.label(".Lcw")
        claim(8)
        e("s_lshl_b32 s96, s56, 13")
        e(f"s_add_u32 s96, s96, {L_W}")
        e(f"s_mul_i32 s99, s56, {64*896}")
        e("s_add_u32 s99, s99, s98")
        for i in range(8):
            e("s_mov_b32 m0, s96")
            e("s_add_u32 s96, s96, 1024")
            e(f"buffer_load_dwordx4 v27, s[40:43], s99 offen {o['wpol']} lds")
            e(f"s_add_u32 s99, s99, {8*896}")
        e("s_branch .Lcw")
        self.label(".Lcg")
        e("v_lshrrev_b32 v27, 2, v1")
        e("v_mul_u32_u24 v27, 3584, v27")
        e("v_lshl_add_u32 v27, v31, 4, v27")
        self.srd(40, 16, 1605632)
        self.srd(44, 18, 1605632)
        self.srd(28, 20, 1605632)
        self.label(".Lcg1")
        claim(7)
        e("s_lshl_b32 s96, s56, 12")
        e("s_mul_i32 s98, s69, 28672")
        e("s_add_u32 s98, s98, s96")
        e(f"s_add_u32 s96, s96, {L_W}")
        e(f"s_mul_i32 s99, s56, {64*3584}")
        e("s_lshl_b32 s57, s69, 6")
        e("s_add_u32 s99, s99, s57")
        for i in range(4):
            e("s_mov_b32 m0, s96")
            e(f"s_add_u32 s57, s96, {L_U - L_W}")
            e(f"buffer_load_dwordx4 v27, s[40:43], s99 offen {o['wpol']} lds")
            e("s_mov_b32 m0, s57")
            e(f"s_add_u32 s57, s96, {L_D - L_W}")
            e(f"buffer_load_dwordx4 v27, s[44:47], s99 offen {o['wpol']} lds")
            e("s_mov_b32 m0, s57")
            e("s_add_u32 s96, s96, 1024")
            e(f"buffer_load_dwordx4 v14, s[28:31], s98 offen {o['dpol']} lds")
            e(f"s_add_u32 s99, s99, {16*3584}")
            e("s_add_u32 s98, s98, 1024")
        e("s_branch .Lcg1")

    def bar(self):
        e = self.e
        if self.o['dry']:
            l = self.newlab("nb")
            e(f"s_cbranch_execz {l}")
            e("s_barrier")
            self.label(l)
        else: e("s_barrier")

    def stageW(self):
        e = self.e; o = self.o
        NC = o['NC']; dry = o['dry']
        e("s_mul_i32 s60, s69, 37")
        e("s_lshr_b32 s60, s60, 8")
        e("s_lshl_b32 s60, s60, 1")
        e("s_lshr_b32 s63, s52, 1")
        e("s_add_u32 s60, s60, s63")
        e("s_lshl_b32 s60, s60, 12")
        if o['iod']: self.swap13()
        e("s_and_b32 s63, s52, 1")
        e("s_lshl_b32 s63, s63, 8")
        e("s_add_u32 s60, s60, s63")
        e(f"s_add_u32 s60, s60, {WS_PART}")
        e("v_and_b32 v13, 1, v1")
        e("v_lshlrev_b32 v13, 16, v13")
        e("v_bfe_u32 v14, v1, 1, 3")
        e("v_lshl_add_u32 v13, v14, 9, v13")
        e("v_lshrrev_b32 v14, 4, v1")
        e("v_lshl_add_u32 v13, v14, 4, v13")
        HP = o['hp']
        if HP:
            assert 'W' not in o['fresh']
            e(f"s_add_u32 s61, s60, {WS_PART2}")
        def lds_():
            for t in range(4):
                e(f"buffer_load_dwordx4 v[{64+4*t}:{67+4*t}], v13, s[36:39], s60 offen offset:{t*64} " + self.P("paL"))
            for t in range(4 if HP else 0):
                e(f"buffer_load_dwordx4 v[{100+4*t}:{103+4*t}], v13, s[36:39], s61 offen offset:{t*64} " + self.P("paL"))
        lds_()
        e("v_lshlrev_b32 v14, 7, v29")
        e("v_lshl_add_u32 v14, v31, 3, v14")
        e("s_lshl_b32 s63, s52, 14")
        e("v_add_u32 v14, s63, v14")
        e("v_lshrrev_b32 v15, 5, v1")
        e("v_lshlrev_b32 v15, 8, v15")
        e("v_and_b32 v16, 31, v1")
        e("v_lshl_add_u32 v15, v16, 2, v15")
        e("s_lshl_b32 s63, s52, 9")
        e(f"s_add_u32 s63, s63, {L_R2}")
        e("v_add_u32 v15, s63, v15")
        e("v_lshlrev_b32 v16, 3, v1")
        e("s_lshl_b32 s63, s69, 9")
        e(f"s_add_u32 s63, s63, {WS_Y}")
        if o['iod']:
            e("s_mul_i32 s96, s69, 147")
            e("s_lshr_b32 s96, s96, 11")
            e(f"s_mul_i32 s96, s96, {16384 - 7168}")
            e("s_add_u32 s63, s63, s96")
            e("s_and_b32 s96, s52, 1")
            e("s_lshl_b32 s96, s96, 13")
        else: e("s_mul_i32 s96, s52, 28672")
        e("s_add_u32 s63, s63, s96")
        e(f"s_add_u32 s96, s63, {4*28672}")
        e(f"s_cmp_ge_u32 s52, {NC}")
        e("s_cselect_b32 s59, 1, 0")
        def wtr(t):
            for ct in range(4):
                r = 128 + 16 * t + 4 * ct
                e(f"ds_read_b64_tr_b16 v[{r}:{r+1}], v14 offset:{L_W + t*4096 + ct*32}")
                e(f"ds_read_b64_tr_b16 v[{r+2}:{r+3}], v14 offset:{L_W + t*4096 + ct*32 + 512}")
            e("s_waitcnt lgkmcnt(4)" if not o["ts"] else "s_waitcnt lgkmcnt(0)")
        t0 = 0
        for t1 in (o['wch'] or []):
            assert 'W' not in o['fresh']
            e(f"s_waitcnt vmcnt({(8 if HP else 4) + 16 * (4 - t1)})")
            e("s_barrier")
            for t in range(t0, t1): wtr(t)
            t0 = t1
        e(f"s_waitcnt vmcnt({8 if HP else 4})" if 'W' not in o['fresh'] else "s_waitcnt vmcnt(0)")
        if 'W' in o['fresh']:
            e("v_max3_u32 v98, v64, v66, v68")
            e("v_max3_u32 v99, v70, v72, v74")
            e("v_max3_u32 v98, v98, v76, v78")
            e("v_max_u32 v98, v98, v99")
            e("v_cmp_eq_u32 s[64:65], -1, v98")
            e("s_or_b32 s64, s64, 1")
        e("s_barrier")
        self.ts(9)
        if 'W' in o['fresh']:
            e("s_mov_b64 exec, s[64:65]")
            lds_()
            e("s_mov_b64 exec, -1")
        for t in range(t0, 4): wtr(t)
        self.poll_begin()
        e("s_waitcnt lgkmcnt(0)")
        if 'W' in o['fresh']: e("s_mov_b64 exec, s[64:65]")
        e("s_branch .Lwchk")
        self.label(".Lwpoll")
        lds_()
        self.label(".Lwchk")
        if HP:
            e("s_waitcnt vmcnt(4)")
            e("v_max3_u32 v98, v64, v66, v68")
            e("v_max3_u32 v99, v70, v72, v74")
            e("v_max3_u32 v98, v98, v76, v78")
            e("s_waitcnt vmcnt(2)")
            e("v_max3_u32 v99, v99, v100, v102")
            e("v_max3_u32 v98, v98, v104, v106")
            e("s_waitcnt vmcnt(0)")
            e("v_max3_u32 v99, v99, v108, v110")
            e("v_max3_u32 v98, v98, v112, v114")
        else:
            e("s_waitcnt vmcnt(2)")
            e("v_max3_u32 v98, v64, v66, v68")
            e("s_waitcnt vmcnt(0)")
            e("v_max3_u32 v99, v70, v72, v74")
            e("v_max3_u32 v98, v98, v76, v78")
        e("v_max_u32 v98, v98, v99")
        e("v_cmp_eq_u32 vcc, -1, v98")
        e("s_and_b64 exec, exec, vcc")
        e("s_cbranch_scc0 .Lwok")
        self.poll_again(".Lwpoll")
        self.label(".Lwok")
        e("s_mov_b64 exec, s[0:1]")
        self.ts(5)
        for t in range(4):
            for ct in range(4):
                cin = "0" if t == 0 else f"v[{80+4*ct}:{83+4*ct}]"
                r = 128 + 16 * t + 4 * ct
                e(f"v_mfma_f32_16x16x32_bf16 v[{80+4*ct}:{83+4*ct}], v[{64+4*t}:{67+4*t}], v[{r}:{r+3}], {cin}")
        for t in range(4 if HP else 0):
            for ct in range(4):
                r = 128 + 16 * t + 4 * ct
                e(f"v_mfma_f32_16x16x32_bf16 v[{80+4*ct}:{83+4*ct}], v[{100+4*t}:{103+4*t}], v[{r}:{r+3}], v[{80+4*ct}:{83+4*ct}]")
        e("s_cmp_lg_u32 s59, 0")
        e("s_nop 3")
        for ct in range(4):
            e(f"v_pk_add_f32 v[{80+4*ct}:{81+4*ct}], v[{80+4*ct}:{81+4*ct}], v[{82+4*ct}:{83+4*ct}]")
        for ct in range(4):
            e(f"v_permlane32_swap_b32 v{80+4*ct}, v{81+4*ct}")
        for ct in range(4):
            e(f"v_add_f32 v{80+4*ct}, v{80+4*ct}, v{81+4*ct}")
        e("v_permlane16_swap_b32 v80, v84")
        e("s_nop 0")
        e("v_permlane16_swap_b32 v88, v92")
        e("v_add_f32 v80, v80, v84")
        e("s_nop 0")
        e("v_add_f32 v88, v88, v92")
        e("ds_write2_b32 v15, v80, v88 offset0:0 offset1:32")
        e("s_waitcnt lgkmcnt(0)")
        self.bar()
        if NC < 4: e("s_cbranch_scc1 .Lfin")
        for w in range(4):
            e(f"ds_read_b64 v[{64+2*w}:{65+2*w}], v16 offset:{L_R2 + 512*w}")
        e("s_waitcnt lgkmcnt(2)")
        e("v_pk_add_f32 v[64:65], v[64:65], v[66:67]")
        e("s_waitcnt lgkmcnt(0)")
        e("v_pk_add_f32 v[68:69], v[68:69], v[70:71]")
        e("v_pk_add_f32 v[64:65], v[64:65], v[68:69]")
        e("buffer_store_dwordx2 v[64:65], v16, s[36:39], s63 offen " + self.P("yS"))
        if NC == 8:
            e("buffer_store_dwordx2 v[64:65], v16, s[36:39], s96 offen " + self.P("yS"))
        if dry: e("s_cbranch_execz .Lgok")
        e("s_branch .Lfin")

    def stageG(self):
        e = self.e; o = self.o; NC = o['NC']; dry = o['dry']; gts = o['gts']
        WS_P2 = WS_Y + NC * 28672
        P2S = o['p2s']
        WS_P2I = globals()['WS_P2I'] if not P2S else o['scb']
        iod = o['iod']
        self.cyc = gts
        if gts == 2: gts = False
        self.label(".LstageG")
        if o['dq']:
            self.srd(40, 20, 1605632)
            e("s_lshl_b32 s60, s69, 2")
            e("s_add_u32 s60, s60, s52")
            e("s_mul_i32 s99, s60, 7168")
            e("s_mul_i32 s96, s52, 7168")
            e(f"s_add_u32 s96, s96, {L_D}")
            for i in range(7):
                e("s_mov_b32 m0, s96")
                e("s_add_u32 s96, s96, 1024")
                e(f"buffer_load_dwordx4 v14, s[40:43], s99 offen {o['dpol']} lds")
                e("s_add_u32 s99, s99, 1024")
        e("s_and_b32 s60, s52, 1")
        e("s_mul_i32 s60, s60, 56")
        e("v_add_u32 v14, s60, v1")
        e("v_lshrrev_b32 v13, 4, v14")
        e("v_lshlrev_b32 v13, 9, v13")
        e("v_and_b32 v15, 15, v14")
        e("v_lshl_add_u32 v13, v15, 4, v13")
        e("s_lshr_b32 s63, s52, 1")
        e("s_lshl_b32 s60, s63, 8")
        e(f"s_add_u32 s60, s60, {WS_Y}")
        e("v_add_u32 v13, s60, v13")
        e("s_mul_i32 s63, s63, 896")
        e("v_lshl_add_u32 v16, v14, 3, s63")
        self.srd(40, 4, 1792)
        e("s_mov_b32 s64, -1")
        e("s_mov_b32 s65, 0x00ffffff")
        if NC == 8: e("s_mul_i32 s60, s58, 28672")
        if iod:
            e("s_lshr_b32 s60, s58, 2")
            e("s_lshl_b32 s60, s60, 13")
            e("s_xor_b32 s60, s60, s55")
        for p in range(8):
            if iod: e(f"s_add_u32 s{28+p}, s60, {3584*(p&1) + 16384*(p>>1)}")
            elif NC == 8: e(f"s_add_u32 s{28+p}, s60, {3584*p}")
            elif NC == 2:
                e(f"s_mov_b32 s{28+p}, {3584*p}")
                e(f"s_cmp_eq_u32 s58, {p}")
                e(f"s_cselect_b32 s{28+p}, {3584*p + 28672}, s{28+p}")
            else: e(f"s_mov_b32 s{28+p}, {3584*p}")
        ya = lambda p: f"v13, s[36:39], s{28+p} offen"
        e("v_mov_b32 v96, 0")
        e("v_mov_b32 v97, 0")
        for t in range(16): e(f"v_mov_b32 v{33+2*t}, -1")
        e("s_mov_b64 exec, s[64:65]")
        e("buffer_load_dwordx2 v[104:105], v16, s[40:43], 0 offen")
        def yl():
            for p in range(8):
                e(f"buffer_load_dwordx4 v[{32+4*p}:{35+4*p}], {ya(p)} " + self.P("yL"))
        if 'G' not in o['fresh']: yl()
        e("s_mov_b64 exec, -1")
        e("s_lshl_b32 s60, s52, 3")
        e("v_mov_b32 v17, s60")
        e("s_and_b32 s60, s60, 16")
        e("v_mov_b32 v18, s60")
        e("v_bfe_u32 v14, v1, 3, 1")
        e("v_lshlrev_b32 v14, 4, v14")
        e("v_and_b32 v15, 7, v1")
        e("v_lshl_add_u32 v28, v15, 1, v14")
        e("s_lshl_b32 s60, s52, 5")
        e("v_add_u32 v28, s60, v28")
        e("v_lshrrev_b32 v14, 4, v1")
        e("v_and_b32 v19, 1, v1")
        e("v_lshlrev_b32 v19, 4, v19")
        e("v_lshl_add_u32 v19, v14, 5, v19")
        e("v_and_b32 v20, 15, v1")
        e("v_lshlrev_b32 v20, 3, v20")
        if iod:
            e("s_and_b32 s60, s52, 1")
            e(f"s_mul_i32 s60, s60, {7*16384}")
            e("s_lshr_b32 s63, s52, 1")
            e("s_lshl_b32 s63, s63, 13")
            e("s_xor_b32 s63, s63, s55")
            e("s_add_u32 s60, s60, s63")
        else: e(f"s_mul_i32 s60, s52, {7*7168}")
        e("s_lshl_b32 s63, s69, 7")
        e("s_add_u32 s60, s60, s63")
        PS = [96, 97, 98, 99, 100, 101, 57]
        for j in range(7): e(f"s_add_u32 s{PS[j]}, s60, {WS_P2 + 7168*j if not iod else WS_P2I + 16384*j}")
        e("v_and_b32 v26, 1, v14")
        e("v_mul_u32_u24 v26, 896, v26")
        e("v_lshl_add_u32 v26, v15, 2, v26")
        e("v_and_b32 v14, 2, v14")
        e("v_add_u32 v26, v26, v14")
        e("s_min_u32 s60, s69, 27" if not iod else "s_lshr_b32 s60, s69, 1")
        e("s_lshl_b32 s60, s60, 5")
        e("v_add_u32 v26, s60, v26")
        e("v_lshlrev_b32 v27, 4, v1")
        if iod:
            e("s_lshl_b32 s56, s60, 9")
            e("s_cmp_ge_u32 s69, 28")
            e(f"s_cselect_b32 s61, {14*16384 - 0x2000}, 0")
            e("s_sub_u32 s56, s56, s61")
            e(f"s_add_u32 s56, s56, {WS_P2I}")
            e("s_xor_b32 s56, s56, s55")
            e("s_and_b32 s59, s69, 1")
            e("s_or_b32 s59, s59, s52")
        else:
            e("s_mul_i32 s56, s69, 7168")
            e(f"s_add_u32 s56, s56, {WS_P2}")
            e("s_cmp_ge_u32 s69, 28")
            e("s_cselect_b32 s59, 1, s52")
        e("s_add_u32 s61, s56, 4096")
        self.srd(44, 22, 1792)
        e("s_mov_b32 s53, 0x3f803f80")
        e("s_mov_b32 s24, 0")
        e("s_mov_b32 s25, 0x80000000")
        e("s_mov_b32 s26, -1")
        e("s_mov_b32 s27, 0xffff")
        e("s_mov_b64 s[48:49], 0xffff")
        e("s_mov_b32 s50, 0x00ff00ff")
        e("s_mov_b32 s51, 0x00ff00ff")
        k1 = -2.0 * math.sqrt(2.0 / math.pi) * math.log2(math.e)
        e(f"v_mov_b32 v21, {hex(f2u(k1))}")
        e("v_and_b32 v14, 8, v1")
        e("v_cmp_ne_u32 s[66:67], 0, v14")
        e("v_lshlrev_b32 v14, 6, v29")
        e("v_and_b32 v15, 1, v1")
        e("v_lshl_add_u32 v14, v15, 3, v14")
        e("v_bfe_u32 v15, v1, 1, 1")
        e(f"v_mul_u32_u24 v15, {L_U - L_W}, v15")
        e("v_add_u32 v14, v14, v15")
        e("s_lshl_b32 s60, s52, 4")
        e("v_add_u32 v14, s60, v14")
        e("v_mul_u32_u24 v15, 896, v29")
        e("v_lshl_add_u32 v15, v31, 3, v15")
        e("s_mul_i32 s60, s52, 224")
        e(f"s_add_u32 s60, s60, {L_D}")
        e("v_add_u32 v15, s60, v15")
        if o['dpk']:
            assert iod
            e("v_lshrrev_b32 v98, 4, v1")
            e("v_lshl_add_u32 v20, v98, 14, v20")
            e("v_bfe_u32 v98, v1, 2, 2")
            e("v_mov_b32 v99, 128")
            for G in range(4):
                e(f"v_cmp_eq_u32 vcc, {G}, v98")
                e(f"v_mov_b32 v{64+G}, 0")
                e("s_nop 0")
                e(f"v_cndmask_b32 v{244+G}, v99, v19, vcc")
            e(f"ds_write_b128 v99, v[64:67] offset:{L_ACT}")
            e("s_waitcnt lgkmcnt(0)")
        if o['fold']:
            e(f"v_mov_b32 v22, {hex(f2u(1.0/448))}")
            e(f"v_mov_b32 v23, {hex(f2u(1.0/448))}")
            e("v_and_b32 v18, 8, v1")
            e("v_lshlrev_b32 v18, 1, v18")
            e("v_min_u32 v30, 2, v31")
            e("v_mul_u32_u24 v30, 896, v30")
            e("v_lshrrev_b32 v98, 4, v1")
            e("v_lshl_add_u32 v30, v98, 4, v30")
            e("v_and_b32 v98, 2, v1")
            e("v_lshl_add_u32 v30, v98, 5, v30")
            for i in range(4): e(f"v_mov_b32 v{64+i}, s53")
            e("s_mov_b64 exec, s[64:65]")
            e(f"ds_write_b128 v27, v[64:67] offset:{L_XN + 1792 + 64}")
            e("s_mov_b64 exec, -1")
            e("s_waitcnt lgkmcnt(0)")
        k0 = 0
        def gtr(a, b):
            for ks in range(a, b):
                e(f"ds_read_b64_tr_b16 v[{160+4*ks}:{161+4*ks}], v14 offset:{L_W + ks*2048}")
                e(f"ds_read_b64_tr_b16 v[{162+4*ks}:{163+4*ks}], v14 offset:{L_W + ks*2048 + 256}")
                if ks - a in (6, 10):
                    e("s_waitcnt lgkmcnt(6)")
        def dtr():
            for j in range(7):
                e(f"ds_read_b64_tr_b16 v[{216+4*j}:{217+4*j}], v15 offset:{j*32}")
                e(f"ds_read_b64_tr_b16 v[{218+4*j}:{219+4*j}], v15 offset:{j*32 + 3584}")
        if o['gfl']:
            e("v_mov_b32 v98, 0")
            e("v_mov_b32 v99, 1")
            e("s_waitcnt vmcnt(0)")
            e("s_cmp_eq_u32 s54, 0")
            e("s_cbranch_scc1 .Lgnl")
            e(f"ds_write_b32 v98, v99 offset:{L_CNT + 12}")
            self.label(".Lgnl")
            e("s_mov_b64 exec, s[64:65]")
            yl()
            self.poll_begin()
            e("s_branch .Lgpc")
            self.label(".Lgpre")
            e("s_waitcnt vmcnt(0)")
            self.pround(8, 32, ya, "s[64:65]", 6, "yL")
            e("s_sub_u32 s62, s62, 1")
            e("s_cbranch_scc1 .Lgtr")
            self.label(".Lgpc")
            e(f"ds_read_b32 v99, v98 offset:{L_CNT + 12}")
            e("s_waitcnt lgkmcnt(0)")
            e("v_cmp_eq_u32 vcc, 0, v99")
            e("s_cbranch_vccnz .Lgpre")
            self.label(".Lgtr")
            e("s_mov_b64 exec, -1")
            self.ts(9)
        else:
            for n, kc in enumerate(o['gch'] or []):
                e(f"s_waitcnt vmcnt({1 + 4 * (14 - kc)})")
                e("s_barrier")
                if n == 0:
                    dtr()
                    e("s_waitcnt lgkmcnt(0)")
                gtr(k0, kc)
                e("s_waitcnt lgkmcnt(0)")
                k0 = kc
            if o.get('gy'):
                e("s_mov_b64 exec, s[64:65]")
                yl()
                e("s_mov_b64 exec, -1")
            e("s_waitcnt vmcnt(9)" if 'G' not in o['fresh'] or o.get('gy') else "s_waitcnt vmcnt(1)")
            e("s_barrier")
            self.ts(9)
            if 'G' in o['fresh'] and not o.get('gy'):
                e("s_mov_b64 exec, s[64:65]")
                yl()
                e("s_mov_b64 exec, -1")
        gtr(k0, 14)
        if not o['gch']:
            e("s_waitcnt lgkmcnt(0)")
            dtr()
        e("s_waitcnt vmcnt(8)")
        e("v_lshlrev_b32 v100, 16, v104")
        e("v_and_b32 v101, 0xffff0000, v104")
        e("v_lshlrev_b32 v102, 16, v105")
        e("v_and_b32 v103, 0xffff0000, v105")
        e("s_mov_b64 exec, s[64:65]")
        pk = lambda d, a, b: e(f"v_pk_add_f32 v[{d}:{d+1}], v[{a}:{a+1}], v[{b}:{b+1}]")
        if o['sp']:
            assert o['fold']
            def gtree():
                e("s_waitcnt vmcnt(7)")
                for i in (0, 2): pk(64+i, 32+i, 100+i)
                e("s_waitcnt vmcnt(5)")
                for i in (0, 2): pk(68+i, 36+i, 40+i)
                e("s_waitcnt vmcnt(3)")
                for i in (0, 2): pk(72+i, 44+i, 48+i)
                for i in (0, 2): pk(64+i, 64+i, 68+i)
                e("s_waitcnt vmcnt(1)")
                for i in (0, 2): pk(76+i, 52+i, 56+i)
                for i in (0, 2): pk(64+i, 64+i, 72+i)
                e("s_waitcnt vmcnt(0)")
                for i in (0, 2): pk(76+i, 76+i, 60+i)
                for i in (0, 2): pk(108+i, 64+i, 76+i)
            self.spoll(8, 32, ya, "s[64:65]", ".Lg", gtree, 108, 110, pol="yL")
            self.ts(5)
        else:
            if o['gw']: self.apoll(8, 32, ya, "s[64:65]", ".Lg", o['gw'])
            else: self.mpoll(8, 32, ya, "s[64:65]", ".Lg", m0=6, pol="yL")
            self.ts(5)
            for p in range(0, 8, 2):
                for i in (0, 2): pk(64+4*p+i, 32+4*p+i, 36+4*p+i)
            for i in (0, 2):
                pk(64+i, 64+i, 72+i); pk(80+i, 80+i, 88+i)
        if o['fold']:
            DP = ("quad_perm:[1,0,3,2] row_mask:0xf bank_mask:0xf", "quad_perm:[2,3,0,1] row_mask:0xf bank_mask:0xf",
                  "row_half_mirror row_mask:0xf bank_mask:0xf", "row_mirror row_mask:0xf bank_mask:0xf",
                  "row_bcast:15 row_mask:0xa bank_mask:0xf", "row_bcast:31 row_mask:0xc bank_mask:0xf")
            def dp(n, fill):
                e(f"v_add_f32_dpp v96, v96, v96 {DP[n]}")
                e(f"v_add_f32_dpp v97, v97, v97 {DP[n]}")
                e(fill)
            if not o['sp']:
                for i in (0, 2): pk(64+i, 64+i, 100+i)
                for i in (0, 2): pk(108+i, 64+i, 80+i)
            e("v_cvt_pk_bf16_f32 v112, v108, v109")
            e("v_cvt_pk_bf16_f32 v113, v110, v111")
            e(f"ds_write_b64 v16, v[112:113] offset:{L_XN}")
            e("v_dot2_f32_bf16 v96, v112, s53, 0")
            e("v_dot2_f32_bf16 v97, v112, v112, 0")
            e("v_dot2_f32_bf16 v96, v113, s53, v96")
            e("v_dot2_f32_bf16 v97, v113, v113, v97")
            e("s_mov_b64 exec, s[0:1]")
            e("s_nop 1")
            ND1 = o['nd1']
            for n in range(ND1): dp(n, "s_nop 0" if n < ND1 - 1 else "s_waitcnt lgkmcnt(0)")
            self.bar()
            if gts: self.ts(1)
            def ar(ks): e(f"ds_read_b128 v[{104+4*ks}:{107+4*ks}], v30 offset:{L_XN + ks*64}")
            def mf(ks):
                cin = "0" if ks == 0 else "v[64:67]"
                e(f"v_mfma_f32_16x16x32_bf16 v[64:67], v[{104+4*ks}:{107+4*ks}], v[{160+4*ks}:{163+4*ks}], {cin}")
            I1, I2 = o['il']
            KB = o['kb2']
            KS = o['ks2']
            q = []
            def rd(x):
                if x == 'h': e(f"ds_read_u16 v25, v26 offset:{L_XN}")
                elif x == 'st': e(f"ds_read_b128 v[76:79], v18 offset:{L_ST}")
                elif x == 'sw': e(f"ds_write_b64 v17, v[96:97] offset:{L_ST}")
                else: ar(x)
                q.append(x)
            def need(x):
                if x in q:
                    i = q.index(x)
                    e(f"s_waitcnt lgkmcnt({len(q) - 1 - i})")
                    del q[:i + 1]
            for ks in range(I1): rd(ks)
            if o['p2z']:
                e(f"buffer_store_dwordx2 v[22:23], v20, s[36:39], s{PS[0]} offen " + self.P("p2S"))
                e("s_mov_b64 exec, s[26:27]")
                e(f"buffer_store_dwordx2 v[22:23], v20, s[36:39], s{PS[4]} offen " + self.P("p2S"))
                e("s_mov_b64 exec, s[0:1]")
            for n in range(ND1, 6): dp(n, "s_nop 0" if n < 5 else "s_mov_b64 exec, s[24:25]")
            rd('sw')
            e("s_mov_b64 exec, s[0:1]")
            for ks in range(I1, I2): rd(ks)
            todo = list(range(I2, 14)) + ['h']
            for ks in range(KS):
                if ks == KB:
                    need('sw')
                    self.bar()
                    if gts: self.ts(2)
                    rd('st')
                need(ks); mf(ks)
                n = o['rpm']
                for x in todo[:n]: rd(x)
                del todo[:n]
            assert not todo
            need('st')
            if o['rsq']:
                st = ["v_pk_add_f32 v[76:77], v[76:77], v[78:79]",
                      "v_pk_mul_f32 v[76:77], v[76:77], v[22:23]",
                      "v_fma_f32 v77, -v76, v76, v77",
                      f"v_add_f32 v77, {hex(f2u(1e-5))}, v77",
                      "v_rsq_f32 v77, v77"]
            else:
                st = ["v_pk_add_f32 v[76:77], v[76:77], v[78:79]",
                  "v_pk_mul_f32 v[76:77], v[76:77], v[22:23]",
                  "v_fma_f32 v77, -v76, v76, v77",
                  "v_cvt_pk_bf16_f32 v78, v76, v77",
                  "v_and_b32 v77, 0xffff0000, v78",
                  f"v_add_f32 v77, {hex(f2u(1e-5))}, v77",
                  "v_cvt_pk_bf16_f32 v77, 0, v77",
                  "v_sqrt_f32 v77, v77",
                  "v_lshlrev_b32 v76, 16, v78",
                  "v_cvt_pk_bf16_f32 v77, 0, v77",
                  "v_rcp_f32 v77, v77"]
            for ks in range(KS, 14):
                for x in st[:2]: e(x)
                del st[:2]
                need(ks); mf(ks)
            for x in st: e(x)
            pad = 8 - len(st) - (1 if KS == 14 else 0)
            assert not o['rw']
            if pad > 0: e(f"s_nop {pad - 1}")
            if gts: self.ts(3)
            e("v_mov_b32_dpp v69, v65 row_ror:8 row_mask:0xf bank_mask:0xf")
            e("v_mov_b32_dpp v72, v66 row_ror:8 row_mask:0xf bank_mask:0xf")
            e("v_cndmask_b32 v70, v64, v69, s[66:67]")
            e("v_cndmask_b32 v74, v66, v72, s[66:67]")
            e("v_fma_f32 v70, -v76, v74, v70")
            e("v_mul_f32 v70, v70, v77")
            e("v_cvt_pk_bf16_f32 v70, 0, v70")
            e("v_mul_f32 v73, v70, v70")
            e(f"v_fmamk_f32 v73, v73, {hex(f2u(k1 * 0.044715))}, v21")
            e("v_mul_f32 v73, v73, v70")
            e("v_exp_f32 v73, v73")
            e("v_mov_b32_dpp v68, v64 row_ror:8 row_mask:0xf bank_mask:0xf")
            e("v_cndmask_b32 v74, v72, v66, s[66:67]")
            e("v_add_f32 v73, 1.0, v73")
            e("v_rcp_f32 v73, v73")
            e("v_cndmask_b32 v71, v68, v65, s[66:67]")
            e("v_fma_f32 v71, -v76, v74, v71")
            e("v_mul_f32 v73, v73, v70")
            e("v_mul_f32 v71, v71, v77")
            e("v_cvt_pk_bf16_f32 v73, 0, v73")
            e("v_cvt_pk_bf16_f32 v71, 0, v71")
            e("v_mul_f32 v73, v73, v71")
        else:
            for i in (0, 2): pk(108+i, 64+i, 80+i)
            def cvt():
                e("v_cvt_pk_bf16_f32 v112, v108, v109")
                e("v_cvt_pk_bf16_f32 v113, v110, v111")
            UP = ["v_lshlrev_b32 v108, 16, v112", "v_and_b32 v109, 0xffff0000, v112", "v_lshlrev_b32 v110, 16, v113", "v_and_b32 v111, 0xffff0000, v113"]
            cvt()
            for u in UP: e(u)
            pk(108, 108, 100); pk(110, 110, 102)
            cvt()
            e("v_dot2_f32_bf16 v96, v112, s53, 0")
            e("v_dot2_f32_bf16 v97, v112, v112, 0")
            e("v_dot2_f32_bf16 v96, v113, s53, v96")
            e("v_dot2_f32_bf16 v97, v113, v113, v97")
            e(f"ds_write_b64 v16, v[112:113] offset:{L_H}")
            e("s_mov_b64 exec, s[0:1]")
            e(UP[0])
            fill = UP[1:] + ["s_nop 0", "s_nop 0", "s_mov_b64 exec, s[24:25]"]
            for n, st in enumerate(("quad_perm:[1,0,3,2] row_mask:0xf bank_mask:0xf", "quad_perm:[2,3,0,1] row_mask:0xf bank_mask:0xf",
                       "row_half_mirror row_mask:0xf bank_mask:0xf", "row_mirror row_mask:0xf bank_mask:0xf",
                       "row_bcast:15 row_mask:0xa bank_mask:0xf", "row_bcast:31 row_mask:0xc bank_mask:0xf")):
                e(f"v_add_f32_dpp v96, v96, v96 {st}")
                e(f"v_add_f32_dpp v97, v97, v97 {st}")
                e(fill[n])
            e(f"ds_write_b64 v17, v[96:97] offset:{L_ST}")
            e("s_mov_b64 exec, s[0:1]")
            e("s_waitcnt lgkmcnt(0)")
            self.bar()
            if gts: self.ts(1)
            e(f"ds_read_b128 v[64:67], v18 offset:{L_ST}")
            e("s_waitcnt lgkmcnt(0)")
            pk(64, 64, 66)
            e(f"v_mul_f32 v64, {hex(f2u(1.0/448))}, v64")
            e(f"v_mul_f32 v65, {hex(f2u(1.0/448))}, v65")
            e("v_fma_f32 v65, -v64, v64, v65")
            e("v_cvt_pk_bf16_f32 v66, v64, v65")
            e("v_and_b32 v65, 0xffff0000, v66")
            e("v_lshlrev_b32 v64, 16, v66")
            e(f"v_add_f32 v65, {hex(f2u(1e-5))}, v65")
            e("v_cvt_pk_bf16_f32 v65, 0, v65")
            e("v_sqrt_f32 v65, v65")
            for i in (108, 110): e(f"v_pk_add_f32 v[{i}:{i+1}], v[{i}:{i+1}], v[64:65] op_sel_hi:[1,0] neg_lo:[0,1] neg_hi:[0,1]")
            e("v_cvt_pk_bf16_f32 v65, 0, v65")
            e("v_rcp_f32 v65, v65")
            cvt()
            for u in UP: e(u)
            for i in (108, 110): e(f"v_pk_mul_f32 v[{i}:{i+1}], v[{i}:{i+1}], v[64:65] op_sel:[0,1] op_sel_hi:[1,1]")
            e("s_mov_b64 exec, s[64:65]")
            cvt()
            e(f"ds_write_b64 v16, v[112:113] offset:{L_XN}")
            e("s_mov_b64 exec, s[0:1]")
            e("s_waitcnt lgkmcnt(0)")
            self.bar()
            if gts: self.ts(2)
            for ks in range(14):
                e(f"ds_read_b128 v[{104+4*ks}:{107+4*ks}], v30 offset:{L_XN + ks*64}")
            for ks in range(14):
                e(f"s_waitcnt lgkmcnt({13-ks if not gts else 0})")
                cin = "0" if ks == 0 else "v[64:67]"
                e(f"v_mfma_f32_16x16x32_bf16 v[64:67], v[{104+4*ks}:{107+4*ks}], v[{160+4*ks}:{163+4*ks}], {cin}")
            e(f"ds_read_u16 v25, v26 offset:{L_H}")
            if o['rw']:
                for t in range(7): e(f"v_mov_b32 v{161+2*t}, -1")
            else: e("s_nop 6")
            e("v_mov_b32_dpp v68, v64 row_ror:8 row_mask:0xf bank_mask:0xf")
            e("v_mov_b32_dpp v69, v65 row_ror:8 row_mask:0xf bank_mask:0xf")
            e("v_cndmask_b32 v70, v64, v69, s[66:67]")
            e("v_cndmask_b32 v71, v68, v65, s[66:67]")
            e("v_cvt_pk_bf16_f32 v70, 0, v70")
            e("v_mul_f32 v73, v70, v70")
            e(f"v_fmamk_f32 v73, v73, {hex(f2u(k1 * 0.044715))}, v21")
            e("v_mul_f32 v73, v73, v70")
            e("v_exp_f32 v73, v73")
            e("v_cvt_pk_bf16_f32 v71, 0, v71")
            e("v_add_f32 v73, 1.0, v73")
            e("v_rcp_f32 v73, v73")
            e("s_nop 0")
            e("v_mul_f32 v73, v73, v70")
            e("v_cvt_pk_bf16_f32 v73, 0, v73")
            e("v_mul_f32 v73, v73, v71")
        if gts: self.ts(6)
        e("s_mov_b64 exec, s[48:49]")
        e("v_cvt_pk_bf16_f32 v75, v73, v73")
        e(f"ds_write_b16 v28, v75 offset:{L_ACT}")
        e("s_mov_b64 exec, s[0:1]")
        if o['rw']:
            for t in range(7, 14): e(f"v_mov_b32 v{161+2*t}, -1")
        e("s_waitcnt lgkmcnt(0)")
        self.bar()
        if gts: self.ts(7)
        if o['dpk']:
            for G in range(4): e(f"ds_read_b128 v[{104+4*G}:{107+4*G}], v{244+G} offset:{L_ACT}")
            e("v_lshlrev_b32 v25, 16, v25")
            e("s_cmp_lg_u32 s59, 0")
            for j in range(7):
                if j < 4: e(f"s_waitcnt lgkmcnt({3-j})")
                d = 64 + 4 * (j >> 2)
                e(f"v_mfma_f32_16x16x32_bf16 v[{d}:{d+3}], v[{104+4*(j&3)}:{107+4*(j&3)}], v[{216+4*j}:{219+4*j}], {'0' if j & 3 == 0 else f'v[{d}:{d+3}]'}")
            e("s_nop 4")
            CM = hex(f2u(1.0 - 0.7213 / 512))
            if P2S:
                e(f"v_mul_f32 v65, {CM}, v65")
                e("v_or_b32 v65, 0x7fff, v65")
            e(f"buffer_store_dwordx2 v[64:65], v20, s[36:39], s{PS[0]} offen " + self.P("p2S"))
            if P2S:
                e(f"v_mul_f32 v69, {CM}, v69")
                e("s_mov_b64 exec, s[26:27]")
                e("v_or_b32 v69, 0x7fff, v69")
            else:
                e("s_mov_b64 exec, s[26:27]")
                e("s_nop 0")
            e(f"buffer_store_dwordx2 v[68:69], v20, s[36:39], s{PS[4]} offen " + self.P("p2S"))
        else:
            e(f"ds_read_b128 v[104:107], v19 offset:{L_ACT}")
            e("v_lshlrev_b32 v25, 16, v25")
            e("s_cmp_lg_u32 s59, 0")
            e("s_waitcnt lgkmcnt(0)")
            for j in range(7):
                e(f"v_mfma_f32_16x16x32_bf16 v[{64+4*j}:{67+4*j}], v[104:107], v[{216+4*j}:{219+4*j}], 0")
            e("s_mov_b64 exec, s[48:49]")
            e("s_nop 0")
            for j in range(7):
                e(f"buffer_store_dwordx2 v[{64+4*j}:{65+4*j}], v20, s[36:39], s{PS[j]} offen " + self.P("p2S"))
        e("s_mov_b64 exec, s[0:1]")
        self.ts(11)
        e("s_cbranch_scc1 .Lfin")
        for i in range(o['rdel']): e("s_nop 15")
        ra = lambda p: f"v27, s[36:39], {'s56' if p < 4 else 's61'} offen offset:{(p&3)*1024}"
        for p in range(7):
            e(f"buffer_load_dwordx4 v[{160+4*p}:{163+4*p}], {ra(p)} " + self.P("p2L"))
        if o['sp']:
            def an(d, a, p):
                if P2S: e(f"v_bitop3_b32 v{d}, v{a}, v{161+4*p}, v{163+4*p} bitop3:0x80")
            def rtree():
                e("s_waitcnt vmcnt(5)")
                for i in (0, 2): pk(108+i, 160+i, 164+i)
                an(120, 161, 0); an(120, 120, 1)
                e("s_waitcnt vmcnt(3)")
                for i in (0, 2): pk(112+i, 168+i, 172+i)
                an(120, 120, 2); an(120, 120, 3)
                e("s_waitcnt vmcnt(1)")
                for i in (0, 2): pk(116+i, 176+i, 180+i)
                for i in (0, 2): pk(108+i, 108+i, 112+i)
                an(120, 120, 4); an(120, 120, 5)
                e("s_waitcnt vmcnt(0)")
                an(120, 120, 6)
                for i in (0, 2): pk(116+i, 116+i, 184+i)
                if P2S: e("v_or_b32 v120, 0xffff8000, v120")
                for i in (0, 2): pk(108+i, 108+i, 116+i)
            self.spoll(7, 160, ra, "-1", ".Lr", rtree, 108, 110, pol="p2L", mk=P2S)
            if not o['prof']: self.ts(12)
        else:
            if o['rw']: self.apoll(7, 160, ra, "-1", ".Lr", o['rw'])
            else: self.mpoll(7, 160, ra, "-1", ".Lr", m0=6, pol="p2L")
            if not o['prof']: self.ts(12)
            for p in range(0, 6, 2):
                for i in (0, 2): pk(108+4*p+i, 160+4*p+i, 164+4*p+i)
            for i in (0, 2):
                pk(108+i, 108+i, 116+i); pk(124+i, 124+i, 184+i)
            for i in (0, 2): pk(108+i, 108+i, 124+i)
        e("s_nop 0")
        e("v_permlane16_swap_b32 v108, v109")
        e("v_permlane16_swap_b32 v110, v111")
        e("s_nop 0")
        e("v_add_f32 v108, v108, v109")
        e("v_add_f32 v110, v110, v111")
        e("s_nop 1")
        e("v_permlane32_swap_b32 v108, v110")
        e("s_nop 1")
        e("v_add_f32 v108, v108, v110")
        e("s_nop 1")
        e("v_add_f32_dpp v108, v108, v108 row_ror:8 row_mask:0xf bank_mask:0xf")
        e("s_mov_b64 exec, s[50:51]")
        e("v_cvt_pk_bf16_f32 v108, 0, v108")
        e("v_add_f32 v108, v108, v25")
        e("v_cvt_pk_bf16_f32 v108, v108, v108")
        if dry: e("s_cbranch_execz .Ldryend")
        e(f"buffer_store_short v108, v26, s[44:47], 0 offen {o['opol']}")
        e("s_mov_b64 exec, -1")

if __name__ == "__main__":
    out = sys.argv[1]
    kw = json.loads(sys.argv[2]) if len(sys.argv) > 2 else {}
    open(out, "w").write(Gen(**kw).build())
```

```python
from gen6 import *
import gen6

L_QQ = L_SC + 1024
L_DUM = L_SC + 2048 + 1024
L_QH = L_CNT + 12
L_QF = L_CNT + 16
EMPTY = 0xff80ff80
WS_CI = 0x3000
DP = ("quad_perm:[1,0,3,2]", "quad_perm:[2,3,0,1]", "row_half_mirror", "row_mirror")
def dpp(op, v, k): return f"{op}_dpp v{v}, v{v}, v{v} {DP[k]} row_mask:0xf bank_mask:0xf"

class Gen(gen6.Gen):
    def __init__(self, **kw):
        d = dict(g7=True, dry=True, NO=14, NSH=2, NB=0, fine=True, pb=1, pace=10, lim=[5, 5, 10, 8], LA=3, E7=80, E8=50, E9=50, wd2=14, wx=8, wxn=9, wvp=8, dry7=0, od=True, tk=0, tk0=0, wdl=None, lw=2, cik=False, ci2=True, r2=True, sm=5, rk=1, xs7=20, gy=1, x0=0, xw=0, nb=False, dmax=1)
        d.update(kw)
        super().__init__(**d)

    def load(self, i, W, voff=None):
        g, j = divmod(i, 4)
        self.e(f"s_waitcnt vmcnt({W - 1})")
        self.e(f"buffer_load_dwordx4 v[{64+4*i}:{67+4*i}], v{2+g if voff is None else voff}, s[28:31], s57 offen offset:{j*128} {self.o['kvpol']}")

    def step(self):
        self.e("s_add_u32 s57, s57, 0x80000")
        self.e("s_and_b32 s57, s57, 0x7fffff")

    def kfill(self):
        F = {i: [] for i in range(16)}
        for gp in range(4):
            a = 11 + 2 * ((gp - 1) & 3)
            F[4*gp].append(f"v_add_f32 v{a}, v{a}, v{a+1}")
            F[4*gp+1] += [dpp("v_add_f32", a, 0), f"v_mov_b32 v{a+1}, 0"]
            F[4*gp+2].append(dpp("v_add_f32", a, 1))
            F[4*gp+3].append(dpp("v_add_f32", a, 2))
        F[4] += ["v_cvt_pk_bf16_f32 v25, v15, v17", "v_max3_f32 v23, v23, v15, v17"]
        F[5] += ["ds_write_b64 v19, v[24:25]", "v_add_u32 v19, 64, v19", "v_mov_b32 v15, 0", "v_mov_b32 v17, 0"]
        F[12] += ["v_cvt_pk_bf16_f32 v24, v11, v13", "v_max3_f32 v23, v23, v11, v13"]
        F[13] += ["v_mov_b32 v11, 0", "v_mov_b32 v13, 0"]
        return F

    def kit(self, W, X={}):
        F = self.kfill()
        for i in range(16):
            g, j = divmod(i, 4)
            for c in range(4):
                self.e(f"v_dot2c_f32_bf16 v{11+2*g+(c&1)}, v{64+4*i+c}, v{32+4*j+c}")
            for s in F[i] + X.get(i, []): self.e(s)
            self.load(i, W[i])
        self.plog()

    def unp(self, d, g, src=152):
        return f"v_and_b32 v{d}, 0xffff0000, v{src + (g >> 1)}" if g & 1 else f"v_lshlrev_b32 v{d}, 16, v{src + (g >> 1)}"

    def ands(self, g, p): return [f"v_and_b32 v{128+4*g+r}, v{6+r}, v{p}" for r in range(4)]

    def vfill(self, n=16):
        F = {i: [] for i in range(16)}
        for gp in range(n // 4):
            g = (gp - 1) & 3
            if gp == 1: F[4].append("s_waitcnt lgkmcnt(0)")
            F[4*gp] += [self.unp(144, g), "v_fma_f32 v144, v144, s59, v10"]
            F[4*gp+1].append("v_exp_f32 v144, v144")
            F[4*gp+2].append("v_cvt_pk_bf16_f32 v144, v144, v144")
            F[4*gp+3] += self.ands(g, 144)
        if not getattr(self, 'nods', False): F[1] += ["ds_read_b64 v[152:153], v206", "v_add_u32 v206, 64, v206"]
        return F

    def mfma(self, i, zero=False):
        g, j = divmod(i, 4)
        c = f"v[{48+4*j}:{51+4*j}]"
        self.e(f"v_mfma_f32_16x16x32_bf16 {c}, v[{128+4*g}:{131+4*g}], v[{64+4*i}:{67+4*i}], {'0' if zero else c}")

    def vit(self, W, X={}, first=False, n=16):
        F = self.vfill(n)
        for i in range(16):
            self.mfma(i, first and i < 4)
            for s in F[i] + X.get(i, []):
                if s.endswith(":"): self.label(s[:-1])
                else: self.e(s)
            self.load(i, W[i])
        self.plog()

    def maxred(self, v, t, i0):
        return {i0: [dpp("v_max_f32", v, 3)], i0+1: [f"v_mov_b32 v{t}, v{v}"], i0+2: [f"v_permlane16_swap_b32 v{v}, v{t}"],
                i0+3: [f"v_max_f32 v{v}, v{v}, v{t}", f"v_mov_b32 v{t}, v{v}"], i0+4: [f"v_permlane32_swap_b32 v{v}, v{t}"],
                i0+5: [f"v_max_f32 v{v}, v{v}, v{t}"]}

    def take(self, r):
        LA = self.o['LA']; n = (r + 1) & 3
        return [["s_mov_b64 exec, s[46:47]", f"ds_add_rtn_u32 v204, v16, v17 offset:{L_QH}", "s_mov_b64 exec, -1", f"v_fma_f32 v144, v{192+n}, s59, v10"],
                ["v_exp_f32 v144, v144", "s_waitcnt lgkmcnt(0)", "v_readfirstlane_b32 s58, v204", "s_andn2_b32 s64, s58, 3", "v_add_u32 v205, s64, v208", f"ds_read_b32 v205, v205 offset:{L_QQ}"],
                ["v_cvt_pk_bf16_f32 v144, v144, v144"] + self.masks() + ["s_waitcnt lgkmcnt(0)", "v_readfirstlane_b32 s56, v205"],
                self.ands(n, 144) + self.addr() + [f"s_mov_b32 s99, {n}"]]

    def masks(self):
        return [f"s_add_u32 s42, s64, {L_QQ + 4 * self.o['LA']}", "s_and_b32 s58, s58, 3", f"s_cselect_b32 s42, {L_DUM}, s42", "s_cselect_b32 s44, 0, 1"]

    def addr(self):
        return ["s_lshr_b32 s96, s56, 1", "s_lshl_b32 s96, s96, 2", "s_add_u32 s96, s96, s58", "s_lshl_b32 s96, s96, 1", "s_and_b32 s63, s56, 1", "s_add_u32 s96, s96, s63",
                "s_lshl_b32 s96, s96, 12", "s_add_u32 s96, s96, s43", "s_and_b32 s96, s96, 0x7fffff",
                "s_and_b32 s98, s56, 31", "s_lshl_b32 s98, s98, 7", "s_andn2_b32 s63, s56, 31", "s_add_u32 s98, s98, s63", "s_add_u32 s98, s98, s58", "s_lshl_b32 s98, s98, 1",
                "s_cmp_lt_u32 s56, s67", "s_cselect_b32 s44, s44, 0", f"s_cselect_b32 s65, 1, {32 * self.o['NSH']}"]

    def rare(self):
        e = self.e
        assert self.o['sm']
        def ml(lab, ok):
            self.poll_begin()
            self.label(lab)
            e("buffer_load_dwordx4 v[184:187], v28, s[36:39], s98 offen " + self.P("mlL"))
            e("s_waitcnt vmcnt(0)")
            e("v_xor_b32 v187, s55, v187")
            e("v_cmp_ne_u32 vcc, s55, v185")
            e("v_cmp_lt_u32 s[66:67], 7, v187")
            e("s_or_b64 vcc, vcc, s[66:67]")
            e(f"s_cbranch_vccz {ok}")
            self.poll_again(lab)
        self.label(".Lmlchk")
        ml(".Lmlchk1", ".Lmlok")
        e("s_branch .Lmlok")
        self.label(".Lrd")
        self.poll_begin()
        self.label(".Lrd1")
        e("buffer_load_dwordx2 v[190:191], v27, s[36:39], 0 offen sc1")
        e("s_waitcnt vmcnt(0)")
        e("v_cmp_ne_u32 vcc, s55, v190")
        e("s_cbranch_vccz .Lrdok")
        self.poll_again(".Lrd1")
        e("s_branch .Lrdok")
        self.label(".Lsum")
        ml(".Lsum1", ".Lsum2")
        self.label(".Lsum2")
        for b in range(3):
            e(f"v_and_b32 v184, {1 << b}, v187")
            e("v_cmp_ne_u32 vcc, 0, v184")
            e("s_bcnt1_i32_b32 s63, vcc_lo")
            if b:
                e(f"s_lshl_b32 s63, s63, {10 * b}")
                e("s_add_u32 s60, s60, s63")
            else: e("s_mov_b32 s60, s63")
        e("v_mov_b32 v184, s55")
        e("v_mov_b32 v185, s60")
        e("s_lshl_b32 s60, s54, 3")
        e(f"s_add_u32 s60, s60, {WS_CI}")
        e("s_mov_b64 exec, 1")
        e("buffer_store_dwordx2 v[184:185], v16, s[36:39], s60 offen sc1")
        e("s_mov_b64 exec, -1")
        e("s_branch .Lsumok")

    def stream(self):
        o = self.o; e = self.e
        NSH = o['NSH']; NO = o['NO']; ND = 32 * NSH; LA = o['LA']
        WK, WV, WD, WW = o['lim']; WX = o['wx']
        assert NSH + NO == 16 and o['PD'] == 2 and 1 <= NSH <= 4 and o['p2s'] and o['elig'] and o['c2'] and max(WK, WV, WW, WX, o['wvp']) <= 11 and WD <= 14
        self.q = list(self.q7)
        e("v_mov_b32 v23, 0xff800000")
        mx = lambda: (e("v_max3_f32 v23, v23, v11, v13"), e("v_max3_f32 v23, v23, v15, v17"))
        self.ktile(64, lambda g: self.vwait(('A', g)), True, rtag='A2'); mx()
        self.ktile(128, lambda g: self.vwait(('E0', g)), False); mx()
        self.resets()
        for i in range(8): e(f"v_mov_b32 v{11+i}, 0")
        for g in range(4):
            self.vwait(('E1', g))
            for i in range(16): e(f"v_dot2c_f32_bf16 v{11+2*g+(i&1)}, v{192+g*16+i}, v{32+i}")
        self.plog()
        for g in range(3): e(f"v_add_f32 v{11+2*g}, v{11+2*g}, v{12+2*g}")
        for k in range(3):
            for g in range(3): e(dpp("v_add_f32", 11 + 2 * g, k))
        e("v_subrev_u32 v206, 128, v19")
        e("v_cvt_pk_bf16_f32 v24, v11, v13")
        e("v_max3_f32 v23, v23, v11, v13")
        for r in (11, 12, 13, 14, 16): e(f"v_mov_b32 v{r}, 0")
        e("s_xor_b32 s69, s53, s54")
        e("s_and_b32 s69, s69, 3")
        e(f"s_cselect_b32 s69, {o['w0']}, {max(2, o['w0']) + o['pb']}")
        e("s_sub_u32 s99, 12, s69")
        e("s_waitcnt vmcnt(15)")
        self.label(".Lkw")
        self.step()
        self.kit([WW] * 16)
        e("s_sub_u32 s69, s69, 1")
        e("s_cmp_lg_u32 s69, 0")
        e("s_cbranch_scc1 .Lkw")
        if o['cik']:
            self.checkin(".Lkn", 164)
        self.label(".Lkn")
        self.step()
        self.kit([WK] * 16)
        e("s_sub_u32 s99, s99, 1")
        e("s_cmp_lg_u32 s99, 0")
        e("s_cbranch_scc1 .Lkn")
        self.step()
        e("s_mov_b64 s[28:29], s[32:33]")
        X = self.maxred(176, 177, 6)
        X[0] = ["ds_read_b64 v[152:153], v206", "v_add_u32 v206, 64, v206"]
        X[5] = ["v_mov_b32 v176, v23"]
        X[11] += ["v_mul_f32_e64 v10, -s59, v176"]
        X[12] = ["s_waitcnt lgkmcnt(0)"] + [self.unp(144 + g, g) for g in range(3)] + [f"v_fma_f32 v{144+g}, v{144+g}, s59, v10" for g in range(3)]
        X[13] = [f"v_exp_f32 v{144+g}, v{144+g}" for g in range(3)]
        X[14] = [f"v_cvt_pk_bf16_f32 v{144+g}, v{144+g}, v{144+g}" for g in range(3)]
        X[15] = sum((self.ands(g, 144 + g) for g in range(3)), [])
        self.kit([WK] * 16, X)
        self.ts(6)
        self.step()
        K = self.kfill()
        X = self.maxred(23, 177, 6)
        for i in range(4): X[i] = K[i][:1]
        X[3] += ["s_lshl_b32 s60, s52, 11", f"s_add_u32 s60, s60, {L_SC}", "v_lshl_add_u32 v207, v1, 4, s60"]
        X[4] = K[4][1:] + ["s_lshl_b32 s60, s2, 2", "s_add_u32 s63, s60, s52", "s_lshl_b32 s60, s63, 8", f"s_add_u32 s60, s60, {o['scb'] - 768}", "v_lshlrev_b32 v13, 4, v1"]
        X[5] = ["ds_write_b64 v19, v[24:25]", "ds_read_b128 v[148:151], v207"]
        X[7] += ["s_waitcnt lgkmcnt(0)", "s_mov_b32 exec_lo, 0", "s_mov_b32 exec_hi, 0xffff0000", "buffer_store_dwordx4 v[148:151], v13, s[36:39], s60 offen " + self.P("scS"), "s_mov_b64 exec, -1"]
        X[8] += [self.unp(156 + i, i, 148) for i in range(8)]
        X[11] += ["v_mul_f32_e64 v179, -s59, v23"]
        X[12] = [f"v_fma_f32 v{156+i}, v{156+i}, s59, v179" for i in range(8)]
        X[13] = [f"v_exp_f32 v{156+i}, v{156+i}" for i in range(8)]
        X[14] = [f"v_add_f32 v{156+i}, v{156+i}, v{160+i}" for i in range(4)]
        X[15] = ["v_add_f32 v156, v156, v157", "v_add_f32 v158, v158, v159", "v_add_f32 v182, v156, v158"]
        if o['lw'] & 1:
            X[2] += ["v_lshrrev_b32 v164, 4, v1", "v_lshlrev_b32 v164, 11, v164", "v_and_b32 v165, 15, v1", "v_lshl_add_u32 v164, v165, 4, v164", "v_mov_b32 v165, 0", "v_mov_b32 v166, 1"]
            X[4] = X[4][:4] + ["s_lshl_b32 s60, s2, 10", f"s_add_u32 s60, s60, {o['scb']}", "v_lshlrev_b32 v13, 4, v1"]
            X[5] += ["s_mov_b64 exec, 1", f"ds_add_rtn_u32 v167, v165, v166 offset:{L_QH}", "s_mov_b64 exec, -1", f"ds_read_b128 v[168:171], v164 offset:{L_SC + 768}"]
            X[7] = X[7][:2] + ["v_readfirstlane_b32 s64, v167", "s_cmp_eq_u32 s64, 3", "s_cselect_b64 exec, -1, 0", "buffer_store_dwordx4 v[168:171], v13, s[36:39], s60 offen " + self.P("scS"), "s_mov_b64 exec, -1"]
        self.vit([WV] * 7 + [WX] * 9, X, first=True)
        self.step()
        X = {0: [dpp("v_add_f32", 182, 0), "s_nop 1", dpp("v_add_f32", 182, 1)],
             1: [dpp("v_add_f32", 182, 2), "s_nop 1", dpp("v_add_f32", 182, 3)],
             2: ["v_mov_b32 v177, v182", "s_nop 1", "v_permlane16_swap_b32 v182, v177"],
             3: ["v_add_f32 v182, v182, v177", "v_mov_b32 v177, v182", "s_nop 1", "v_permlane32_swap_b32 v182, v177"],
             4: ["v_add_f32 v182, v182, v177", "v_mov_b32 v180, v23", "v_mov_b32 v181, s55", "v_mov_b32 v183, s55", "s_lshl_b32 s60, s63, 4", f"s_add_u32 s60, s60, {WS_ML}", "v_mov_b32 v16, 0",
                 "v_mov_b32 v22, s40", "s_getreg_b32 s63, hwreg(HW_REG_XCC_ID, 0, 3)", "s_lshl_b32 s63, s63, 2", "s_cmp_eq_u32 s52, 1", "s_cselect_b64 s[44:45], 1, 0"],
             5: ["s_mov_b64 exec, 1", "buffer_store_dwordx4 v[180:183], v16, s[36:39], s60 offen " + self.P("mlS"), "s_mov_b64 exec, s[44:45]",
                 f"buffer_atomic_add v22, v16, s[48:51], s63 offen sc1 {o['cpol']}", "s_mov_b64 exec, -1"],
             6: ["s_lshl_b32 s98, s54, 9", f"s_add_u32 s98, s98, {WS_ML}", "v_and_b32 v28, 31, v1", "v_lshlrev_b32 v28, 4, v28", "v_and_b32 v27, 7, v1", "v_lshlrev_b32 v27, 2, v27"],
             7: ["v_lshrrev_b32 v13, 5, v1", "v_lshlrev_b32 v13, 10, v13", "v_and_b32 v14, 7, v1", "v_lshl_add_u32 v13, v14, 5, v13", "v_bfe_u32 v14, v1, 4, 1", "v_lshl_add_u32 v13, v14, 4, v13"],
             8: ["s_lshl_b32 s60, s52, 11", "v_add_u32 v13, s60, v13", "v_lshlrev_b32 v14, 4, v1", "v_lshlrev_b32 v15, 3, v1", "v_mov_b32 v17, 1", "v_lshlrev_b32 v208, 2, v1"],
             9: [f"v_mov_b32 v{200+r}, {L_DUM}" for r in range(4)] + ["v_mov_b32 v26, 1", f"v_mov_b32 v199, {LA}"],
             10: [f"s_add_u32 s43, s61, {(512 - ND) << 14}", f"v_add_u32 v20, {(4 - NSH) * 64}, v20", "s_mov_b64 s[46:47], 1", "s_mov_b32 s45, 0", "v_mov_b32 v211, 0x100",
                  "s_mov_b32 s97, 1", "s_mov_b32 s101, 0", f"s_mov_b32 s99, {NO - 4}"]}
        n0 = 5
        SM = o['sm']
        if SM:
            assert o['lw'] & 2
            k = X[4].index("v_mov_b32 v22, s40")
            X[4] = X[4][:k] + ["s_getreg_b32 s63, hwreg(HW_REG_XCC_ID, 2, 1)", "s_lshr_b32 s64, s40, 9", "s_lshr_b32 s65, s40, 18", "s_or_b32 s64, s64, s65", "s_and_b32 s64, s64, 6", "s_or_b32 s63, s63, s64",
                               "s_cmp_eq_u32 s52, 1", "s_cselect_b32 s63, s63, 0", "v_xor_b32 v183, s63, v183"]
            X[5] = X[5][:2] + X[5][4:]
            X[6] = X[6][:4] + ["v_lshrrev_b32 v27, 1, v28", f"v_add_u32 v27, {WS_CI}, v27"]
            X[11] = ["s_xor_b32 s60, s53, s54", "s_and_b32 s60, s60, 7", "s_lshl_b32 s60, s60, 2", "s_add_u32 s60, s60, s52", "s_cmp_eq_u32 s60, 6", f"s_cselect_b32 s47, {NO - 4 - SM}, -1"]
        elif o['ci2']:
            X[4] += ["s_and_b32 s64, s63, 16", "s_lshl_b32 s64, s64, 3", "s_add_u32 s63, s63, s64"]
            X[6] += ["v_and_b32 v14, 4, v1", "v_lshl_add_u32 v27, v14, 5, v27"]
        if o['cik']: X[5] = X[5][:2] + X[5][4:]
        if o['lw'] & 2:
            X[4] = [x.replace("s_lshl_b32 s60, s63, 4", "s_lshl_b32 s60, s2, 6") for x in X[4]] + ["s_lshl_b32 s64, s52, 4", "v_mov_b32 v164, s64", "v_mov_b32 v166, 1", "v_lshlrev_b32 v165, 4, v1", "s_mov_b32 s65, s60"]
            X[5] = ["s_mov_b64 exec, 1", f"ds_write_b128 v164, v[180:183] offset:{L_DUM}", f"ds_add_rtn_u32 v167, v16, v166 offset:{L_QF}"] + X[5][2:] + [f"ds_read_b128 v[168:171], v165 offset:{L_DUM}"]
            X[7] = ["s_waitcnt lgkmcnt(0)", "v_readfirstlane_b32 s64, v167", "s_cmp_eq_u32 s64, 3", "s_cselect_b64 exec, 15, 0", "buffer_store_dwordx4 v[168:171], v165, s[36:39], s65 offen " + self.P("mlS"), "s_mov_b64 exec, -1"] + X[7]
        self.vit([WV] * n0 + [WX + 1] * o['wxn'] + [WV] * (16 - n0 - o['wxn']), X)
        self.label(".Lvn")
        self.step()
        e("s_sub_u32 s99, s99, 1")
        e("s_cmp_lg_u32 s99, 0")
        e("s_cbranch_scc1 .Lv1")
        e("buffer_load_dwordx4 v[184:187], v28, s[36:39], s98 offen " + self.P("m1L"))
        e("buffer_load_dword v23, v27, s[48:51], 0 offen sc1" if not SM else "buffer_load_dwordx2 v[190:191], v27, s[36:39], 0 offen " + self.P("s1L"))
        self.label(".Lv1")
        if SM:
            e("s_cmp_eq_u32 s99, s47")
            e("s_cbranch_scc1 .Lsum")
            self.label(".Lsumok")
        self.vit([WV] * 16)
        e("s_cmp_lg_u32 s99, 0")
        e("s_cbranch_scc1 .Lvn")
        self.ts(7)
        self.step()
        u = lambda op, v, k: dpp(op, v, k)
        T = self.take(3)
        X = {0: ["s_mov_b64 exec, 1", f"ds_add_rtn_u32 v204, v16, v17 offset:{L_QF}", "s_mov_b64 exec, -1",
                 "v_cmp_ne_u32 vcc, s55, v185", "v_cmp_ne_u32 s[66:67], s55, v187", "s_or_b64 vcc, vcc, s[66:67]", "s_cbranch_vccnz .Lmlchk", ".Lmlok:",
                 "v_mov_b32 v188, v184", "v_mov_b32 v190, v23", "v_and_b32 v191, 0x3ff, v23"],
             1: [u("v_max_f32", 188, 0), u("v_add_u32", 190, 0), u("v_add_u32", 191, 0), u("v_max_f32", 188, 1),
                 "s_waitcnt lgkmcnt(1)", "v_readfirstlane_b32 s60, v204", "s_cmp_eq_u32 s60, 0", f"s_cselect_b64 s[64:65], {(1 << LA) - 1}, 0", "s_cselect_b64 exec, 1, 0",
                 f"buffer_atomic_add v199, v21, s[36:39], 0 offen sc0 sc1 {o['tpol']}", "s_mov_b64 exec, -1"],
             2: [u("v_max_f32", 188, 2), u("v_add_u32", 190, 1), u("v_add_u32", 191, 1), u("v_max_f32", 188, 3)],
             3: ["v_mov_b32 v189, v188", u("v_add_u32", 190, 2), u("v_min_u32", 191, 2), "v_permlane16_swap_b32 v188, v189"],
             4: ["s_waitcnt lgkmcnt(0)"] + [self.unp(192 + g, g) for g in range(4)] + ["v_max_f32 v188, v188, v189", "v_sub_f32 v184, v184, v188", "v_mul_f32 v184, s59, v184", "v_exp_f32 v184, v184",
                 "v_readfirstlane_b32 s60, v190", "v_readfirstlane_b32 s63, v191", "v_mul_f32 v186, v186, v184", "s_and_b32 s100, s60, 0x3ff", "s_cmp_lt_u32 s100, 256", "s_cbranch_scc1 .Lrd", ".Lrdok:"],
             5: [u("v_add_f32", 186, 0), "s_getreg_b32 s58, hwreg(HW_REG_XCC_ID, 0, 3)", "s_and_b32 s100, s58, 4", u("v_add_f32", 186, 1),
                 f"s_cmp_lt_u32 s63, {56 if o['cls'] else 1000}", "s_cselect_b32 s100, 64, s100", "v_mov_b32 v190, s55", "v_mov_b32 v23, 4"],
             6: [u("v_add_f32", 186, 2), "s_bfe_u32 s63, s60, 0xa000a", "s_lshr_b32 s60, s60, 20", u("v_add_f32", 186, 3), "s_cmp_gt_u32 s60, s63", "s_cselect_b32 s55, 0x2000, 0",
                 "s_or_b32 s60, s2, s52", "s_mov_b64 exec, 1", f"ds_add_u32 v16, v17 offset:{L_CNT + 8}", "s_cbranch_scc1 .Lnoep", f"buffer_store_dword v190, v16, s[36:39], 0 offen offset:{WS_EPOCH} sc1", ".Lnoep:", "s_mov_b64 exec, -1"],
             7: ["v_mov_b32 v189, v186", "s_lshl_b32 s60, s2, 9", "s_lshr_b32 s63, s60, 2", "v_permlane16_swap_b32 v186, v189", "s_xor_b32 s63, s63, s60", "s_and_b32 s63, s63, 0x2000", "s_mul_i32 s63, s63, 5",
                 "s_xor_b32 s60, s60, s63", "s_xor_b32 s60, s60, s55", f"s_add_u32 s68, s60, {WS_PART}", "s_mov_b32 s54, 0"],
             8: ["v_add_f32 v186, v186, v189", "v_log_f32 v186, v186", "s_lshr_b32 s60, s2, 3", "s_xor_b32 s60, s60, s2", "s_and_b32 s60, s60, 1",
                 f"s_cselect_b32 s41, {ND - o['E9']}, {ND - o['E7']}", "s_cselect_b32 s69, 4, 0", f"s_cselect_b32 s67, {ND}, {ND - o['E8']}", "s_mov_b32 s66, 0"],
             9: ["v_fma_f32 v186, v188, s59, v186", "v_add_f32 v187, v10, v186", "v_sub_f32 v10, 0, v186", "v_exp_f32 v187, -v187"],
             11: ["s_waitcnt vmcnt(10)", "v_readfirstlane_b32 s60, v199", "s_mov_b64 exec, s[64:65]", "s_nop 0", "v_add_u32 v205, s60, v1", f"ds_write_b32 v208, v205 offset:{L_QQ}", "s_mov_b64 exec, -1"],
             12: T[0], 13: T[1], 14: T[2] + [f"v_mul_f32 v{48+i}, v{48+i}, v187" for i in range(4)], 15: T[3] + [f"v_mul_f32 v{52+i}, v{52+i}, v187" for i in range(4)]}
        if o['ts'] and not o['prof']: X[8].append("s_mov_b32 s3, 999")
        def late(src):
            return {12: [self.unp(144 + g, g, src) for g in range(3)] + [f"v_fma_f32 v{144+g}, v{144+g}, s59, v10" for g in range(3)],
                    13: [f"v_exp_f32 v{144+g}, v{144+g}" for g in range(3)], 14: [f"v_cvt_pk_bf16_f32 v{144+g}, v{144+g}, v{144+g}" for g in range(3)],
                    15: sum((self.ands(g, 144 + g) for g in range(3)), [])}
        tick = lambda m: ["v_mov_b32 v22, 1", f"s_mov_b64 exec, {m}", f"buffer_atomic_add v22, v21, s[36:39], 0 offen sc0 sc1 {o['tpol']}", "s_mov_b64 exec, -1"]
        if o['od']:
            X[0] = X[0][3:]
            X[1] = X[1][:4]
            X[4] = X[4][:1] + X[4][5:]
            if SM:
                X[0] = ["v_xor_b32 v187, s55, v187", "v_cmp_ne_u32 vcc, s55, v185", "v_cmp_lt_u32 s[66:67], 7, v187", "s_or_b64 vcc, vcc, s[66:67]", "s_cbranch_vccnz .Lmlchk", ".Lmlok:",
                        "v_cmp_ne_u32 vcc, s55, v190", "s_cbranch_vccnz .Lrd", ".Lrdok:", "v_mov_b32 v188, v184"]
                X[1] = [u("v_max_f32", 188, 0), u("v_add_u32", 191, 0), "s_nop 0", u("v_max_f32", 188, 1), u("v_add_u32", 191, 1)]
                X[2] = [u("v_max_f32", 188, 2), u("v_add_u32", 191, 2), "s_nop 0", u("v_max_f32", 188, 3), u("v_add_u32", 191, 3)]
                X[3] = ["v_mov_b32 v189, v188", "v_readlane_b32 s60, v191, 0", "v_readlane_b32 s63, v191, 16", "v_permlane16_swap_b32 v188, v189"]
                X[4] = X[4][:5] + ["s_add_u32 s60, s60, s63", "s_and_b32 s63, s60, 0x3ff", "v_mul_f32 v186, v186, v184", "s_sub_u32 s100, 256, s63", "s_min_u32 s63, s63, s100"]
            X[8] = X[8][:2] + X[8][9:] + ["s_mov_b32 s46, -1"]
            X[11] = ["s_lshl_b32 s47, s100, 5", "s_and_b32 s47, s47, 128"]
            RK = o['rk']
            if RK:
                X[0] += ["v_and_b32 v189, 15, v191", "v_cmp_ne_u32 s[64:65], 4, v189"]
                X[4] = X[4][:6] + X[4][7:8]
                X[5] = X[5][:2] + ["s_lshr_b32 s100, s58, 2", X[5][3], f"s_mul_i32 s100, s100, {RK}", f"s_and_b32 s63, s54, {RK - 1}", "s_add_u32 s100, s100, s63",
                                   "s_cmp_lg_u64 s[64:65], 0" if o['cls'] else "s_cmp_eq_u32 s2, s2", "s_cselect_b32 s47, 31, s100", f"s_mul_i32 s100, s100, {28 // RK}", "s_cselect_b32 s100, 64, s100"] + X[5][6:]
                X[11] = [f"s_mul_i32 s47, s47, {256 * o.get('rsp', 1)}", f"s_and_b32 s47, s47, 0x1fff", f"s_add_u32 s47, s47, {WS_CNT + 128}"]
            if o['x0']: X[10] = [f"s_cmp_eq_u32 s52, {o['xw']}", f"s_cselect_b32 s41, {ND - o['x0']}, {ND - o['xs7']}"]
            X.update(late(152))
            X[14] += [f"v_mul_f32 v{48+i}, v{48+i}, v187" for i in range(4)]
            X[15] += [f"v_mul_f32 v{52+i}, v{52+i}, v187" for i in range(4)]
            X[o['tk0']] = tick(1) + X.get(o['tk0'], [])
        self.vit([o['wvp']] * 16, X, n=4)
        for i in range(8): e(f"v_mul_f32 v{56+i}, v{56+i}, v187")
        if o['od']:
            NB = o['NB']; TK = o['tk']
            e(f"s_waitcnt vmcnt({16 - o['tk0']})")
            self.label(".Ldloop")
            e("v_readfirstlane_b32 s56, v22")
            e("s_cmp_lt_i32 s46, 0")
            e("s_cbranch_scc1 .Ld0")
            e("s_mov_b32 s56, s46")
            e("s_mov_b32 s46, -1")
            e("s_mov_b32 s44, 1")
            e("s_branch .Ld1")
            self.label(".Ld0")
            e("s_lshl_b32 s60, s56, 1")
            e("s_add_u32 s63, s60, 1")
            e(f"s_cmp_lt_u32 s56, {NB}")
            e("s_cselect_b32 s46, s63, -1")
            e("s_cselect_b32 s44, 0, 1")
            e(f"s_add_u32 s56, s56, {NB}")
            e("s_min_u32 s56, s56, s60")
            e(f"s_cmp_ge_u32 s56, {ND}")
            e("s_cbranch_scc1 .Lfx")
            self.label(".Ld1")
            if o['xs7']:
                assert o['xs7'] <= 32 and 2 * NB <= ND - o['xs7']
                assert not o['x0'] or (o['xs7'] <= 24 and NB == 0)
                e(f"s_cmp_lt_u32 s56, {ND - o['xs7']}" if not o['x0'] else "s_cmp_lt_u32 s56, s41")
                e("s_cselect_b32 s44, s44, 0")
                e("s_cselect_b32 s65, 1, 0x1000")
            for s_ in ["s_lshr_b32 s57, s56, 1", "s_lshl_b32 s57, s57, 3", "s_and_b32 s63, s56, 1", "s_add_u32 s57, s57, s63", "s_lshl_b32 s57, s57, 12", "s_add_u32 s57, s57, s43", "s_and_b32 s57, s57, 0x7fffff"]: e(s_)
            X = late(154)
            X[12] = [f"s_waitcnt vmcnt({12 if TK > 0 else 13})"] + X[12]
            X[15] += ["v_mov_b32 v153, v155"]
            X[0] = ["s_and_b32 s98, s56, 31", "s_lshl_b32 s98, s98, 7", "s_andn2_b32 s63, s56, 31", "s_add_u32 s98, s98, s63", "s_lshl_b32 s98, s98, 1",
                    "buffer_load_dwordx2 v[154:155], v20, s[36:39], s98 offen " + self.P("scL")]
            X[TK] = X.get(TK, []) + [x.replace("v22, 1", "v22, s65") if o['xs7'] else x for x in tick("s[44:45]")]
            self.nods = True
            self.vit(o['wdl'] or [WD] * 16, X, n=4)
            e(f"s_waitcnt vmcnt({16 - TK})")
            e("s_branch .Ldloop")
            self.rare()
            self.label(".Lfx")
            e("s_mov_b64 exec, 1")
            e(f"ds_cmpst_rtn_b32 v18, v16, v23, v16 offset:{L_CNT + 8}")
            e("s_mov_b64 exec, -1")
            e(self.unp(144, 3))
            e("v_fma_f32 v144, v144, s59, v10")
            e("v_exp_f32 v144, v144")
            e("s_mov_b32 s60, s68")
            e("v_cvt_pk_bf16_f32 v144, v144, v144")
            for s_ in self.ands(3, 144): e(s_)
            e("s_waitcnt lgkmcnt(0)")
            e("v_readfirstlane_b32 s97, v18")
            e("s_xor_b32 s97, s97, 4")
            e("s_cselect_b64 exec, 0, 1")
            if o['rk']: e(f"buffer_atomic_add v26, v16, s[36:39], s47 offen sc0 sc1 {o.get('rpol', '')}")
            else: e(f"buffer_atomic_add v26, v16, s[48:51], {'s47' if o['r2'] else 's100'} offen offset:64 sc0 sc1")
            e("s_mov_b64 exec, -1")
            for g in range(3):
                e(f"s_waitcnt vmcnt({13 - 4 * g})")
                for j in range(4): self.mfma(4 * g + j)
            for j in range(4):
                e(f"s_waitcnt vmcnt({4 - j})")
                self.mfma(12 + j)
            self.label(".Lnr")
            return
        e("s_mov_b32 s57, s96")
        e("s_cmp_ge_u32 s56, s41")
        e("s_cbranch_scc1 .Lhd")
        for sx, W in (("", WD), ("w", o['wd2'])):
          for r in range(4):
            p = (r + 2) & 3
            self.label(f".Ldu{r}{sx}")
            e(f"v_mov_b32 v{196+r}, s65")
            e(f"v_mov_b32 v{200+r}, s42")
            e("s_mov_b64 exec, s[44:45]")
            e(f"buffer_atomic_add v{196+r}, v21, s[36:39], 0 offen sc0 sc1 {o['tpol']}")
            e("s_mov_b64 exec, -1")
            e(f"buffer_load_short_d16_hi v{192+r}, v20, s[36:39], s98 offen " + self.P("scL"))
            T = self.take(r)
            T[0] = ["s_waitcnt vmcnt(13)", "s_mov_b64 exec, 1", f"ds_write_b32 v{200+p}, v{196+p}"] + T[0]
            for j in range(4):
                self.mfma(4 * r + j)
                for s in T[j]: e(s)
                self.load(4 * r + j, W, 2)
            if r == 3: self.plog()
            e("s_mov_b32 s57, s96")
            e("s_cmp_ge_u32 s56, s41")
            e("s_cbranch_scc1 .Lhd")
          e(f"s_branch .Ldu0{sx}")
        self.rare()
        self.label(".Lhd")
        e("s_cmp_eq_u32 s69, 3")
        e("s_cbranch_scc1 .Lsl")
        e(f"s_cmp_ge_u32 s56, {ND}")
        e("s_cbranch_scc1 .Lsl")
        e("s_cmp_eq_u32 s69, 4")
        e("s_cbranch_scc1 .Lh4")
        e("s_cmp_eq_u32 s69, 0")
        e("s_cbranch_scc1 .Lh0")
        e("s_add_u32 s69, s69, 1")
        e("s_cmp_eq_u32 s69, 2")
        e("s_cbranch_scc1 .Lback")
        e("s_waitcnt vmcnt(12)")
        e("v_readfirstlane_b32 s60, v26")
        e("s_cmp_eq_u32 s100, 64")
        e("s_cselect_b32 s63, 112, 56")
        e("s_cmp_lt_u32 s60, s63")
        e("s_cselect_b64 s[46:47], 0, 1")
        e("s_cselect_b32 s69, 3, 4")
        e("s_branch .Lback")
        self.label(".Lh0")
        e("s_mov_b64 exec, 1")
        e(f"ds_or_rtn_b32 v18, v16, v211 offset:{L_CNT + 8}")
        e("s_mov_b32 s69, 4")
        e("s_waitcnt lgkmcnt(0)")
        e("v_readfirstlane_b32 s60, v18")
        e("s_bitcmp1_b32 s60, 8")
        e("s_cbranch_scc1 .Lh1")
        e("buffer_atomic_add v26, v16, s[48:51], s100 offen offset:64 sc0 sc1")
        e("s_mov_b64 exec, -1")
        e("s_mov_b32 s97, 0")
        e("s_mov_b32 s69, 1")
        e("s_mov_b32 s41, 0")
        e("s_branch .Lback")
        self.label(".Lh1")
        e("s_mov_b64 exec, -1")
        self.label(".Lh4")
        e(f"s_cmp_ge_u32 s56, {ND - o['E9']}")
        e(f"s_cselect_b32 s41, {ND}, {ND - o['E9']}")
        e("s_cselect_b32 s66, 1, 0")
        self.label(".Lback")
        e("s_cmp_lg_u32 s66, 0")
        e("s_cbranch_scc1 .Lbackw")
        for sx in ("", "w"):
            if sx: self.label(".Lbackw")
            for r in range(3):
                e(f"s_cmp_eq_u32 s99, {r}")
                e(f"s_cbranch_scc1 .Ldu{r}{sx}")
            e(f"s_branch .Ldu3{sx}")
        self.label(".Lsl")
        e("s_waitcnt vmcnt(5)")
        e("s_mov_b64 exec, 1")
        for r in range(4): e(f"ds_write_b32 v{200+r}, v{196+r}")
        e("s_mov_b64 exec, -1")
        e("s_cmp_eq_u32 s69, 3")
        e("s_cbranch_scc1 .Lex")
        e(f"v_mov_b32 v209, {ND}")
        self.poll_begin()
        self.label(".Lsl1")
        e("v_add_u32 v205, s64, v208")
        e(f"ds_read_b32 v205, v205 offset:{L_QQ}")
        e("v_mov_b32 v210, s42")
        e("s_waitcnt lgkmcnt(0)")
        e("v_readfirstlane_b32 s56, v205")
        e(f"v_cmp_eq_u32 vcc, {hex(EMPTY)}, v205")
        e(f"s_cmp_lt_u32 s56, {ND}")
        e("s_cbranch_scc1 .Lsl3")
        e("s_andn2_b64 exec, 1, vcc")
        e("ds_write_b32 v210, v209")
        e("s_mov_b64 exec, -1")
        e(f"s_and_b32 s60, vcc_lo, {(1 << LA) - 1}")
        e("s_cbranch_scc0 .Lsl2")
        self.poll_again(".Lsl1")
        e("s_branch .Lex")
        self.label(".Lsl2")
        e("v_cmp_gt_u32 vcc, v209, v205")
        e(f"s_and_b32 s60, vcc_lo, {(1 << LA) - 1}")
        e("s_cbranch_scc0 .Lex")
        e("s_mov_b64 exec, 1")
        e(f"ds_add_rtn_u32 v204, v16, v17 offset:{L_QH}")
        e("s_mov_b64 exec, -1")
        e("s_waitcnt lgkmcnt(0)")
        e("v_readfirstlane_b32 s58, v204")
        e("s_andn2_b32 s64, s58, 3")
        for s in self.masks(): e(s)
        e("s_branch .Lsl1")
        self.label(".Lsl3")
        for s in self.addr(): e(s)
        e("s_mov_b32 s57, s96")
        e("s_branch .Lback")
        self.label(".Lex")
        e("s_mov_b64 exec, 1")
        e(f"ds_cmpst_rtn_b32 v18, v16, v23, v211 offset:{L_CNT + 8}")
        e("s_mov_b64 exec, -1")
        for r in range(3):
            e(f"s_cmp_eq_u32 s99, {r}")
            e(f"s_cbranch_scc1 .Ldx{r}")
        for n in (3, 0, 1, 2):
            self.label(f".Ldx{n}")
            q = [(n + k) & 3 for k in range(4)]
            for k in (1, 2): e(f"v_fma_f32 v{144+k}, v{192+q[k]}, s59, v10")
            for k in (1, 2): e(f"v_exp_f32 v{144+k}, v{144+k}")
            for j in range(4): self.mfma(4 * q[0] + j)
            for k in (1, 2): e(f"v_cvt_pk_bf16_f32 v{144+k}, v{144+k}, v{144+k}")
            for k in (1, 2):
                for s in self.ands(q[k], 144 + k): e(s)
            e("s_waitcnt lgkmcnt(0)")
            e("v_readfirstlane_b32 s60, v18")
            e("s_cmp_eq_u32 s60, 4")
            e("s_cselect_b32 s97, 0, s97")
            e("s_cselect_b64 exec, 1, 0")
            e("buffer_atomic_add v26, v16, s[48:51], s100 offen offset:64 sc0 sc1")
            e("s_mov_b64 exec, -1")
            for j in range(4): self.mfma(4 * q[1] + j)
            e("s_waitcnt vmcnt(5)")
            e(f"v_fma_f32 v144, v{192+q[3]}, s59, v10")
            e("v_exp_f32 v144, v144")
            for j in range(4): self.mfma(4 * q[2] + j)
            e("v_cvt_pk_bf16_f32 v144, v144, v144")
            for s in self.ands(q[3], 144): e(s)
            e("s_mov_b32 s60, s68")
            e("s_mov_b32 s99, 0")
            for j in range(4):
                e(f"s_waitcnt vmcnt({4 - j})")
                self.mfma(4 * q[3] + j)
            if n != 2: e("s_branch .Lrt")
        self.label(".Lnr")

    def build(self):
        T = super().build().split("\n")
        a = T.index(";@S7A"); b = T.index(".Lrt:")
        self.L = []
        self.stream()
        T = T[:a] + self.L + T[b:]
        k = T.index(f"    ds_write_b32 v15, v15 offset:{L_QH}")
        T.insert(k + 1, f"    ds_write_b32 v15, v15 offset:{L_QF}")
        if self.o['rk']:
            Q = 28 // self.o['rk']
            k = T.index("    s_mul_i32 s56, s100, 7")
            assert T[k+1:k+5] == ["    s_cmp_lt_u32 s69, 28", "    s_cselect_b32 s57, 0, 28", "    s_add_u32 s56, s56, s57", "    s_cmp_lt_u32 s69, 56"]
            T[k:k+5] = [f"    s_cmp_lt_u32 s69, {Q}", f"    s_cselect_b32 s57, 0, {56 - Q}", "    s_add_u32 s56, s100, s57", f"    s_cmp_lt_u32 s69, {2 * Q}"]
        if self.o['nb']:
            T.insert(T.index(f"    ds_write_b32 v15, v15 offset:{L_QH}"), f"    ds_write_b32 v15, v15 offset:{L_CNT + 4}")
            k = T.index("    v_mov_b32 v18, s69")
            T[k] = "    s_or_b32 s56, s69, 0x1000\n    v_mov_b32 v18, s56"
            k = T.index(".Lrolewait:")
            assert T[k+2] == "    s_barrier" and T[k+5] == "    v_readfirstlane_b32 s69, v18"
            T[k+2:k+6] = [f"    s_mov_b32 s62, {self.o['spin']}", ".Lrw1:", T[k+3], "    s_sub_u32 s62, s62, 1", "    s_cbranch_scc1 .Lfin", T[k+4], T[k+5], "    s_cmp_eq_u32 s69, 0", "    s_cbranch_scc1 .Lrw1", "    s_and_b32 s69, s69, 0xfff"]
            k = T.index(".Ldry:")
            assert T[k+1] == "    s_cmp_gt_u32 s63, 1"
            T[k+1] = f"    s_cmp_gt_u32 s63, {self.o['dmax']}"
        if self.o['dry7']:
            k = T.index(".Lrdone:")
            assert T[k+3] == "    s_branch .Lrolewait" and T[k+4] == ".Ldry:" and T[k+6] == "    s_cbranch_scc1 .Lrolewait"
            T[k+3] = "    s_branch .Ldry1"
            T.insert(k + 7, ".Ldry1:")
            if self.o['dry7'] == 1: T[k+5:k+7] = ["    s_branch .Lrolewait"]
        return "\n".join(T)
```
